```python
import torch

def _softmax(x, axis=-1):
    return torch.softmax(x, dim=axis)
def _gelu(x):
    return torch.nn.functional.gelu(x, approximate="tanh")
def _silu(x):
    return torch.nn.functional.silu(x)
def _sigmoid(x):
    return torch.sigmoid(x)
def _layernorm(x, axis=-1, eps=1e-5):
    m = x.mean(dim=axis, keepdim=True)
    v = x.var(dim=axis, keepdim=True, unbiased=False)
    return (x - m) / torch.sqrt(v + eps)
def _scatter_add(tgt, idx, src, axis=0):
    return tgt.clone().index_add_(axis, idx, src)
def _segment_sum(src, seg, n):
    out = torch.zeros((n,) + src.shape[1:], dtype=src.dtype)
    return out.index_add_(0, seg, src)
def _pad(x, pw):
    flat = tuple(v for pair in reversed(pw) for v in pair)
    return torch.nn.functional.pad(x, flat)

kernel_name = 'interleave_layers__ssm_conv_h3__softmax_full_mha__prompt'

def setup_inputs():

    _w = (lambda a: (lambda t: t.to(torch.bfloat16) if t.is_floating_point() else t)(torch.as_tensor(a)))
    def _A_setup():
        B, S, D = 1, 2048, 576
        ks = 4
        return {
            "q": _w((lambda *s: torch.randn(*s, dtype=torch.bfloat16) * 0.05)(B, S, D)),
            "k": _w((lambda *s: torch.randn(*s, dtype=torch.bfloat16) * 0.4)(B, S, D)),
            "v": _w((lambda *s: torch.randn(*s, dtype=torch.bfloat16) * 0.4)(B, S, D)),
            "shift_k": _w((lambda *s: torch.randn(*s, dtype=torch.bfloat16) * 0.4)(D, ks) * 0.5),
            "ssm_k": _w((lambda *s: torch.randn(*s, dtype=torch.bfloat16) * 0.4)(D, S) * (1.0 / S ** 0.5)),
            "ssm_D": _w((lambda *s: torch.randn(*s, dtype=torch.bfloat16) * 0.4)(D)),
        }
    _A_in = _A_setup()

    def _B_setup():
        B, S, D = 1, 2048, 576
        return {
            "x": _w((lambda *s: torch.randn(*s, dtype=torch.bfloat16) * 0.05)(B, S, D)),
            "wqkv": _w((lambda *s: torch.randn(*s, dtype=torch.bfloat16) * 0.05)(D, 3 * D)),
            "wo": _w((lambda *s: torch.randn(*s, dtype=torch.bfloat16) * 0.05)(D, D)),
        }
    _B_in = _B_setup()

    return {
        "A_q": _A_in["q"],
        "A_k": _A_in["k"],
        "A_v": _A_in["v"],
        "A_shift_k": _A_in["shift_k"],
        "A_ssm_k": _A_in["ssm_k"],
        "A_ssm_D": _A_in["ssm_D"],
        "B_x": _B_in["x"],
        "B_wqkv": _B_in["wqkv"],
        "B_wo": _B_in["wo"],
    }

def reference(A_q, A_k, A_v, A_shift_k, A_ssm_k, A_ssm_D, B_x, B_wqkv, B_wo):
    def _A_ref(q, k, v, shift_k, ssm_k, ssm_D):
        B, S, D = q.shape
        ks = shift_k.shape[-1]
        k_pad = _pad(k, ((0, 0), (ks - 1, 0), (0, 0)))
        k_shift = torch.zeros_like(k)
        for t in range(ks):
            k_shift = k_shift + k_pad[:, t:t + S, :] * shift_k[:, ks - 1 - t][None, None, :]
        kv = k_shift * v
        L = 2 * S
        kv_pad = _pad(kv, ((0, 0), (0, S), (0, 0)))
        kf_pad = _pad(ssm_k, ((0, 0), (0, S)))
        kv_f = (lambda x, axes=(-2,-1): torch.fft.rfft2(x.float(), dim=axes))(kv_pad[:, None, :, :], axes=(1, 2))
        kf_f = (lambda x, axes=(-2,-1): torch.fft.rfft2(x.float(), dim=axes))(kf_pad[:, None, :], axes=(1, 2))
        kf_f = (lambda x, *d: x.permute(*d))(kf_f, 1, 2, 0)
        y_f = kv_f * kf_f[None, :, :, :]
        y = (lambda x, s, axes=(-2,-1): torch.fft.irfft2(x, s=s, dim=axes).to(torch.bfloat16))(y_f, (1, L), axes=(1, 2))[:, 0, :S, :]
        y = y + kv * ssm_D[None, None, :]
        return q * y

    def _B_ref(x, wqkv, wo):
        B, S, D = x.shape
        H = 32; Dh = D // H
        qkv = (lambda x, *d: x.permute(*d))((x @ wqkv).reshape(B, S, 3, H, Dh), 2, 0, 3, 1, 4)
        q, k, v = qkv[0], qkv[1], qkv[2]
        scale = Dh ** -0.5
        scores = torch.einsum("bhqd,bhkd->bhqk", q, k) * scale
        p = _softmax(scores, axis=-1)
        o = torch.einsum("bhqk,bhkd->bhqd", p, v)
        return (lambda x, *d: x.permute(*d))(o, 0, 2, 1, 3).reshape(B, S, D) @ wo

    x = A_q
    x = x + _A_ref(_layernorm(x, axis=-1), A_k, A_v, A_shift_k, A_ssm_k, A_ssm_D)
    x = x + _B_ref(_layernorm(x, axis=-1), B_wqkv, B_wo)
    x = x + _A_ref(_layernorm(x, axis=-1), A_k, A_v, A_shift_k, A_ssm_k, A_ssm_D)
    x = x + _B_ref(_layernorm(x, axis=-1), B_wqkv, B_wo)
    return x
```

```python
import re

TRANS = ("v_exp_", "v_log_", "v_rcp_", "v_rsq_", "v_sqrt_", "v_sin_", "v_cos_")
MFMA_PASSES = {
    "v_mfma_f32_32x32x16_bf16": 8, "v_mfma_f32_16x16x32_bf16": 4,
    "v_mfma_f32_32x32x8bf16_1k": 8, "v_mfma_f32_32x32x4bf16_1k": 16,
    "v_smfmac_f32_32x32x32_bf16": 8, "v_smfmac_f32_16x16x64_bf16": 4,
}
RW_DST = ("v_fmac_", "v_dot2c_", "v_pk_fmac", "v_smfmac", "v_mac_", "v_writelane")

_reg = re.compile(r"^(-?)(?:abs\()?([vsa])(\d+)\)?$")
_rng = re.compile(r"^(-?)(?:abs\()?([vsa])\[(\d+):(\d+)\]\)?$")


def regs_of(tok):
    tok = tok.strip()
    m = _reg.match(tok)
    if m:
        return [(m.group(2), int(m.group(3)))]
    m = _rng.match(tok)
    if m:
        return [(m.group(2), i) for i in range(int(m.group(3)), int(m.group(4)) + 1)]
    if tok == "vcc":
        return [("s", "vcc_lo"), ("s", "vcc_hi")]
    if tok in ("vcc_lo", "vcc_hi"):
        return [("s", tok)]
    if tok == "exec":
        return [("s", "exec_lo"), ("s", "exec_hi")]
    if tok in ("exec_lo", "exec_hi"):
        return [("s", tok)]
    if tok == "m0":
        return [("s", "m0")]
    return []


class I:
    def __init__(self, text):
        self.text = text
        t = text.split(";")[0].strip()
        self.label = t.endswith(":")
        self.directive = t.startswith(".")
        self.empty = (t == "")
        self.op = ""
        self.dst = []
        self.src = []
        self.kind = "none"
        if self.label or self.directive or self.empty:
            return
        parts = t.split(None, 1)
        op = self.op = parts[0]
        rest = parts[1] if len(parts) > 1 else ""
        ops = [x.strip() for x in rest.split(",")] if rest else []
        mods = ""
        if ops:
            last = ops[-1].split(None, 1)
            ops[-1] = last[0]
            mods = last[1] if len(last) > 1 else ""
        clean = []
        for o in ops:
            o2 = o.split(None, 1)
            clean.append(o2[0] if o2 else o)
            if len(o2) > 1:
                mods += " " + o2[1]
        ops = clean
        mods += " " + rest
        self.mods = mods
        R = [regs_of(o) for o in ops]
        flat = lambda L: [r for l in L for r in l]
        if op.startswith("v_mfma") or op.startswith("v_smfmac"):
            self.kind = "mfma"
            self.passes = MFMA_PASSES[op]
            self.dst = R[0]
            if op.startswith("v_smfmac"):
                self.srcC = R[0]
                self.srcAB = R[1] + R[2] + R[3]
            else:
                self.srcC = R[3]
                self.srcAB = R[1] + R[2]
            self.src = self.srcC + self.srcAB
        elif op.startswith("v_"):
            self.kind = "valu"
            self.trans = op.startswith(TRANS)
            self.dpp = ("_dpp" in op) or any(k in mods for k in ("row_shr", "row_shl", "row_ror", "quad_perm", "row_bcast", "row_mirror", "row_half_mirror", "wave_sh"))
            self.sdwa = "_sdwa" in op
            self.permlane = op.startswith("v_permlane")
            self.readlane = op.startswith(("v_readlane", "v_readfirstlane"))
            if op == "v_nop":
                pass
            elif self.permlane or op.startswith("v_swap"):
                self.dst = R[0] + R[1]
                self.src = R[0] + R[1]
            elif op.startswith("v_cmpx"):
                self.dst = R[0] + regs_of("exec")
                self.src = flat(R[1:])
            elif op.startswith(("v_add_co", "v_sub_co", "v_subrev_co", "v_addc_co", "v_subb_co", "v_div_scale", "v_mad_u64")):
                self.dst = R[0] + R[1]
                self.src = flat(R[2:])
            else:
                self.dst = R[0]
                self.src = flat(R[1:])
                if op.startswith(RW_DST) or "UNUSED_PRESERVE" in mods or (self.dpp and "bound_ctrl" not in mods):
                    self.src = self.src + R[0]
        elif op.startswith(("buffer_", "global_")):
            self.kind = "vmem"
            self.lds = bool(re.search(r"\blds\b", mods)) or "load_lds" in op
            if op.startswith(("buffer_wbl2", "buffer_inv")):
                self.load = False
                self.store = False
                self.wide = False
                return
            self.load = "_load" in op
            self.store = "_store" in op or "atomic" in op
            self.wide = self.store and ("x4" in op or "x3" in op)
            if self.lds:
                self.src = flat(R) + regs_of("m0")
            elif self.load:
                self.dst = R[0]
                self.src = flat(R[1:])
                if "d16" in op:
                    self.src += R[0]
            else:
                self.src = flat(R)
                self.data = R[0] if op.startswith("buffer_") else R[1]
                if "atomic" in op and re.search(r"\bsc0\b", mods):
                    self.dst = R[0]
                    self.load = True
        elif op.startswith("ds_"):
            self.kind = "ds"
            if op.startswith(("ds_read", "ds_bpermute", "ds_permute", "ds_swizzle")) or "_rtn" in op:
                self.dst = R[0]
                self.src = flat(R[1:])
                if "d16" in op:
                    self.src += R[0]
            else:
                self.src = flat(R)
        elif op.startswith(("s_load", "s_buffer_load", "s_memtime", "s_memrealtime")):
            self.kind = "smem"
            self.dst = R[0]
            self.src = flat(R[1:])
        elif op == "s_waitcnt":
            self.kind = "wait"
            m = re.search(r"vmcnt\((\d+)\)", rest)
            self.vm = int(m.group(1)) if m else None
            m = re.search(r"lgkmcnt\((\d+)\)", rest)
            self.lgkm = int(m.group(1)) if m else None
        elif op == "s_nop":
            self.kind = "nop"
            self.n = int(ops[0], 0) + 1
        elif op.startswith(("s_cbranch", "s_branch", "s_barrier", "s_endpgm", "s_sleep", "s_setpc", "s_call", "s_setprio", "s_sethalt")):
            self.kind = "ctl"
        elif op.startswith("s_cmp") or op.startswith("s_bitcmp"):
            self.kind = "salu"
            self.src = flat(R)
        elif op.startswith("s_"):
            self.kind = "salu"
            self.dst = R[0]
            self.src = flat(R[1:])
            if "saveexec" in op:
                self.dst = self.dst + regs_of("exec")
                self.src = self.src + regs_of("exec")
            if op.startswith(("s_addk", "s_mulk", "s_cmov", "s_bitset")):
                self.src = self.src + R[0]
        else:
            raise ValueError("unknown instruction: " + text)

    def states(self):
        if self.kind == "none":
            return 0
        if self.kind == "nop":
            return self.n
        return 1


def need(p, c):
    n = 0
    pd, cs, cd = set(p.dst), set(c.src), set(c.dst)
    if p.kind == "valu":
        pv = {r for r in pd if r[0] in "va"}
        ps = {r for r in pd if r[0] == "s"}
        if c.kind == "mfma" and pv & cs:
            n = max(n, 2)
        if c.kind == "mfma" and ("s", "exec_lo") in ps:
            n = max(n, 4)
        if c.kind == "valu":
            if c.dpp and pv & cs:
                n = max(n, 2)
            if c.permlane and pv & cs:
                n = max(n, 2)
            if c.readlane and pv & cs:
                n = max(n, 1)
            if ps & cs:
                n = max(n, 4 if (c.readlane or c.op.startswith("v_writelane") or c.op.startswith("v_div_fmas")) else 2)
            if c.op.startswith("v_cndmask") and len(c.src) and ps & set(regs_of("vcc")) and "vcc" in c.text:
                n = max(n, 2)
            if p.trans and not c.trans and pv & cs:
                n = max(n, 1)
            if (p.sdwa or "op_sel" in p.mods) and not p.op.startswith("v_pk_") and pv & (cs | cd):
                n = max(n, 1)
            if ("s", "exec_lo") in ps and (c.dpp or c.permlane or c.readlane):
                n = max(n, 5)
        if p.op.startswith("v_dot") and c.kind in ("valu", "mfma", "vmem", "ds") and pv & (cs | cd):
            if not (c.op == p.op and not (pv & set(c.src[:-len(c.dst)] if c.dst else c.src))):
                n = max(n, 3)
        if c.kind == "vmem" and ps & cs:
            n = max(n, 5)
        if c.kind == "salu" and ps & cs:
            n = max(n, 1)
    elif p.kind == "salu":
        if ("s", "m0") in pd and c.kind == "vmem" and c.lds:
            n = max(n, 1)
    elif p.kind == "vmem":
        if p.wide and set(p.data) & cd:
            n = max(n, 2 if c.kind in ("valu", "mfma") else 1)
    elif p.kind == "mfma":
        P = p.passes
        if c.kind == "mfma":
            cC = set(c.srcC)
            if cC & pd:
                if c.srcC == p.dst and c.passes == P:
                    n = max(n, 2 if P == 2 else 0)
                else:
                    n = max(n, P + 2)
            if set(c.srcAB) & pd:
                n = max(n, P + 4)
            if cd & pd and not (cC & pd):
                if c.passes < P:
                    n = max(n, P + 2)
        elif c.kind in ("valu", "vmem", "ds"):
            if pd & (cs | cd):
                n = max(n, P + 4)
            if c.kind == "valu" and set(p.srcC) & cd:
                n = max(n, P - 1)
    return n


class Asm:
    def __init__(self):
        self.lines = []

    def __call__(self, text):
        for l in text.split("\n"):
            if l.strip():
                self.lines.append(l.strip())
        return self

    def text(self):
        out = []
        for l in self.lines:
            t = l.split(";")[0].strip()
            if t.endswith(":") or t.startswith("."):
                out.append(l)
            else:
                out.append("    " + l)
        return "\n".join(out) + "\n"


WINDOW = 24


def fix_hazards(lines, verbose=False, tag=""):
    out = []
    ins = []
    added = 0
    for l in lines:
        c = I(l)
        if c.kind != "none":
            req = 0
            dist = 0
            for p in reversed(ins):
                if dist >= WINDOW:
                    break
                if p.kind != "none":
                    nd = need(p, c)
                    if nd > dist:
                        req = max(req, nd - dist)
                    dist += p.states()
            if req:
                added += req
                if verbose:
                    print(f"[{tag}] +{req} nop before: {l}")
                r = req
                while r > 0:
                    k = min(r, 16)
                    nl = f"s_nop {k-1}"
                    out.append(nl)
                    ins.append(I(nl))
                    r -= k
        out.append(l)
        ins.append(c)
    labels = {i.text.split(";")[0].strip()[:-1]: n for n, i in enumerate(ins) if i.label}
    for n, b in enumerate(ins):
        if b.kind == "ctl" and b.op.startswith(("s_cbranch", "s_branch")):
            tgt = b.text.split(";")[0].split()[1]
            if tgt not in labels:
                continue
            tail = [p for p in ins[max(0, n - 3 * WINDOW):n + 1] if p.kind != "none"]
            d0 = 0
            head = [c for c in ins[labels[tgt]:labels[tgt] + 3 * WINDOW] if c.kind != "none"]
            for c in head:
                if d0 >= WINDOW:
                    break
                dist = d0
                for p in reversed(tail):
                    if dist >= WINDOW:
                        break
                    nd = need(p, c)
                    if nd > dist:
                        raise RuntimeError(f"[{tag}] hazard across branch {b.text!r}: {p.text!r} -> {c.text!r} needs {nd}, has {dist}")
                    dist += p.states()
                d0 += c.states()
                if c.kind == "ctl" and c.op in ("s_branch", "s_endpgm"):
                    break
    return out, added


def check_waits(lines, tag="", path=None):
    vm = []
    lg = []
    errs = []
    for l in lines:
        c = I(l)
        if c.kind == "none":
            if c.text.strip().startswith(".reset_waits"):
                vm.clear(); lg.clear()
            continue
        if c.kind == "wait":
            if c.vm is not None:
                while len(vm) > c.vm:
                    vm.pop(0)
            if c.lgkm is not None:
                if any(k == "smem" for k, _ in lg):
                    if c.lgkm == 0:
                        lg.clear()
                else:
                    while len(lg) > c.lgkm:
                        lg.pop(0)
            continue
        touched = set(c.src) | set(c.dst)
        for d in vm:
            if d & touched and not (c.kind == "vmem" and c.load and not (d & set(c.src))):
                errs.append(f"[{tag}] vmem result used before wait: {l}")
        for k, d in lg:
            if d & touched and not (c.kind == "ds" and k == "ds" and not (d & set(c.src))):
                errs.append(f"[{tag}] lgkm result used before wait: {l}")
        if c.kind == "vmem":
            vm.append(set(c.dst))
            if len(vm) > 63:
                errs.append(f"[{tag}] more than 63 vmem outstanding at {l}")
        elif c.kind == "ds":
            lg.append(("ds", set(c.dst)))
        elif c.kind == "smem":
            lg.append(("smem", set(c.dst)))
    return errs
```

```python
import sys
from asmlib import Asm, fix_hazards, check_waits

NAME = "interleave_layers__ssm_conv_h3__softmax_full_mha__prompt"
S, D = 2048, 576
NB = S * D * 2

W_NONCE = 0
W_F1 = 0x1000
W_F3 = 0x5000
W_F4 = 0x8000
W_F5 = 0x12000
W_F6 = 0x52000
W_F8 = 0x5A000
W_G7 = 0x70000
W_ST0 = 0xB0000
W_TS = 0xC0000
W_U = 0x200000
W_WQ = 0x500000
W_WO = 0x700000
W_X1 = 0x800000
W_Y = 0xB00000
W_X3 = 0xE00000
W_KV = 0x1100000
W_OM = 0x1B00000
W_OR = 0x1F00000
W_SIZE = 0x2000000
WQ_B, WO_B, KV_B = 64512, 82944, 19456
KV_V, KV_R = 8192, 18432

L_HC, HC_B = 0, 4160
L_U, U_B = 66560, 4608
L_WO = 0
L_OWN = 0
L_WQ = 84992
L_RING = 84992
L_CS = 149504
L_ST = 149760
L_QR = 151808
L_END = 152832
LDS_BYTES = 152832

sWS = "s[4:7]"
sA, sB, sC, sD_ = "s[8:11]", "s[12:15]", "s[16:19]", "s[20:23]"
sX, sJ, sW, sLayer = "s24", "s25", "s26", "s27"
sTag = "s[28:29]"
sP = 32
PTR = dict(q=32, k=34, v=36, sk=38, h=40, dd=42, bx=44, wqkv=46, wo=48, out=50, dbg=52, ws=54)
SPIN_MAX = 400000

C_SCALE = 18 ** -0.5 * 1.4426950408889634


def f32hex(x):
    import struct
    return "0x%08x" % struct.unpack("<I", struct.pack("<f", x))[0]


def vr(a, n):
    return f"v[{a}:{a+n-1}]" if n > 1 else f"v{a}"


class G:
    def __init__(self, stop=None, ts=False):
        self.a = Asm()
        self.stop = stop
        self.ts = ts
        self.nlab = 0

    def lab(self, p="L"):
        self.nlab += 1
        return f"{p}_{self.nlab}"

    def srd(self, s, ptr, nbytes):
        b = int(s[2:s.index(":")])
        p = PTR[ptr]
        self.a(f"s_mov_b32 s{b}, s{p}\ns_mov_b32 s{b+1}, s{p+1}\ns_mov_b32 s{b+2}, {nbytes}\ns_mov_b32 s{b+3}, 0x20000")

    def stamp(self, i):
        if not self.ts:
            return
        self.a(f"s_memrealtime s[98:99]\ns_lshl_b32 s97, {sLayer}, 4\ns_add_u32 m0, s97, {i}\ns_waitcnt lgkmcnt(0)\nv_writelane_b32 v255, s98, m0")

    def flag_store(self, soff, vtmp):
        self.a(f"""
        v_mov_b32 v{vtmp}, s28
        v_mov_b32 v{vtmp+1}, s29
        v_mov_b32 v{vtmp+2}, 0
        s_mov_b64 exec, 1
        buffer_store_dwordx2 {vr(vtmp,2)}, v{vtmp+2}, {sWS}, {soff} offen sc1
        s_mov_b64 exec, -1
        """)

    def poll(self, loads, vt, code):
        a = self.a
        L, Ld = self.lab("Lpoll"), self.lab("Lpolld")
        a(f"s_mov_b32 s96, {SPIN_MAX}")
        a(f"{L}:")
        for i, (va, so, im) in enumerate(loads):
            a(f"buffer_load_dwordx2 {vr(vt+2*i,2)}, v{va}, {sWS}, {so} offen offset:{im} sc1")
        a("s_waitcnt vmcnt(0)")
        for i in range(len(loads)):
            if i == 0:
                a(f"v_cmp_eq_u64 vcc, {sTag}, {vr(vt,2)}")
            else:
                a(f"v_cmp_eq_u64 s[94:95], {sTag}, {vr(vt+2*i,2)}\ns_and_b64 vcc, vcc, s[94:95]")
        a(f"""
        s_cmp_eq_u64 vcc, exec
        s_cbranch_scc1 {Ld}
        s_sub_u32 s96, s96, 1
        s_cmp_lg_u32 s96, 0
        s_cbranch_scc1 {L}
        """)
        self.timeout_mark(code, vt)
        a(f"{Ld}:")

    def timeout_mark(self, code, vt):
        self.a(f"""
        v_mov_b32 v{vt}, {code}
        v_mov_b32 v{vt+1}, 0
        global_store_dword v{vt+1}, v{vt}, s[{PTR['dbg']}:{PTR['dbg']+1}]
        s_waitcnt vmcnt(0)
        """)

    def finish_if(self, name):
        if self.stop == name:
            self.a("s_branch L_end")

    def prologue(self):
        a = self.a
        a(f"""
        s_cmp_ge_u32 s2, 256
        s_cbranch_scc1 L_exit
        s_load_dwordx16 s[32:47], s[0:1], 0
        s_load_dwordx8 s[48:55], s[0:1], 64
        v_lshrrev_b32 v1, 6, v0
        v_and_b32 v2, 63, v0
        s_and_b32 {sX}, s2, 7
        v_readfirstlane_b32 {sW}, v1
        s_lshr_b32 {sJ}, s2, 3
        s_mov_b32 {sLayer}, 0
        s_waitcnt lgkmcnt(0)
        s_load_dwordx2 {sTag}, s[54:55], {W_NONCE}
        """)
        self.srd(sWS, "ws", W_SIZE)
        if self.ts:
            a("v_mov_b32 v255, 0")

    def prep(self):
        a = self.a
        self.stamp(0)
        a(f"s_cmp_ge_u32 {sW}, 5\ns_cbranch_scc1 L_prep_other")
        self.srd(sA, "k", NB)
        self.srd(sB, "v", NB)
        self.srd(sC, "sk", D * 8)
        a(f"""
        v_and_b32 v3, 15, v0            ; tg
        v_lshrrev_b32 v4, 4, v0         ; quad
        v_cmp_gt_u32 vcc, 288, v0
        s_mul_i32 s60, {sJ}, {64*1152}
        s_mul_i32 s61, {sX}, 144
        s_add_u32 s60, s60, s61
        v_mul_u32_u24 v5, {4*1152}, v3
        v_lshl_add_u32 v5, v4, 3, v5
        v_add_u32 v5, s60, v5
        v_subrev_u32 v6, 3456, v5
        s_mul_i32 s61, {sX}, 576
        v_lshl_add_u32 v7, v4, 5, s61
        s_mov_b64 exec, vcc
        """)
        for i in range(3):
            a(f"buffer_load_dwordx2 {vr(10+2*i,2)}, v6, {sA}, 0 offen offset:{1152*i}")
        for i in range(4):
            a(f"buffer_load_dwordx2 {vr(16+2*i,2)}, v5, {sA}, 0 offen offset:{1152*i}")
        a(f"buffer_load_dwordx4 v[32:35], v7, {sC}, 0 offen")
        a(f"buffer_load_dwordx4 v[36:39], v7, {sC}, 0 offen offset:16")
        for i in range(4):
            a(f"buffer_load_dwordx2 {vr(24+2*i,2)}, v5, {sB}, 0 offen offset:{1152*i}")
        a("s_mov_b64 exec, -1")
        a("s_barrier")
        a(f"""
        s_mul_i32 s62, {sX}, {72*4096}
        s_lshl_b32 s63, {sJ}, 7
        s_add_u32 s62, s62, s63
        s_add_u32 s62, s62, {W_U}
        v_xor_b32 v8, 1, v3
        v_lshlrev_b32 v8, 3, v8
        v_lshl_add_u32 v8, v4, 14, v8
        s_mov_b32 s64, 0xffff0000
        s_waitcnt vmcnt(4)
        """)
        for r in range(7):
            for d in range(2):
                a(f"v_lshlrev_b32 v{40+4*r+2*d}, 16, v{10+2*r+d}")
                a(f"v_and_b32 v{41+4*r+2*d}, s64, v{10+2*r+d}")
        for c in range(4):
            for d in range(2):
                a(f"v_lshlrev_b32 v{70+4*(2*d)+c}, 16, v{32+2*c+d}")
                a(f"v_and_b32 v{70+4*(2*d+1)+c}, s64, v{32+2*c+d}")
        for t in range(4):
            for p in range(2):
                d = 88 + 4 * t + 2 * p
                a(f"v_pk_mul_f32 {vr(d,2)}, {vr(70+2*p,2)}, {vr(40+4*(t+3)+2*p,2)}")
        for i in range(1, 4):
            for t in range(4):
                for p in range(2):
                    d = 88 + 4 * t + 2 * p
                    a(f"v_pk_fma_f32 {vr(d,2)}, {vr(70+4*i+2*p,2)}, {vr(40+4*(t+3-i)+2*p,2)}, {vr(d,2)}")
        a("s_waitcnt vmcnt(0)")
        for r in range(4):
            for d in range(2):
                a(f"v_lshlrev_b32 v{40+4*r+2*d}, 16, v{24+2*r+d}")
                a(f"v_and_b32 v{41+4*r+2*d}, s64, v{24+2*r+d}")
        for t in range(4):
            for p in range(2):
                d = 88 + 4 * t + 2 * p
                a(f"v_pk_mul_f32 {vr(d,2)}, {vr(d,2)}, {vr(40+4*t+2*p,2)}")
        for c in range(4):
            a(f"v_cvt_pk_bf16_f32 v{10+2*c}, v{88+12+c}, v{88+8+c}")
            a(f"v_cvt_pk_bf16_f32 v{11+2*c}, v{88+4+c}, v{88+c}")
        a("v_cmp_gt_u32 vcc, 288, v0\ns_nop 1\ns_mov_b64 exec, vcc")
        for c in range(4):
            a(f"buffer_store_dwordx2 {vr(10+2*c,2)}, v8, {sWS}, s62 offen sc1")
            if c < 3:
                a("s_add_u32 s62, s62, 4096")
        a("s_mov_b64 exec, -1\ns_waitcnt vmcnt(0) lgkmcnt(0)\ns_branch L_prep_done")

        a("L_prep_other:")
        a(".reset_waits")
        a(f"s_cmp_ge_u32 {sW}, 6\ns_cbranch_scc1 L_prep_dma")
        self.srd(sA, "q", NB)
        a(f"""
        s_lshl_b32 s60, {sX}, 5
        s_add_u32 s60, s60, {sJ}        ; w' = 32X+J : rows 8w'..8w'+7
        s_mul_i32 s61, s60, {8*1152}
        v_lshrrev_b32 v3, 3, v2
        v_and_b32 v4, 7, v2
        v_mul_u32_u24 v5, 1152, v3
        v_lshl_add_u32 v5, v4, 4, v5
        """)
        for i in range(9):
            a(f"buffer_load_dwordx4 {vr(12+4*i,4)}, v5, {sA}, s61 offen offset:{128*i}")
        a("s_barrier")
        a(f"""
        v_mov_b32 v6, 0
        v_mov_b32 v7, 0
        v_mov_b32 v8, 0x3f803f80
        s_lshl_b32 s62, s60, 6
        s_add_u32 s62, s62, {W_ST0}
        v_lshlrev_b32 v9, 3, v3
        """)
        for i in range(9):
            a(f"s_waitcnt vmcnt({8-i})")
            for j in range(4):
                r = 12 + 4 * i + j
                a(f"v_dot2c_f32_bf16 v6, v{r}, v8")
                a(f"v_dot2c_f32_bf16 v7, v{r}, v{r}")
        for m in ("quad_perm:[1,0,3,2]", "quad_perm:[2,3,0,1]", "row_half_mirror"):
            a("s_nop 2")
            a(f"v_add_f32_dpp v6, v6, v6 {m} row_mask:0xf bank_mask:0xf bound_ctrl:0")
            a(f"v_add_f32_dpp v7, v7, v7 {m} row_mask:0xf bank_mask:0xf bound_ctrl:0")
        self.stats(6, 7, 10, 11, 12)
        a(f"""
        v_cmp_eq_u32 vcc, 0, v4
        s_nop 1
        s_mov_b64 exec, vcc
        buffer_store_dwordx2 v[10:11], v9, {sWS}, s62 offen sc1
        s_mov_b64 exec, -1
        s_waitcnt vmcnt(0) lgkmcnt(0)
        s_branch L_prep_done
        """)

        a("L_prep_dma:")
        a(".reset_waits")
        a("s_barrier")
        a(f"""
        s_getpc_b64 s[8:9]
        s_and_b32 s9, s9, 0xffff
        s_mov_b32 s10, CODE_AFTER
        s_mov_b32 s11, 0x20000
        s_lshl_b32 s60, {sJ}, 11
        s_sub_u32 s61, {sW}, 6
        s_lshl_b32 s61, s61, 10
        s_add_u32 s60, s60, s61
        v_lshlrev_b32 v3, 4, v2
        buffer_load_dwordx4 v[12:15], v3, {sA}, s60 offen
        """)
        a("L_pc_here:")
        a(f"s_cmp_ge_u32 {sJ}, 18\ns_cbranch_scc1 L_prep_wraw")
        self.dma_h()
        a("s_waitcnt lgkmcnt(0)\ns_branch L_prep_done")
        a("L_prep_wraw:")
        self.dma_wraw()
        a("s_waitcnt lgkmcnt(0)")
        a("L_prep_done:")
        a(".reset_waits")
        a("s_barrier")
        a(f"s_add_u32 s28, s28, 1\ns_addc_u32 s29, s29, 0")
        L = self.lab()
        a(f"""
        s_cmp_lg_u32 {sW}, 0
        s_cbranch_scc1 {L}
        s_lshl_b32 s60, {sX}, 5
        s_add_u32 s60, s60, {sJ}
        s_lshl_b32 s60, s60, 6
        s_add_u32 s60, s60, {W_F1}
        """)
        self.flag_store("s60", 10)
        a(f"{L}:")
        self.stamp(1)

    def stats(self, vs, vq, vrs, vmr, vt, n=576):
        self.a(f"""
        v_mul_f32 v{vs}, {f32hex(1.0/n)}, v{vs}
        v_mul_f32 v{vq}, {f32hex(1.0/n)}, v{vq}
        v_fma_f32 v{vt}, -v{vs}, v{vs}, v{vq}
        v_max_f32 v{vt}, 0, v{vt}
        v_add_f32 v{vt}, {f32hex(1e-5)}, v{vt}
        v_rsq_f32 v{vrs}, v{vt}
        s_nop 0
        v_mul_f32 v{vmr}, v{vs}, v{vrs}
        v_sub_f32 v{vmr}, 0, v{vmr}
        """)

    def dma_h(self):
        a = self.a
        self.srd(sB, "h", NB)
        a(f"""
        s_mul_i32 s60, {sX}, 18
        s_add_u32 s60, s60, {sJ}
        s_lshl_b32 s60, s60, 2
        s_sub_u32 s61, {sW}, 6
        s_lshl_b32 s61, s61, 1
        s_add_u32 s60, s60, s61
        s_lshl_b32 s60, s60, 12
        s_mul_i32 s62, s61, {4*HC_B}
        v_lshrrev_b32 v4, 2, v2
        v_and_b32 v5, 3, v2
        v_lshlrev_b32 v6, 12, v4
        v_cmp_gt_u32 vcc, 8, v2
        s_nop 1
        s_mov_b64 exec, vcc
        buffer_load_dwordx2 v[16:17], v6, {sB}, s60 offen
        s_mov_b64 exec, -1
        """)
        for cc in range(2):
            for sg in range(4):
                for i in range(4):
                    a(f"s_add_u32 m0, s62, {L_HC + (4*cc+sg)*HC_B + 32 + 1024*i}")
                    a(f"s_add_u32 s63, s60, {4096*cc + 1024*i + 2*sg}")
                    a(f"buffer_load_dwordx4 v3, {sB}, s63 offen lds")
        a(f"""
        v_mov_b32 v18, 0
        v_mov_b32 v19, 0
        v_mov_b32 v20, 0
        v_mov_b32 v21, 0
        s_mul_i32 s63, s61, {U_B}
        s_add_u32 s63, s63, {L_U}
        v_lshl_add_u32 v7, v2, 3, s63
        ds_write_b64 v7, v[18:19]
        ds_write_b64 v7, v[18:19] offset:{U_B}
        v_mul_u32_u24 v7, {HC_B}, v2
        v_add_u32 v7, s62, v7
        v_lshlrev_b32 v8, 4, v5
        v_sub_u32 v8, 64, v8
        v_cmp_eq_u32 s[64:65], 0, v5
        s_waitcnt vmcnt(32)
        v_lshlrev_b64 v[22:23], v8, v[16:17]
        v_cndmask_b32 v22, v22, v18, s[64:65]
        v_cndmask_b32 v23, v23, v18, s[64:65]
        s_mov_b64 exec, vcc
        ds_write_b128 v7, v[18:21] offset:{L_HC}
        ds_write_b128 v7, v[20:23] offset:{L_HC+16}
        s_mov_b64 exec, -1
        """)

    def dma_wraw(self):
        a = self.a
        a(f"""
        s_mul_i32 s70, {sX}, 14
        s_add_u32 s70, s70, {sJ}
        s_sub_u32 s70, s70, 18
        s_mov_b32 s64, 0x1c71c71d
        s_sub_u32 s61, {sW}, 6
        s_cmp_ge_u32 s70, 96
        s_cbranch_scc1 L_wraw_o
        s_mul_i32 s71, s70, 21846
        s_lshr_b32 s71, s71, 16          ; head
        s_mul_i32 s72, s71, 3
        s_sub_u32 s72, s70, s72          ; third
        s_mul_i32 s60, s72, {192*3456}
        s_mul_i32 s62, s71, 36
        s_add_u32 s60, s60, s62
        """)
        self.srd(sB, "wqkv", D * 3 * D * 2)
        L1 = self.lab()
        a(f"""
        s_mov_b32 s62, s61
        {L1}:
        v_lshl_add_u32 v4, s62, 6, v2
        v_mul_hi_u32 v5, v4, s64
        v_mul_u32_u24 v6, 9, v5
        v_sub_u32 v6, v4, v6             ; j
        v_mul_u32_u24 v7, 11, v6
        v_lshrrev_b32 v7, 5, v7          ; j/3
        v_mul_u32_u24 v8, {1152-48}, v7
        v_lshl_add_u32 v8, v6, 4, v8
        v_mul_u32_u24 v5, 3456, v5
        v_add_u32 v8, v8, v5
        s_lshl_b32 m0, s62, 10
        s_add_u32 s62, s62, 2
        buffer_load_dwordx4 v8, {sB}, s60 offen lds
        s_cmp_lt_u32 s62, 27
        s_cbranch_scc1 {L1}
        s_branch L_wraw_done
        L_wraw_o:
        s_sub_u32 s71, s70, 96
        s_lshr_b32 s71, s71, 1           ; slice
        s_mul_i32 s60, s71, 144
        """)
        self.srd(sB, "wo", D * D * 2)
        L2 = self.lab()
        a(f"""
        s_mov_b32 s62, s61
        {L2}:
        v_lshl_add_u32 v4, s62, 6, v2
        v_mul_hi_u32 v5, v4, s64
        v_mul_u32_u24 v6, 9, v5
        v_sub_u32 v6, v4, v6
        v_mul_u32_u24 v5, 1152, v5
        v_lshl_add_u32 v8, v6, 4, v5
        s_lshl_b32 m0, s62, 10
        s_add_u32 s62, s62, 2
        buffer_load_dwordx4 v8, {sB}, s60 offen lds
        s_cmp_lt_u32 s62, 81
        s_cbranch_scc1 {L2}
        L_wraw_done:
        """)

    def relayout(self):
        a = self.a
        a("L_relayout:")
        a(".reset_waits")
        a(f"""
        s_waitcnt vmcnt(0)
        s_barrier
        s_mul_i32 s70, {sX}, 14
        s_add_u32 s70, s70, {sJ}
        s_sub_u32 s70, s70, 18
        v_lshrrev_b32 v3, 4, v2          ; G
        v_bfe_u32 v4, v2, 2, 2           ; j
        v_and_b32 v5, 3, v2              ; m
        v_lshrrev_b32 v6, 5, v2          ; half
        v_and_b32 v7, 31, v2             ; col
        s_cmp_ge_u32 s70, 96
        s_cbranch_scc1 L_rel_o
        s_mul_i32 s71, s70, 21846
        s_lshr_b32 s71, s71, 16          ; head
        s_mul_i32 s72, s71, 3
        s_sub_u32 s72, s70, s72          ; third
        s_mul_i32 s73, s71, {WQ_B}
        s_mul_i32 s74, s72, {12*1792}
        s_add_u32 s73, s73, s74
        s_add_u32 s73, s73, {W_WQ}
        v_lshl_add_u32 v8, v6, 3, v4
        v_mul_u32_u24 v8, 144, v8
        v_and_b32 v9, 1, v3              ; G&1
        s_lshr_b32 s75, {sW}, 1
        s_and_b32 s76, {sW}, 1           ; tile
        s_mul_i32 s77, s75, 2304
        s_mul_i32 s78, s75, 1792
        s_add_u32 s73, s73, s78
        s_cmp_lg_u32 s76, 0
        s_cbranch_scc1 L_rel_t1
        v_mul_u32_u24 v10, 48, v9
        v_lshl_add_u32 v10, v5, 3, v10
        v_add3_u32 v8, v8, v10, s77
        v_lshlrev_b32 v11, 4, v2
        s_branch L_rel_go
        L_rel_t1:
        ; G&1==0: 96+8m ; else m: 0->128 1->32 2->80 3->128
        v_lshl_add_u32 v10, v5, 3, 64
        v_add_u32 v10, 32, v10
        v_mov_b32 v12, 128
        v_cmp_eq_u32 vcc, 1, v5
        s_nop 1
        v_cndmask_b32 v12, v12, 32, vcc
        v_mov_b32 v13, 80
        v_cmp_eq_u32 vcc, 2, v5
        s_nop 1
        v_cndmask_b32 v12, v12, v13, vcc
        v_cmp_eq_u32 vcc, 1, v9
        s_nop 1
        v_cndmask_b32 v10, v10, v12, vcc
        v_add3_u32 v8, v8, v10, s77
        v_subrev_u32 v12, 2, v7
        v_cmp_gt_u32 vcc, 22, v7
        s_nop 1
        v_cndmask_b32 v12, v12, v7, vcc
        v_lshlrev_b32 v12, 4, v12
        v_mul_u32_u24 v13, 384, v6
        v_add_u32 v11, v12, v13
        v_add_u32 v11, 1024, v11
        v_and_b32 v13, 30, v7
        v_cmp_eq_u32 s[62:63], 24, v13
        s_nop 1
        s_or_b64 vcc, vcc, s[62:63]
        v_mov_b32 v13, 0x7fffffff
        s_nop 0
        v_cndmask_b32 v11, v13, v11, vcc
        L_rel_go:
        """)
        for n in range(3):
            a(f"ds_read_b64_tr_b16 {vr(16+4*n,2)}, v8 offset:{9216*n}")
            a(f"ds_read_b64_tr_b16 {vr(18+4*n,2)}, v8 offset:{9216*n+576}")
        for n in range(3):
            a(f"s_waitcnt lgkmcnt({4-2*n})")
            a(f"buffer_store_dwordx4 {vr(16+4*n,4)}, v11, {sWS}, s73 offen sc1")
            a(f"s_add_u32 s73, s73, {4*1792}")
        a("s_branch L_rel_fin")
        a(f"""
        L_rel_o:
        .reset_waits
        s_sub_u32 s71, s70, 96
        s_and_b32 s72, s71, 1            ; k half
        s_lshr_b32 s71, s71, 1           ; slice
        s_mul_i32 s73, s71, {WO_B}
        s_add_u32 s73, s73, {W_WO}
        v_and_b32 v9, 1, v3
        v_mul_u32_u24 v10, 18, v6
        v_lshl_add_u32 v10, v9, 2, v10
        v_add_u32 v10, v10, v4
        v_mul_u32_u24 v10, 144, v10
        v_lshl_add_u32 v10, v5, 3, v10
        v_mul_u32_u24 v11, 72, v3
        v_lshrrev_b32 v12, 1, v4
        v_mul_u32_u24 v12, 18, v12
        v_and_b32 v13, 1, v4
        v_add3_u32 v11, v11, v12, v13
        v_add_u32 v11, 16, v11
        v_mul_u32_u24 v11, 144, v11
        v_lshl_add_u32 v11, v5, 3, v11
        ; store offsets: ft<4: 16*lane ; ft==4: G*128 + (lane&15)*16 for (lane&15)<8
        v_lshlrev_b32 v12, 4, v2
        v_and_b32 v13, 15, v2
        v_lshlrev_b32 v14, 4, v13
        v_lshl_add_u32 v14, v3, 7, v14
        v_mov_b32 v15, 0x7fffffff
        v_cmp_gt_u32 vcc, 8, v13
        s_nop 1
        v_cndmask_b32 v14, v15, v14, vcc
        s_mov_b32 s74, {sW}              ; item
        L_rel_ol:
        s_mul_i32 s75, s74, 13108
        s_lshr_b32 s75, s75, 16          ; item/5
        s_mul_i32 s76, s75, 5
        s_sub_u32 s76, s74, s76          ; ft
        s_mul_i32 s77, s72, 9
        s_add_u32 s75, s75, s77          ; S
        s_mul_i32 s78, s75, 4608
        s_lshl_b32 s79, s76, 10
        s_add_u32 s78, s78, s79
        s_add_u32 s78, s78, s73
        s_lshl_b32 s79, s76, 5           ; 32*ft
        s_cmp_ge_u32 s75, 16
        s_cbranch_scc1 L_rel_orem
        s_mul_i32 s80, s75, {144*36}
        s_add_u32 s80, s80, s79
        v_add_u32 v16, s80, v10
        ds_read_b64_tr_b16 v[20:21], v16
        ds_read_b64_tr_b16 v[22:23], v16 offset:{144*8}
        s_branch L_rel_ost
        L_rel_orem:
        s_sub_u32 s80, s75, 16
        s_mul_i32 s80, s80, {144*288}
        s_add_u32 s80, s80, s79
        v_add_u32 v16, s80, v11
        ds_read_b64_tr_b16 v[20:21], v16
        ds_read_b64_tr_b16 v[22:23], v16 offset:{144*36}
        L_rel_ost:
        s_cmp_eq_u32 s76, 4
        s_cselect_b64 vcc, -1, 0
        s_nop 1
        v_cndmask_b32 v17, v12, v14, vcc
        s_waitcnt lgkmcnt(0)
        buffer_store_dwordx4 v[20:23], v17, {sWS}, s78 offen sc1
        s_add_u32 s74, s74, 8
        s_cmp_lt_u32 s74, 45
        s_cbranch_scc1 L_rel_ol
        L_rel_fin:
        s_waitcnt vmcnt(0)
        s_barrier
        s_cmp_lg_u32 {sW}, 0
        s_cbranch_scc1 L_rel_nf
        s_lshl_b32 s60, s70, 6
        s_add_u32 s60, s60, {W_F3}
        """)
        self.flag_store("s60", 10)
        a("L_rel_nf:")
        a(f"s_cmp_lt_u32 {sW}, 4\ns_cbranch_scc1 L_rel_nw")
        self.wq_fetch(poll=True)
        a("L_rel_nw:")
        a("s_waitcnt vmcnt(0)\ns_barrier\ns_branch L_qkv_pre")

    def wq_fetch(self, poll):
        a = self.a
        if poll:
            a(f"""
            s_mul_i32 s60, {sJ}, 3
            s_and_b32 s61, {sJ}, 7
            s_lshl_b32 s61, s61, 1
            s_add_u32 s61, s61, {96-3}
            v_min_u32 v4, 4, v2
            v_add_u32 v5, s60, v4
            v_add_u32 v6, s61, v4
            v_cmp_gt_u32 vcc, 3, v4
            s_mov_b32 s62, {W_F3}
            s_nop 0
            v_cndmask_b32 v5, v6, v5, vcc
            v_lshlrev_b32 v5, 6, v5
            """)
            self.poll([(5, "s62", 0)], 6, 3)
        L = self.lab()
        a(f"""
        s_mul_i32 s60, {sJ}, {WQ_B}
        s_add_u32 s60, s60, {W_WQ}
        s_sub_u32 s62, {sW}, 4
        v_lshlrev_b32 v4, 4, v2
        {L}:
        s_lshl_b32 s63, s62, 10
        s_add_u32 m0, s63, {L_WQ}
        s_add_u32 s63, s63, s60
        s_add_u32 s62, s62, 4
        buffer_load_dwordx4 v4, {sWS}, s63 offen sc1 lds
        s_cmp_lt_u32 s62, 63
        s_cbranch_scc1 {L}
        """)

    def conv(self):
        a = self.a
        a(f"s_cmp_ge_u32 {sJ}, 18\ns_cbranch_scc1 L_relayout")
        a(f"""
        s_mul_i32 s66, {sX}, 18
        s_add_u32 s66, s66, {sJ}          ; quad
        s_cmp_ge_u32 {sW}, 4
        s_cbranch_scc1 L_conv_help
        """)
        L = self.lab()
        a(f"s_cmp_lg_u32 {sW}, 0\ns_cbranch_scc1 {L}")
        a(f"""
        v_and_b32 v4, 31, v2
        v_lshlrev_b32 v4, 6, v4
        s_lshl_b32 s60, {sX}, 11
        s_add_u32 s60, s60, {W_F1}
        """)
        self.poll([(4, "s60", 0)], 6, 1)
        a(f"{L}:")
        self.srd(sA, "dd", D * 2)
        a(f"""
        s_lshl_b32 s61, s66, 2
        s_add_u32 s61, s61, {sW}           ; channel
        s_lshl_b32 s62, s61, 1
        v_mov_b32 v4, s62
        buffer_load_ushort v5, v4, {sA}, 0 offen
        s_barrier                          ; B2
        s_lshl_b32 s61, s61, 12
        s_add_u32 s61, s61, {W_U}
        s_mul_i32 s62, {sW}, {U_B}
        s_add_u32 s62, s62, {L_U+512}
        v_lshlrev_b32 v4, 4, v2
        """)
        for i in range(4):
            a(f"s_add_u32 m0, s62, {1024*i}\ns_add_u32 s63, s61, {1024*i}")
            a(f"buffer_load_dwordx4 v4, {sWS}, s63 offen sc1 lds")
        self.stamp(2)
        vBA, vAA, AD = 6, 7, 8
        ACC, A0, B0 = 16, 48, 112
        a(f"""
        v_and_b32 v12, 15, v2              ; nn / r
        v_lshrrev_b32 v13, 5, v2           ; g>>1
        v_bfe_u32 v14, v2, 4, 1            ; g&1
        s_sub_u32 s62, s62, {448}          ; u base + 64
        v_sub_u32 v15, v12, v13
        v_lshlrev_b32 v15, 5, v15
        v_lshl_add_u32 v15, v14, 4, v15
        v_add_u32 v{vBA}, s62, v15
        v_add_u32 v15, 1, v12
        v_and_b32 v3, 3, v15               ; sigma
        v_lshl_add_u32 v15, v13, 4, v12
        v_lshlrev_b32 v1, 3, v14
        v_sub_u32 v15, v15, v1
        v_sub_u32 v15, v15, v3
        v_add_u32 v15, 9, v15
        v_lshlrev_b32 v15, 1, v15
        v_mul_u32_u24 v3, {HC_B}, v3
        s_mul_i32 s63, {sW}, {4*HC_B}
        v_add3_u32 v{vAA}, v15, v3, s63
        v_add_u32 v1, 7, v1
        v_sub_u32 v1, v1, v12              ; j0
        v_lshl_add_u32 v1, v13, 6, v1
        v_and_b32 v3, 1, v1
        v_lshlrev_b32 v3, 4, v3
        v_lshrrev_b32 v1, 1, v1
        s_waitcnt vmcnt(4)
        v_lshlrev_b32 v5, v3, v5
        """)
        for i in range(4):
            a(f"v_cmp_eq_u32 vcc, {i}, v1\ns_nop 1\nv_cndmask_b32 v{AD+i}, 0, v5, vcc")

        def rdA(rho, q):
            b = A0 + 32 * (rho & 1) + 4 * q
            off = L_HC + 64 * (rho + 8 * q)
            return [f"ds_read_b64 {vr(b,2)}, v{vAA} offset:{off}", f"ds_read_b64 {vr(b+2,2)}, v{vAA} offset:{off+8}"]

        def rdB(rho, j):
            b = B0 + 32 * (rho & 1) + 4 * j
            return [f"ds_read_b128 {vr(b,4)}, v{vBA} offset:{64*(8*j-rho+7)}"]

        def reads(rho):
            r = rdA(rho, 0)
            for j in range(8):
                r += rdB(rho, j)
            for q in range(1, 8):
                r += rdA(rho, q)
            return r
        for q in range(8):
            for l in rdA(0, q):
                a(l)
        a("s_waitcnt vmcnt(0)")
        for j in range(8):
            a(rdB(0, j)[0])
        for rho in range(8):
            a("s_waitcnt lgkmcnt(0)")
            nxt = reads(rho + 1) if rho < 7 else []
            ab, bb = A0 + 32 * (rho & 1), B0 + 32 * (rho & 1)
            ms = []
            if rho == 0:
                for n in range(8):
                    ms.append(f"v_mfma_f32_16x16x32_bf16 {vr(ACC+4*n,4)}, {vr(AD,4)}, {vr(bb+4*n,4)}, 0")
            for q in range(8):
                for n in range(q, 8):
                    ms.append(f"v_mfma_f32_16x16x32_bf16 {vr(ACC+4*n,4)}, {vr(ab+4*q,4)}, {vr(bb+4*(n-q),4)}, {vr(ACC+4*n,4)}")
            for m in ms:
                a(m)
                if nxt:
                    a(nxt.pop(0))
        self.stamp(3)
        a(f"""
        v_lshlrev_b32 v12, 5, v12
        v_lshrrev_b32 v13, 4, v2
        v_lshl_add_u32 v12, v13, 3, v12
        s_mul_i32 s63, {sW}, {4*HC_B+32}
        v_add_u32 v12, s63, v12
        """)
        for n in range(8):
            a(f"v_cvt_pk_bf16_f32 v{A0+2*n}, v{ACC+4*n}, v{ACC+4*n+1}")
            a(f"v_cvt_pk_bf16_f32 v{A0+2*n+1}, v{ACC+4*n+2}, v{ACC+4*n+3}")
            a(f"ds_write_b64 v12, {vr(A0+2*n,2)} offset:{L_HC+512*n}")
        a("s_waitcnt lgkmcnt(0)\ns_barrier\ns_branch L_qkv_pre")

        a("L_conv_help:")
        a(".reset_waits")
        a("s_waitcnt vmcnt(0)\ns_barrier")
        self.srd(sA, "q", NB)
        X0, ST, Y, T = 16, 32, 48, 64
        a(f"""
        s_sub_u32 s67, {sW}, 4             ; hw
        s_mul_i32 s60, s67, {512*1152}
        s_lshl_b32 s61, s66, 3
        s_add_u32 s60, s60, s61
        v_mul_u32_u24 v3, 1152, v2
        """)
        for i in range(8):
            a(f"buffer_load_dwordx2 {vr(X0+2*i,2)}, v3, {sA}, s60 offen")
            if i < 7:
                a(f"s_add_u32 s60, s60, {64*1152}")
        a(f"""
        v_lshlrev_b32 v4, 6, v2
        s_lshl_b32 s60, s67, 12
        s_add_u32 s60, s60, {W_F1}
        """)
        self.poll([(4, "s60", 0)], 6, 2)
        a(f"""
        v_lshlrev_b32 v3, 3, v2
        s_lshl_b32 s60, s67, 12
        s_add_u32 s60, s60, {W_ST0}
        """)
        for i in range(8):
            a(f"buffer_load_dwordx2 {vr(ST+2*i,2)}, v3, {sWS}, s60 offen offset:{512*i} sc1")
        self.wq_fetch(poll=True)
        a(f"""
        v_bfe_u32 v4, v2, 2, 2
        v_mul_u32_u24 v4, {4*HC_B+32}, v4
        v_lshrrev_b32 v5, 4, v2
        v_lshl_add_u32 v4, v5, 5, v4
        v_and_b32 v5, 3, v2
        v_lshl_add_u32 v4, v5, 3, v4
        s_lshl_b32 s60, s67, 10
        v_add_u32 v4, s60, v4
        s_mov_b32 s64, 0xffff0000
        s_lshl_b32 s60, s66, 14
        s_lshl_b32 s61, s67, 12
        s_add_u32 s60, s60, s61
        s_add_u32 s61, s60, {W_Y}
        s_add_u32 s60, s60, {W_X1}
        s_waitcnt vmcnt(0)
        """)
        for i in range(8):
            t = T + 8 * i
            for d in range(2):
                a(f"v_lshlrev_b32 v{t+2*d}, 16, v{X0+2*i+d}")
                a(f"v_and_b32 v{t+2*d+1}, s64, v{X0+2*i+d}")
            for c in range(4):
                a(f"v_fma_f32 v{t+4+c}, v{t+c}, v{ST+2*i}, v{ST+2*i+1}")
        a("s_barrier")
        for i in range(8):
            a(f"ds_read_b64_tr_b16 {vr(Y+2*i,2)}, v4 offset:{L_HC+128*i}")
        for i in range(8):
            t = T + 8 * i
            a(f"s_waitcnt lgkmcnt({7-i})")
            for d in range(2):
                a(f"v_lshlrev_b32 v8, 16, v{Y+2*i+d}")
                a(f"v_and_b32 v9, s64, v{Y+2*i+d}")
                a(f"v_fmac_f32 v{t+2*d}, v{t+4+2*d}, v8")
                a(f"v_fmac_f32 v{t+2*d+1}, v{t+5+2*d}, v9")
            a(f"v_cvt_pk_bf16_f32 v{X0+2*i}, v{t}, v{t+1}")
            a(f"v_cvt_pk_bf16_f32 v{X0+2*i+1}, v{t+2}, v{t+3}")
            a(f"buffer_store_dwordx2 {vr(X0+2*i,2)}, v3, {sWS}, s60 offen offset:{512*i} sc1")
        for i in range(8):
            a(f"buffer_store_dwordx2 {vr(Y+2*i,2)}, v3, {sWS}, s61 offen offset:{512*i} sc1")
        a(f"""
        s_lshl_b32 s60, s66, 2
        s_add_u32 s60, s60, s67
        s_lshl_b32 s60, s60, 6
        s_add_u32 s60, s60, {W_F4}
        s_waitcnt vmcnt(8)
        """)
        self.flag_store("s60", 10)
        a("s_branch L_qkv_pre")

    def colsum(self):
        a = self.a
        a("L_qkv_pre:")
        a(".reset_waits")
        self.stamp(4)
        a(f"""
        v_lshlrev_b32 v4, 4, v2
        v_add_u32 v4, {L_WQ}, v4
        v_and_b32 v6, 31, v2
        v_min_u32 v5, 23, v6
        v_lshlrev_b32 v5, 4, v5
        v_lshrrev_b32 v7, 5, v2
        v_mul_u32_u24 v7, 384, v7
        v_add_u32 v5, v5, v7
        v_add_u32 v5, {L_WQ+1024}, v5
        s_cmp_lt_u32 {sW}, 2
        s_cbranch_scc1 L_cs_done
        s_cmp_ge_u32 {sW}, 4
        s_cbranch_scc1 L_cs_done
        s_cmp_eq_u32 {sW}, 2
        s_cselect_b64 vcc, -1, 0
        s_sub_u32 s60, {sW}, 2
        v_cndmask_b32 v8, v5, v4, vcc
        v_mov_b32 v9, 0x3f803f80
        v_mov_b32 v10, 0
        v_mov_b32 v11, 0
        """)
        for s0 in range(0, 36, 12):
            for s in range(12):
                a(f"ds_read_b128 {vr(16+4*s,4)}, v8 offset:{1792*(s0+s)}")
            for s in range(12):
                a(f"s_waitcnt lgkmcnt({11-s})")
                for j in range(4):
                    a(f"v_dot2c_f32_bf16 v{10+(j&1)}, v{16+4*s+j}, v9")
        a(f"""
        s_nop 2
        v_add_f32 v10, v10, v11
        v_mov_b32 v11, v10
        s_lshl_b32 s60, s60, 7
        s_add_u32 s60, s60, {L_CS}
        v_permlane32_swap_b32 v10, v11
        v_lshl_add_u32 v12, v6, 2, s60
        v_add_f32 v10, v10, v11
        ds_write_b32 v12, v10
        s_waitcnt lgkmcnt(0)
        L_cs_done:
        """)

    def qkv(self):
        a = self.a
        L = self.lab()
        a(f"s_cmp_lg_u32 {sW}, 0\ns_cbranch_scc1 {L}")
        a(f"""
        v_lshlrev_b32 v8, 8, v2
        v_add_u32 v9, {64*256}, v8
        v_add_u32 v10, {128*256}, v8
        v_min_u32 v10, {143*256}, v10
        s_lshr_b32 s60, {sX}, 1
        s_lshl_b32 s60, s60, 6
        s_add_u32 s60, s60, {W_F4}
        """)
        self.poll([(8, "s60", 0), (9, "s60", 0), (10, "s60", 0)], 12, 4)
        a(f"{L}:")
        a(f"s_mov_b32 s68, {W_X1}")
        a("L_qkv:")
        a(".reset_waits")
        a("s_barrier")
        self.stamp(5)
        XF, D0, D1, WF = 64, 16, 32, 208
        a(f"""
        v_lshrrev_b32 v8, 4, v2
        v_and_b32 v9, 15, v2
        v_lshlrev_b32 v8, 14, v8
        v_lshl_add_u32 v8, v9, 4, v8
        s_lshl_b32 s60, {sX}, 11
        s_lshl_b32 s61, {sW}, 8
        s_add_u32 s60, s60, s61
        s_add_u32 s60, s60, s68
        """)
        for s in range(36):
            a(f"buffer_load_dwordx4 {vr(XF+4*s,4)}, v8, {sWS}, s60 offen sc1")
            if s < 35:
                a("s_add_u32 s60, s60, 0x10000")

        def rdW(s):
            b = WF + 8 * (s % 3)
            a(f"ds_read_b128 {vr(b,4)}, v4 offset:{1792*s}")
            a(f"ds_read_b128 {vr(b+4,4)}, v5 offset:{1792*s}")
        rdW(0)
        rdW(1)
        a("v_mov_b32 v10, 0\nv_mov_b32 v11, 0\nv_mov_b32 v12, 0\nv_mov_b32 v13, 0\nv_mov_b32 v14, 0x3f803f80")

        def swap(s):
            x = XF + 4 * s
            a(f"s_waitcnt vmcnt({35-s})")
            a(f"v_permlane16_swap_b32 v{x}, v{x+2}")
            a(f"v_permlane16_swap_b32 v{x+1}, v{x+3}")
        swap(0)
        for s in range(36):
            x, b = XF + 4 * s, WF + 8 * (s % 3)
            if s + 1 < 36:
                swap(s + 1)
            a(f"s_waitcnt lgkmcnt({2 if s + 1 < 36 else 0})")
            a(f"v_mfma_f32_32x32x16_bf16 {vr(D0,16)}, {vr(b,4)}, {vr(x,4)}, {vr(D0,16) if s else 0}")
            for j in range(4):
                a(f"v_dot2c_f32_bf16 v{10+(j&1)}, v{x+j}, v14")
            a(f"v_mfma_f32_32x32x16_bf16 {vr(D1,16)}, {vr(x,4)}, {vr(b+4,4)}, {vr(D1,16) if s else 0}")
            if s + 2 < 36:
                rdW(s + 2)
            for j in range(4):
                a(f"v_dot2c_f32_bf16 v{12+(j&1)}, v{x+j}, v{x+j}")
        self.stamp(6)
        CS0, MU, RS = 64, 80, 96
        a(f"""
        v_lshrrev_b32 v7, 5, v2            ; hh
        v_lshlrev_b32 v8, 4, v7
        v_add_u32 v9, {L_CS}, v8
        v_lshlrev_b32 v15, 2, v6
        v_add_u32 v48, {L_CS+128}, v15
        """)
        for g in range(4):
            a(f"ds_read_b128 {vr(CS0+4*g,4)}, v9 offset:{32*g}")
        a(f"""
        ds_read_b32 v49, v48
        v_add_f32 v10, v10, v11
        v_add_f32 v12, v12, v13
        v_mov_b32 v11, v10
        v_mov_b32 v13, v12
        s_lshl_b32 s60, {sW}, 8
        s_add_u32 s60, s60, {L_ST}
        v_permlane32_swap_b32 v10, v11
        v_permlane32_swap_b32 v12, v13
        v_add_u32 v15, s60, v15
        v_add_u32 v8, s60, v8
        v_add_f32 v10, v10, v11
        v_add_f32 v12, v12, v13
        """)
        self.stats(10, 12, 11, 13, 14)
        a(f"""
        v_sub_f32 v10, 0, v10
        ds_write_b32 v15, v10
        ds_write_b32 v15, v11 offset:128
        """)
        for g in range(4):
            a(f"ds_read_b128 {vr(MU+4*g,4)}, v8 offset:{32*g}")
            a(f"ds_read_b128 {vr(RS+4*g,4)}, v8 offset:{128+32*g}")
        a(f"""
        v_and_b32 v50, 19, v6
        v_bfe_u32 v51, v6, 2, 1
        v_lshl_add_u32 v50, v51, 3, v50
        v_bfe_u32 v51, v6, 3, 1
        v_lshl_add_u32 v50, v51, 2, v50    ; sigma(n)
        v_lshlrev_b32 v51, 4, v50
        v_lshl_add_u32 v51, v7, 9, v51
        s_lshl_b32 s61, {sW}, 10
        v_add_u32 v51, s61, v51
        v_min_u32 v52, 19, v6
        v_cmp_eq_u32 vcc, 4, v52
        v_cmp_eq_u32 s[62:63], 19, v52
        s_mul_i32 s61, {sW}, 1280
        s_add_u32 s61, s61, {KV_V}
        v_cndmask_b32 v52, v52, 19, vcc
        v_cndmask_b32 v52, v52, 4, s[62:63]
        v_lshlrev_b32 v52, 4, v52
        v_mul_u32_u24 v53, 320, v7
        v_add_u32 v52, v52, v53
        v_add_u32 v53, s61, v52
        s_lshl_b32 s69, {sLayer}, 5
        s_add_u32 s69, s69, {sJ}
        s_lshl_b32 s69, s69, 3             ; (layer*32+head)*8
        s_add_u32 s61, s69, {sX}
        s_mul_i32 s61, s61, {KV_B}
        s_add_u32 s61, s61, {W_KV}
        v_mul_f32 v12, {f32hex(C_SCALE)}, v11
        v_mov_b32 v54, 1.0
        v_mov_b32 v55, 0
        v_and_b32 v56, 30, v6
        v_cmp_eq_u32 vcc, 18, v56
        v_cmp_eq_u32 s[62:63], 20, v56
        v_mov_b32 v57, {f32hex(C_SCALE)}
        v_cndmask_b32 v54, v54, 0, vcc
        v_cmp_eq_u32 vcc, 18, v6
        v_cndmask_b32 v54, v54, v57, s[62:63]
        s_nop 0
        v_cndmask_b32 v55, v55, 1.0, vcc
        s_waitcnt lgkmcnt(10)
        """)
        KF, QF, VF = 112, 116, 120
        for i in range(8, 16):
            a(f"v_fmac_f32 v{D0+i}, v10, v{CS0+i}")
        for i in range(8, 16):
            a(f"v_mul_f32 v{D0+i}, v11, v{D0+i}")
        for i in range(4):
            a(f"v_cvt_pk_bf16_f32 v{KF+i}, v{D0+8+2*i}, v{D0+9+2*i}")
        a(f"buffer_store_dwordx4 {vr(KF,4)}, v51, {sWS}, s61 offen sc1")
        a(f"ds_write_b128 v51, {vr(KF,4)} offset:{L_OWN}")
        a("s_waitcnt lgkmcnt(1)")
        for i in range(16):
            a(f"v_fmac_f32 v{D1+i}, v{MU+i}, v49")
        for i in range(16):
            a(f"v_mul_f32 v{D1+i}, v{RS+i}, v{D1+i}")
        for i in range(16):
            a(f"v_fma_f32 v{D1+i}, v{D1+i}, v54, v55")
        for i in range(8):
            a(f"v_cvt_pk_bf16_f32 v{VF+i}, v{D1+2*i}, v{D1+2*i+1}")
        a(f"""
        s_mov_b32 s62, 0xfffff
        s_mov_b32 s63, 0xfffff
        s_mov_b64 exec, s[62:63]
        buffer_store_dwordx4 {vr(VF,4)}, v53, {sWS}, s61 offen sc1
        buffer_store_dwordx4 {vr(VF+4,4)}, v53, {sWS}, s61 offen offset:640 sc1
        ds_write_b128 v53, {vr(VF,4)} offset:{L_OWN}
        ds_write_b128 v53, {vr(VF+4,4)} offset:{L_OWN+640}
        s_mov_b64 exec, -1
        s_lshl_b32 s62, {sW}, 7
        s_add_u32 s63, s62, {L_QR}
        s_add_u32 s62, s62, {KV_R}
        v_mov_b32 v56, s63
        v_mov_b32 v57, s62
        v_cmp_gt_u32 vcc, 22, v6
        v_and_b32 v58, 1, v6
        v_lshlrev_b32 v58, 1, v58
        v_lshl_add_u32 v58, v7, 5, v58
        v_cndmask_b32 v59, v57, v56, vcc
        v_add_u32 v58, v58, v59
        v_lshl_add_u32 v56, v50, 2, v56
        v_lshl_add_u32 v57, v6, 2, v57
        s_mov_b32 s62, 0xf00000
        s_mov_b32 s63, 0xf00000
        s_mov_b64 exec, s[62:63]
        """)
        assert L_OWN == 0
        for i in range(8):
            g, r = i >> 1, 2 * (i & 1)
            off = 64 * (g >> 1) + 16 * (g & 1) + 4 * r
            a(f"ds_write_b16 v58, v{VF+i} offset:{off}")
            a(f"ds_write_b16_d16_hi v58, v{VF+i} offset:{off+4}")
        a("s_mov_b64 exec, -1")
        R = self.R
        a(f"ds_read_b32 v60, v57\nds_read_b32 v{R.Qr}, v56")
        for i in range(8):
            a(f"v_fmac_f32 v{D0+i}, v10, v{CS0+i}")
        for i in range(8):
            a(f"v_mul_f32 v{D0+i}, v12, v{D0+i}")
        for i in range(4):
            a(f"v_cvt_pk_bf16_f32 v{R.Q+i}, v{D0+2*i}, v{D0+1+2*i}")
        a(f"""
        s_waitcnt lgkmcnt(0)
        s_mov_b32 exec_hi, 0
        buffer_store_dword v60, v57, {sWS}, s61 offen sc1
        s_mov_b64 exec, -1
        v_mov_b32 v{R.aV}, v52
        """)
        self.stamp(7)

    class Regs:
        S = [128, 160]
        O = 192
        Q = 208
        Qr = 212
        K = [8, 16]
        Kr = [24, 26]
        V = [28, 44]
        idx, aK, aR, aV = 214, 215, 216, 217

    def attention(self):
        a, R = self.a, self.R
        slot = lambda blk: L_OWN if blk == 0 else L_RING + ((blk - 1) % 3) * KV_B
        aK0, aR0, aV0 = 218, 219, 220

        def rd(kind, u, i=0):
            blk, dt = u >> 2, u & 3
            own = blk == 0
            base = slot(blk) - (0 if own else L_RING)
            buf = u & 1
            if kind == "R":
                return f"ds_read_b32 v{R.Kr[buf]}, v{aR0 if own else R.aR} offset:{base + KV_R + 256*dt}"
            if kind == "K":
                return f"ds_read_b128 {vr(R.K[buf]+4*i,4)}, v{aK0 if own else R.aK} offset:{base + 2048*dt + 1024*i}"
            return f"ds_read_b128 {vr(R.V[buf]+4*i,4)}, v{aV0 if own else R.aV} offset:{base + KV_V + 2560*dt + 640*i}"

        def m4(sb, kb):
            a(f"v_mfma_f32_32x32x4bf16_1k {vr(R.S[sb],32)}, {vr(R.Kr[kb],2)}, {vr(R.Qr,2)}, 0")

        def mf(sb, kb, hi):
            d = vr(R.S[sb] + 16 * hi, 16)
            a(f"v_mfma_f32_32x32x16_bf16 {d}, {vr(R.K[kb]+4*hi,4)}, {vr(R.Q,4)}, {d}")

        def sm(sb, vb, g):
            a(f"v_smfmac_f32_32x32x32_bf16 {vr(R.O,16)}, {vr(R.V[vb]+4*g,4)}, {vr(R.S[sb]+8*g,8)}, v{R.idx}")

        def fetch_block(blk):
            a(f"""
            s_add_u32 s60, {sX}, {blk}
            s_and_b32 s60, s60, 7
            s_add_u32 s60, s60, s69
            s_lshl_b32 s61, s60, 9
            s_add_u32 s61, s61, {W_F5}
            v_and_b32 v4, 7, v2
            v_lshlrev_b32 v4, 6, v4
            """)
            self.poll([(4, "s61", 0)], 6, 5)
            Ll = self.lab()
            a(f"""
            s_mul_i32 s60, s60, {KV_B}
            s_add_u32 s60, s60, {W_KV}
            s_mov_b32 m0, {slot(blk)}
            s_add_u32 s61, s60, {KV_B}
            {Ll}:
            buffer_load_dwordx4 v{aK0}, {sWS}, s60 offen sc1 lds
            s_add_u32 m0, m0, 1024
            s_add_u32 s60, s60, 1024
            s_cmp_lt_u32 s60, s61
            s_cbranch_scc1 {Ll}
            """)

        def fetch_wo(part):
            n = min(16, 81 - 16 * part)
            Ll = self.lab()
            a(f"""
            s_and_b32 s60, {sJ}, 7
            s_mul_i32 s60, s60, {WO_B}
            s_add_u32 s60, s60, {W_WO + 16384*part}
            s_mov_b32 m0, {L_WO + 16384*part}
            s_add_u32 s61, s60, {1024*n}
            {Ll}:
            buffer_load_dwordx4 v{aK0}, {sWS}, s60 offen sc1 lds
            s_add_u32 m0, m0, 1024
            s_add_u32 s60, s60, 1024
            s_cmp_lt_u32 s60, s61
            s_cbranch_scc1 {Ll}
            """)

        def on_wave(w, fn):
            L = self.lab()
            a(f"s_cmp_lg_u32 {sW}, {w}\ns_cbranch_scc1 {L}")
            fn()
            a(f"{L}:")

        a(f"""
        v_lshlrev_b32 v{aK0}, 4, v2
        v_lshlrev_b32 v{aR0}, 2, v2
        v_mov_b32 v{aV0}, v{R.aV}
        v_add_u32 v{R.aK}, {L_RING}, v{aK0}
        v_add_u32 v{R.aR}, {L_RING}, v{aR0}
        v_add_u32 v{R.aV}, {L_RING}, v{aV0}
        v_mov_b32 v{R.idx}, 0xdddddddd
        v_mov_b32 v{R.Qr+1}, 0
        v_mov_b32 v{R.Kr[0]+1}, 0
        v_mov_b32 v{R.Kr[1]+1}, 0
        s_add_u32 s70, s69, {sX}
        s_lshl_b32 s70, s70, 3
        s_add_u32 s70, s70, {sW}
        s_lshl_b32 s70, s70, 6
        s_add_u32 s70, s70, {W_F5}
        """)
        for i in range(16):
            a(f"v_mov_b32 v{R.O+i}, 0")
        a("s_barrier")
        for l in (rd("R", 0), rd("K", 0, 0), rd("K", 0, 1), rd("V", 0, 0), rd("V", 0, 1), rd("R", 1), rd("K", 1, 0),
                  rd("V", 0, 2), rd("K", 1, 1), rd("V", 0, 3)):
            a(l)
        L = self.lab()
        a(f"s_cmp_lt_u32 {sW}, 4\ns_cbranch_scc1 {L}\ns_waitcnt vmcnt(0)")
        self.flag_store("s70", 4)
        on_wave(5, lambda: fetch_block(1))
        a(f"{L}:")
        a("s_waitcnt lgkmcnt(7)")
        m4(0, 0)
        a("s_nop 15\ns_nop 1")
        mf(0, 0, 0)
        mf(0, 0, 1)
        a("s_nop 9")
        self.stamp(8)
        for u in range(32):
            P = u & 1
            N = P ^ 1
            last = u == 31
            e = lambda i, j: [a(f"v_exp_f32 v{R.S[P]+k}, v{R.S[P]+k}") for k in range(i, j)]
            k2 = u + 2 < 32
            v1 = u + 1 < 32
            blk, dt = u >> 2, u & 3
            if dt == 2 and blk < 7:
                a("s_waitcnt vmcnt(0)\ns_barrier")
                if blk + 2 < 8:
                    on_wave(4 + (blk & 3), lambda: fetch_block(blk + 2))
                if 1 <= blk <= 6:
                    on_wave(4 + ((blk + 2) & 3), lambda: fetch_wo(blk - 1))
            if u == 1:
                L = self.lab()
                a(f"s_cmp_ge_u32 {sW}, 4\ns_cbranch_scc1 {L}\ns_waitcnt vmcnt(0)")
                self.flag_store("s70", 4)
                a(f"{L}:")
            e(0, 2)
            if u > 0:
                sm(N, N, 3)
            if k2:
                a(rd("R", u + 2))
            e(2, 5)
            a(f"s_waitcnt lgkmcnt({2 if last else 3 + (1 if k2 else 0)})")
            if not last:
                m4(N, N)
            if v1:
                a(rd("V", u + 1, 0))
            e(5, 13)
            sm(P, P, 0)
            if v1:
                a(rd("V", u + 1, 1))
            e(13, 18)
            sm(P, P, 1)
            if k2:
                a(rd("K", u + 2, 0))
            e(18, 22)
            if not last:
                mf(N, N, 0)
            if v1:
                a(rd("V", u + 1, 2))
            e(22, 26)
            a(f"s_waitcnt lgkmcnt({(2 if k2 else 0) + (3 if v1 else 0)})")
            sm(P, P, 2)
            if k2:
                a(rd("K", u + 2, 1))
            e(26, 29)
            if not last:
                mf(N, N, 1)
            if v1:
                a(rd("V", u + 1, 3))
            e(29, 32)
            if last:
                a("s_nop 1")
                sm(P, P, 3)
        self.stamp(9)
        O = R.O
        a(f"""
        v_and_b32 v6, 31, v2
        v_lshrrev_b32 v7, 5, v2
        v_and_b32 v8, 15, v2
        v_lshlrev_b32 v8, 1, v8
        v_bfe_u32 v9, v2, 4, 1
        v_add_u32 v8, v8, v9               ; tau(n)
        s_lshl_b32 s60, {sW}, 5
        v_add_u32 v8, s60, v8
        v_lshlrev_b32 v9, 4, v8
        v_lshl_add_u32 v9, v7, 12, v9
        v_lshlrev_b32 v8, 2, v8
        s_lshl_b32 s60, {sLayer}, 3
        s_add_u32 s60, s60, {sX}
        s_lshl_b32 s71, s60, 5             ; (layer*8+X)*32
        s_add_u32 s60, s71, {sJ}
        s_lshl_b32 s61, s60, 13
        s_add_u32 s61, s61, {W_OM}
        s_lshl_b32 s62, s60, 10
        s_add_u32 s62, s62, {W_OR}
        s_mov_b32 s72, 0
        L_att_norm:
        s_nop 3
        v_mov_b32 v10, v{O+10}
        v_mov_b32 v11, v{O+10}
        v_add_f32 v12, abs(v{O}), abs(v{O+1})
        v_add_f32 v13, abs(v{O+2}), abs(v{O+3})
        v_permlane32_swap_b32 v10, v11
        v_add_f32 v12, v12, abs(v{O+4})
        v_add_f32 v13, v13, abs(v{O+5})
        v_add_f32 v12, v12, abs(v{O+6})
        v_add_f32 v13, v13, abs(v{O+7})
        v_add_f32 v12, v12, abs(v{O+8})
        v_add_f32 v13, v13, abs(v{O+9})
        v_add_f32 v12, v12, v13
        v_rcp_f32 v11, v10
        v_cmp_le_f32 vcc, {f32hex(2.0**-60)}, v10
        v_cmp_ge_f32 s[64:65], {"s73"}, v10
        v_cmp_ge_f32 s[66:67], {"s74"}, v12
        s_nop 0
        s_and_b64 vcc, vcc, s[64:65]
        s_and_b64 vcc, vcc, s[66:67]
        s_cmp_eq_u64 vcc, exec
        s_cbranch_scc1 L_att_ok
        s_cmp_eq_u32 s72, 0
        s_cbranch_scc1 L_att_fallback
        L_att_ok:
        """)
        for i in range(10):
            a(f"v_mul_f32 v{O+i}, v11, v{O+i}")
        for i in range(5):
            a(f"v_cvt_pk_bf16_f32 v{12+i}, v{O+2*i}, v{O+2*i+1}")
        a(f"""
        buffer_store_dwordx4 v[12:15], v9, {sWS}, s61 offen sc1
        s_mov_b32 exec_hi, 0
        buffer_store_dword v16, v8, {sWS}, s62 offen sc1
        s_mov_b64 exec, -1
        s_waitcnt vmcnt(0)
        s_barrier
        """)
        self.stamp(10)

    def fallback(self):
        a, R = self.a, self.R
        S0 = R.S[0]
        a("L_att_fallback:")
        a(".reset_waits")
        a(f"""
        s_mov_b32 s72, 1
        s_mul_i32 s75, s69, {KV_B}
        s_add_u32 s75, s75, {W_KV}
        v_mov_b32 v221, 0xff7fffff
        s_waitcnt vmcnt(0)
        """)
        for p in range(2):
            Lb = self.lab("Lfb")
            a(f"s_mov_b32 s76, 0\n{Lb}:")
            a(f"""
            s_lshr_b32 s77, s76, 2
            s_and_b32 s78, s76, 3
            s_mul_i32 s77, s77, {KV_B}
            s_add_u32 s77, s77, s75
            s_lshl_b32 s79, s78, 11
            s_add_u32 s79, s79, s77
            buffer_load_dwordx4 {vr(R.K[0]+8,4)}, v218, {sWS}, s79 offen sc1
            buffer_load_dwordx4 {vr(R.K[0]+12,4)}, v218, {sWS}, s79 offen offset:1024 sc1
            s_lshl_b32 s79, s78, 8
            s_add_u32 s79, s79, s77
            s_add_u32 s79, s79, {KV_R}
            buffer_load_dword v{R.Kr[0]}, v219, {sWS}, s79 offen sc1
            """)
            if p:
                a(f"s_mul_i32 s79, s78, 2560\ns_add_u32 s79, s79, s77\ns_add_u32 s79, s79, {KV_V}")
                for i in range(4):
                    a(f"buffer_load_dwordx4 {vr(R.V[0]+4*i,4)}, v220, {sWS}, s79 offen offset:{640*i} sc1")
            a(f"""
            s_waitcnt vmcnt(0)
            v_mfma_f32_32x32x4bf16_1k {vr(S0,32)}, {vr(R.Kr[0],2)}, {vr(R.Qr,2)}, 0
            s_nop 15
            s_nop 3
            v_mfma_f32_32x32x16_bf16 {vr(S0,16)}, {vr(R.K[0]+8,4)}, {vr(R.Q,4)}, {vr(S0,16)}
            v_mfma_f32_32x32x16_bf16 {vr(S0+16,16)}, {vr(R.K[0]+12,4)}, {vr(R.Q,4)}, {vr(S0+16,16)}
            s_nop 15
            """)
            if p == 0:
                for i in range(16):
                    a(f"v_max3_f32 v221, v221, v{S0+2*i}, v{S0+2*i+1}")
            else:
                for i in range(32):
                    a(f"v_sub_f32 v{S0+i}, v{S0+i}, v221")
                for i in range(32):
                    a(f"v_exp_f32 v{S0+i}, v{S0+i}")
                a("s_nop 1")
                for g in range(4):
                    a(f"v_smfmac_f32_32x32x32_bf16 {vr(R.O,16)}, {vr(R.V[0]+4*g,4)}, {vr(S0+8*g,8)}, v{R.idx}")
            a(f"s_add_u32 s76, s76, 1\ns_cmp_lt_u32 s76, 32\ns_cbranch_scc1 {Lb}")
            if p == 0:
                a("v_mov_b32 v222, v221\ns_nop 1\nv_permlane32_swap_b32 v221, v222\ns_nop 1\nv_max_f32 v221, v221, v222")
                for i in range(16):
                    a(f"v_mov_b32 v{R.O+i}, 0")
        a("s_nop 15\ns_branch L_att_norm")

    def outproj(self):
        a = self.a
        OF, ACC, WF, XR, YR = 64, 16, 144, 36, 46
        L = self.lab()
        a(f"""
        s_cmp_lg_u32 {sW}, 0
        s_cbranch_scc1 {L}
        s_add_u32 s60, s71, {sJ}
        s_lshl_b32 s60, s60, 6
        s_add_u32 s60, s60, {W_F6}
        """)
        self.flag_store("s60", 4)
        a(f"{L}:")
        a(f"s_cmp_ge_u32 {sW}, 4\ns_cbranch_scc1 L_op_help")
        a(f"""
        v_and_b32 v6, 15, v2
        v_lshrrev_b32 v7, 4, v2            ; g
        s_lshr_b32 s64, {sJ}, 3            ; sub
        s_and_b32 s65, {sJ}, 7             ; slice
        s_lshl_b32 s66, s64, 6
        s_lshl_b32 s67, {sW}, 4
        s_add_u32 s66, s66, s67
        v_add_u32 v8, s66, v6
        v_lshlrev_b32 v9, 14, v7
        v_lshl_add_u32 v9, v8, 3, v9       ; g*16384 + tok*8
        v_mov_b32 v11, 0x7fffffff
        v_cmp_gt_u32 vcc, 2, v7
        s_mul_i32 s60, s65, {18*16384}
        s_lshl_b32 s61, {sX}, 11
        s_add_u32 s67, s60, s61
        v_cndmask_b32 v10, v11, v9, vcc
        s_add_u32 s60, s67, s68
        s_add_u32 s61, s67, {W_Y}
        """)
        for ft in range(5):
            va = 10 if ft == 4 else 9
            a(f"buffer_load_dwordx2 {vr(XR+2*ft,2)}, v{va}, {sWS}, s60 offen sc1")
            a(f"buffer_load_dwordx2 {vr(YR+2*ft,2)}, v{va}, {sWS}, s61 offen sc1")
            if ft < 4:
                a("s_add_u32 s60, s60, 0x10000\ns_add_u32 s61, s61, 0x10000")
        a(f"""
        v_lshrrev_b32 v11, 1, v7
        v_lshlrev_b32 v11, 13, v11
        v_and_b32 v12, 1, v7
        v_lshl_add_u32 v11, v12, 12, v11
        v_lshl_add_u32 v11, v8, 4, v11     ; o main
        v_lshlrev_b32 v12, 12, v7
        v_lshl_add_u32 v12, v8, 2, v12     ; o rem
        v_lshlrev_b32 v13, 4, v2           ; W ft<4
        v_and_b32 v14, 7, v2
        v_lshlrev_b32 v14, 4, v14
        v_lshl_add_u32 v14, v7, 7, v14
        v_add_u32 v14, 4096, v14           ; W ft==4
        v_add_u32 v15, {9*4608}, v13
        v_add_u32 v3, {9*4608}, v14
        """)
        L = self.lab()
        a(f"""
        s_cmp_lg_u32 {sW}, 0
        s_cbranch_scc1 {L}
        v_and_b32 v4, 31, v2
        v_lshlrev_b32 v4, 6, v4
        s_lshl_b32 s60, s71, 6
        s_add_u32 s60, s60, {W_F6}
        """)
        self.poll([(4, "s60", 0)], 56, 6)
        a(f"{L}:")
        a(f"""
        s_barrier
        s_lshl_b32 s60, s71, 13
        s_add_u32 s60, s60, {W_OM}
        s_lshl_b32 s61, s71, 10
        s_add_u32 s61, s61, {W_OR}
        """)
        self.stamp(11)
        for s in range(16):
            a(f"buffer_load_dwordx4 {vr(OF+4*s,4)}, v11, {sWS}, s60 offen sc1")
            if s < 15:
                a("s_add_u32 s60, s60, 0x4000")
        for s in range(2):
            for i in range(4):
                a(f"buffer_load_dword v{OF+64+4*s+i}, v12, {sWS}, s61 offen offset:{1024*i} sc1")
            if s == 0:
                a("s_add_u32 s61, s61, 0x4000")

        def rdW(s):
            hi = s >= 9
            out = []
            for ft in range(5):
                va = (15 if hi else 13) if ft < 4 else (3 if hi else 14)
                off = L_WO + 4608 * (s - 9 * hi) + (1024 * ft if ft < 4 else 0)
                out.append(f"ds_read_b128 {vr(WF+20*(s&1)+4*ft,4)}, v{va} offset:{off}")
            return out
        for l in rdW(0):
            a(l)
        for s in range(18):
            nxt = rdW(s + 1) if s < 17 else []
            a(f"s_waitcnt vmcnt({23-s if s < 16 else (4 if s == 16 else 0)}) lgkmcnt(0)")
            for ft in range(5):
                d = vr(ACC + 4 * ft, 4)
                a(f"v_mfma_f32_16x16x32_bf16 {d}, {vr(WF+20*(s&1)+4*ft,4)}, {vr(OF+4*s,4)}, {d if s else 0}")
                if nxt:
                    a(nxt[ft])
        self.stamp(12)
        XF, YF = 64, 84
        a("s_mov_b32 s63, 0xffff0000")
        for i in range(10):
            a(f"v_lshlrev_b32 v{XF+2*i}, 16, v{XR+i}")
            a(f"v_and_b32 v{XF+2*i+1}, s63, v{XR+i}")
        for i in range(20):
            a(f"v_add_f32 v{XF+i}, v{XF+i}, v{ACC+i}")
        a(f"s_cmp_lg_u32 {sLayer}, 0\ns_cbranch_scc1 L_op_final")
        a("v_cmp_gt_u32 vcc, 2, v7\nv_mov_b32 v16, 0\nv_mov_b32 v17, 0")
        for i in range(16, 20):
            a(f"v_cndmask_b32 v{XF+i}, 0, v{XF+i}, vcc")
        for i in range(20):
            a(f"v_add_f32 v16, v16, v{XF+i}")
            a(f"v_fmac_f32 v17, v{XF+i}, v{XF+i}")

        def xsum():
            for op in ("v_permlane16_swap_b32", "v_permlane32_swap_b32"):
                a(f"""
                v_mov_b32 v20, v16
                v_mov_b32 v21, v17
                s_nop 1
                {op} v16, v20
                {op} v17, v21
                s_nop 0
                v_add_f32 v16, v16, v20
                v_add_f32 v17, v17, v21
                """)
        xsum()
        a(f"""
        v_mov_b32 v18, s28
        v_mov_b32 v19, s29
        s_lshl_b32 s60, {sX}, 2
        s_add_u32 s60, s60, s64
        s_lshl_b32 s60, s60, 13
        s_add_u32 s60, s60, {W_G7}
        s_lshl_b32 s61, {sW}, 8
        s_add_u32 s60, s60, s61
        s_lshl_b32 s61, s65, 10
        s_add_u32 s61, s61, s60
        v_lshlrev_b32 v4, 4, v6
        s_mov_b64 exec, 0xffff
        buffer_store_dwordx4 v[16:19], v4, {sWS}, s61 offen sc1
        s_mov_b64 exec, -1
        v_lshl_add_u32 v4, v7, 10, v4
        s_add_u32 s61, s60, 4096
        """)
        for i in range(10):
            a(f"v_lshlrev_b32 v{YF+2*i}, 16, v{YR+i}")
            a(f"v_and_b32 v{YF+2*i+1}, s63, v{YR+i}")
        Lp, Ld = self.lab("Lg"), self.lab("Lgd")
        a(f"""
        s_mov_b32 s96, {SPIN_MAX}
        {Lp}:
        buffer_load_dwordx4 v[24:27], v4, {sWS}, s60 offen sc1
        buffer_load_dwordx4 v[28:31], v4, {sWS}, s61 offen sc1
        s_waitcnt vmcnt(0)
        v_cmp_eq_u64 vcc, {sTag}, v[26:27]
        v_cmp_eq_u64 s[94:95], {sTag}, v[30:31]
        s_and_b64 vcc, vcc, s[94:95]
        s_cmp_eq_u64 vcc, exec
        s_cbranch_scc1 {Ld}
        s_sub_u32 s96, s96, 1
        s_cmp_lg_u32 s96, 0
        s_cbranch_scc1 {Lp}
        """)
        self.timeout_mark(7, 20)
        a(f"{Ld}:")
        a("v_add_f32 v16, v24, v28\nv_add_f32 v17, v25, v29")
        xsum()
        self.stats(16, 17, 18, 19, 20)
        for i in range(20):
            a(f"v_fma_f32 v{ACC+6+i}, v{XF+i}, v18, v19")
        for i in range(20):
            a(f"v_fmac_f32 v{XF+i}, v{ACC+6+i}, v{YF+i}")
        a(f"s_add_u32 s60, s67, {W_X3}")
        for ft in range(5):
            a(f"v_cvt_pk_bf16_f32 v{YF+2*ft}, v{XF+4*ft}, v{XF+4*ft+1}")
            a(f"v_cvt_pk_bf16_f32 v{YF+2*ft+1}, v{XF+4*ft+2}, v{XF+4*ft+3}")
            a(f"buffer_store_dwordx2 {vr(YF+2*ft,2)}, v{10 if ft == 4 else 9}, {sWS}, s60 offen sc1")
            if ft < 4:
                a("s_add_u32 s60, s60, 0x10000")
        a(f"""
        s_lshl_b32 s60, {sX}, 5
        s_add_u32 s60, s60, {sJ}
        s_lshl_b32 s60, s60, 2
        s_add_u32 s60, s60, {sW}
        s_lshl_b32 s60, s60, 6
        s_add_u32 s60, s60, {W_F8}
        s_waitcnt vmcnt(0)
        """)
        self.flag_store("s60", 20)
        self.stamp(13)
        L = self.lab()
        a(f"""
        s_cmp_lg_u32 {sW}, 0
        s_cbranch_scc1 {L}
        v_lshlrev_b32 v8, 6, v2
        s_lshl_b32 s60, {sX}, 13
        s_add_u32 s60, s60, {W_F8}
        s_add_u32 s61, s60, 4096
        """)
        self.poll([(8, "s60", 0), (8, "s61", 0)], 12, 8)
        a(f"{L}:")
        a("s_branch L_next_layer")

        a("L_op_help:")
        a(".reset_waits")
        a(f"s_cmp_lg_u32 {sLayer}, 0\ns_cbranch_scc1 L_op_help_fin")
        self.wq_fetch(poll=False)
        a("s_barrier\ns_waitcnt vmcnt(0)")
        a("L_next_layer:")
        a(f"""
        s_mov_b32 {sLayer}, 1
        s_mov_b32 s68, {W_X3}
        v_lshlrev_b32 v4, 4, v2
        v_add_u32 v4, {L_WQ}, v4
        v_and_b32 v6, 31, v2
        v_min_u32 v5, 23, v6
        v_lshlrev_b32 v5, 4, v5
        v_lshrrev_b32 v7, 5, v2
        v_mul_u32_u24 v7, 384, v7
        v_add_u32 v5, v5, v7
        v_add_u32 v5, {L_WQ+1024}, v5
        """)
        if self.stop == "gate2":
            a("s_branch L_end")
        a("s_branch L_qkv")
        a("L_op_help_fin:\ns_barrier\ns_branch L_end")

        a("L_op_final:")
        a(".reset_waits")
        self.srd(sA, "out", NB)
        a(f"""
        s_lshl_b32 s60, {sX}, 8
        v_add_u32 v8, s60, v8
        v_mul_u32_u24 v8, 1152, v8
        v_lshl_add_u32 v8, v7, 3, v8
        v_mov_b32 v11, 0x7fffffff
        v_cmp_gt_u32 vcc, 2, v7
        s_mul_i32 s60, s65, 144
        s_nop 0
        v_cndmask_b32 v9, v11, v8, vcc
        """)
        for ft in range(5):
            a(f"v_cvt_pk_bf16_f32 v{YF+2*ft}, v{XF+4*ft}, v{XF+4*ft+1}")
            a(f"v_cvt_pk_bf16_f32 v{YF+2*ft+1}, v{XF+4*ft+2}, v{XF+4*ft+3}")
            a(f"buffer_store_dwordx2 {vr(YF+2*ft,2)}, v{9 if ft == 4 else 8}, {sA}, s60 offen offset:{32*ft}")
        a(f"""
        s_or_b32 s60, s2, {sW}
        s_cmp_lg_u32 s60, 0
        s_cbranch_scc1 L_end
        s_mov_b32 s60, {W_NONCE}
        """)
        self.flag_store("s60", 20)

    def build(self):
        a = self.a
        self.R = G.Regs
        self.prologue()
        self.prep()
        self.finish_if("prep")
        self.conv()
        self.relayout()
        self.colsum()
        self.finish_if("conv")
        a(f"s_mov_b32 s73, {f32hex(2.0**60)}\ns_mov_b32 s74, {f32hex(2.0**120)}")
        self.qkv()
        if self.stop == "qkv":
            a("s_waitcnt vmcnt(0)\ns_branch L_end")
        self.attention()
        self.finish_if("attn")
        self.outproj()
        a("L_end:")
        if self.ts:
            self.stamp(15)
            a(f"""
            s_lshl_b32 s60, s2, 3
            s_add_u32 s60, s60, {sW}
            s_lshl_b32 s60, s60, 7
            s_add_u32 s60, s60, {W_TS}
            v_lshlrev_b32 v4, 2, v2
            s_mov_b32 exec_hi, 0
            buffer_store_dword v255, v4, {sWS}, s60 offen
            """)
        a("s_waitcnt vmcnt(0)")
        a("L_exit:")
        a("s_endpgm")
        self.fallback()
        a("L_code_end:")
        lines, added = fix_hazards(a.lines, verbose=True, tag="k")
        errs = check_waits(lines, "k")
        for e in errs:
            print(e)
        lines = [l for l in lines if not l.startswith(".reset_waits")]
        a.lines = lines
        body = a.text().replace("CODE_AFTER", "(L_code_end-L_pc_here)")
        ref = open(f"cdna_kernels/{NAME}.s.ref").read()
        head = ref[:ref.index("; Override launch")]
        txt = head + f"""; @launch grid=(256,1,1) block=(512,1,1) lds={LDS_BYTES}
.amdgcn_target "amdgcn-amd-amdhsa--gfx950"
.text
.globl {NAME}_kernel
.p2align 8
.type {NAME}_kernel,@function
{NAME}_kernel:
""" + body + f""".section .rodata,"a"
.p2align 6
.amdhsa_kernel {NAME}_kernel
  .amdhsa_next_free_vgpr 256
  .amdhsa_next_free_sgpr 102
  .amdhsa_accum_offset 256
  .amdhsa_group_segment_fixed_size 0
  .amdhsa_kernarg_size 96
  .amdhsa_user_sgpr_count 2
  .amdhsa_user_sgpr_kernarg_segment_ptr 1
  .amdhsa_system_sgpr_workgroup_id_x 1
.end_amdhsa_kernel
"""
        return txt, errs


if __name__ == "__main__":
    out = sys.argv[1]
    stop = None
    ts = False
    for x in sys.argv[2:]:
        if x == "ts":
            ts = True
        else:
            stop = x
    txt, errs = G(stop, ts).build()
    open(out, "w").write(txt)
    print("written", out, len(txt), "bytes;", len(errs), "wait errors")
```

```python
import sys
from asmlib import Asm, fix_hazards, check_waits

NAME = "interleave_layers__ssm_conv_h3__softmax_full_mha__prompt"
S, D = 2048, 576
NB = S * D * 2

W_NONCE = 0
W_F1 = 0x1000
W_F3 = 0x5000
W_F2 = 0x6C000
W_F4 = 0x8000
W_F5 = 0x12000
W_F6 = 0x52000
W_F8 = 0x5A000
W_G7 = 0x70000
W_ST0 = 0xB0000
W_F10 = 0x110000
W_G9 = 0x100000
W_TS = 0x140000
W_U = 0x200000
W_WQ = 0x500000
W_WO = 0x700000
W_X1 = 0x800000
W_X0 = 0x2000000
W_Y = 0xB00000
W_X3 = 0xE00000
W_KV = 0x1100000
W_OM = 0x1B00000
W_OR = 0x1F00000
W_SIZE = 0x2400000
WQ_B, WO_B, KV_B = 64512, 82944, 19456
KV_V, KV_R = 8192, 18432

L_HC, HC_B = 0, 4160
L_U, U_B = 66560, 4608
L_WO = 0
L_OWN = 0
L_RING = 37632
L_CS = 96000
L_ST = 96256
L_QR = 98304
L_WQ = 99328
L_PK = L_WQ
L_PV = L_WQ + 10240
L_CNT = L_CS
L_PX = L_PV + 9216
LDS_BYTES = 163840

sWS = "s[4:7]"
sA, sB, sC, sD_ = "s[8:11]", "s[12:15]", "s[16:19]", "s[20:23]"
sX, sJ, sW, sLayer = "s24", "s25", "s26", "s27"
sT, sT4 = "s30", "s31"
sTag = "s[28:29]"
sP = 32
PTR = dict(q=32, k=34, v=36, sk=38, h=40, dd=42, bx=44, wqkv=46, wo=48, out=50, dbg=52, ws=54)
SPIN_MAX = 400000

C_SCALE = 18 ** -0.5 * 1.4426950408889634


def f32hex(x):
    import struct
    return "0x%08x" % struct.unpack("<I", struct.pack("<f", x))[0]


def vr(a, n):
    return f"v[{a}:{a+n-1}]" if n > 1 else f"v{a}"


import os
EXP = os.environ.get('EXP', '').split(',')


class G:
    def __init__(self, stop=None, ts=False):
        self.a = Asm()
        self.stop = stop
        self.ts = ts
        self.nlab = 0

    def lab(self, p="L"):
        self.nlab += 1
        return f"{p}_{self.nlab}"

    def srd(self, s, ptr, nbytes):
        b = int(s[2:s.index(":")])
        p = PTR[ptr]
        self.a(f"s_mov_b32 s{b}, s{p}\ns_mov_b32 s{b+1}, s{p+1}\ns_mov_b32 s{b+2}, {nbytes}\ns_mov_b32 s{b+3}, 0x20000")

    def stamp(self, i):
        if not self.ts:
            return
        self.a(f"s_memrealtime s[98:99]\ns_memtime s[92:93]\ns_lshl_b32 s97, {sLayer}, 4\ns_add_u32 m0, s97, {i}\ns_waitcnt lgkmcnt(0)\nv_writelane_b32 v255, s98, m0\ns_add_u32 m0, m0, 32\ns_nop 0\nv_writelane_b32 v255, s92, m0")

    def flag_store(self, soff, vtmp):
        self.a(f"""
        v_mov_b32 v{vtmp}, s28
        v_mov_b32 v{vtmp+1}, s29
        v_mov_b32 v{vtmp+2}, 0
        s_mov_b64 exec, 1
        buffer_store_dwordx2 {vr(vtmp,2)}, v{vtmp+2}, {sWS}, {soff} offen sc1
        s_mov_b64 exec, -1
        """)

    def poll(self, loads, vt, code, first=0, nap=1):
        a = self.a
        L, Ld = self.lab("Lpoll"), self.lab("Lpolld")
        a(f"s_mov_b32 s96, {SPIN_MAX}")
        if first:
            L1, L1d = self.lab("Lp1"), self.lab("Lp1d")
            va, so, im = loads[0]
            a(f"""
            s_mov_b64 exec, 1
            {L1}:
            buffer_load_dwordx2 {vr(vt,2)}, v{va}, {sWS}, {so} offen offset:{im} sc1
            s_waitcnt vmcnt(0)
            v_cmp_eq_u64 vcc, {sTag}, {vr(vt,2)}
            s_cmp_lg_u64 vcc, 0
            s_cbranch_scc1 {L1d}
            s_sleep {first}
            s_sub_u32 s96, s96, 1
            s_cmp_gt_u32 s96, 1
            s_cbranch_scc1 {L1}
            {L1d}:
            s_mov_b64 exec, -1
            """)
        a(f"{L}:")
        for i, (va, so, im) in enumerate(loads):
            a(f"buffer_load_dwordx2 {vr(vt+2*i,2)}, v{va}, {sWS}, {so} offen offset:{im} sc1")
        a("s_waitcnt vmcnt(0)")
        for i in range(len(loads)):
            if i == 0:
                a(f"v_cmp_ne_u64 vcc, {sTag}, {vr(vt,2)}")
            else:
                a(f"v_cmp_ne_u64 s[94:95], {sTag}, {vr(vt+2*i,2)}\ns_or_b64 vcc, vcc, s[94:95]")
        a(f"""
        s_cmp_eq_u64 vcc, 0
        s_cbranch_scc1 {Ld}
        s_mov_b64 exec, vcc
        """)
        if nap:
            a(f"s_sleep {nap}")
        a(f"""
        s_sub_u32 s96, s96, 1
        s_cmp_lg_u32 s96, 0
        s_cbranch_scc1 {L}
        """)
        self.timeout_mark(code, vt)
        a(f"{Ld}:\ns_mov_b64 exec, -1")

    def timeout_mark(self, code, vt):
        self.a(f"""
        v_mov_b32 v{vt}, {code}
        v_mov_b32 v{vt+1}, 0
        global_store_dword v{vt+1}, v{vt}, s[{PTR['dbg']}:{PTR['dbg']+1}]
        s_waitcnt vmcnt(0)
        """)

    def finish_if(self, name):
        if self.stop == name:
            self.a("s_branch L_end")

    def prologue(self):
        a = self.a
        a(f"""
        s_cmp_ge_u32 s2, 256
        s_cbranch_scc1 L_exit
        s_load_dwordx16 s[32:47], s[0:1], 0
        s_load_dwordx8 s[48:55], s[0:1], 64
        s_getpc_b64 s[16:17]
        L_pc_here:
        s_and_b32 s17, s17, 0xffff
        s_mov_b32 s18, CODE_AFTER
        s_mov_b32 s19, 0x20000
        s_lshr_b32 s3, s2, 3
        s_lshl_b32 s3, s3, 10
        v_lshlrev_b32 v1, 7, v0
        v_cmp_gt_u32 vcc, 8, v0
        v_bfrev_b32 v2, -2
        v_cndmask_b32 v1, v2, v1, vcc
        buffer_load_dword v254, v1, {sC}, s3 offen
        v_lshrrev_b32 v1, 6, v0
        v_and_b32 v2, 63, v0
        s_and_b32 {sX}, s2, 7
        v_readfirstlane_b32 {sW}, v1
        s_lshr_b32 {sJ}, s2, 3
        s_mov_b32 {sLayer}, 0
        s_add_u32 {sT}, {sW}, {sJ}
        s_and_b32 {sT4}, {sT}, 3
        s_and_b32 {sT}, {sT}, 7
        s_waitcnt lgkmcnt(0)
        """)
        self.srd(sWS, "ws", W_SIZE)
        a("v_mov_b32 v248, 0")
        if self.ts:
            a("v_mov_b32 v255, 0")

    def div9(self, vidx, vrow, vj):
        self.a(f"""
        v_mul_hi_u32 v{vrow}, v{vidx}, s64
        v_mul_u32_u24 v{vj}, 9, v{vrow}
        v_sub_u32 v{vj}, v{vidx}, v{vj}
        """)

    def prep(self):
        a = self.a
        HR = 128
        self.stamp(0)
        a(f"s_load_dwordx2 {sTag}, s[54:55], {W_NONCE}")
        self.srd(sA, "k", NB)
        self.srd(sB, "v", NB)
        a(f"""
        s_mov_b32 s64, 0x1c71c71d
        s_mul_i32 s60, {sJ}, {64*1152}
        s_mul_i32 s61, {sX}, 144
        s_add_u32 s60, s60, s61
        s_sub_u32 s61, s60, {4*1152}
        """)
        self.div9(0, 3, 4)
        a(f"""
        v_mul_u32_u24 v3, 1152, v3
        v_lshl_add_u32 v5, v4, 4, v3
        v_add_u32 v6, s61, v5
        s_lshl_b32 s62, {sW}, 10
        s_add_u32 m0, s62, {L_PK}
        v_add_u32 v7, 512, v0
        buffer_load_dwordx4 v6, {sA}, 0 offen lds
        s_add_u32 m0, s62, {L_PV}
        s_cmp_ge_u32 {sW}, 3
        buffer_load_dwordx4 v5, {sB}, s60 offen lds
        s_cbranch_scc1 L_prep_d3
        s_cmp_eq_u32 {sW}, 2
        s_cbranch_scc1 L_prep_d2
        """)
        self.div9(7, 3, 4)
        a(f"""
        v_mul_u32_u24 v3, 1152, v3
        v_lshl_add_u32 v5, v4, 4, v3
        v_add_u32 v6, s61, v5
        s_add_u32 m0, s62, {L_PK+8192}
        s_nop 0
        buffer_load_dwordx4 v6, {sA}, 0 offen lds
        s_branch L_prep_d3
        L_prep_d2:
        v_add_u32 v7, 512, v2
        """)
        self.div9(7, 3, 4)
        a(f"""
        v_mul_u32_u24 v3, 1152, v3
        v_lshl_add_u32 v5, v4, 4, v3
        s_mov_b32 m0, {L_PV+8192}
        s_nop 0
        buffer_load_dwordx4 v5, {sB}, s60 offen lds
        L_prep_d3:
        s_cmp_ge_u32 {sW}, 5
        s_cbranch_scc1 L_prep_other
        """)
        self.sk_load()
        a("s_waitcnt vmcnt(0)")
        a(f"""
        v_bfe_u32 v5, v2, 2, 2
        v_lshl_add_u32 v5, v4, 3, v5      ; 8G + j
        v_mul_u32_u24 v5, 144, v5
        v_and_b32 v6, 3, v2
        v_lshl_add_u32 v5, v6, 3, v5
        s_lshl_b32 s62, {sW}, 5
        s_add_u32 s62, s62, {L_PK}
        v_add_u32 v5, s62, v5
        s_waitcnt lgkmcnt(0)
        """)
        self.stamp(19)
        a("s_barrier")
        self.stamp(16)
        KR, VR_, KF, AC, WT = 12, 24, 32, 56, 72
        for o in range(2):
            for i in range(3):
                a(f"ds_read_b64_tr_b16 {vr(KR+6*o+2*i,2)}, v5 offset:{4608*o+576*i}")
            for i in range(2):
                a(f"ds_read_b64_tr_b16 {vr(VR_+4*o+2*i,2)}, v5 offset:{L_PV-L_PK+4608*o+576*i}")
        a(f"""
        s_mov_b32 s65, 0xffff0000
        v_lshlrev_b32 v{WT}, 16, v10
        v_and_b32 v{WT+1}, s65, v10
        v_lshlrev_b32 v{WT+2}, 16, v11
        v_and_b32 v{WT+3}, s65, v11
        v_lshlrev_b32 v6, 12, v3
        v_lshl_add_u32 v6, v4, 4, v6
        v_mov_b32 v7, 0x7fffffff
        s_mul_i32 s62, {sW}, 16
        v_add_u32 v8, s62, v3
        v_cmp_gt_u32 vcc, 72, v8
        s_lshl_b32 s62, s61, 12
        s_lshl_b32 s63, {sJ}, 7
        s_add_u32 s62, s62, s63
        s_add_u32 s62, s62, {W_U}
        v_cndmask_b32 v6, v7, v6, vcc
        """)
        for o in range(2):
            a(f"s_waitcnt lgkmcnt({7 if o == 0 else 2})")
            kf = KF + 12 * o
            for d in range(6):
                if d:
                    a(f"v_lshlrev_b32 v{kf+2*d}, 16, v{KR+6*o+d}")
                a(f"v_and_b32 v{kf+2*d+1}, s65, v{KR+6*o+d}")
            ac = AC + 8 * o
            for t in range(8):
                a(f"v_mul_f32 v{ac+t}, v{WT}, v{kf+4+t}")
            for i in range(1, 4):
                for t in range(8):
                    a(f"v_fmac_f32 v{ac+t}, v{WT+i}, v{kf+4+t-i}")
            a(f"s_waitcnt lgkmcnt({5 if o == 0 else 0})")
            for d in range(4):
                a(f"v_lshlrev_b32 v{kf+2*d}, 16, v{VR_+4*o+d}")
                a(f"v_and_b32 v{kf+2*d+1}, s65, v{VR_+4*o+d}")
            for t in range(8):
                a(f"v_mul_f32 v{ac+t}, v{ac+t}, v{kf+t}")
            for d in range(4):
                a(f"v_cvt_pk_bf16_f32 v{76+4*o+d}, v{ac+7-2*d}, v{ac+6-2*d}")
            a(f"buffer_store_dwordx4 {vr(76+4*o,4)}, v6, {sWS}, s62 offen offset:{64*o} sc1")
        self.stamp(17)
        a("s_add_u32 s28, s28, 1\ns_addc_u32 s29, s29, 0")
        self.arrive(L_CNT, 4, W_F1, f"s_lshl_b32 s60, {sX}, 5\ns_add_u32 s60, s60, {sJ}")
        a(f"""
        s_mov_b32 s81, 256
        s_cmp_lt_u32 {sW}, 4
        s_cbranch_scc1 L_prep_done
        s_sub_u32 s67, {sW}, 4
        s_cmp_ge_u32 {sJ}, 18
        s_cbranch_scc1 L_prep_done
        s_barrier                        ; B2
        s_branch L_prep_done
        """)

        a("L_prep_other:")
        a(".reset_waits")
        a(f"""
        v_mov_b32 v6, 0
        v_mov_b32 v8, {L_CNT}
        ds_write_b32 v8, v6
        s_sub_u32 s67, {sW}, 4
        s_mul_i32 s66, {sX}, 18
        s_add_u32 s66, s66, {sJ}
        s_cmp_ge_u32 {sJ}, 18
        s_cbranch_scc1 L_prep_w
        """)
        self.srd(sD_, "h", NB)
        a(f"""
        v_lshlrev_b32 v9, 4, v2
        s_sub_u32 s61, {sW}, 5
        s_lshl_b32 s63, s66, 2
        s_add_u32 s63, s63, s61
        s_lshl_b32 s63, s63, 12
        s_mov_b32 s81, s66
        """)

        def hload(hr):
            for i in range(4):
                b = hr + 10 * i
                a(f"buffer_load_dwordx4 {vr(b,4)}, v9, {sD_}, s63 offen offset:{1024*i}")
                a(f"buffer_load_dwordx4 {vr(b+4,4)}, v9, {sD_}, s63 offen offset:{1024*i+4}")
                a(f"buffer_load_dword v{b+8}, v9, {sD_}, s63 offen offset:{1024*i+20}")
        B0 = "s_barrier\ns_add_u32 s28, s28, 1\ns_addc_u32 s29, s29, 0"
        hload(HR)
        a(f"s_cmp_lg_u32 {sW}, 7\ns_cbranch_scc1 L_prep_h6\ns_add_u32 s63, s63, 4096")
        hload(HR + 40)
        a(f"s_waitcnt vmcnt(24) lgkmcnt(0)\n{B0}\ns_mov_b32 s61, 3\ns_waitcnt vmcnt(0)")
        self.build_h(HR + 40)
        a(f"""
        s_branch L_prep_h5
        L_prep_h6:
        s_cmp_lg_u32 {sW}, 5
        s_cbranch_scc1 L_prep_h7
        """)
        self.x0_issue()
        a(f"""
        s_waitcnt vmcnt(21) lgkmcnt(0)
        {B0}
        s_waitcnt vmcnt(9)
        s_branch L_prep_h5
        L_prep_h7:
        s_waitcnt vmcnt(12) lgkmcnt(0)
        {B0}
        s_waitcnt vmcnt(0)
        L_prep_h5:
        s_sub_u32 s61, {sW}, 5
        """)
        self.build_h(HR)
        a(f"s_cmp_lg_u32 {sW}, 5\ns_cbranch_scc1 L_prep_h8")
        self.x0_stats()
        a("L_prep_h8:\ns_waitcnt lgkmcnt(0)")
        self.stamp(14)
        a(f"s_barrier\ns_cmp_lg_u32 {sW}, 5\ns_cbranch_scc1 L_prep_done")
        self.x0_store()
        a("s_waitcnt vmcnt(0)")
        self.flag_store("s82", 10)
        a("s_branch L_prep_done")
        a(f"""
        L_prep_w:
        .reset_waits
        s_mul_i32 s70, {sX}, 14
        s_add_u32 s70, s70, {sJ}
        s_sub_u32 s70, s70, {18+72}
        s_mul_i32 s81, s70, 3
        s_add_u32 s81, s81, s67
        s_add_u32 s81, s81, 143
        s_cmp_lt_i32 s70, 0
        s_cselect_b32 s81, 256, s81
        s_cbranch_scc1 L_prep_wq
        s_cmp_ge_u32 s81, 256
        s_cbranch_scc1 L_prep_w0
        """)
        self.x0_issue()
        a(f"s_waitcnt vmcnt(9) lgkmcnt(0)\n{B0}")
        self.x0_stats()
        a(f"""
        s_branch L_prep_done
        L_prep_wq:
        .reset_waits
        s_cmp_lt_u32 {sW}, 6
        s_cbranch_scc1 L_prep_w0
        """)
        self.dma_wraw("q")
        a(f"""
        s_waitcnt vmcnt(18) lgkmcnt(0)
        {B0}
        s_branch L_prep_done
        L_prep_w0:
        s_waitcnt vmcnt(0) lgkmcnt(0)
        {B0}
        """)
        a("L_prep_done:")
        a(".reset_waits")
        self.stamp(1)

    def x0_issue(self):
        a = self.a
        self.srd(sC, "q", NB)
        a(f"""
        s_mul_i32 s61, s81, {8*1152}
        v_lshrrev_b32 v3, 3, v2
        v_and_b32 v4, 7, v2
        v_mul_u32_u24 v5, 1152, v3
        v_lshl_add_u32 v5, v4, 4, v5
        """)
        for i in range(9):
            a(f"buffer_load_dwordx4 {vr(28+4*i,4)}, v5, {sC}, s61 offen offset:{128*i}")

    def x0_stats(self):
        a = self.a
        a("v_mov_b32 v6, 0\nv_mov_b32 v7, 0\nv_mov_b32 v8, 0x3f803f80")
        for i in range(9):
            a(f"s_waitcnt vmcnt({8-i})")
            for j in range(4):
                r = 28 + 4 * i + j
                a(f"v_dot2c_f32_bf16 v6, v{r}, v8")
                a(f"v_dot2c_f32_bf16 v7, v{r}, v{r}")
        for m in ("quad_perm:[1,0,3,2]", "quad_perm:[2,3,0,1]", "row_half_mirror"):
            a(f"v_add_f32_dpp v6, v6, v6 {m} row_mask:0xf bank_mask:0xf bound_ctrl:0")
            a(f"v_add_f32_dpp v7, v7, v7 {m} row_mask:0xf bank_mask:0xf bound_ctrl:0")
        self.stats(6, 7, 26, 27, 12)

    def x0_store(self):
        a = self.a
        a(f"""
        s_lshl_b32 s63, s81, 6
        s_add_u32 s82, s63, {W_F2}
        s_add_u32 s63, s63, {W_ST0}
        v_lshrrev_b32 v3, 3, v2
        v_and_b32 v4, 7, v2
        v_lshlrev_b32 v9, 3, v3
        v_lshl_add_u32 v5, v4, 9, v9
        v_cmp_eq_u32 vcc, 0, v4
        s_lshr_b32 s60, s81, 2
        s_mul_i32 s60, s60, 36864
        s_and_b32 s61, s81, 3
        s_lshl_b32 s61, s61, 6
        s_add_u32 s60, s60, s61
        s_add_u32 s60, s60, {W_X0}
        s_mov_b64 exec, vcc
        buffer_store_dwordx2 v[26:27], v9, {sWS}, s63 offen sc1
        s_mov_b64 exec, -1
        """)
        for i in range(9):
            a(f"buffer_store_dwordx2 {vr(28+4*i,2)}, v5, {sWS}, s60 offen sc1")
            a(f"buffer_store_dwordx2 {vr(30+4*i,2)}, v5, {sWS}, s60 offen offset:256 sc1")
            if i < 8:
                a("s_add_u32 s60, s60, 4096")

    def sk_load(self):
        self.srd(sC, "sk", D * 8)
        self.a(f"""
        v_and_b32 v3, 15, v2
        v_lshrrev_b32 v4, 4, v2           ; G
        s_mul_i32 s61, {sX}, 72
        s_lshl_b32 s62, {sW}, 4
        s_add_u32 s61, s61, s62
        v_add_u32 v5, s61, v3
        v_lshlrev_b32 v5, 3, v5
        buffer_load_dwordx2 v[10:11], v5, {sC}, 0 offen
        """)

    def arrive(self, cnt, last, base, index, vm=0):
        L = self.lab()
        self.a(f"""
        v_mov_b32 v8, {cnt}
        v_mov_b32 v9, 1
        s_waitcnt vmcnt({vm})
        s_mov_b64 exec, 1
        ds_add_rtn_u32 v9, v8, v9
        s_mov_b64 exec, -1
        {index}
        s_lshl_b32 s60, s60, 6
        s_add_u32 s60, s60, {base}
        s_waitcnt lgkmcnt(0)
        v_readfirstlane_b32 s61, v9
        s_cmp_lg_u32 s61, {last}
        s_cbranch_scc1 {L}
        """)
        self.flag_store("s60", 10)
        self.a(f"{L}:")

    def build_h(self, HR):
        a = self.a
        T = 84
        a(f"""
        s_mul_i32 s63, s61, {4*HC_B}
        s_add_u32 s63, s63, {L_HC+32}
        v_lshl_add_u32 v7, v2, 4, s63
        v_readlane_b32 s60, v{HR}, 0
        v_readlane_b32 s62, v{HR+1}, 0
        """)
        for i in range(4):
            A, B, E = HR + 10 * i, HR + 10 * i + 4, HR + 10 * i + 8
            t = T + 8 * (i & 1)
            a(f"ds_write_b128 v7, {vr(A,4)} offset:{1024*i}")
            a(f"ds_write_b128 v7, {vr(B,4)} offset:{2*HC_B+1024*i}")
            for j in range(4):
                a(f"v_alignbyte_b32 v{t+j}, v{B+j}, v{A+j}, 2")
            for j in range(4):
                a(f"v_alignbyte_b32 v{t+4+j}, v{B+j+1 if j < 3 else E}, v{B+j}, 2")
            a(f"ds_write_b128 v7, {vr(t,4)} offset:{HC_B+1024*i}")
            a(f"ds_write_b128 v7, {vr(t+4,4)} offset:{3*HC_B+1024*i}")
        a(f"""
        v_mov_b32 v16, s60
        v_mov_b32 v17, s62
        v_mov_b32 v18, 0
        v_mov_b32 v19, 0
        v_mov_b32 v20, 0
        v_mov_b32 v21, 0
        v_lshlrev_b32 v8, 4, v2
        v_sub_u32 v8, 64, v8
        v_cmp_eq_u32 vcc, 0, v2
        v_lshlrev_b64 v[22:23], v8, v[16:17]
        s_sub_u32 s63, s63, 32
        v_mul_u32_u24 v7, {HC_B}, v2
        v_add_u32 v7, s63, v7
        v_cndmask_b32 v22, v22, v18, vcc
        v_cndmask_b32 v23, v23, v18, vcc
        s_mul_i32 s63, s61, {U_B}
        s_add_u32 s63, s63, {L_U}
        v_lshl_add_u32 v8, v2, 3, s63
        ds_write_b64 v8, v[18:19]
        s_mov_b64 exec, 15
        ds_write_b128 v7, v[18:21]
        ds_write_b128 v7, v[20:23] offset:16
        s_mov_b64 exec, -1
        """)

    def stats(self, vs, vq, vrs, vmr, vt, n=576):
        self.a(f"""
        v_mul_f32 v{vs}, {f32hex(1.0/n)}, v{vs}
        v_mul_f32 v{vq}, {f32hex(1.0/n)}, v{vq}
        v_fma_f32 v{vt}, -v{vs}, v{vs}, v{vq}
        v_max_f32 v{vt}, 0, v{vt}
        v_add_f32 v{vt}, {f32hex(1e-5)}, v{vt}
        v_rsq_f32 v{vrs}, v{vt}
        s_nop 0
        v_mul_f32 v{vmr}, v{vs}, v{vrs}
        v_sub_f32 v{vmr}, 0, v{vmr}
        """)

    def dma_wraw(self, kind):
        a = self.a
        L1, L2 = self.lab(), self.lab()
        a(f"""
        s_mul_i32 s70, {sX}, 14
        s_add_u32 s70, s70, {sJ}
        s_sub_u32 s70, s70, 18
        s_sub_u32 s62, {sW}, 6
        """)
        if kind == "q":
            self.wraw_q(L1)
        else:
            self.wraw_o(L2)

    def wraw_q(self, L1):
        a = self.a
        a(f"""
        s_lshr_b32 s71, s70, 1
        s_and_b32 s72, s70, 1
        s_mul_i32 s60, s71, {16*3456}
        s_mul_i32 s61, s72, 576
        s_add_u32 s60, s60, s61
        """)
        self.srd(sB, "wqkv", D * 3 * D * 2)
        a(f"{L1}:\nv_lshl_add_u32 v4, s62, 6, v2")
        self.div9(4, 5, 6)
        a(f"""
        v_mul_u32_u24 v7, 11, v6
        v_lshrrev_b32 v7, 5, v7          ; j/3
        v_mul_u32_u24 v8, {1152-48}, v7
        v_lshl_add_u32 v8, v6, 4, v8
        v_and_b32 v7, 15, v5             ; row
        v_lshrrev_b32 v5, 4, v5
        v_mul_u32_u24 v7, 3456, v7
        v_mul_u32_u24 v5, 36, v5
        v_add3_u32 v8, v8, v7, v5
        s_lshl_b32 m0, s62, 10
        s_add_u32 s62, s62, 2
        buffer_load_dwordx4 v8, {sB}, s60 offen lds
        s_cmp_lt_u32 s62, 36
        s_cbranch_scc1 {L1}
        """)

    def wraw_o(self, L2):
        a = self.a
        a(f"""
        s_sub_u32 s71, s70, 72           ; S
        s_mul_i32 s60, s71, {36*1152}
        s_sub_u32 s61, s71, 16
        s_mul_i32 s61, s61, {288*1152}
        s_add_u32 s61, s61, {16*1152}
        s_cmp_lt_u32 s71, 16
        s_cselect_b32 s60, s60, s61
        s_cselect_b64 s[74:75], -1, 0
        """)
        self.srd(sB, "wo", D * D * 2)
        a(f"{L2}:\nv_lshl_add_u32 v4, s62, 6, v2\nv_lshrrev_b32 v9, 3, v4")
        self.div9(9, 5, 6)
        a(f"""
        v_mul_u32_u24 v6, 72, v5
        v_sub_u32 v6, v4, v6
        v_lshrrev_b32 v7, 4, v5
        v_mul_u32_u24 v7, 18, v7
        v_bfe_u32 v8, v5, 3, 1
        v_lshl_add_u32 v7, v8, 2, v7
        v_bfe_u32 v8, v5, 2, 1
        v_lshl_add_u32 v7, v8, 3, v7
        v_and_b32 v8, 3, v5
        v_add_u32 v7, v7, v8
        v_lshrrev_b32 v8, 1, v5
        v_mul_u32_u24 v8, 18, v8
        v_and_b32 v9, 1, v5
        v_add_u32 v8, v8, v9
        v_cndmask_b32 v7, v8, v7, s[74:75]
        v_mul_u32_u24 v7, 1152, v7
        v_lshl_add_u32 v8, v6, 4, v7
        s_lshl_b32 m0, s62, 10
        s_add_u32 s62, s62, 2
        buffer_load_dwordx4 v8, {sB}, s60 offen lds
        s_cmp_lt_u32 s62, 36
        s_cbranch_scc1 {L2}
        """)

    def relayout(self):
        a = self.a
        a("L_relayout:")
        a(".reset_waits")
        a("""
        s_barrier                        ; B1: the u flag is on its way
        s_cmp_ge_u32 s81, 256
        s_cbranch_scc1 L_rel_nx
        """)
        self.x0_store()
        a("s_waitcnt vmcnt(0)")
        self.flag_store("s82", 10)
        a(f"""
        L_rel_nx:
        s_mul_i32 s70, {sX}, 14
        s_add_u32 s70, s70, {sJ}
        s_sub_u32 s70, s70, 18
        s_cmp_lt_u32 {sW}, 6
        s_cbranch_scc1 L_rel_nx1
        s_cmp_lt_u32 s70, 72
        s_cbranch_scc1 L_rel_nx1
        s_cmp_ge_u32 s70, 90
        s_cbranch_scc1 L_rel_nx1
        """)
        self.dma_wraw("o")
        a(f"""
        L_rel_nx1:
        s_waitcnt vmcnt(0)
        s_barrier
        """)
        self.stamp(20)
        a(f"""
        v_lshrrev_b32 v3, 4, v2          ; G
        v_bfe_u32 v4, v2, 2, 2           ; j
        v_and_b32 v5, 3, v2              ; m
        v_lshrrev_b32 v6, 5, v2          ; half
        v_and_b32 v7, 31, v2             ; col
        s_cmp_ge_u32 s70, 90
        s_cbranch_scc1 L_rel_nf
        s_cmp_ge_u32 s70, 72
        s_cbranch_scc1 L_rel_o
        s_lshr_b32 s71, s70, 1           ; k-step
        s_and_b32 s72, s70, 1
        s_mul_i32 s73, s71, 1792
        s_mul_i32 s74, s72, {16*WQ_B}
        s_add_u32 s73, s73, s74
        s_add_u32 s73, s73, {W_WQ}
        v_lshl_add_u32 v8, v6, 3, v4
        v_mul_u32_u24 v8, 144, v8
        v_and_b32 v9, 1, v3              ; G&1
        s_lshr_b32 s75, {sW}, 1
        s_and_b32 s76, {sW}, 1           ; tile
        s_mul_i32 s77, s75, 2304
        s_mul_i32 s78, s75, {WQ_B}
        s_add_u32 s73, s73, s78
        s_cmp_lg_u32 s76, 0
        s_cbranch_scc1 L_rel_t1
        v_mul_u32_u24 v10, 48, v9
        v_lshl_add_u32 v10, v5, 3, v10
        v_add3_u32 v8, v8, v10, s77
        v_lshlrev_b32 v11, 4, v2
        s_branch L_rel_go
        L_rel_t1:
        ; G&1==0: 96+8m ; else m: 0->128 1->32 2->80 3->128
        v_lshl_add_u32 v10, v5, 3, 64
        v_add_u32 v10, 32, v10
        v_mov_b32 v12, 128
        v_cmp_eq_u32 vcc, 1, v5
        s_nop 1
        v_cndmask_b32 v12, v12, 32, vcc
        v_mov_b32 v13, 80
        v_cmp_eq_u32 vcc, 2, v5
        s_nop 1
        v_cndmask_b32 v12, v12, v13, vcc
        v_cmp_eq_u32 vcc, 1, v9
        s_nop 1
        v_cndmask_b32 v10, v10, v12, vcc
        v_add3_u32 v8, v8, v10, s77
        v_subrev_u32 v12, 2, v7
        v_cmp_gt_u32 vcc, 22, v7
        s_nop 1
        v_cndmask_b32 v12, v12, v7, vcc
        v_lshlrev_b32 v12, 4, v12
        v_mul_u32_u24 v13, 384, v6
        v_add_u32 v11, v12, v13
        v_add_u32 v11, 1024, v11
        v_and_b32 v13, 30, v7
        v_cmp_eq_u32 s[62:63], 24, v13
        s_nop 1
        s_or_b64 vcc, vcc, s[62:63]
        v_mov_b32 v13, 0x7fffffff
        s_nop 0
        v_cndmask_b32 v11, v13, v11, vcc
        L_rel_go:
        """)
        for n in range(4):
            a(f"ds_read_b64_tr_b16 {vr(68+4*n,2)}, v8 offset:{9216*n}")
            a(f"ds_read_b64_tr_b16 {vr(70+4*n,2)}, v8 offset:{9216*n+576}")
        for n in range(4):
            a(f"s_waitcnt lgkmcnt({6-2*n})")
            a(f"buffer_store_dwordx4 {vr(68+4*n,4)}, v11, {sWS}, s73 offen sc1")
            a(f"s_add_u32 s73, s73, {4*WQ_B}")
        a("s_branch L_rel_fin")
        a(f"""
        L_rel_o:
        .reset_waits
        s_sub_u32 s71, s70, 72
        s_mul_i32 s73, {sW}, {WO_B}
        s_mul_i32 s74, s71, 4608
        s_add_u32 s73, s73, s74
        s_add_u32 s73, s73, {W_WO}
        v_lshl_add_u32 v10, v3, 3, v4
        v_mul_u32_u24 v10, 1152, v10
        v_lshl_add_u32 v10, v5, 3, v10
        s_mul_i32 s74, {sW}, 144
        v_add_u32 v10, s74, v10
        v_lshlrev_b32 v12, 4, v2
        v_and_b32 v13, 15, v2
        v_lshlrev_b32 v14, 4, v13
        v_lshl_add_u32 v14, v3, 7, v14
        v_mov_b32 v15, 0x7fffffff
        v_cmp_gt_u32 vcc, 8, v13
        s_add_u32 s74, s73, 4096
        s_nop 0
        v_cndmask_b32 v14, v15, v14, vcc
        """)
        for ft in range(5):
            a(f"ds_read_b64_tr_b16 {vr(68+4*ft,2)}, v10 offset:{32*ft}")
            a(f"ds_read_b64_tr_b16 {vr(70+4*ft,2)}, v10 offset:{32*ft+4608}")
        for ft in range(5):
            a(f"s_waitcnt lgkmcnt({8-2*ft})")
            if ft < 4:
                a(f"buffer_store_dwordx4 {vr(68+4*ft,4)}, v12, {sWS}, s73 offen offset:{1024*ft} sc1")
            else:
                a(f"buffer_store_dwordx4 {vr(68+4*ft,4)}, v14, {sWS}, s74 offen sc1")
        a(f"""
        L_rel_fin:
        s_waitcnt vmcnt(0)
        s_barrier
        s_cmp_lg_u32 {sW}, 0
        s_cbranch_scc1 L_rel_nf
        s_lshl_b32 s60, s70, 6
        s_add_u32 s60, s60, {W_F3}
        """)
        self.flag_store("s60", 10)
        a("L_rel_nf:")
        a(f"s_cmp_lt_u32 {sW}, 4\ns_cbranch_scc1 L_rel_nw")
        self.wq_fetch(poll=True)
        a("L_rel_nw:")
        a("s_waitcnt vmcnt(0)\ns_barrier\ns_branch L_qkv_pre")

    def wq_fetch(self, poll):
        a = self.a
        if poll:
            a(f"""
            s_lshr_b32 s60, {sJ}, 4
            v_lshl_add_u32 v5, v2, 1, s60
            s_lshl_b32 s61, {sX}, 5
            s_add_u32 s61, s61, {sJ}
            s_lshl_b32 s61, s61, 6
            s_add_u32 s61, s61, {W_F1}
            v_lshlrev_b32 v5, 6, v5
            v_add_u32 v5, {W_F3}, v5
            v_mov_b32 v6, s61
            v_cmp_gt_u32 vcc, 36, v2
            s_mov_b32 s62, 0
            s_nop 0
            v_cndmask_b32 v5, v6, v5, vcc
            """)
            self.poll([(5, "s62", 0)], 6, 3, first=4)
            self.stamp(29)
        L = self.lab()
        a(f"""
        s_mul_i32 s60, {sJ}, {WQ_B}
        s_add_u32 s60, s60, {W_WQ}
        s_sub_u32 s62, {sW}, 4
        v_lshlrev_b32 v4, 4, v2
        {L}:
        s_lshl_b32 s63, s62, 10
        s_add_u32 m0, s63, {L_WQ}
        s_add_u32 s63, s63, s60
        s_add_u32 s62, s62, 4
        buffer_load_dwordx4 v4, {sWS}, s63 offen sc1 lds
        s_cmp_lt_u32 s62, 63
        s_cbranch_scc1 {L}
        """)

    def conv(self):
        a = self.a
        a(f"s_cmp_ge_u32 {sJ}, 18\ns_cbranch_scc1 L_relayout")
        a(f"""
        s_mul_i32 s66, {sX}, 18
        s_add_u32 s66, s66, {sJ}          ; quad
        s_cmp_ge_u32 {sW}, 4
        s_cbranch_scc1 L_conv_help
        """)
        self.srd(sA, "dd", D * 2)
        a(f"""
        s_lshl_b32 s61, s66, 2
        s_add_u32 s61, s61, {sW}           ; channel
        s_lshl_b32 s62, s61, 1
        v_mov_b32 v4, s62
        buffer_load_ushort v5, v4, {sA}, 0 offen
        s_mul_i32 s62, {sW}, {U_B}
        s_add_u32 s62, s62, {L_U+512}
        s_cmp_lg_u32 {sW}, 0
        s_cbranch_scc1 L_conv_nu
        v_and_b32 v4, 31, v2
        v_lshlrev_b32 v4, 6, v4
        s_lshl_b32 s60, {sX}, 11
        s_add_u32 s60, s60, {W_F1}
        """)
        self.poll([(4, "s60", 0)], 6, 1, nap=0)
        a(f"""
        s_lshl_b32 s61, s61, 12
        s_add_u32 s61, s61, {W_U}
        v_lshlrev_b32 v4, 4, v2
        """)
        for c in range(4):
            for i in range(4):
                a(f"s_mov_b32 m0, {L_U+512+U_B*c+1024*i}\ns_add_u32 s63, s61, {4096*c+1024*i}")
                a(f"buffer_load_dwordx4 v4, {sWS}, s63 offen sc1 lds")
        a("L_conv_nu:")
        self.stamp(2)
        vBA, vAA, AD = 6, 7, 8
        ACC, A0, B0 = 16, 48, 112
        a(f"""
        v_and_b32 v12, 15, v2              ; nn / r
        v_lshrrev_b32 v13, 5, v2           ; g>>1
        v_bfe_u32 v14, v2, 4, 1            ; g&1
        s_sub_u32 s62, s62, {448}          ; u base + 64
        v_sub_u32 v15, v12, v13
        v_lshlrev_b32 v15, 5, v15
        v_lshl_add_u32 v15, v14, 4, v15
        v_add_u32 v{vBA}, s62, v15
        v_add_u32 v15, 1, v12
        v_and_b32 v3, 3, v15               ; sigma
        v_lshl_add_u32 v15, v13, 4, v12
        v_lshlrev_b32 v1, 3, v14
        v_sub_u32 v15, v15, v1
        v_sub_u32 v15, v15, v3
        v_add_u32 v15, 9, v15
        v_lshlrev_b32 v15, 1, v15
        v_mul_u32_u24 v3, {HC_B}, v3
        s_mul_i32 s63, {sW}, {4*HC_B}
        v_add3_u32 v{vAA}, v15, v3, s63
        v_add_u32 v1, 7, v1
        v_sub_u32 v1, v1, v12              ; j0
        v_lshl_add_u32 v1, v13, 6, v1
        v_and_b32 v3, 1, v1
        v_lshlrev_b32 v3, 4, v3
        v_lshrrev_b32 v1, 1, v1
        s_waitcnt vmcnt(16)
        s_cmp_eq_u32 {sW}, 0
        s_cbranch_scc1 L_conv_d
        s_waitcnt vmcnt(0)
        L_conv_d:
        v_lshlrev_b32 v5, v3, v5
        """)
        for i in range(4):
            a(f"v_cmp_eq_u32 vcc, {i}, v1\ns_nop 1\nv_cndmask_b32 v{AD+i}, 0, v5, vcc")

        def rdA(rho, q):
            b = A0 + 32 * (rho & 1) + 4 * q
            off = L_HC + 64 * (rho + 8 * q)
            return [f"ds_read_b64 {vr(b,2)}, v{vAA} offset:{off}", f"ds_read_b64 {vr(b+2,2)}, v{vAA} offset:{off+8}"]

        def rdB(rho, j):
            b = B0 + 32 * (rho & 1) + 4 * j
            return [f"ds_read_b128 {vr(b,4)}, v{vBA} offset:{64*(8*j-rho+7)}"]

        def reads(rho):
            r = rdA(rho, 0)
            for j in range(8):
                r += rdB(rho, j)
            for q in range(1, 8):
                r += rdA(rho, q)
            return r
        a("s_waitcnt vmcnt(0)\ns_barrier")
        for q in range(8):
            for l in rdA(0, q):
                a(l)
        for j in range(8):
            a(rdB(0, j)[0])
        for rho in range(8):
            a("s_waitcnt lgkmcnt(0)")
            nxt = reads(rho + 1) if rho < 7 else []
            ab, bb = A0 + 32 * (rho & 1), B0 + 32 * (rho & 1)
            ms = []
            if rho == 0:
                for n in range(8):
                    ms.append(f"v_mfma_f32_16x16x32_bf16 {vr(ACC+4*n,4)}, {vr(AD,4)}, {vr(bb+4*n,4)}, 0")
            for q in range(8):
                for n in range(q, 8):
                    ms.append(f"v_mfma_f32_16x16x32_bf16 {vr(ACC+4*n,4)}, {vr(ab+4*q,4)}, {vr(bb+4*(n-q),4)}, {vr(ACC+4*n,4)}")
            for m in ms:
                a(m)
                if nxt:
                    a(nxt.pop(0))
        self.stamp(3)
        a(f"""
        v_lshlrev_b32 v12, 5, v12
        v_lshrrev_b32 v13, 4, v2
        v_lshl_add_u32 v12, v13, 3, v12
        s_mul_i32 s63, {sW}, {4*HC_B+32}
        v_add_u32 v12, s63, v12
        """)
        for n in range(8):
            a(f"v_cvt_pk_bf16_f32 v{A0+2*n}, v{ACC+4*n}, v{ACC+4*n+1}")
            a(f"v_cvt_pk_bf16_f32 v{A0+2*n+1}, v{ACC+4*n+2}, v{ACC+4*n+3}")
            a(f"ds_write_b64 v12, {vr(A0+2*n,2)} offset:{L_HC+512*n}")
        a("s_waitcnt lgkmcnt(0)\ns_barrier\ns_barrier\ns_branch L_qkv_pre")

        a("L_conv_help:")
        a(".reset_waits")
        X0, ST, Y, T = 16, 32, 232, 64
        a(f"""
        v_lshlrev_b32 v4, 6, v2
        s_lshl_b32 s60, s67, 12
        s_add_u32 s60, s60, {W_F2}
        """)
        self.poll([(4, "s60", 0)], 6, 2, first=4)
        self.stamp(18)
        a(f"""
        v_lshlrev_b32 v3, 3, v2
        s_lshl_b32 s60, s67, 12
        s_add_u32 s60, s60, {W_ST0}
        v_and_b32 v14, 31, v2
        v_lshrrev_b32 v15, 5, v2
        v_mul_u32_u24 v15, 36864, v15
        v_lshl_add_u32 v14, v14, 3, v15
        s_mul_i32 s76, s67, {16*36864}
        s_lshl_b32 s61, s66, 8
        s_add_u32 s76, s76, s61
        s_add_u32 s61, s76, {W_X0}
        """)
        for i in range(8):
            a(f"buffer_load_dwordx2 {vr(ST+2*i,2)}, v3, {sWS}, s60 offen offset:{512*i} sc1")
            a(f"buffer_load_dwordx2 {vr(X0+2*i,2)}, v14, {sWS}, s61 offen sc1")
            if i < 7:
                a(f"s_add_u32 s61, s61, {2*36864}")
        self.wq_fetch(poll=True)
        a(f"""
        v_bfe_u32 v4, v2, 2, 2
        v_mul_u32_u24 v4, {4*HC_B+32}, v4
        v_lshrrev_b32 v5, 4, v2
        v_lshl_add_u32 v4, v5, 5, v4
        v_and_b32 v5, 3, v2
        v_lshl_add_u32 v4, v5, 3, v4
        s_lshl_b32 s60, s67, 10
        v_add_u32 v4, s60, v4
        s_mov_b32 s64, 0xffff0000
        s_add_u32 s61, s76, {W_Y}
        s_add_u32 s60, s76, {W_X1}
        """)
        for i in range(8):
            t = T + 8 * i
            for d in range(2):
                a(f"v_lshlrev_b32 v{t+2*d}, 16, v{X0+2*i+d}")
                a(f"v_and_b32 v{t+2*d+1}, s64, v{X0+2*i+d}")
            for c in range(4):
                a(f"v_fma_f32 v{t+4+c}, v{t+c}, v{ST+2*i}, v{ST+2*i+1}")
        self.stamp(30)
        a("s_barrier")
        for i in range(8):
            a(f"ds_read_b64_tr_b16 {vr(Y+2*i,2)}, v4 offset:{L_HC+128*i}")
        for i in range(8):
            t = T + 8 * i
            a(f"s_waitcnt lgkmcnt({7-i})")
            for d in range(2):
                a(f"v_lshlrev_b32 v8, 16, v{Y+2*i+d}")
                a(f"v_and_b32 v9, s64, v{Y+2*i+d}")
                a(f"v_fmac_f32 v{t+2*d}, v{t+4+2*d}, v8")
                a(f"v_fmac_f32 v{t+2*d+1}, v{t+5+2*d}, v9")
            a(f"v_cvt_pk_bf16_f32 v{X0+2*i}, v{t}, v{t+1}")
            a(f"v_cvt_pk_bf16_f32 v{X0+2*i+1}, v{t+2}, v{t+3}")
            a(f"buffer_store_dwordx2 {vr(X0+2*i,2)}, v14, {sWS}, s60 offen sc1")
            a(f"s_add_u32 s60, s60, {2*36864}")
        a(f"""
        v_mov_b32 v248, v14
        s_mov_b32 s79, s61
        s_lshl_b32 s80, s66, 2
        s_add_u32 s80, s80, s67
        s_lshl_b32 s80, s80, 6
        s_add_u32 s80, s80, {W_F10}
        """)
        a(f"""
        s_lshl_b32 s60, s66, 2
        s_add_u32 s60, s60, s67
        s_lshl_b32 s60, s60, 6
        s_add_u32 s60, s60, {W_F4}
        s_waitcnt vmcnt(0)
        """)
        self.flag_store("s60", 10)
        a("s_barrier\ns_branch L_qkv_pre")

    def colsum(self):
        a = self.a
        a("L_qkv_pre:")
        a(".reset_waits")
        self.stamp(4)
        a(f"""
        v_lshlrev_b32 v4, 4, v2
        v_add_u32 v4, {L_WQ}, v4
        v_and_b32 v6, 31, v2
        v_min_u32 v5, 23, v6
        v_lshlrev_b32 v5, 4, v5
        v_lshrrev_b32 v7, 5, v2
        v_mul_u32_u24 v7, 384, v7
        v_add_u32 v5, v5, v7
        v_add_u32 v5, {L_WQ+1024}, v5
        s_cmp_lt_u32 {sW}, 2
        s_cbranch_scc1 L_cs_done
        s_cmp_ge_u32 {sW}, 4
        s_cbranch_scc1 L_cs_done
        s_cmp_eq_u32 {sW}, 2
        s_cselect_b64 vcc, -1, 0
        s_sub_u32 s60, {sW}, 2
        v_cndmask_b32 v8, v5, v4, vcc
        v_mov_b32 v9, 0x3f803f80
        v_mov_b32 v10, 0
        v_mov_b32 v11, 0
        """)
        for s0 in range(0, 36, 12):
            for s in range(12):
                a(f"ds_read_b128 {vr(16+4*s,4)}, v8 offset:{1792*(s0+s)}")
            for s in range(12):
                a(f"s_waitcnt lgkmcnt({11-s})")
                for j in range(4):
                    a(f"v_dot2c_f32_bf16 v{10+(j&1)}, v{16+4*s+j}, v9")
        a(f"""
        s_nop 2
        v_add_f32 v10, v10, v11
        v_mov_b32 v11, v10
        s_lshl_b32 s60, s60, 7
        s_add_u32 s60, s60, {L_CS}
        v_permlane32_swap_b32 v10, v11
        v_lshl_add_u32 v12, v6, 2, s60
        v_add_f32 v10, v10, v11
        ds_write_b32 v12, v10
        s_waitcnt lgkmcnt(0)
        L_cs_done:
        """)

    def qkv(self):
        a = self.a
        L = self.lab()
        a(f"s_cmp_lg_u32 {sW}, 0\ns_cbranch_scc1 {L}")
        a(f"""
        v_lshlrev_b32 v8, 8, v2
        v_add_u32 v9, {64*256}, v8
        v_add_u32 v10, {128*256}, v8
        v_min_u32 v10, {143*256}, v10
        s_lshr_b32 s60, {sX}, 1
        s_lshl_b32 s60, s60, 6
        s_add_u32 s60, s60, {W_F4}
        """)
        self.poll([(8, "s60", 0), (9, "s60", 0), (10, "s60", 0)], 12, 4, first=2, nap=0)
        a(f"{L}:")
        a(f"s_mov_b32 s68, {W_X1}")
        a("L_qkv:")
        a(".reset_waits")
        XF, D0, D1, WF = 64, 16, 32, 208
        a(f"""
        s_lshl_b32 s75, {sLayer}, 15
        s_lshl_b32 s61, {sX}, 12
        s_add_u32 s75, s75, s61
        s_add_u32 s75, s75, {W_G9}
        s_mul_i32 s60, {sX}, {8*36864}
        s_add_u32 s60, s60, s68
        s_cmp_lg_u32 {sW}, 0
        s_cbranch_scc1 L_qkv_ns
        v_lshrrev_b32 v10, 2, v2
        v_and_b32 v11, 3, v2
        v_lshlrev_b32 v10, 8, v10
        v_lshl_add_u32 v10, v11, 4, v10
        s_lshr_b32 s61, {sJ}, 2
        s_mul_i32 s61, s61, 36864
        s_and_b32 s62, {sJ}, 3
        s_lshl_b32 s62, s62, 6
        s_add_u32 s61, s61, s62
        s_add_u32 s61, s61, s60
        """)
        for i in range(9):
            a(f"buffer_load_dwordx4 {vr(16+4*i,4)}, v10, {sWS}, s61 offen sc1")
            if i < 8:
                a("s_add_u32 s61, s61, 4096")
        a("L_qkv_ns:")
        a(f"""
        v_lshlrev_b32 v8, 4, v2
        s_mul_i32 s61, {sT}, 36864
        s_add_u32 s60, s60, s61
        s_barrier
        """)
        self.stamp(5)
        WIN = int(os.environ.get("WIN", 8))

        def ldx(s):
            a(f"buffer_load_dwordx4 {vr(XF+4*s,4)}, v8, {sWS}, s60 offen offset:{1024*(s&3)} sc1")
            if s & 3 == 3 and s < 35:
                a("s_add_u32 s60, s60, 4096")
        for s in range(WIN):
            ldx(s)
        a(f"s_cmp_lg_u32 {sW}, 0\ns_cbranch_scc1 L_qkv_ns2")
        a("v_mov_b32 v12, 0\nv_mov_b32 v13, 0\nv_mov_b32 v14, 0\nv_mov_b32 v15, 0\nv_mov_b32 v52, 0x3f803f80")
        for i in range(9):
            a(f"s_waitcnt vmcnt({8+WIN-i})")
            for j in range(4):
                r = 16 + 4 * i + j
                a(f"v_dot2c_f32_bf16 v{12+(j&2)}, v{r}, v52")
                a(f"v_dot2c_f32_bf16 v{13+(j&2)}, v{r}, v{r}")
        for m in ("row_ror:4", "row_ror:8"):
            for j in range(4):
                a(f"v_add_f32_dpp v{12+j}, v{12+j}, v{12+j} {m} row_mask:0xf bank_mask:0xf bound_ctrl:0")
        for op in ("v_permlane16_swap_b32", "v_permlane32_swap_b32"):
            for j in range(4):
                a(f"v_mov_b32 v{16+j}, v{12+j}")
            for j in range(4):
                a(f"{op} v{12+j}, v{16+j}")
            for j in range(4):
                a(f"v_add_f32 v{12+j}, v{12+j}, v{16+j}")
        self.stats(12, 13, 17, 22, 23)
        self.stats(14, 15, 21, 22, 23)
        a(f"""
        v_sub_f32 v16, 0, v12
        v_sub_f32 v20, 0, v14
        v_mov_b32 v18, s28
        v_mov_b32 v19, s29
        v_mov_b32 v22, s28
        v_mov_b32 v23, s29
        v_lshlrev_b32 v11, 5, v11
        s_lshl_b32 s61, {sJ}, 7
        s_add_u32 s61, s61, s75
        s_mov_b64 exec, 15
        buffer_store_dwordx4 v[16:19], v11, {sWS}, s61 offen sc1
        buffer_store_dwordx4 v[20:23], v11, {sWS}, s61 offen offset:16 sc1
        s_mov_b64 exec, -1
        L_qkv_ns2:
        """)

        def rdW(s):
            b = WF + 8 * (s % 3)
            a(f"ds_read_b128 {vr(b,4)}, v4 offset:{1792*s}")
            a(f"ds_read_b128 {vr(b+4,4)}, v5 offset:{1792*s}")
        rdW(0)
        rdW(1)
        a(f"""
        v_and_b32 v9, 15, v2
        v_lshlrev_b32 v9, 1, v9
        v_bfe_u32 v10, v2, 4, 1
        v_add_u32 v9, v9, v10
        v_lshlrev_b32 v9, 4, v9
        s_lshl_b32 s61, {sT}, 9
        s_add_u32 s75, s75, s61
        """)

        def swap(s):
            x = XF + 4 * s
            a(f"s_waitcnt vmcnt({min(35 - s, WIN - 1)})")
            a(f"v_permlane16_swap_b32 v{x}, v{x+2}")
            a(f"v_permlane16_swap_b32 v{x+1}, v{x+3}")
        swap(0)
        for s in range(36):
            x, b = XF + 4 * s, WF + 8 * (s % 3)
            if s % 9 == 0 and 'noprio' not in EXP:
                a(f"s_setprio {3 - s // 9}")
            if s + WIN < 36:
                ldx(s + WIN)
            if s + 1 < 36:
                swap(s + 1)
            a(f"s_waitcnt lgkmcnt({2 if s + 1 < 36 else 0})")
            if 'nomfma' not in EXP or s == 0:
                a(f"v_mfma_f32_32x32x16_bf16 {vr(D0,16)}, {vr(b,4)}, {vr(x,4)}, {vr(D0,16) if s else 0}")
                a(f"v_mfma_f32_32x32x16_bf16 {vr(D1,16)}, {vr(x,4)}, {vr(b+4,4)}, {vr(D1,16) if s else 0}")
            if s + 2 < 36:
                rdW(s + 2)
            if s == 34:
                a(f"buffer_load_dwordx4 v[10:13], v9, {sWS}, s75 offen sc1")
        self.stamp(6)
        Lp, Ld = self.lab("Ls"), self.lab("Lsd")
        a(f"""
        s_mov_b32 s96, {SPIN_MAX}
        {Lp}:
        s_waitcnt vmcnt(0)
        v_cmp_eq_u64 vcc, {sTag}, v[12:13]
        s_cmp_eq_u64 vcc, exec
        s_cbranch_scc1 {Ld}
        buffer_load_dwordx4 v[10:13], v9, {sWS}, s75 offen sc1
        s_sub_u32 s96, s96, 1
        s_cmp_lg_u32 s96, 0
        s_cbranch_scc1 {Lp}
        s_waitcnt vmcnt(0)
        """)
        self.timeout_mark(9, 12)
        a(f"{Ld}:")
        CS0, MU, RS = 64, 80, 96
        a(f"""
        v_lshrrev_b32 v7, 5, v2            ; hh
        v_lshlrev_b32 v8, 4, v7
        v_add_u32 v9, {L_CS}, v8
        v_lshlrev_b32 v15, 2, v6
        v_add_u32 v48, {L_CS+128}, v15
        """)
        for g in range(4):
            a(f"ds_read_b128 {vr(CS0+4*g,4)}, v9 offset:{32*g}")
        a(f"""
        ds_read_b32 v49, v48
        s_lshl_b32 s60, {sW}, 8
        s_add_u32 s60, s60, {L_ST}
        v_add_u32 v15, s60, v15
        v_add_u32 v8, s60, v8
        ds_write_b32 v15, v10
        ds_write_b32 v15, v11 offset:128
        """)
        for g in range(4):
            a(f"ds_read_b128 {vr(MU+4*g,4)}, v8 offset:{32*g}")
            a(f"ds_read_b128 {vr(RS+4*g,4)}, v8 offset:{128+32*g}")
        a(f"""
        v_and_b32 v50, 19, v6
        v_bfe_u32 v51, v6, 2, 1
        v_lshl_add_u32 v50, v51, 3, v50
        v_bfe_u32 v51, v6, 3, 1
        v_lshl_add_u32 v50, v51, 2, v50    ; sigma(n)
        v_lshlrev_b32 v51, 4, v50
        v_lshl_add_u32 v51, v7, 9, v51
        s_lshl_b32 s61, {sT}, 10
        v_add_u32 v51, s61, v51
        v_min_u32 v52, 19, v6
        v_cmp_eq_u32 vcc, 4, v52
        v_cmp_eq_u32 s[62:63], 19, v52
        s_mul_i32 s61, {sT}, 1280
        s_add_u32 s61, s61, {KV_V}
        v_cndmask_b32 v52, v52, 19, vcc
        v_cndmask_b32 v52, v52, 4, s[62:63]
        v_lshlrev_b32 v52, 4, v52
        v_mul_u32_u24 v53, 320, v7
        v_add_u32 v52, v52, v53
        v_add_u32 v53, s61, v52
        s_lshl_b32 s69, {sLayer}, 5
        s_add_u32 s69, s69, {sJ}
        s_lshl_b32 s69, s69, 3             ; (layer*32+head)*8
        s_add_u32 s61, s69, {sX}
        s_mul_i32 s61, s61, {KV_B}
        s_add_u32 s61, s61, {W_KV}
        v_mul_f32 v12, {f32hex(C_SCALE)}, v11
        v_mov_b32 v54, 1.0
        v_mov_b32 v55, 0
        v_and_b32 v56, 30, v6
        v_cmp_eq_u32 vcc, 18, v56
        v_cmp_eq_u32 s[62:63], 20, v56
        v_mov_b32 v57, {f32hex(C_SCALE)}
        v_cndmask_b32 v54, v54, 0, vcc
        v_cmp_eq_u32 vcc, 18, v6
        v_cndmask_b32 v54, v54, v57, s[62:63]
        s_nop 0
        v_cndmask_b32 v55, v55, 1.0, vcc
        s_waitcnt lgkmcnt(10)
        """)
        KF, QF, VF = 112, 116, 120
        for i in range(8, 16):
            a(f"v_fmac_f32 v{D0+i}, v10, v{CS0+i}")
        for i in range(8, 16):
            a(f"v_mul_f32 v{D0+i}, v11, v{D0+i}")
        for i in range(4):
            a(f"v_cvt_pk_bf16_f32 v{KF+i}, v{D0+8+2*i}, v{D0+9+2*i}")
        a(f"buffer_store_dwordx4 {vr(KF,4)}, v51, {sWS}, s61 offen sc1")
        a(f"ds_write_b128 v51, {vr(KF,4)} offset:{L_OWN}")
        a("s_waitcnt lgkmcnt(1)")
        for i in range(16):
            a(f"v_fmac_f32 v{D1+i}, v{MU+i}, v49")
        for i in range(16):
            a(f"v_mul_f32 v{D1+i}, v{RS+i}, v{D1+i}")
        for i in range(16):
            a(f"v_fma_f32 v{D1+i}, v{D1+i}, v54, v55")
        for i in range(8):
            a(f"v_cvt_pk_bf16_f32 v{VF+i}, v{D1+2*i}, v{D1+2*i+1}")
        a(f"""
        s_mov_b32 s62, 0xfffff
        s_mov_b32 s63, 0xfffff
        s_mov_b64 exec, s[62:63]
        buffer_store_dwordx4 {vr(VF,4)}, v53, {sWS}, s61 offen sc1
        buffer_store_dwordx4 {vr(VF+4,4)}, v53, {sWS}, s61 offen offset:640 sc1
        ds_write_b128 v53, {vr(VF,4)} offset:{L_OWN}
        ds_write_b128 v53, {vr(VF+4,4)} offset:{L_OWN+640}
        s_mov_b64 exec, -1
        s_lshl_b32 s62, {sT}, 7
        s_add_u32 s63, s62, {L_QR}
        s_add_u32 s62, s62, {KV_R}
        v_mov_b32 v56, s63
        v_mov_b32 v57, s62
        v_cmp_gt_u32 vcc, 22, v6
        v_and_b32 v58, 1, v6
        v_lshlrev_b32 v58, 1, v58
        v_lshl_add_u32 v58, v7, 5, v58
        v_cndmask_b32 v59, v57, v56, vcc
        v_add_u32 v58, v58, v59
        v_lshl_add_u32 v56, v50, 2, v56
        v_lshl_add_u32 v57, v6, 2, v57
        s_mov_b32 s62, 0xf00000
        s_mov_b32 s63, 0xf00000
        s_mov_b64 exec, s[62:63]
        """)
        assert L_OWN == 0
        for i in range(8):
            g, r = i >> 1, 2 * (i & 1)
            off = 64 * (g >> 1) + 16 * (g & 1) + 4 * r
            a(f"ds_write_b16 v58, v{VF+i} offset:{off}")
            a(f"ds_write_b16_d16_hi v58, v{VF+i} offset:{off+4}")
        a("s_mov_b64 exec, -1")
        R = self.R
        a(f"ds_read_b32 v60, v57\nds_read_b32 v{R.Qr}, v56")
        for i in range(8):
            a(f"v_fmac_f32 v{D0+i}, v10, v{CS0+i}")
        for i in range(8):
            a(f"v_mul_f32 v{D0+i}, v12, v{D0+i}")
        for i in range(4):
            a(f"v_cvt_pk_bf16_f32 v{R.Q+i}, v{D0+2*i}, v{D0+1+2*i}")
        a(f"""
        s_waitcnt lgkmcnt(0)
        s_mov_b32 exec_hi, 0
        buffer_store_dword v60, v57, {sWS}, s61 offen sc1
        s_mov_b64 exec, -1
        v_mov_b32 v{R.aV}, v52
        """)
        self.stamp(7)

    class Regs:
        S = [128, 160]
        O = 192
        Q = 208
        Qr = 212
        K = [8, 16]
        Kr = [24, 26]
        V = [28, 44]
        idx, aK, aR, aV = 214, 215, 216, 217

    def attention(self):
        a, R = self.a, self.R
        slot = lambda blk: L_OWN if blk == 0 else L_RING + ((blk - 2) % 3) * KV_B
        aK0, aR0, aV0 = 218, 219, 220

        def rd(kind, u, i=0):
            blk, dt = u >> 2, u & 3
            own = blk == 0
            base = slot(blk) - (0 if own else L_RING)
            buf = u & 1
            if kind == "R":
                return f"ds_read_b32 v{R.Kr[buf]}, v{aR0 if own else R.aR} offset:{base + KV_R + 256*dt}"
            if kind == "K":
                return f"ds_read_b128 {vr(R.K[buf]+4*i,4)}, v{aK0 if own else R.aK} offset:{base + 2048*dt + 1024*i}"
            return f"ds_read_b128 {vr(R.V[buf]+4*i,4)}, v{aV0 if own else R.aV} offset:{base + KV_V + 2560*dt + 640*i}"

        def m4(sb, kb):
            a(f"v_mfma_f32_32x32x4bf16_1k {vr(R.S[sb],32)}, {vr(R.Kr[kb],2)}, {vr(R.Qr,2)}, 0")

        def mf(sb, kb, hi):
            d = vr(R.S[sb] + 16 * hi, 16)
            a(f"v_mfma_f32_32x32x16_bf16 {d}, {vr(R.K[kb]+4*hi,4)}, {vr(R.Q,4)}, {d}")

        def sm(sb, vb, g):
            a(f"v_smfmac_f32_32x32x32_bf16 {vr(R.O,16)}, {vr(R.V[vb]+4*g,4)}, {vr(R.S[sb]+8*g,8)}, v{R.idx}")

        def fetch_block(blk):
            a(f"""
            s_add_u32 s60, {sX}, {blk}
            s_and_b32 s60, s60, 7
            s_add_u32 s60, s60, s69
            """)
            a(f"""
            s_lshl_b32 s61, s60, 9
            s_add_u32 s61, s61, {W_F5}
            v_and_b32 v4, 7, v2
            v_lshlrev_b32 v4, 6, v4
            """)
            self.poll([(4, "s61", 0)], 6, 5, nap=0)
            Ll = self.lab()
            a(f"""
            s_mul_i32 s60, s60, {KV_B}
            s_add_u32 s60, s60, {W_KV}
            s_mov_b32 m0, {slot(blk)}
            s_add_u32 s61, s60, {KV_B}
            {Ll}:
            buffer_load_dwordx4 v{aK0}, {sWS}, s60 offen sc1 lds
            s_add_u32 m0, m0, 1024
            s_add_u32 s60, s60, 1024
            s_cmp_lt_u32 s60, s61
            s_cbranch_scc1 {Ll}
            """)

        def on_wave(w, fn):
            if 'nofetch' in EXP:
                return
            L = self.lab()
            a(f"s_cmp_lg_u32 {sW}, {w}\ns_cbranch_scc1 {L}\ns_setprio 3")
            fn()
            a(f"{L}:")

        a(f"""
        v_lshlrev_b32 v{aK0}, 4, v2
        v_lshlrev_b32 v{aR0}, 2, v2
        v_mov_b32 v{aV0}, v{R.aV}
        v_add_u32 v{R.aK}, {L_RING}, v{aK0}
        v_add_u32 v{R.aR}, {L_RING}, v{aR0}
        v_add_u32 v{R.aV}, {L_RING}, v{aV0}
        v_mov_b32 v{R.idx}, 0xdddddddd
        v_mov_b32 v{R.Qr+1}, 0
        v_mov_b32 v{R.Kr[0]+1}, 0
        v_mov_b32 v{R.Kr[1]+1}, 0
        s_add_u32 s70, s69, {sX}
        s_lshl_b32 s70, s70, 3
        s_add_u32 s70, s70, {sW}
        s_lshl_b32 s70, s70, 6
        s_add_u32 s70, s70, {W_F5}
        """)
        for i in range(16):
            a(f"v_mov_b32 v{R.O+i}, 0")
        a(f"""
        s_lshl_b32 s83, {sW}, 10
        s_and_b32 s84, {sJ}, 7
        s_mul_i32 s84, s84, {WO_B}
        s_add_u32 s84, s84, {W_WO}
        s_add_u32 s84, s84, s83
        s_waitcnt vmcnt(0)
        """)
        self.flag_store("s70", 4)
        a("s_barrier")

        def seg_start(u):
            for l in (rd("R", u), rd("K", u, 0), rd("K", u, 1), rd("V", u, 0), rd("V", u, 1), rd("R", u + 1), rd("K", u + 1, 0),
                      rd("V", u, 2), rd("K", u + 1, 1), rd("V", u, 3)):
                a(l)

        def seg_qk():
            a("s_waitcnt lgkmcnt(7)")
            m4(0, 0)
            a("s_nop 15\ns_nop 1")
            mf(0, 0, 0)
            mf(0, 0, 1)
            a("s_nop 10")

        def piece(src, lds, off, maxw=8):
            if 'nofetch' in EXP:
                return
            L = self.lab()
            if maxw < 8:
                a(f"s_cmp_ge_u32 {sW}, {maxw}\ns_cbranch_scc1 {L}")
            a(f"s_add_u32 m0, s83, {lds + off}\ns_add_u32 s86, {src}, {off}")
            a(f"buffer_load_dwordx4 v{aK0}, {sWS}, s86 offen sc1 lds")
            if maxw < 8:
                a(f"{L}:")

        def poll_all():
            a(f"""
            s_lshl_b32 s61, s69, 9
            s_add_u32 s61, s61, {W_F5}
            v_lshlrev_b32 v4, 6, v2
            v_min_u32 v5, 17, v2
            v_lshlrev_b32 v5, 6, v5
            s_mov_b32 s60, {W_F3 + 72*64}
            """)
            self.poll([(4, "s61", 0), (5, "s60", 0)], 222, 5)
        seg_start(0)
        L = self.lab()
        a(f"s_cmp_lt_u32 {sW}, 4\ns_cbranch_scc1 {L}")
        on_wave(5, lambda: fetch_block(1))
        on_wave(4, lambda: fetch_block(2))
        a(f"s_cmp_lg_u32 {sLayer}, 0\ns_cbranch_scc1 {L}\ns_cmp_ge_u32 {sJ}, 18\ns_cbranch_scc1 {L}")
        for i in range(8):
            a(f"buffer_store_dwordx2 {vr(232+2*i,2)}, v248, {sWS}, s79 offen sc1")
            a(f"s_add_u32 s79, s79, {2*36864}")
        a(f"{L}:")
        seg_qk()
        self.stamp(8)
        for u in range(32):
            P = u & 1
            N = P ^ 1
            end = 4 if u < 4 else 32
            first = u in (0, 4)
            last = u == end - 1
            e = lambda i, j: [a(f"v_exp_f32 v{R.S[P]+k}, v{R.S[P]+k}") for k in range(i, j)]
            k2 = u + 2 < end
            v1 = u + 1 < end
            blk, dt = u >> 2, u & 3
            hook = {}
            if u == 4:
                a("s_waitcnt vmcnt(0)\ns_barrier")
                seg_start(4)
                L = self.lab()
                a(f"s_cmp_lt_u32 {sW}, 4\ns_cbranch_scc1 {L}\ns_cmp_lg_u32 {sLayer}, 0\ns_cbranch_scc1 {L}\ns_cmp_ge_u32 {sJ}, 18\ns_cbranch_scc1 {L}")
                self.flag_store("s80", 4)
                a(f"{L}:")
                on_wave(6, poll_all)
                seg_qk()
            if 1 <= blk < 7 and dt == 2 and 'nobar' not in EXP:
                a("s_waitcnt vmcnt(0)\ns_barrier")
                if blk + 2 < 8:
                    a(f"""
                    s_add_u32 s85, {sX}, {blk+2}
                    s_and_b32 s85, s85, 7
                    s_add_u32 s85, s85, s69
                    s_mul_i32 s85, s85, {KV_B}
                    s_add_u32 s85, s85, {W_KV}
                    s_add_u32 s85, s85, s83
                    """)
            if 1 <= blk < 7 and dt >= 2:
                src, lds, o = ("s85", slot(blk + 2), 0) if blk < 6 else ("s84", L_WO, 36 * 1024)
                if dt == 2:
                    hook[0] = lambda: piece(src, lds, o)
                    hook[1] = lambda: piece(src, lds, o + 8192)
                else:
                    hook[0] = lambda: piece(src, lds, o + 16384, 3)
                    if blk < 6:
                        hook[1] = lambda: piece("s84", L_WO, 8192 * (blk - 1), 8 if blk < 5 else 4)
            H = lambda k: hook.get(k, lambda: None)()
            if 'noprio' not in EXP:
                a(f"s_setprio {[2, 1, 1, 0][u] if u < 4 else 3 - ((u + 2) & 3)}")
            e(0, 2)
            if not first:
                sm(N, N, 3)
            if k2:
                a(rd("R", u + 2))
            e(2, 5)
            a(f"s_waitcnt lgkmcnt({2 if last else 3 + (1 if k2 else 0)})")
            if not last:
                m4(N, N)
            if v1:
                a(rd("V", u + 1, 0))
            H(0)
            e(5, 13)
            sm(P, P, 0)
            if v1:
                a(rd("V", u + 1, 1))
            e(13, 18)
            sm(P, P, 1)
            if k2:
                a(rd("K", u + 2, 0))
            e(18, 22)
            if not last:
                mf(N, N, 0)
            if v1:
                a(rd("V", u + 1, 2))
            H(1)
            e(22, 26)
            a(f"s_waitcnt lgkmcnt({(2 if k2 else 0) + (3 if v1 else 0)})")
            sm(P, P, 2)
            if k2:
                a(rd("K", u + 2, 1))
            e(26, 29)
            if not last:
                mf(N, N, 1)
            if v1:
                a(rd("V", u + 1, 3))
            e(29, 32)
            if last:
                a("s_nop 1")
                sm(P, P, 3)
        self.stamp(9)
        a("s_setprio 0")
        O = R.O
        a(f"""
        v_and_b32 v6, 31, v2
        v_lshrrev_b32 v7, 5, v2
        v_and_b32 v8, 15, v2
        v_lshlrev_b32 v8, 1, v8
        v_bfe_u32 v9, v2, 4, 1
        v_add_u32 v8, v8, v9               ; tau(n)
        s_lshl_b32 s60, {sT}, 5
        v_add_u32 v8, s60, v8
        v_lshlrev_b32 v9, 4, v8
        v_lshl_add_u32 v9, v7, 12, v9
        v_lshlrev_b32 v8, 2, v8
        s_lshl_b32 s60, {sLayer}, 3
        s_add_u32 s60, s60, {sX}
        s_lshl_b32 s71, s60, 5             ; (layer*8+X)*32
        s_add_u32 s60, s71, {sJ}
        s_lshl_b32 s61, s60, 13
        s_add_u32 s61, s61, {W_OM}
        s_lshl_b32 s62, s60, 10
        s_add_u32 s62, s62, {W_OR}
        s_mov_b32 s72, 0
        L_att_norm:
        s_nop 3
        v_mov_b32 v10, v{O+10}
        v_mov_b32 v11, v{O+10}
        v_add_f32 v12, abs(v{O}), abs(v{O+1})
        v_add_f32 v13, abs(v{O+2}), abs(v{O+3})
        v_permlane32_swap_b32 v10, v11
        v_add_f32 v12, v12, abs(v{O+4})
        v_add_f32 v13, v13, abs(v{O+5})
        v_add_f32 v12, v12, abs(v{O+6})
        v_add_f32 v13, v13, abs(v{O+7})
        v_add_f32 v12, v12, abs(v{O+8})
        v_add_f32 v13, v13, abs(v{O+9})
        v_add_f32 v12, v12, v13
        v_rcp_f32 v11, v10
        v_cmp_le_f32 vcc, {f32hex(2.0**-60)}, v10
        v_cmp_ge_f32 s[64:65], {"s73"}, v10
        v_cmp_ge_f32 s[66:67], {"s74"}, v12
        s_nop 0
        s_and_b64 vcc, vcc, s[64:65]
        s_and_b64 vcc, vcc, s[66:67]
        s_cmp_eq_u64 vcc, exec
        s_cbranch_scc1 L_att_ok
        s_cmp_eq_u32 s72, 0
        s_cbranch_scc1 L_att_fallback
        L_att_ok:
        """)
        for i in range(10):
            a(f"v_mul_f32 v{O+i}, v11, v{O+i}")
        for i in range(5):
            a(f"v_cvt_pk_bf16_f32 v{12+i}, v{O+2*i}, v{O+2*i+1}")
        a(f"""
        buffer_store_dwordx4 v[12:15], v9, {sWS}, s61 offen sc1
        s_mov_b32 exec_hi, 0
        buffer_store_dword v16, v8, {sWS}, s62 offen sc1
        s_mov_b64 exec, -1
        s_waitcnt vmcnt(0)
        s_barrier
        """)
        self.stamp(10)

    def fetch_wo(self, first, n, va, step=1):
        Ll = self.lab()
        self.a(f"""
        s_and_b32 s60, {sJ}, 7
        s_mul_i32 s60, s60, {WO_B}
        s_add_u32 s60, s60, {W_WO + 1024*first}
        s_add_u32 s61, s60, {1024*n}
        s_mov_b32 m0, {L_WO + 1024*first}
        """)
        if step > 1:
            self.a("s_lshl_b32 s62, s62, 10\ns_add_u32 s60, s60, s62\ns_add_u32 m0, m0, s62\ns_nop 0")
        else:
            self.a("s_nop 0")
        self.a(f"""
        {Ll}:
        buffer_load_dwordx4 v{va}, {sWS}, s60 offen sc1 lds
        s_add_u32 m0, m0, {1024*step}
        s_add_u32 s60, s60, {1024*step}
        s_cmp_lt_u32 s60, s61
        s_cbranch_scc1 {Ll}
        """)

    def fallback(self):
        a, R = self.a, self.R
        S0 = R.S[0]
        a("L_att_fallback:")
        a(".reset_waits")
        a(f"""
        s_mov_b32 s72, 1
        s_mul_i32 s75, s69, {KV_B}
        s_add_u32 s75, s75, {W_KV}
        v_mov_b32 v221, 0xff7fffff
        s_waitcnt vmcnt(0)
        """)
        for p in range(2):
            Lb = self.lab("Lfb")
            a(f"s_mov_b32 s76, 0\n{Lb}:")
            a(f"""
            s_lshr_b32 s77, s76, 2
            s_and_b32 s78, s76, 3
            s_mul_i32 s77, s77, {KV_B}
            s_add_u32 s77, s77, s75
            s_lshl_b32 s79, s78, 11
            s_add_u32 s79, s79, s77
            buffer_load_dwordx4 {vr(R.K[0]+8,4)}, v218, {sWS}, s79 offen sc1
            buffer_load_dwordx4 {vr(R.K[0]+12,4)}, v218, {sWS}, s79 offen offset:1024 sc1
            s_lshl_b32 s79, s78, 8
            s_add_u32 s79, s79, s77
            s_add_u32 s79, s79, {KV_R}
            buffer_load_dword v{R.Kr[0]}, v219, {sWS}, s79 offen sc1
            """)
            if p:
                a(f"s_mul_i32 s79, s78, 2560\ns_add_u32 s79, s79, s77\ns_add_u32 s79, s79, {KV_V}")
                for i in range(4):
                    a(f"buffer_load_dwordx4 {vr(R.V[0]+4*i,4)}, v220, {sWS}, s79 offen offset:{640*i} sc1")
            a(f"""
            s_waitcnt vmcnt(0)
            v_mfma_f32_32x32x4bf16_1k {vr(S0,32)}, {vr(R.Kr[0],2)}, {vr(R.Qr,2)}, 0
            s_nop 15
            s_nop 3
            v_mfma_f32_32x32x16_bf16 {vr(S0,16)}, {vr(R.K[0]+8,4)}, {vr(R.Q,4)}, {vr(S0,16)}
            v_mfma_f32_32x32x16_bf16 {vr(S0+16,16)}, {vr(R.K[0]+12,4)}, {vr(R.Q,4)}, {vr(S0+16,16)}
            s_nop 15
            """)
            if p == 0:
                for i in range(16):
                    a(f"v_max3_f32 v221, v221, v{S0+2*i}, v{S0+2*i+1}")
            else:
                for i in range(32):
                    a(f"v_sub_f32 v{S0+i}, v{S0+i}, v221")
                for i in range(32):
                    a(f"v_exp_f32 v{S0+i}, v{S0+i}")
                a("s_nop 1")
                for g in range(4):
                    a(f"v_smfmac_f32_32x32x32_bf16 {vr(R.O,16)}, {vr(R.V[0]+4*g,4)}, {vr(S0+8*g,8)}, v{R.idx}")
            a(f"s_add_u32 s76, s76, 1\ns_cmp_lt_u32 s76, 32\ns_cbranch_scc1 {Lb}")
            if p == 0:
                a("v_mov_b32 v222, v221\ns_nop 1\nv_permlane32_swap_b32 v221, v222\ns_nop 1\nv_max_f32 v221, v221, v222")
                for i in range(16):
                    a(f"v_mov_b32 v{R.O+i}, 0")
        a("s_nop 15\ns_branch L_att_norm")

    def outproj(self):
        a = self.a
        OF, ACC, WF, XR, YR = 64, 16, 144, 36, 46
        L = self.lab()
        a(f"""
        s_cmp_lg_u32 {sW}, 0
        s_cbranch_scc1 {L}
        s_add_u32 s60, s71, {sJ}
        s_lshl_b32 s60, s60, 6
        s_add_u32 s60, s60, {W_F6}
        """)
        self.flag_store("s60", 4)
        a(f"{L}:")
        a(f"s_cmp_ge_u32 {sW}, 4\ns_cbranch_scc1 L_op_help")
        a(f"""
        v_and_b32 v6, 15, v2
        v_lshrrev_b32 v7, 4, v2            ; g
        s_lshr_b32 s64, {sJ}, 3            ; sub
        s_and_b32 s65, {sJ}, 7             ; slice
        s_lshl_b32 s66, s64, 6
        s_lshl_b32 s67, {sT4}, 4
        s_add_u32 s66, s66, s67
        v_add_u32 v8, s66, v6
        v_lshlrev_b32 v9, 8, v7
        v_lshl_add_u32 v9, v6, 3, v9       ; g*256 + tok*8
        v_mov_b32 v11, 0x7fffffff
        v_cmp_gt_u32 vcc, 2, v7
        s_mul_i32 s60, s65, {18*256}
        s_lshl_b32 s61, {sX}, 3
        s_lshr_b32 s62, s66, 5
        s_add_u32 s61, s61, s62
        s_mul_i32 s61, s61, 36864
        s_add_u32 s60, s60, s61
        s_and_b32 s62, s66, 16
        s_lshl_b32 s62, s62, 3
        s_add_u32 s67, s60, s62
        v_cndmask_b32 v10, v11, v9, vcc
        s_mul_i32 s60, s65, {18*256}
        s_lshr_b32 s61, {sX}, 1
        s_lshl_b32 s61, s61, 6
        s_add_u32 s60, s60, s61
        s_add_u32 s60, s60, {W_F10}
        v_min_u32 v4, 17, v2
        v_lshlrev_b32 v4, 8, v4
        """)
        L = self.lab()
        a(f"s_cmp_lg_u32 {sLayer}, 0\ns_cbranch_scc1 {L}")
        self.poll([(4, "s60", 0)], 56, 10)
        a(f"{L}:")
        a(f"""
        s_add_u32 s60, s67, s68
        s_add_u32 s61, s67, {W_Y}
        """)
        for ft in range(5):
            va = 10 if ft == 4 else 9
            a(f"buffer_load_dwordx2 {vr(XR+2*ft,2)}, v{va}, {sWS}, s60 offen sc1")
            a(f"buffer_load_dwordx2 {vr(YR+2*ft,2)}, v{va}, {sWS}, s61 offen sc1")
            if ft < 4:
                a("s_add_u32 s60, s60, 1024\ns_add_u32 s61, s61, 1024")
        a(f"""
        v_lshrrev_b32 v11, 1, v7
        v_lshlrev_b32 v11, 13, v11
        v_and_b32 v12, 1, v7
        v_lshl_add_u32 v11, v12, 12, v11
        v_lshl_add_u32 v11, v8, 4, v11     ; o main
        v_lshlrev_b32 v12, 12, v7
        v_lshl_add_u32 v12, v8, 2, v12     ; o rem
        v_lshlrev_b32 v13, 4, v2           ; W ft<4
        v_and_b32 v14, 7, v2
        v_lshlrev_b32 v14, 4, v14
        v_lshl_add_u32 v14, v7, 7, v14
        v_add_u32 v14, 4096, v14           ; W ft==4
        v_add_u32 v15, {9*4608}, v13
        v_add_u32 v3, {9*4608}, v14
        """)
        L = self.lab()
        a(f"""
        s_cmp_lg_u32 {sW}, 0
        s_cbranch_scc1 {L}
        v_and_b32 v4, 31, v2
        v_lshlrev_b32 v4, 6, v4
        s_lshl_b32 s60, s71, 6
        s_add_u32 s60, s60, {W_F6}
        """)
        self.poll([(4, "s60", 0)], 56, 6, nap=0)
        a(f"{L}:")
        a(f"""
        s_barrier
        s_lshl_b32 s60, s71, 13
        s_add_u32 s60, s60, {W_OM}
        s_lshl_b32 s61, s71, 10
        s_add_u32 s61, s61, {W_OR}
        """)
        self.stamp(11)
        for s in range(16):
            a(f"buffer_load_dwordx4 {vr(OF+4*s,4)}, v11, {sWS}, s60 offen sc1")
            if s < 15:
                a("s_add_u32 s60, s60, 0x4000")
        for s in range(2):
            for i in range(4):
                a(f"buffer_load_dword v{OF+64+4*s+i}, v12, {sWS}, s61 offen offset:{1024*i} sc1")
            if s == 0:
                a("s_add_u32 s61, s61, 0x4000")

        def rdW(s):
            hi = s >= 9
            out = []
            for ft in range(5):
                va = (15 if hi else 13) if ft < 4 else (3 if hi else 14)
                off = L_WO + 4608 * (s - 9 * hi) + (1024 * ft if ft < 4 else 0)
                out.append(f"ds_read_b128 {vr(WF+20*(s%3)+4*ft,4)}, v{va} offset:{off}")
            return out
        for l in rdW(0) + rdW(1):
            a(l)
        for s in range(18):
            nxt = rdW(s + 2) if s < 16 else []
            a(f"s_waitcnt vmcnt({23-s if s < 16 else (4 if s == 16 else 0)}) lgkmcnt({5 if s < 17 else 0})")
            for ft in range(5):
                d = vr(ACC + 4 * ft, 4)
                a(f"v_mfma_f32_16x16x32_bf16 {d}, {vr(WF+20*(s%3)+4*ft,4)}, {vr(OF+4*s,4)}, {d if s else 0}")
                if nxt:
                    a(nxt[ft])
        self.stamp(12)
        XF, YF = 64, 84
        a("s_mov_b32 s63, 0xffff0000")
        for i in range(10):
            a(f"v_lshlrev_b32 v{XF+2*i}, 16, v{XR+i}")
            a(f"v_and_b32 v{XF+2*i+1}, s63, v{XR+i}")
        for i in range(20):
            a(f"v_add_f32 v{XF+i}, v{XF+i}, v{ACC+i}")
        a(f"s_cmp_lg_u32 {sLayer}, 0\ns_cbranch_scc1 L_op_final")
        a("v_cmp_gt_u32 vcc, 2, v7\nv_mov_b32 v16, 0\nv_mov_b32 v17, 0")
        for i in range(16, 20):
            a(f"v_cndmask_b32 v{XF+i}, 0, v{XF+i}, vcc")
        for i in range(20):
            a(f"v_add_f32 v16, v16, v{XF+i}")
            a(f"v_fmac_f32 v17, v{XF+i}, v{XF+i}")

        def xsum():
            for op in ("v_permlane16_swap_b32", "v_permlane32_swap_b32"):
                a(f"""
                v_mov_b32 v20, v16
                v_mov_b32 v21, v17
                s_nop 1
                {op} v16, v20
                {op} v17, v21
                s_nop 0
                v_add_f32 v16, v16, v20
                v_add_f32 v17, v17, v21
                """)
        xsum()
        a(f"""
        v_mov_b32 v18, s28
        v_mov_b32 v19, s29
        s_lshl_b32 s60, {sX}, 2
        s_add_u32 s60, s60, s64
        s_lshl_b32 s60, s60, 13
        s_add_u32 s60, s60, {W_G7}
        s_lshl_b32 s61, {sT4}, 8
        s_add_u32 s60, s60, s61
        s_lshl_b32 s61, s65, 10
        s_add_u32 s61, s61, s60
        v_lshlrev_b32 v4, 4, v6
        s_mov_b64 exec, 0xffff
        buffer_store_dwordx4 v[16:19], v4, {sWS}, s61 offen sc1
        s_mov_b64 exec, -1
        v_lshl_add_u32 v4, v7, 10, v4
        s_add_u32 s61, s60, 4096
        """)
        for i in range(10):
            a(f"v_lshlrev_b32 v{YF+2*i}, 16, v{YR+i}")
            a(f"v_and_b32 v{YF+2*i+1}, s63, v{YR+i}")
        Lp, Ld = self.lab("Lg"), self.lab("Lgd")
        a(f"""
        s_mov_b32 s96, {SPIN_MAX}
        {Lp}:
        buffer_load_dwordx4 v[24:27], v4, {sWS}, s60 offen sc1
        buffer_load_dwordx4 v[28:31], v4, {sWS}, s61 offen sc1
        s_waitcnt vmcnt(0)
        v_cmp_eq_u64 vcc, {sTag}, v[26:27]
        v_cmp_eq_u64 s[94:95], {sTag}, v[30:31]
        s_and_b64 vcc, vcc, s[94:95]
        s_cmp_eq_u64 vcc, exec
        s_cbranch_scc1 {Ld}
        s_sub_u32 s96, s96, 1
        s_cmp_lg_u32 s96, 0
        s_cbranch_scc1 {Lp}
        """)
        self.timeout_mark(7, 20)
        a(f"{Ld}:")
        a("v_add_f32 v16, v24, v28\nv_add_f32 v17, v25, v29")
        xsum()
        self.stats(16, 17, 18, 19, 20)
        for i in range(20):
            a(f"v_fma_f32 v{ACC+6+i}, v{XF+i}, v18, v19")
        for i in range(20):
            a(f"v_fmac_f32 v{XF+i}, v{ACC+6+i}, v{YF+i}")
        a(f"s_add_u32 s60, s67, {W_X3}")
        for ft in range(5):
            a(f"v_cvt_pk_bf16_f32 v{YF+2*ft}, v{XF+4*ft}, v{XF+4*ft+1}")
            a(f"v_cvt_pk_bf16_f32 v{YF+2*ft+1}, v{XF+4*ft+2}, v{XF+4*ft+3}")
            a(f"buffer_store_dwordx2 {vr(YF+2*ft,2)}, v{10 if ft == 4 else 9}, {sWS}, s60 offen sc1")
            if ft < 4:
                a("s_add_u32 s60, s60, 1024")
        a(f"""
        s_lshl_b32 s60, {sX}, 5
        s_add_u32 s60, s60, {sJ}
        s_lshl_b32 s60, s60, 2
        s_add_u32 s60, s60, {sW}
        s_lshl_b32 s60, s60, 6
        s_add_u32 s60, s60, {W_F8}
        s_waitcnt vmcnt(0)
        """)
        self.flag_store("s60", 20)
        self.stamp(13)
        L = self.lab()
        a(f"""
        s_cmp_lg_u32 {sW}, 0
        s_cbranch_scc1 {L}
        v_lshlrev_b32 v8, 6, v2
        s_lshl_b32 s60, {sX}, 13
        s_add_u32 s60, s60, {W_F8}
        s_add_u32 s61, s60, 4096
        """)
        self.poll([(8, "s60", 0), (8, "s61", 0)], 12, 8, nap=0)
        a(f"{L}:")
        a("s_branch L_next_layer")

        a("L_op_help:")
        a(".reset_waits")
        a(f"s_sub_u32 s62, {sW}, 4")
        self.fetch_wo(55, 26, 218, step=4)
        a("s_waitcnt vmcnt(0)\ns_barrier")
        a(f"s_cmp_lg_u32 {sLayer}, 0\ns_cbranch_scc1 L_end")
        a("L_next_layer:")
        a(f"""
        s_mov_b32 {sLayer}, 1
        s_mov_b32 s68, {W_X3}
        v_lshlrev_b32 v4, 4, v2
        v_add_u32 v4, {L_WQ}, v4
        v_and_b32 v6, 31, v2
        v_min_u32 v5, 23, v6
        v_lshlrev_b32 v5, 4, v5
        v_lshrrev_b32 v7, 5, v2
        v_mul_u32_u24 v7, 384, v7
        v_add_u32 v5, v5, v7
        v_add_u32 v5, {L_WQ+1024}, v5
        """)
        if self.stop == "gate2":
            a("s_branch L_end")
        a("s_branch L_qkv")

        a("L_op_final:")
        a(".reset_waits")
        self.srd(sA, "out", NB)
        a(f"""
        s_lshl_b32 s60, {sX}, 8
        v_add_u32 v8, s60, v8
        v_mul_u32_u24 v8, 1152, v8
        v_lshl_add_u32 v8, v7, 3, v8
        v_mov_b32 v11, 0x7fffffff
        v_cmp_gt_u32 vcc, 2, v7
        s_mul_i32 s60, s65, 144
        s_nop 0
        v_cndmask_b32 v9, v11, v8, vcc
        """)
        for ft in range(5):
            a(f"v_cvt_pk_bf16_f32 v{YF+2*ft}, v{XF+4*ft}, v{XF+4*ft+1}")
            a(f"v_cvt_pk_bf16_f32 v{YF+2*ft+1}, v{XF+4*ft+2}, v{XF+4*ft+3}")
            a(f"buffer_store_dwordx2 {vr(YF+2*ft,2)}, v{9 if ft == 4 else 8}, {sA}, s60 offen offset:{32*ft}")
        a(f"""
        s_or_b32 s60, s2, {sW}
        s_cmp_lg_u32 s60, 0
        s_cbranch_scc1 L_end
        s_mov_b32 s60, {W_NONCE}
        """)
        self.flag_store("s60", 20)

    def build(self):
        a = self.a
        self.R = G.Regs
        self.prologue()
        self.prep()
        self.finish_if("prep")
        self.conv()
        self.relayout()
        self.colsum()
        self.finish_if("conv")
        a(f"s_mov_b32 s73, {f32hex(2.0**60)}\ns_mov_b32 s74, {f32hex(2.0**120)}")
        self.qkv()
        if self.stop == "qkv":
            a("s_waitcnt vmcnt(0)\ns_branch L_end")
        self.attention()
        self.finish_if("attn")
        self.outproj()
        a("L_end:")
        if self.ts:
            self.stamp(15)
            a(f"""
            s_lshl_b32 s60, s2, 3
            s_add_u32 s60, s60, {sW}
            s_lshl_b32 s60, s60, 8
            s_add_u32 s60, s60, {W_TS}
            v_lshlrev_b32 v4, 2, v2
            buffer_store_dword v255, v4, {sWS}, s60 offen
            """)
        a("s_waitcnt vmcnt(0)")
        a("L_exit:")
        a("s_endpgm")
        self.fallback()
        a("L_code_end:")
        lines, added = fix_hazards(a.lines, verbose=True, tag="k")
        errs = check_waits(lines, "k")
        for e in errs:
            print(e)
        lines = [l for l in lines if not l.startswith(".reset_waits")]
        a.lines = lines
        body = a.text().replace("CODE_AFTER", "(L_code_end-L_pc_here)")
        ref = open(f"cdna_kernels/{NAME}.s.ref").read()
        head = ref[:ref.index("; Override launch")]
        txt = head + f"""; @launch grid=(256,1,1) block=(512,1,1) lds={LDS_BYTES}
.amdgcn_target "amdgcn-amd-amdhsa--gfx950"
.text
.globl {NAME}_kernel
.p2align 12
.type {NAME}_kernel,@function
{NAME}_kernel:
""" + body + f""".section .rodata,"a"
.p2align 6
.amdhsa_kernel {NAME}_kernel
  .amdhsa_next_free_vgpr 256
  .amdhsa_next_free_sgpr 102
  .amdhsa_accum_offset 256
  .amdhsa_group_segment_fixed_size 0
  .amdhsa_kernarg_size 96
  .amdhsa_user_sgpr_count 2
  .amdhsa_user_sgpr_kernarg_segment_ptr 1
  .amdhsa_system_sgpr_workgroup_id_x 1
.end_amdhsa_kernel
"""
        return txt, errs


if __name__ == "__main__":
    out = sys.argv[1]
    stop = None
    ts = False
    for x in sys.argv[2:]:
        if x == "ts":
            ts = True
        else:
            stop = x
    txt, errs = G(stop, ts).build()
    open(out, "w").write(txt)
    print("written", out, len(txt), "bytes;", len(errs), "wait errors")
```

```python
import sys
from asmlib import Asm, fix_hazards, check_waits

NAME = "interleave_layers__ssm_conv_h3__softmax_full_mha__prompt"
S, D = 2048, 576
NB = S * D * 2

W_NONCE = 0
W_F1 = 0x1000
W_F3 = 0x5000
W_F2 = 0x6C000
W_F4 = 0x8000
W_F5 = 0x12000
W_F6 = 0x52000
W_F8 = 0x5A000
W_G7 = 0x70000
W_ST0 = 0xB0000
W_F10 = 0x110000
W_G9 = 0x100000
W_TS = 0x140000
W_U = 0x200000
W_WQ = 0x500000
W_WO = 0x700000
W_X1 = 0x800000
W_X0 = 0x2000000
W_Y = 0xB00000
W_X3 = 0xE00000
W_KV = 0x1100000
W_OM = 0x1B00000
W_OR = 0x1F00000
W_SIZE = 0x2400000
WQ_B, WO_B, KV_B = 64512, 82944, 19456
KV_V, KV_R = 8192, 18432

L_HC, HC_B = 0, 4160
L_U, U_B = 66560, 4608
L_WO = 0
L_OWN = 0
L_RING = 37632
L_CS = 96000
L_ST = 96256
L_QR = 98304
L_WQ = 99328
L_PK = L_WQ
L_PV = L_WQ + 10240
L_CNT = L_CS
L_PX = L_PV + 9216
LDS_BYTES = 163840

sWS = "s[4:7]"
sA, sB, sC, sD_ = "s[8:11]", "s[12:15]", "s[16:19]", "s[20:23]"
sX, sJ, sW, sLayer = "s24", "s25", "s26", "s27"
sT, sT4 = "s30", "s31"
sTag = "s[28:29]"
sP = 32
PTR = dict(q=32, k=34, v=36, sk=38, h=40, dd=42, bx=44, wqkv=46, wo=48, out=50, dbg=52, ws=54)
SPIN_MAX = 400000

C_SCALE = 18 ** -0.5 * 1.4426950408889634


def f32hex(x):
    import struct
    return "0x%08x" % struct.unpack("<I", struct.pack("<f", x))[0]


def vr(a, n):
    return f"v[{a}:{a+n-1}]" if n > 1 else f"v{a}"


import os
EXP = os.environ.get('EXP', '').split(',')


class G:
    def __init__(self, stop=None, ts=False):
        self.a = Asm()
        self.stop = stop
        self.ts = ts
        self.nlab = 0

    def lab(self, p="L"):
        self.nlab += 1
        return f"{p}_{self.nlab}"

    def srd(self, s, ptr, nbytes):
        b = int(s[2:s.index(":")])
        p = PTR[ptr]
        self.a(f"s_mov_b32 s{b}, s{p}\ns_mov_b32 s{b+1}, s{p+1}\ns_mov_b32 s{b+2}, {nbytes}\ns_mov_b32 s{b+3}, 0x20000")

    def stamp(self, i):
        if not self.ts:
            return
        self.a(f"s_memrealtime s[98:99]\ns_memtime s[92:93]\ns_lshl_b32 s97, {sLayer}, 4\ns_add_u32 m0, s97, {i}\ns_waitcnt lgkmcnt(0)\nv_writelane_b32 v255, s98, m0\ns_add_u32 m0, m0, 32\ns_nop 0\nv_writelane_b32 v255, s92, m0")

    def flag_store(self, soff, vtmp):
        self.a(f"""
        v_mov_b32 v{vtmp}, s28
        v_mov_b32 v{vtmp+1}, s29
        v_mov_b32 v{vtmp+2}, 0
        s_mov_b64 exec, 1
        buffer_store_dwordx2 {vr(vtmp,2)}, v{vtmp+2}, {sWS}, {soff} offen sc1
        s_mov_b64 exec, -1
        """)

    def poll(self, loads, vt, code, first=0, nap=1):
        a = self.a
        L, Ld = self.lab("Lpoll"), self.lab("Lpolld")
        a(f"s_mov_b32 s96, {SPIN_MAX}")
        if first:
            L1, L1d = self.lab("Lp1"), self.lab("Lp1d")
            va, so, im = loads[0]
            a(f"""
            s_mov_b64 exec, 1
            {L1}:
            buffer_load_dwordx2 {vr(vt,2)}, v{va}, {sWS}, {so} offen offset:{im} sc1
            s_waitcnt vmcnt(0)
            v_cmp_eq_u64 vcc, {sTag}, {vr(vt,2)}
            s_cmp_lg_u64 vcc, 0
            s_cbranch_scc1 {L1d}
            s_sleep {first}
            s_sub_u32 s96, s96, 1
            s_cmp_gt_u32 s96, 1
            s_cbranch_scc1 {L1}
            {L1d}:
            s_mov_b64 exec, -1
            """)
        a(f"{L}:")
        for i, (va, so, im) in enumerate(loads):
            a(f"buffer_load_dwordx2 {vr(vt+2*i,2)}, v{va}, {sWS}, {so} offen offset:{im} sc1")
        a("s_waitcnt vmcnt(0)")
        for i in range(len(loads)):
            if i == 0:
                a(f"v_cmp_ne_u64 vcc, {sTag}, {vr(vt,2)}")
            else:
                a(f"v_cmp_ne_u64 s[94:95], {sTag}, {vr(vt+2*i,2)}\ns_or_b64 vcc, vcc, s[94:95]")
        a(f"""
        s_cmp_eq_u64 vcc, 0
        s_cbranch_scc1 {Ld}
        s_mov_b64 exec, vcc
        """)
        if nap:
            a(f"s_sleep {nap}")
        a(f"""
        s_sub_u32 s96, s96, 1
        s_cmp_lg_u32 s96, 0
        s_cbranch_scc1 {L}
        """)
        self.timeout_mark(code, vt)
        a(f"{Ld}:\ns_mov_b64 exec, -1")

    def timeout_mark(self, code, vt):
        self.a(f"""
        v_mov_b32 v{vt}, {code}
        v_mov_b32 v{vt+1}, 0
        global_store_dword v{vt+1}, v{vt}, s[{PTR['dbg']}:{PTR['dbg']+1}]
        s_waitcnt vmcnt(0)
        """)

    def finish_if(self, name):
        if self.stop == name:
            self.a("s_branch L_end")

    def prologue(self):
        a = self.a
        a(f"""
        s_cmp_ge_u32 s2, 256
        s_cbranch_scc1 L_exit
        s_load_dwordx16 s[32:47], s[0:1], 0
        s_load_dwordx8 s[48:55], s[0:1], 64
        s_getpc_b64 s[16:17]
        L_pc_here:
        s_and_b32 s17, s17, 0xffff
        s_mov_b32 s18, CODE_AFTER
        s_mov_b32 s19, 0x20000
        s_lshr_b32 s3, s2, 3
        s_lshl_b32 s3, s3, 10
        v_lshlrev_b32 v1, 7, v0
        v_cmp_gt_u32 vcc, 8, v0
        v_bfrev_b32 v2, -2
        v_cndmask_b32 v1, v2, v1, vcc
        buffer_load_dword v254, v1, {sC}, s3 offen
        v_lshrrev_b32 v1, 6, v0
        v_and_b32 v2, 63, v0
        s_and_b32 {sX}, s2, 7
        v_readfirstlane_b32 {sW}, v1
        s_lshr_b32 {sJ}, s2, 3
        s_mov_b32 {sLayer}, 0
        s_add_u32 {sT}, {sW}, {sJ}
        s_and_b32 {sT4}, {sT}, 3
        s_and_b32 {sT}, {sT}, 7
        s_waitcnt lgkmcnt(0)
        """)
        self.srd(sWS, "ws", W_SIZE)
        a("v_mov_b32 v248, 0")
        if self.ts:
            a("v_mov_b32 v255, 0")

    def div9(self, vidx, vrow, vj):
        self.a(f"""
        v_mul_hi_u32 v{vrow}, v{vidx}, s64
        v_mul_u32_u24 v{vj}, 9, v{vrow}
        v_sub_u32 v{vj}, v{vidx}, v{vj}
        """)

    def prep(self):
        a = self.a
        HR = 128
        self.stamp(0)
        a(f"s_load_dwordx2 {sTag}, s[54:55], {W_NONCE}")
        self.srd(sA, "k", NB)
        self.srd(sB, "v", NB)
        a(f"""
        s_mov_b32 s64, 0x1c71c71d
        s_mul_i32 s60, {sJ}, {64*1152}
        s_mul_i32 s61, {sX}, 144
        s_add_u32 s60, s60, s61
        s_sub_u32 s61, s60, {4*1152}
        """)
        self.div9(0, 3, 4)
        a(f"""
        v_mul_u32_u24 v3, 1152, v3
        v_lshl_add_u32 v5, v4, 4, v3
        v_add_u32 v6, s61, v5
        s_lshl_b32 s62, {sW}, 10
        s_add_u32 m0, s62, {L_PK}
        v_add_u32 v7, 512, v0
        buffer_load_dwordx4 v6, {sA}, 0 offen lds
        s_add_u32 m0, s62, {L_PV}
        s_cmp_ge_u32 {sW}, 3
        buffer_load_dwordx4 v5, {sB}, s60 offen lds
        s_cbranch_scc1 L_prep_d3
        s_cmp_eq_u32 {sW}, 2
        s_cbranch_scc1 L_prep_d2
        """)
        self.div9(7, 3, 4)
        a(f"""
        v_mul_u32_u24 v3, 1152, v3
        v_lshl_add_u32 v5, v4, 4, v3
        v_add_u32 v6, s61, v5
        s_add_u32 m0, s62, {L_PK+8192}
        s_nop 0
        buffer_load_dwordx4 v6, {sA}, 0 offen lds
        s_branch L_prep_d3
        L_prep_d2:
        v_add_u32 v7, 512, v2
        """)
        self.div9(7, 3, 4)
        a(f"""
        v_mul_u32_u24 v3, 1152, v3
        v_lshl_add_u32 v5, v4, 4, v3
        s_mov_b32 m0, {L_PV+8192}
        s_nop 0
        buffer_load_dwordx4 v5, {sB}, s60 offen lds
        L_prep_d3:
        s_cmp_ge_u32 {sW}, 5
        s_cbranch_scc1 L_prep_other
        """)
        self.sk_load()
        a("s_waitcnt vmcnt(0)")
        a(f"""
        v_bfe_u32 v5, v2, 2, 2
        v_lshl_add_u32 v5, v4, 3, v5      ; 8G + j
        v_mul_u32_u24 v5, 144, v5
        v_and_b32 v6, 3, v2
        v_lshl_add_u32 v5, v6, 3, v5
        s_lshl_b32 s62, {sW}, 5
        s_add_u32 s62, s62, {L_PK}
        v_add_u32 v5, s62, v5
        s_waitcnt lgkmcnt(0)
        """)
        self.stamp(19)
        a("s_barrier")
        self.stamp(16)
        KR, VR_, KF, AC, WT = 12, 24, 32, 56, 72
        for o in range(2):
            for i in range(3):
                a(f"ds_read_b64_tr_b16 {vr(KR+6*o+2*i,2)}, v5 offset:{4608*o+576*i}")
            for i in range(2):
                a(f"ds_read_b64_tr_b16 {vr(VR_+4*o+2*i,2)}, v5 offset:{L_PV-L_PK+4608*o+576*i}")
        a(f"""
        s_mov_b32 s65, 0xffff0000
        v_lshlrev_b32 v{WT}, 16, v10
        v_and_b32 v{WT+1}, s65, v10
        v_lshlrev_b32 v{WT+2}, 16, v11
        v_and_b32 v{WT+3}, s65, v11
        v_lshlrev_b32 v6, 12, v3
        v_lshl_add_u32 v6, v4, 4, v6
        v_mov_b32 v7, 0x7fffffff
        s_mul_i32 s62, {sW}, 16
        v_add_u32 v8, s62, v3
        v_cmp_gt_u32 vcc, 72, v8
        s_lshl_b32 s62, s61, 12
        s_lshl_b32 s63, {sJ}, 7
        s_add_u32 s62, s62, s63
        s_add_u32 s62, s62, {W_U}
        v_cndmask_b32 v6, v7, v6, vcc
        """)
        for o in range(2):
            a(f"s_waitcnt lgkmcnt({7 if o == 0 else 2})")
            kf = KF + 12 * o
            for d in range(6):
                if d:
                    a(f"v_lshlrev_b32 v{kf+2*d}, 16, v{KR+6*o+d}")
                a(f"v_and_b32 v{kf+2*d+1}, s65, v{KR+6*o+d}")
            ac = AC + 8 * o
            for t in range(8):
                a(f"v_mul_f32 v{ac+t}, v{WT}, v{kf+4+t}")
            for i in range(1, 4):
                for t in range(8):
                    a(f"v_fmac_f32 v{ac+t}, v{WT+i}, v{kf+4+t-i}")
            a(f"s_waitcnt lgkmcnt({5 if o == 0 else 0})")
            for d in range(4):
                a(f"v_lshlrev_b32 v{kf+2*d}, 16, v{VR_+4*o+d}")
                a(f"v_and_b32 v{kf+2*d+1}, s65, v{VR_+4*o+d}")
            for t in range(8):
                a(f"v_mul_f32 v{ac+t}, v{ac+t}, v{kf+t}")
            for d in range(4):
                a(f"v_cvt_pk_bf16_f32 v{76+4*o+d}, v{ac+7-2*d}, v{ac+6-2*d}")
            a(f"buffer_store_dwordx4 {vr(76+4*o,4)}, v6, {sWS}, s62 offen offset:{64*o} sc1")
        self.stamp(17)
        a("s_add_u32 s28, s28, 1\ns_addc_u32 s29, s29, 0")
        self.arrive(L_CNT, 4, W_F1, f"s_lshl_b32 s60, {sX}, 5\ns_add_u32 s60, s60, {sJ}")
        a(f"""
        s_mov_b32 s81, 256
        s_cmp_lt_u32 {sW}, 4
        s_cbranch_scc1 L_prep_done
        s_sub_u32 s67, {sW}, 4
        s_cmp_ge_u32 {sJ}, 18
        s_cbranch_scc1 L_prep_done
        s_barrier                        ; B2
        s_branch L_prep_done
        """)

        a("L_prep_other:")
        a(".reset_waits")
        a(f"""
        v_mov_b32 v6, 0
        v_mov_b32 v8, {L_CNT}
        ds_write_b32 v8, v6
        s_sub_u32 s67, {sW}, 4
        s_mul_i32 s66, {sX}, 18
        s_add_u32 s66, s66, {sJ}
        s_cmp_ge_u32 {sJ}, 18
        s_cbranch_scc1 L_prep_w
        """)
        self.srd(sD_, "h", NB)
        a(f"""
        v_lshlrev_b32 v9, 4, v2
        s_sub_u32 s61, {sW}, 5
        s_lshl_b32 s63, s66, 2
        s_add_u32 s63, s63, s61
        s_lshl_b32 s63, s63, 12
        s_mov_b32 s81, s66
        """)

        def hload(hr):
            for i in range(4):
                b = hr + 10 * i
                a(f"buffer_load_dwordx4 {vr(b,4)}, v9, {sD_}, s63 offen offset:{1024*i}")
                a(f"buffer_load_dwordx4 {vr(b+4,4)}, v9, {sD_}, s63 offen offset:{1024*i+4}")
                a(f"buffer_load_dword v{b+8}, v9, {sD_}, s63 offen offset:{1024*i+20}")
        B0 = "s_barrier\ns_add_u32 s28, s28, 1\ns_addc_u32 s29, s29, 0"
        hload(HR)
        a(f"s_cmp_lg_u32 {sW}, 7\ns_cbranch_scc1 L_prep_h6\ns_add_u32 s63, s63, 4096")
        hload(HR + 40)
        a(f"s_waitcnt vmcnt(24) lgkmcnt(0)\n{B0}\ns_mov_b32 s61, 3\ns_waitcnt vmcnt(0)")
        self.build_h(HR + 40)
        a(f"""
        s_branch L_prep_h5
        L_prep_h6:
        s_cmp_lg_u32 {sW}, 5
        s_cbranch_scc1 L_prep_h7
        """)
        self.x0_issue()
        a(f"""
        s_waitcnt vmcnt(21) lgkmcnt(0)
        {B0}
        s_waitcnt vmcnt(9)
        s_branch L_prep_h5
        L_prep_h7:
        s_waitcnt vmcnt(12) lgkmcnt(0)
        {B0}
        s_waitcnt vmcnt(0)
        L_prep_h5:
        s_sub_u32 s61, {sW}, 5
        """)
        self.build_h(HR)
        a(f"s_cmp_lg_u32 {sW}, 5\ns_cbranch_scc1 L_prep_h8")
        self.x0_stats()
        a("L_prep_h8:\ns_waitcnt lgkmcnt(0)")
        self.stamp(14)
        a(f"s_barrier\ns_cmp_lg_u32 {sW}, 5\ns_cbranch_scc1 L_prep_done")
        self.x0_store()
        a("s_waitcnt vmcnt(0)")
        self.flag_store("s82", 10)
        a("s_branch L_prep_done")
        a(f"""
        L_prep_w:
        .reset_waits
        s_mul_i32 s70, {sX}, 14
        s_add_u32 s70, s70, {sJ}
        s_sub_u32 s70, s70, {18+72}
        s_mul_i32 s81, s70, 3
        s_add_u32 s81, s81, s67
        s_add_u32 s81, s81, 143
        s_cmp_lt_i32 s70, 0
        s_cselect_b32 s81, 256, s81
        s_cbranch_scc1 L_prep_wq
        s_cmp_ge_u32 s81, 256
        s_cbranch_scc1 L_prep_w0
        """)
        self.x0_issue()
        a(f"s_waitcnt vmcnt(9) lgkmcnt(0)\n{B0}")
        self.x0_stats()
        a(f"""
        s_branch L_prep_done
        L_prep_wq:
        .reset_waits
        s_cmp_lt_u32 {sW}, 6
        s_cbranch_scc1 L_prep_w0
        """)
        self.dma_wraw("q")
        a(f"""
        s_waitcnt vmcnt(18) lgkmcnt(0)
        {B0}
        s_branch L_prep_done
        L_prep_w0:
        s_waitcnt vmcnt(0) lgkmcnt(0)
        {B0}
        """)
        a("L_prep_done:")
        a(".reset_waits")
        self.stamp(1)

    def x0_issue(self):
        a = self.a
        self.srd(sC, "q", NB)
        a(f"""
        s_mul_i32 s61, s81, {8*1152}
        v_lshrrev_b32 v3, 3, v2
        v_and_b32 v4, 7, v2
        v_mul_u32_u24 v5, 1152, v3
        v_lshl_add_u32 v5, v4, 4, v5
        """)
        for i in range(9):
            a(f"buffer_load_dwordx4 {vr(28+4*i,4)}, v5, {sC}, s61 offen offset:{128*i}")

    def x0_stats(self):
        a = self.a
        a("v_mov_b32 v6, 0\nv_mov_b32 v7, 0\nv_mov_b32 v8, 0x3f803f80")
        for i in range(9):
            a(f"s_waitcnt vmcnt({8-i})")
            for j in range(4):
                r = 28 + 4 * i + j
                a(f"v_dot2c_f32_bf16 v6, v{r}, v8")
                a(f"v_dot2c_f32_bf16 v7, v{r}, v{r}")
        for m in ("quad_perm:[1,0,3,2]", "quad_perm:[2,3,0,1]", "row_half_mirror"):
            a(f"v_add_f32_dpp v6, v6, v6 {m} row_mask:0xf bank_mask:0xf bound_ctrl:0")
            a(f"v_add_f32_dpp v7, v7, v7 {m} row_mask:0xf bank_mask:0xf bound_ctrl:0")
        self.stats(6, 7, 26, 27, 12)

    def x0_store(self):
        a = self.a
        a(f"""
        s_lshl_b32 s63, s81, 6
        s_add_u32 s82, s63, {W_F2}
        s_add_u32 s63, s63, {W_ST0}
        v_lshrrev_b32 v3, 3, v2
        v_and_b32 v4, 7, v2
        v_lshlrev_b32 v9, 3, v3
        v_lshl_add_u32 v5, v4, 9, v9
        v_cmp_eq_u32 vcc, 0, v4
        s_lshr_b32 s60, s81, 2
        s_mul_i32 s60, s60, 36864
        s_and_b32 s61, s81, 3
        s_lshl_b32 s61, s61, 6
        s_add_u32 s60, s60, s61
        s_add_u32 s60, s60, {W_X0}
        s_mov_b64 exec, vcc
        buffer_store_dwordx2 v[26:27], v9, {sWS}, s63 offen sc1
        s_mov_b64 exec, -1
        """)
        for i in range(9):
            a(f"buffer_store_dwordx2 {vr(28+4*i,2)}, v5, {sWS}, s60 offen sc1")
            a(f"buffer_store_dwordx2 {vr(30+4*i,2)}, v5, {sWS}, s60 offen offset:256 sc1")
            if i < 8:
                a("s_add_u32 s60, s60, 4096")

    def sk_load(self):
        self.srd(sC, "sk", D * 8)
        self.a(f"""
        v_and_b32 v3, 15, v2
        v_lshrrev_b32 v4, 4, v2           ; G
        s_mul_i32 s61, {sX}, 72
        s_lshl_b32 s62, {sW}, 4
        s_add_u32 s61, s61, s62
        v_add_u32 v5, s61, v3
        v_lshlrev_b32 v5, 3, v5
        buffer_load_dwordx2 v[10:11], v5, {sC}, 0 offen
        """)

    def arrive(self, cnt, last, base, index, vm=0):
        L = self.lab()
        self.a(f"""
        v_mov_b32 v8, {cnt}
        v_mov_b32 v9, 1
        s_waitcnt vmcnt({vm})
        s_mov_b64 exec, 1
        ds_add_rtn_u32 v9, v8, v9
        s_mov_b64 exec, -1
        {index}
        s_lshl_b32 s60, s60, 6
        s_add_u32 s60, s60, {base}
        s_waitcnt lgkmcnt(0)
        v_readfirstlane_b32 s61, v9
        s_cmp_lg_u32 s61, {last}
        s_cbranch_scc1 {L}
        """)
        self.flag_store("s60", 10)
        self.a(f"{L}:")

    def build_h(self, HR):
        a = self.a
        T = 84
        a(f"""
        s_mul_i32 s63, s61, {4*HC_B}
        s_add_u32 s63, s63, {L_HC+32}
        v_lshl_add_u32 v7, v2, 4, s63
        v_readlane_b32 s60, v{HR}, 0
        v_readlane_b32 s62, v{HR+1}, 0
        """)
        for i in range(4):
            A, B, E = HR + 10 * i, HR + 10 * i + 4, HR + 10 * i + 8
            t = T + 8 * (i & 1)
            a(f"ds_write_b128 v7, {vr(A,4)} offset:{1024*i}")
            a(f"ds_write_b128 v7, {vr(B,4)} offset:{2*HC_B+1024*i}")
            for j in range(4):
                a(f"v_alignbyte_b32 v{t+j}, v{B+j}, v{A+j}, 2")
            for j in range(4):
                a(f"v_alignbyte_b32 v{t+4+j}, v{B+j+1 if j < 3 else E}, v{B+j}, 2")
            a(f"ds_write_b128 v7, {vr(t,4)} offset:{HC_B+1024*i}")
            a(f"ds_write_b128 v7, {vr(t+4,4)} offset:{3*HC_B+1024*i}")
        a(f"""
        v_mov_b32 v16, s60
        v_mov_b32 v17, s62
        v_mov_b32 v18, 0
        v_mov_b32 v19, 0
        v_mov_b32 v20, 0
        v_mov_b32 v21, 0
        v_lshlrev_b32 v8, 4, v2
        v_sub_u32 v8, 64, v8
        v_cmp_eq_u32 vcc, 0, v2
        v_lshlrev_b64 v[22:23], v8, v[16:17]
        s_sub_u32 s63, s63, 32
        v_mul_u32_u24 v7, {HC_B}, v2
        v_add_u32 v7, s63, v7
        v_cndmask_b32 v22, v22, v18, vcc
        v_cndmask_b32 v23, v23, v18, vcc
        s_mul_i32 s63, s61, {U_B}
        s_add_u32 s63, s63, {L_U}
        v_lshl_add_u32 v8, v2, 3, s63
        ds_write_b64 v8, v[18:19]
        s_mov_b64 exec, 15
        ds_write_b128 v7, v[18:21]
        ds_write_b128 v7, v[20:23] offset:16
        s_mov_b64 exec, -1
        """)

    def stats(self, vs, vq, vrs, vmr, vt, n=576):
        self.a(f"""
        v_mul_f32 v{vs}, {f32hex(1.0/n)}, v{vs}
        v_mul_f32 v{vq}, {f32hex(1.0/n)}, v{vq}
        v_fma_f32 v{vt}, -v{vs}, v{vs}, v{vq}
        v_max_f32 v{vt}, 0, v{vt}
        v_add_f32 v{vt}, {f32hex(1e-5)}, v{vt}
        v_rsq_f32 v{vrs}, v{vt}
        s_nop 0
        v_mul_f32 v{vmr}, v{vs}, v{vrs}
        v_sub_f32 v{vmr}, 0, v{vmr}
        """)

    def dma_wraw(self, kind):
        a = self.a
        L1, L2 = self.lab(), self.lab()
        a(f"""
        s_mul_i32 s70, {sX}, 14
        s_add_u32 s70, s70, {sJ}
        s_sub_u32 s70, s70, 18
        s_sub_u32 s62, {sW}, 6
        """)
        if kind == "q":
            self.wraw_q(L1)
        else:
            self.wraw_o(L2)

    def wraw_q(self, L1):
        a = self.a
        a(f"""
        s_lshr_b32 s71, s70, 1
        s_and_b32 s72, s70, 1
        s_mul_i32 s60, s71, {16*3456}
        s_mul_i32 s61, s72, 576
        s_add_u32 s60, s60, s61
        """)
        self.srd(sB, "wqkv", D * 3 * D * 2)
        a(f"{L1}:\nv_lshl_add_u32 v4, s62, 6, v2")
        self.div9(4, 5, 6)
        a(f"""
        v_mul_u32_u24 v7, 11, v6
        v_lshrrev_b32 v7, 5, v7          ; j/3
        v_mul_u32_u24 v8, {1152-48}, v7
        v_lshl_add_u32 v8, v6, 4, v8
        v_and_b32 v7, 15, v5             ; row
        v_lshrrev_b32 v5, 4, v5
        v_mul_u32_u24 v7, 3456, v7
        v_mul_u32_u24 v5, 36, v5
        v_add3_u32 v8, v8, v7, v5
        s_lshl_b32 m0, s62, 10
        s_add_u32 s62, s62, 2
        buffer_load_dwordx4 v8, {sB}, s60 offen lds
        s_cmp_lt_u32 s62, 36
        s_cbranch_scc1 {L1}
        """)

    def wraw_o(self, L2):
        a = self.a
        a(f"""
        s_sub_u32 s71, s70, 72           ; S
        s_mul_i32 s60, s71, {36*1152}
        s_sub_u32 s61, s71, 16
        s_mul_i32 s61, s61, {288*1152}
        s_add_u32 s61, s61, {16*1152}
        s_cmp_lt_u32 s71, 16
        s_cselect_b32 s60, s60, s61
        s_cselect_b64 s[74:75], -1, 0
        """)
        self.srd(sB, "wo", D * D * 2)
        a(f"{L2}:\nv_lshl_add_u32 v4, s62, 6, v2\nv_lshrrev_b32 v9, 3, v4")
        self.div9(9, 5, 6)
        a(f"""
        v_mul_u32_u24 v6, 72, v5
        v_sub_u32 v6, v4, v6
        v_lshrrev_b32 v7, 4, v5
        v_mul_u32_u24 v7, 18, v7
        v_bfe_u32 v8, v5, 3, 1
        v_lshl_add_u32 v7, v8, 2, v7
        v_bfe_u32 v8, v5, 2, 1
        v_lshl_add_u32 v7, v8, 3, v7
        v_and_b32 v8, 3, v5
        v_add_u32 v7, v7, v8
        v_lshrrev_b32 v8, 1, v5
        v_mul_u32_u24 v8, 18, v8
        v_and_b32 v9, 1, v5
        v_add_u32 v8, v8, v9
        v_cndmask_b32 v7, v8, v7, s[74:75]
        v_mul_u32_u24 v7, 1152, v7
        v_lshl_add_u32 v8, v6, 4, v7
        s_lshl_b32 m0, s62, 10
        s_add_u32 s62, s62, 2
        buffer_load_dwordx4 v8, {sB}, s60 offen lds
        s_cmp_lt_u32 s62, 36
        s_cbranch_scc1 {L2}
        """)

    def relayout(self):
        a = self.a
        a("L_relayout:")
        a(".reset_waits")
        a("""
        s_barrier                        ; B1: the u flag is on its way
        s_cmp_ge_u32 s81, 256
        s_cbranch_scc1 L_rel_nx
        """)
        self.x0_store()
        a("s_waitcnt vmcnt(0)")
        self.flag_store("s82", 10)
        a(f"""
        L_rel_nx:
        s_mul_i32 s70, {sX}, 14
        s_add_u32 s70, s70, {sJ}
        s_sub_u32 s70, s70, 18
        s_cmp_lt_u32 {sW}, 6
        s_cbranch_scc1 L_rel_nx1
        s_cmp_lt_u32 s70, 72
        s_cbranch_scc1 L_rel_nx1
        s_cmp_ge_u32 s70, 90
        s_cbranch_scc1 L_rel_nx1
        """)
        self.dma_wraw("o")
        a(f"""
        L_rel_nx1:
        s_waitcnt vmcnt(0)
        s_barrier
        """)
        self.stamp(20)
        a(f"""
        v_lshrrev_b32 v3, 4, v2          ; G
        v_bfe_u32 v4, v2, 2, 2           ; j
        v_and_b32 v5, 3, v2              ; m
        v_lshrrev_b32 v6, 5, v2          ; half
        v_and_b32 v7, 31, v2             ; col
        s_cmp_ge_u32 s70, 90
        s_cbranch_scc1 L_rel_nf
        s_cmp_ge_u32 s70, 72
        s_cbranch_scc1 L_rel_o
        s_lshr_b32 s71, s70, 1           ; k-step
        s_and_b32 s72, s70, 1
        s_mul_i32 s73, s71, 1792
        s_mul_i32 s74, s72, {16*WQ_B}
        s_add_u32 s73, s73, s74
        s_add_u32 s73, s73, {W_WQ}
        v_lshl_add_u32 v8, v6, 3, v4
        v_mul_u32_u24 v8, 144, v8
        v_and_b32 v9, 1, v3              ; G&1
        s_lshr_b32 s75, {sW}, 1
        s_and_b32 s76, {sW}, 1           ; tile
        s_mul_i32 s77, s75, 2304
        s_mul_i32 s78, s75, {WQ_B}
        s_add_u32 s73, s73, s78
        s_cmp_lg_u32 s76, 0
        s_cbranch_scc1 L_rel_t1
        v_mul_u32_u24 v10, 48, v9
        v_lshl_add_u32 v10, v5, 3, v10
        v_add3_u32 v8, v8, v10, s77
        v_lshlrev_b32 v11, 4, v2
        s_branch L_rel_go
        L_rel_t1:
        ; G&1==0: 96+8m ; else m: 0->128 1->32 2->80 3->128
        v_lshl_add_u32 v10, v5, 3, 64
        v_add_u32 v10, 32, v10
        v_mov_b32 v12, 128
        v_cmp_eq_u32 vcc, 1, v5
        s_nop 1
        v_cndmask_b32 v12, v12, 32, vcc
        v_mov_b32 v13, 80
        v_cmp_eq_u32 vcc, 2, v5
        s_nop 1
        v_cndmask_b32 v12, v12, v13, vcc
        v_cmp_eq_u32 vcc, 1, v9
        s_nop 1
        v_cndmask_b32 v10, v10, v12, vcc
        v_add3_u32 v8, v8, v10, s77
        v_subrev_u32 v12, 2, v7
        v_cmp_gt_u32 vcc, 22, v7
        s_nop 1
        v_cndmask_b32 v12, v12, v7, vcc
        v_lshlrev_b32 v12, 4, v12
        v_mul_u32_u24 v13, 384, v6
        v_add_u32 v11, v12, v13
        v_add_u32 v11, 1024, v11
        v_and_b32 v13, 30, v7
        v_cmp_eq_u32 s[62:63], 24, v13
        s_nop 1
        s_or_b64 vcc, vcc, s[62:63]
        v_mov_b32 v13, 0x7fffffff
        s_nop 0
        v_cndmask_b32 v11, v13, v11, vcc
        L_rel_go:
        """)
        for n in range(4):
            a(f"ds_read_b64_tr_b16 {vr(68+4*n,2)}, v8 offset:{9216*n}")
            a(f"ds_read_b64_tr_b16 {vr(70+4*n,2)}, v8 offset:{9216*n+576}")
        for n in range(4):
            a(f"s_waitcnt lgkmcnt({6-2*n})")
            a(f"buffer_store_dwordx4 {vr(68+4*n,4)}, v11, {sWS}, s73 offen sc1")
            a(f"s_add_u32 s73, s73, {4*WQ_B}")
        a("s_branch L_rel_fin")
        a(f"""
        L_rel_o:
        .reset_waits
        s_sub_u32 s71, s70, 72
        s_mul_i32 s73, {sW}, {WO_B}
        s_mul_i32 s74, s71, 4608
        s_add_u32 s73, s73, s74
        s_add_u32 s73, s73, {W_WO}
        v_lshl_add_u32 v10, v3, 3, v4
        v_mul_u32_u24 v10, 1152, v10
        v_lshl_add_u32 v10, v5, 3, v10
        s_mul_i32 s74, {sW}, 144
        v_add_u32 v10, s74, v10
        v_lshlrev_b32 v12, 4, v2
        v_and_b32 v13, 15, v2
        v_lshlrev_b32 v14, 4, v13
        v_lshl_add_u32 v14, v3, 7, v14
        v_mov_b32 v15, 0x7fffffff
        v_cmp_gt_u32 vcc, 8, v13
        s_add_u32 s74, s73, 4096
        s_nop 0
        v_cndmask_b32 v14, v15, v14, vcc
        """)
        for ft in range(5):
            a(f"ds_read_b64_tr_b16 {vr(68+4*ft,2)}, v10 offset:{32*ft}")
            a(f"ds_read_b64_tr_b16 {vr(70+4*ft,2)}, v10 offset:{32*ft+4608}")
        for ft in range(5):
            a(f"s_waitcnt lgkmcnt({8-2*ft})")
            if ft < 4:
                a(f"buffer_store_dwordx4 {vr(68+4*ft,4)}, v12, {sWS}, s73 offen offset:{1024*ft} sc1")
            else:
                a(f"buffer_store_dwordx4 {vr(68+4*ft,4)}, v14, {sWS}, s74 offen sc1")
        a(f"""
        L_rel_fin:
        s_waitcnt vmcnt(0)
        s_barrier
        s_cmp_lg_u32 {sW}, 0
        s_cbranch_scc1 L_rel_nf
        s_lshl_b32 s60, s70, 6
        s_add_u32 s60, s60, {W_F3}
        """)
        self.flag_store("s60", 10)
        a("L_rel_nf:")
        a(f"s_cmp_lt_u32 {sW}, 4\ns_cbranch_scc1 L_rel_nw")
        self.wq_fetch(poll=True)
        a("L_rel_nw:")
        a("s_waitcnt vmcnt(0)\ns_barrier\ns_branch L_qkv_pre")

    def wq_fetch(self, poll):
        a = self.a
        if poll:
            a(f"""
            s_lshr_b32 s60, {sJ}, 4
            v_lshl_add_u32 v5, v2, 1, s60
            s_lshl_b32 s61, {sX}, 5
            s_add_u32 s61, s61, {sJ}
            s_lshl_b32 s61, s61, 6
            s_add_u32 s61, s61, {W_F1}
            v_lshlrev_b32 v5, 6, v5
            v_add_u32 v5, {W_F3}, v5
            v_mov_b32 v6, s61
            v_cmp_gt_u32 vcc, 36, v2
            s_mov_b32 s62, 0
            s_nop 0
            v_cndmask_b32 v5, v6, v5, vcc
            """)
            self.poll([(5, "s62", 0)], 6, 3, first=4)
            self.stamp(29)
        L = self.lab()
        a(f"""
        s_mul_i32 s60, {sJ}, {WQ_B}
        s_add_u32 s60, s60, {W_WQ}
        s_sub_u32 s62, {sW}, 4
        v_lshlrev_b32 v4, 4, v2
        {L}:
        s_lshl_b32 s63, s62, 10
        s_add_u32 m0, s63, {L_WQ}
        s_add_u32 s63, s63, s60
        s_add_u32 s62, s62, 4
        buffer_load_dwordx4 v4, {sWS}, s63 offen sc1 lds
        s_cmp_lt_u32 s62, 63
        s_cbranch_scc1 {L}
        """)

    def conv(self):
        a = self.a
        a(f"s_cmp_ge_u32 {sJ}, 18\ns_cbranch_scc1 L_relayout")
        a(f"""
        s_mul_i32 s66, {sX}, 18
        s_add_u32 s66, s66, {sJ}          ; quad
        s_cmp_ge_u32 {sW}, 4
        s_cbranch_scc1 L_conv_help
        """)
        self.srd(sA, "dd", D * 2)
        a(f"""
        s_lshl_b32 s61, s66, 2
        s_add_u32 s61, s61, {sW}           ; channel
        s_lshl_b32 s62, s61, 1
        v_mov_b32 v4, s62
        buffer_load_ushort v5, v4, {sA}, 0 offen
        s_mul_i32 s62, {sW}, {U_B}
        s_add_u32 s62, s62, {L_U+512}
        s_cmp_lg_u32 {sW}, 0
        s_cbranch_scc1 L_conv_nu
        v_and_b32 v4, 31, v2
        v_lshlrev_b32 v4, 6, v4
        s_lshl_b32 s60, {sX}, 11
        s_add_u32 s60, s60, {W_F1}
        """)
        self.poll([(4, "s60", 0)], 6, 1, nap=0)
        a(f"""
        s_lshl_b32 s61, s61, 12
        s_add_u32 s61, s61, {W_U}
        v_lshlrev_b32 v4, 4, v2
        """)
        for c in range(4):
            for i in range(4):
                a(f"s_mov_b32 m0, {L_U+512+U_B*c+1024*i}\ns_add_u32 s63, s61, {4096*c+1024*i}")
                a(f"buffer_load_dwordx4 v4, {sWS}, s63 offen sc1 lds")
        a("L_conv_nu:")
        self.stamp(2)
        vBA, vAA, AD = 6, 7, 8
        ACC, A0, B0 = 16, 48, 112
        a(f"""
        v_and_b32 v12, 15, v2              ; nn / r
        v_lshrrev_b32 v13, 5, v2           ; g>>1
        v_bfe_u32 v14, v2, 4, 1            ; g&1
        s_sub_u32 s62, s62, {448}          ; u base + 64
        v_sub_u32 v15, v12, v13
        v_lshlrev_b32 v15, 5, v15
        v_lshl_add_u32 v15, v14, 4, v15
        v_add_u32 v{vBA}, s62, v15
        v_add_u32 v15, 1, v12
        v_and_b32 v3, 3, v15               ; sigma
        v_lshl_add_u32 v15, v13, 4, v12
        v_lshlrev_b32 v1, 3, v14
        v_sub_u32 v15, v15, v1
        v_sub_u32 v15, v15, v3
        v_add_u32 v15, 9, v15
        v_lshlrev_b32 v15, 1, v15
        v_mul_u32_u24 v3, {HC_B}, v3
        s_mul_i32 s63, {sW}, {4*HC_B}
        v_add3_u32 v{vAA}, v15, v3, s63
        v_add_u32 v1, 7, v1
        v_sub_u32 v1, v1, v12              ; j0
        v_lshl_add_u32 v1, v13, 6, v1
        v_and_b32 v3, 1, v1
        v_lshlrev_b32 v3, 4, v3
        v_lshrrev_b32 v1, 1, v1
        s_waitcnt vmcnt(16)
        s_cmp_eq_u32 {sW}, 0
        s_cbranch_scc1 L_conv_d
        s_waitcnt vmcnt(0)
        L_conv_d:
        v_lshlrev_b32 v5, v3, v5
        """)
        for i in range(4):
            a(f"v_cmp_eq_u32 vcc, {i}, v1\ns_nop 1\nv_cndmask_b32 v{AD+i}, 0, v5, vcc")

        def rdA(rho, q):
            b = A0 + 32 * (rho & 1) + 4 * q
            off = L_HC + 64 * (rho + 8 * q)
            return [f"ds_read_b64 {vr(b,2)}, v{vAA} offset:{off}", f"ds_read_b64 {vr(b+2,2)}, v{vAA} offset:{off+8}"]

        def rdB(rho, j):
            b = B0 + 32 * (rho & 1) + 4 * j
            return [f"ds_read_b128 {vr(b,4)}, v{vBA} offset:{64*(8*j-rho+7)}"]

        def reads(rho):
            r = rdA(rho, 0)
            for j in range(8):
                r += rdB(rho, j)
            for q in range(1, 8):
                r += rdA(rho, q)
            return r
        a("s_waitcnt vmcnt(0)\ns_barrier")
        for q in range(8):
            for l in rdA(0, q):
                a(l)
        for j in range(8):
            a(rdB(0, j)[0])
        for rho in range(8):
            a("s_waitcnt lgkmcnt(0)")
            nxt = reads(rho + 1) if rho < 7 else []
            ab, bb = A0 + 32 * (rho & 1), B0 + 32 * (rho & 1)
            ms = []
            if rho == 0:
                for n in range(8):
                    ms.append(f"v_mfma_f32_16x16x32_bf16 {vr(ACC+4*n,4)}, {vr(AD,4)}, {vr(bb+4*n,4)}, 0")
            for q in range(8):
                for n in range(q, 8):
                    ms.append(f"v_mfma_f32_16x16x32_bf16 {vr(ACC+4*n,4)}, {vr(ab+4*q,4)}, {vr(bb+4*(n-q),4)}, {vr(ACC+4*n,4)}")
            for m in ms:
                a(m)
                if nxt:
                    a(nxt.pop(0))
        self.stamp(3)
        a(f"""
        v_lshlrev_b32 v12, 5, v12
        v_lshrrev_b32 v13, 4, v2
        v_lshl_add_u32 v12, v13, 3, v12
        s_mul_i32 s63, {sW}, {4*HC_B+32}
        v_add_u32 v12, s63, v12
        """)
        for n in range(8):
            a(f"v_cvt_pk_bf16_f32 v{A0+2*n}, v{ACC+4*n}, v{ACC+4*n+1}")
            a(f"v_cvt_pk_bf16_f32 v{A0+2*n+1}, v{ACC+4*n+2}, v{ACC+4*n+3}")
            a(f"ds_write_b64 v12, {vr(A0+2*n,2)} offset:{L_HC+512*n}")
        a("s_waitcnt lgkmcnt(0)\ns_barrier\ns_barrier\ns_branch L_qkv_pre")

        a("L_conv_help:")
        a(".reset_waits")
        X0, ST, Y, T = 16, 32, 232, 64
        a(f"""
        v_lshlrev_b32 v4, 6, v2
        s_lshl_b32 s60, s67, 12
        s_add_u32 s60, s60, {W_F2}
        """)
        self.poll([(4, "s60", 0)], 6, 2, first=4)
        self.stamp(18)
        a(f"""
        v_lshlrev_b32 v3, 3, v2
        s_lshl_b32 s60, s67, 12
        s_add_u32 s60, s60, {W_ST0}
        v_and_b32 v14, 31, v2
        v_lshrrev_b32 v15, 5, v2
        v_mul_u32_u24 v15, 36864, v15
        v_lshl_add_u32 v14, v14, 3, v15
        s_mul_i32 s76, s67, {16*36864}
        s_lshl_b32 s61, s66, 8
        s_add_u32 s76, s76, s61
        s_add_u32 s61, s76, {W_X0}
        """)
        for i in range(8):
            a(f"buffer_load_dwordx2 {vr(ST+2*i,2)}, v3, {sWS}, s60 offen offset:{512*i} sc1")
            a(f"buffer_load_dwordx2 {vr(X0+2*i,2)}, v14, {sWS}, s61 offen sc1")
            if i < 7:
                a(f"s_add_u32 s61, s61, {2*36864}")
        self.wq_fetch(poll=True)
        a(f"""
        v_bfe_u32 v4, v2, 2, 2
        v_mul_u32_u24 v4, {4*HC_B+32}, v4
        v_lshrrev_b32 v5, 4, v2
        v_lshl_add_u32 v4, v5, 5, v4
        v_and_b32 v5, 3, v2
        v_lshl_add_u32 v4, v5, 3, v4
        s_lshl_b32 s60, s67, 10
        v_add_u32 v4, s60, v4
        s_mov_b32 s64, 0xffff0000
        s_add_u32 s61, s76, {W_Y}
        s_add_u32 s60, s76, {W_X1}
        """)
        for i in range(8):
            t = T + 8 * i
            for d in range(2):
                a(f"v_lshlrev_b32 v{t+2*d}, 16, v{X0+2*i+d}")
                a(f"v_and_b32 v{t+2*d+1}, s64, v{X0+2*i+d}")
            for c in range(4):
                a(f"v_fma_f32 v{t+4+c}, v{t+c}, v{ST+2*i}, v{ST+2*i+1}")
        self.stamp(30)
        a("s_barrier")
        for i in range(8):
            a(f"ds_read_b64_tr_b16 {vr(Y+2*i,2)}, v4 offset:{L_HC+128*i}")
        for i in range(8):
            t = T + 8 * i
            a(f"s_waitcnt lgkmcnt({7-i})")
            for d in range(2):
                a(f"v_lshlrev_b32 v8, 16, v{Y+2*i+d}")
                a(f"v_and_b32 v9, s64, v{Y+2*i+d}")
                a(f"v_fmac_f32 v{t+2*d}, v{t+4+2*d}, v8")
                a(f"v_fmac_f32 v{t+2*d+1}, v{t+5+2*d}, v9")
            a(f"v_cvt_pk_bf16_f32 v{X0+2*i}, v{t}, v{t+1}")
            a(f"v_cvt_pk_bf16_f32 v{X0+2*i+1}, v{t+2}, v{t+3}")
            a(f"buffer_store_dwordx2 {vr(X0+2*i,2)}, v14, {sWS}, s60 offen sc1")
            a(f"s_add_u32 s60, s60, {2*36864}")
        a(f"""
        v_mov_b32 v248, v14
        s_mov_b32 s79, s61
        s_lshl_b32 s80, s66, 2
        s_add_u32 s80, s80, s67
        s_lshl_b32 s80, s80, 6
        s_add_u32 s80, s80, {W_F10}
        """)
        a(f"""
        s_lshl_b32 s60, s66, 2
        s_add_u32 s60, s60, s67
        s_lshl_b32 s60, s60, 6
        s_add_u32 s60, s60, {W_F4}
        s_waitcnt vmcnt(0)
        """)
        self.flag_store("s60", 10)
        a("s_barrier\ns_branch L_qkv_pre")

    def colsum(self):
        a = self.a
        a("L_qkv_pre:")
        a(".reset_waits")
        self.stamp(4)
        a(f"""
        v_lshlrev_b32 v4, 4, v2
        v_add_u32 v4, {L_WQ}, v4
        v_and_b32 v6, 31, v2
        v_min_u32 v5, 23, v6
        v_lshlrev_b32 v5, 4, v5
        v_lshrrev_b32 v7, 5, v2
        v_mul_u32_u24 v7, 384, v7
        v_add_u32 v5, v5, v7
        v_add_u32 v5, {L_WQ+1024}, v5
        s_cmp_lt_u32 {sW}, 2
        s_cbranch_scc1 L_cs_done
        s_cmp_ge_u32 {sW}, 4
        s_cbranch_scc1 L_cs_done
        s_cmp_eq_u32 {sW}, 2
        s_cselect_b64 vcc, -1, 0
        s_sub_u32 s60, {sW}, 2
        v_cndmask_b32 v8, v5, v4, vcc
        v_mov_b32 v9, 0x3f803f80
        v_mov_b32 v10, 0
        v_mov_b32 v11, 0
        """)
        for s0 in range(0, 36, 12):
            for s in range(12):
                a(f"ds_read_b128 {vr(16+4*s,4)}, v8 offset:{1792*(s0+s)}")
            for s in range(12):
                a(f"s_waitcnt lgkmcnt({11-s})")
                for j in range(4):
                    a(f"v_dot2c_f32_bf16 v{10+(j&1)}, v{16+4*s+j}, v9")
        a(f"""
        s_nop 2
        v_add_f32 v10, v10, v11
        v_mov_b32 v11, v10
        s_lshl_b32 s60, s60, 7
        s_add_u32 s60, s60, {L_CS}
        v_permlane32_swap_b32 v10, v11
        v_lshl_add_u32 v12, v6, 2, s60
        v_add_f32 v10, v10, v11
        ds_write_b32 v12, v10
        s_waitcnt lgkmcnt(0)
        L_cs_done:
        """)

    def qkv(self):
        a = self.a
        L = self.lab()
        a(f"s_cmp_lg_u32 {sW}, 0\ns_cbranch_scc1 {L}")
        a(f"""
        v_lshlrev_b32 v8, 8, v2
        v_add_u32 v9, {64*256}, v8
        v_add_u32 v10, {128*256}, v8
        v_min_u32 v10, {143*256}, v10
        s_lshr_b32 s60, {sX}, 1
        s_lshl_b32 s60, s60, 6
        s_add_u32 s60, s60, {W_F4}
        """)
        self.poll([(8, "s60", 0), (9, "s60", 0), (10, "s60", 0)], 12, 4, first=2, nap=0)
        a(f"{L}:")
        a(f"s_mov_b32 s68, {W_X1}")
        a("L_qkv:")
        a(".reset_waits")
        XF, D0, D1, WF = 64, 16, 32, 208
        a(f"""
        s_lshl_b32 s75, {sLayer}, 15
        s_lshl_b32 s61, {sX}, 12
        s_add_u32 s75, s75, s61
        s_add_u32 s75, s75, {W_G9}
        s_mul_i32 s60, {sX}, {8*36864}
        s_add_u32 s60, s60, s68
        s_cmp_lg_u32 {sW}, 0
        s_cbranch_scc1 L_qkv_ns
        v_lshrrev_b32 v10, 2, v2
        v_and_b32 v11, 3, v2
        v_lshlrev_b32 v10, 8, v10
        v_lshl_add_u32 v10, v11, 4, v10
        s_lshr_b32 s61, {sJ}, 2
        s_mul_i32 s61, s61, 36864
        s_and_b32 s62, {sJ}, 3
        s_lshl_b32 s62, s62, 6
        s_add_u32 s61, s61, s62
        s_add_u32 s61, s61, s60
        """)
        for i in range(9):
            a(f"buffer_load_dwordx4 {vr(16+4*i,4)}, v10, {sWS}, s61 offen sc1")
            if i < 8:
                a("s_add_u32 s61, s61, 4096")
        a("L_qkv_ns:")
        a(f"""
        v_lshlrev_b32 v8, 4, v2
        s_mul_i32 s61, {sT}, 36864
        s_add_u32 s60, s60, s61
        s_barrier
        """)
        self.stamp(5)
        WIN = int(os.environ.get("WIN", 8))

        def ldx(s):
            a(f"buffer_load_dwordx4 {vr(XF+4*s,4)}, v8, {sWS}, s60 offen offset:{1024*(s&3)} sc1")
            if s & 3 == 3 and s < 35:
                a("s_add_u32 s60, s60, 4096")
        for s in range(WIN):
            ldx(s)
        a(f"s_cmp_lg_u32 {sW}, 0\ns_cbranch_scc1 L_qkv_ns2")
        a("v_mov_b32 v12, 0\nv_mov_b32 v13, 0\nv_mov_b32 v14, 0\nv_mov_b32 v15, 0\nv_mov_b32 v52, 0x3f803f80")
        for i in range(9):
            a(f"s_waitcnt vmcnt({8+WIN-i})")
            for j in range(4):
                r = 16 + 4 * i + j
                a(f"v_dot2c_f32_bf16 v{12+(j&2)}, v{r}, v52")
                a(f"v_dot2c_f32_bf16 v{13+(j&2)}, v{r}, v{r}")
        for m in ("row_ror:4", "row_ror:8"):
            for j in range(4):
                a(f"v_add_f32_dpp v{12+j}, v{12+j}, v{12+j} {m} row_mask:0xf bank_mask:0xf bound_ctrl:0")
        for op in ("v_permlane16_swap_b32", "v_permlane32_swap_b32"):
            for j in range(4):
                a(f"v_mov_b32 v{16+j}, v{12+j}")
            for j in range(4):
                a(f"{op} v{12+j}, v{16+j}")
            for j in range(4):
                a(f"v_add_f32 v{12+j}, v{12+j}, v{16+j}")
        self.stats(12, 13, 17, 22, 23)
        self.stats(14, 15, 21, 22, 23)
        a(f"""
        v_sub_f32 v16, 0, v12
        v_sub_f32 v20, 0, v14
        v_mov_b32 v18, s28
        v_mov_b32 v19, s29
        v_mov_b32 v22, s28
        v_mov_b32 v23, s29
        v_lshlrev_b32 v11, 5, v11
        s_lshl_b32 s61, {sJ}, 7
        s_add_u32 s61, s61, s75
        s_mov_b64 exec, 15
        buffer_store_dwordx4 v[16:19], v11, {sWS}, s61 offen sc1
        buffer_store_dwordx4 v[20:23], v11, {sWS}, s61 offen offset:16 sc1
        s_mov_b64 exec, -1
        L_qkv_ns2:
        """)

        def rdW(s):
            b = WF + 8 * (s % 3)
            a(f"ds_read_b128 {vr(b,4)}, v4 offset:{1792*s}")
            a(f"ds_read_b128 {vr(b+4,4)}, v5 offset:{1792*s}")
        rdW(0)
        rdW(1)
        a(f"""
        v_and_b32 v9, 15, v2
        v_lshlrev_b32 v9, 1, v9
        v_bfe_u32 v10, v2, 4, 1
        v_add_u32 v9, v9, v10
        v_lshlrev_b32 v9, 4, v9
        s_lshl_b32 s61, {sT}, 9
        s_add_u32 s75, s75, s61
        """)

        def swap(s):
            x = XF + 4 * s
            a(f"s_waitcnt vmcnt({min(35 - s, WIN - 1)})")
            a(f"v_permlane16_swap_b32 v{x}, v{x+2}")
            a(f"v_permlane16_swap_b32 v{x+1}, v{x+3}")
        swap(0)
        for s in range(36):
            x, b = XF + 4 * s, WF + 8 * (s % 3)
            if s % 9 == 0 and 'noprio' not in EXP:
                a(f"s_setprio {3 - s // 9}")
            if s + WIN < 36:
                ldx(s + WIN)
            if s + 1 < 36:
                swap(s + 1)
            a(f"s_waitcnt lgkmcnt({2 if s + 1 < 36 else 0})")
            if 'nomfma' not in EXP or s == 0:
                a(f"v_mfma_f32_32x32x16_bf16 {vr(D0,16)}, {vr(b,4)}, {vr(x,4)}, {vr(D0,16) if s else 0}")
                a(f"v_mfma_f32_32x32x16_bf16 {vr(D1,16)}, {vr(x,4)}, {vr(b+4,4)}, {vr(D1,16) if s else 0}")
            if s + 2 < 36:
                rdW(s + 2)
            if s == 34:
                a(f"buffer_load_dwordx4 v[10:13], v9, {sWS}, s75 offen sc1")
        self.stamp(6)
        Lp, Ld = self.lab("Ls"), self.lab("Lsd")
        a(f"""
        s_mov_b32 s96, {SPIN_MAX}
        {Lp}:
        s_waitcnt vmcnt(0)
        v_cmp_eq_u64 vcc, {sTag}, v[12:13]
        s_cmp_eq_u64 vcc, exec
        s_cbranch_scc1 {Ld}
        buffer_load_dwordx4 v[10:13], v9, {sWS}, s75 offen sc1
        s_sub_u32 s96, s96, 1
        s_cmp_lg_u32 s96, 0
        s_cbranch_scc1 {Lp}
        s_waitcnt vmcnt(0)
        """)
        self.timeout_mark(9, 12)
        a(f"{Ld}:")
        CS0, MU, RS = 64, 80, 96
        a(f"""
        v_lshrrev_b32 v7, 5, v2            ; hh
        v_lshlrev_b32 v8, 4, v7
        v_add_u32 v9, {L_CS}, v8
        v_lshlrev_b32 v15, 2, v6
        v_add_u32 v48, {L_CS+128}, v15
        """)
        for g in range(4):
            a(f"ds_read_b128 {vr(CS0+4*g,4)}, v9 offset:{32*g}")
        a(f"""
        ds_read_b32 v49, v48
        s_lshl_b32 s60, {sW}, 8
        s_add_u32 s60, s60, {L_ST}
        v_add_u32 v15, s60, v15
        v_add_u32 v8, s60, v8
        ds_write_b32 v15, v10
        ds_write_b32 v15, v11 offset:128
        """)
        for g in range(4):
            a(f"ds_read_b128 {vr(MU+4*g,4)}, v8 offset:{32*g}")
            a(f"ds_read_b128 {vr(RS+4*g,4)}, v8 offset:{128+32*g}")
        a(f"""
        v_and_b32 v50, 19, v6
        v_bfe_u32 v51, v6, 2, 1
        v_lshl_add_u32 v50, v51, 3, v50
        v_bfe_u32 v51, v6, 3, 1
        v_lshl_add_u32 v50, v51, 2, v50    ; sigma(n)
        v_lshlrev_b32 v51, 4, v50
        v_lshl_add_u32 v51, v7, 9, v51
        s_lshl_b32 s61, {sT}, 10
        v_add_u32 v51, s61, v51
        v_min_u32 v52, 19, v6
        v_cmp_eq_u32 vcc, 4, v52
        v_cmp_eq_u32 s[62:63], 19, v52
        s_mul_i32 s61, {sT}, 1280
        s_add_u32 s61, s61, {KV_V}
        v_cndmask_b32 v52, v52, 19, vcc
        v_cndmask_b32 v52, v52, 4, s[62:63]
        v_lshlrev_b32 v52, 4, v52
        v_mul_u32_u24 v53, 320, v7
        v_add_u32 v52, v52, v53
        v_add_u32 v53, s61, v52
        s_lshl_b32 s69, {sLayer}, 5
        s_add_u32 s69, s69, {sJ}
        s_lshl_b32 s69, s69, 3             ; (layer*32+head)*8
        s_add_u32 s61, s69, {sX}
        s_mul_i32 s61, s61, {KV_B}
        s_add_u32 s61, s61, {W_KV}
        v_mul_f32 v12, {f32hex(C_SCALE)}, v11
        v_mov_b32 v54, 1.0
        v_mov_b32 v55, 0
        v_and_b32 v56, 30, v6
        v_cmp_eq_u32 vcc, 18, v56
        v_cmp_eq_u32 s[62:63], 20, v56
        v_mov_b32 v57, {f32hex(C_SCALE)}
        v_cndmask_b32 v54, v54, 0, vcc
        v_cmp_eq_u32 vcc, 18, v6
        v_cndmask_b32 v54, v54, v57, s[62:63]
        s_nop 0
        v_cndmask_b32 v55, v55, 1.0, vcc
        s_waitcnt lgkmcnt(10)
        """)
        KF, QF, VF = 112, 116, 120
        for i in range(8, 16):
            a(f"v_fmac_f32 v{D0+i}, v10, v{CS0+i}")
        for i in range(8, 16):
            a(f"v_mul_f32 v{D0+i}, v11, v{D0+i}")
        for i in range(4):
            a(f"v_cvt_pk_bf16_f32 v{KF+i}, v{D0+8+2*i}, v{D0+9+2*i}")
        a(f"buffer_store_dwordx4 {vr(KF,4)}, v51, {sWS}, s61 offen sc1")
        a(f"ds_write_b128 v51, {vr(KF,4)} offset:{L_OWN}")
        a("s_waitcnt lgkmcnt(1)")
        for i in range(16):
            a(f"v_fmac_f32 v{D1+i}, v{MU+i}, v49")
        for i in range(16):
            a(f"v_mul_f32 v{D1+i}, v{RS+i}, v{D1+i}")
        for i in range(16):
            a(f"v_fma_f32 v{D1+i}, v{D1+i}, v54, v55")
        for i in range(8):
            a(f"v_cvt_pk_bf16_f32 v{VF+i}, v{D1+2*i}, v{D1+2*i+1}")
        a(f"""
        s_mov_b32 s62, 0xfffff
        s_mov_b32 s63, 0xfffff
        s_mov_b64 exec, s[62:63]
        buffer_store_dwordx4 {vr(VF,4)}, v53, {sWS}, s61 offen sc1
        buffer_store_dwordx4 {vr(VF+4,4)}, v53, {sWS}, s61 offen offset:640 sc1
        ds_write_b128 v53, {vr(VF,4)} offset:{L_OWN}
        ds_write_b128 v53, {vr(VF+4,4)} offset:{L_OWN+640}
        s_mov_b64 exec, -1
        s_lshl_b32 s62, {sT}, 7
        s_add_u32 s63, s62, {L_QR}
        s_add_u32 s62, s62, {KV_R}
        v_mov_b32 v56, s63
        v_mov_b32 v57, s62
        v_cmp_gt_u32 vcc, 22, v6
        v_and_b32 v58, 1, v6
        v_lshlrev_b32 v58, 1, v58
        v_lshl_add_u32 v58, v7, 5, v58
        v_cndmask_b32 v59, v57, v56, vcc
        v_add_u32 v58, v58, v59
        v_lshl_add_u32 v56, v50, 2, v56
        v_lshl_add_u32 v57, v6, 2, v57
        s_mov_b32 s62, 0xf00000
        s_mov_b32 s63, 0xf00000
        s_mov_b64 exec, s[62:63]
        """)
        assert L_OWN == 0
        for i in range(8):
            g, r = i >> 1, 2 * (i & 1)
            off = 64 * (g >> 1) + 16 * (g & 1) + 4 * r
            a(f"ds_write_b16 v58, v{VF+i} offset:{off}")
            a(f"ds_write_b16_d16_hi v58, v{VF+i} offset:{off+4}")
        a("s_mov_b64 exec, -1")
        R = self.R
        a(f"ds_read_b32 v60, v57\nds_read_b32 v{R.Qr}, v56")
        for i in range(8):
            a(f"v_fmac_f32 v{D0+i}, v10, v{CS0+i}")
        for i in range(8):
            a(f"v_mul_f32 v{D0+i}, v12, v{D0+i}")
        for i in range(4):
            a(f"v_cvt_pk_bf16_f32 v{R.Q+i}, v{D0+2*i}, v{D0+1+2*i}")
        a(f"""
        s_waitcnt lgkmcnt(0)
        s_mov_b32 exec_hi, 0
        buffer_store_dword v60, v57, {sWS}, s61 offen sc1
        s_mov_b64 exec, -1
        v_mov_b32 v{R.aV}, v52
        """)
        self.stamp(7)

    class Regs:
        S = [128, 160]
        O = 192
        Q = 208
        Qr = 212
        K = [8, 16]
        Kr = [24, 26]
        V = [28, 44]
        idx, aK, aR, aV = 214, 215, 216, 217

    def attention(self):
        a, R = self.a, self.R
        slot = lambda blk: L_OWN if blk == 0 else L_RING + ((blk - 2) % 3) * KV_B
        aK0, aR0, aV0 = 218, 219, 220

        def rd(kind, u, i=0):
            blk, dt = u >> 2, u & 3
            own = blk == 0
            base = slot(blk) - (0 if own else L_RING)
            buf = u & 1
            if kind == "R":
                return f"ds_read_b32 v{R.Kr[buf]}, v{aR0 if own else R.aR} offset:{base + KV_R + 256*dt}"
            if kind == "K":
                return f"ds_read_b128 {vr(R.K[buf]+4*i,4)}, v{aK0 if own else R.aK} offset:{base + 2048*dt + 1024*i}"
            return f"ds_read_b128 {vr(R.V[buf]+4*i,4)}, v{aV0 if own else R.aV} offset:{base + KV_V + 2560*dt + 640*i}"

        def m4(sb, kb):
            a(f"v_mfma_f32_32x32x4bf16_1k {vr(R.S[sb],32)}, {vr(R.Kr[kb],2)}, {vr(R.Qr,2)}, 0")

        def mf(sb, kb, hi):
            d = vr(R.S[sb] + 16 * hi, 16)
            a(f"v_mfma_f32_32x32x16_bf16 {d}, {vr(R.K[kb]+4*hi,4)}, {vr(R.Q,4)}, {d}")

        def sm(sb, vb, g):
            a(f"v_smfmac_f32_32x32x32_bf16 {vr(R.O,16)}, {vr(R.V[vb]+4*g,4)}, {vr(R.S[sb]+8*g,8)}, v{R.idx}")

        def fetch_block(blk):
            a(f"""
            s_add_u32 s60, {sX}, {blk}
            s_and_b32 s60, s60, 7
            s_add_u32 s60, s60, s69
            """)
            a(f"""
            s_lshl_b32 s61, s60, 9
            s_add_u32 s61, s61, {W_F5}
            v_and_b32 v4, 7, v2
            v_lshlrev_b32 v4, 6, v4
            """)
            self.poll([(4, "s61", 0)], 6, 5, nap=0)
            Ll = self.lab()
            a(f"""
            s_mul_i32 s60, s60, {KV_B}
            s_add_u32 s60, s60, {W_KV}
            s_mov_b32 m0, {slot(blk)}
            s_add_u32 s61, s60, {KV_B}
            {Ll}:
            buffer_load_dwordx4 v{aK0}, {sWS}, s60 offen sc1 lds
            s_add_u32 m0, m0, 1024
            s_add_u32 s60, s60, 1024
            s_cmp_lt_u32 s60, s61
            s_cbranch_scc1 {Ll}
            """)

        def on_wave(w, fn):
            if 'nofetch' in EXP:
                return
            L = self.lab()
            a(f"s_cmp_lg_u32 {sW}, {w}\ns_cbranch_scc1 {L}\ns_setprio 3")
            fn()
            a(f"{L}:")

        a(f"""
        v_lshlrev_b32 v{aK0}, 4, v2
        v_lshlrev_b32 v{aR0}, 2, v2
        v_mov_b32 v{aV0}, v{R.aV}
        v_add_u32 v{R.aK}, {L_RING}, v{aK0}
        v_add_u32 v{R.aR}, {L_RING}, v{aR0}
        v_add_u32 v{R.aV}, {L_RING}, v{aV0}
        v_mov_b32 v{R.idx}, 0xdddddddd
        v_mov_b32 v{R.Qr+1}, 0
        v_mov_b32 v{R.Kr[0]+1}, 0
        v_mov_b32 v{R.Kr[1]+1}, 0
        s_add_u32 s70, s69, {sX}
        s_lshl_b32 s70, s70, 3
        s_add_u32 s70, s70, {sW}
        s_lshl_b32 s70, s70, 6
        s_add_u32 s70, s70, {W_F5}
        """)
        for i in range(16):
            a(f"v_mov_b32 v{R.O+i}, 0")
        a(f"""
        s_lshl_b32 s83, {sW}, 10
        s_and_b32 s84, {sJ}, 7
        s_mul_i32 s84, s84, {WO_B}
        s_add_u32 s84, s84, {W_WO}
        s_add_u32 s84, s84, s83
        s_waitcnt vmcnt(0)
        """)
        self.flag_store("s70", 4)
        a("s_barrier")

        def seg_start(u):
            for l in (rd("R", u), rd("K", u, 0), rd("K", u, 1), rd("V", u, 0), rd("V", u, 1), rd("R", u + 1), rd("K", u + 1, 0),
                      rd("V", u, 2), rd("K", u + 1, 1), rd("V", u, 3)):
                a(l)

        def seg_qk():
            a("s_waitcnt lgkmcnt(7)")
            m4(0, 0)
            a("s_nop 15\ns_nop 1")
            mf(0, 0, 0)
            mf(0, 0, 1)
            a("s_nop 10")

        def piece(src, lds, off, maxw=8):
            if 'nofetch' in EXP:
                return
            L = self.lab()
            if maxw < 8:
                a(f"s_cmp_ge_u32 {sW}, {maxw}\ns_cbranch_scc1 {L}")
            a(f"s_add_u32 m0, s83, {lds + off}\ns_add_u32 s86, {src}, {off}")
            a(f"buffer_load_dwordx4 v{aK0}, {sWS}, s86 offen sc1 lds")
            if maxw < 8:
                a(f"{L}:")

        def poll_all():
            a(f"""
            s_lshl_b32 s61, s69, 9
            s_add_u32 s61, s61, {W_F5}
            v_lshlrev_b32 v4, 6, v2
            v_min_u32 v5, 17, v2
            v_lshlrev_b32 v5, 6, v5
            s_mov_b32 s60, {W_F3 + 72*64}
            """)
            self.poll([(4, "s61", 0), (5, "s60", 0)], 222, 5)
        seg_start(0)
        L = self.lab()
        a(f"s_cmp_lt_u32 {sW}, 4\ns_cbranch_scc1 {L}")
        on_wave(5, lambda: fetch_block(1))
        on_wave(4, lambda: fetch_block(2))
        a(f"s_cmp_lg_u32 {sLayer}, 0\ns_cbranch_scc1 {L}\ns_cmp_ge_u32 {sJ}, 18\ns_cbranch_scc1 {L}")
        for i in range(8):
            a(f"buffer_store_dwordx2 {vr(232+2*i,2)}, v248, {sWS}, s79 offen sc1")
            a(f"s_add_u32 s79, s79, {2*36864}")
        a(f"{L}:")
        seg_qk()
        self.stamp(8)
        for u in range(32):
            P = u & 1
            N = P ^ 1
            end = 4 if u < 4 else 32
            first = u in (0, 4)
            last = u == end - 1
            e = lambda i, j: [a(f"v_exp_f32 v{R.S[P]+k}, v{R.S[P]+k}") for k in range(i, j)]
            k2 = u + 2 < end
            v1 = u + 1 < end
            blk, dt = u >> 2, u & 3
            hook = {}
            if u == 4:
                a("s_waitcnt vmcnt(0)\ns_barrier")
                seg_start(4)
                L = self.lab()
                a(f"s_cmp_lt_u32 {sW}, 4\ns_cbranch_scc1 {L}\ns_cmp_lg_u32 {sLayer}, 0\ns_cbranch_scc1 {L}\ns_cmp_ge_u32 {sJ}, 18\ns_cbranch_scc1 {L}")
                self.flag_store("s80", 4)
                a(f"{L}:")
                on_wave(6, poll_all)
                seg_qk()
            if 1 <= blk < 7 and dt == 2 and 'nobar' not in EXP:
                a("s_waitcnt vmcnt(0)\ns_barrier")
                if blk + 2 < 8:
                    a(f"""
                    s_add_u32 s85, {sX}, {blk+2}
                    s_and_b32 s85, s85, 7
                    s_add_u32 s85, s85, s69
                    s_mul_i32 s85, s85, {KV_B}
                    s_add_u32 s85, s85, {W_KV}
                    s_add_u32 s85, s85, s83
                    """)
            if 1 <= blk < 7 and dt >= 2:
                src, lds, o = ("s85", slot(blk + 2), 0) if blk < 6 else ("s84", L_WO, 36 * 1024)
                if dt == 2:
                    hook[0] = lambda: piece(src, lds, o)
                    hook[1] = lambda: piece(src, lds, o + 8192)
                else:
                    hook[0] = lambda: piece(src, lds, o + 16384, 3)
                    if blk < 6:
                        hook[1] = lambda: piece("s84", L_WO, 8192 * (blk - 1), 8 if blk < 5 else 4)
            H = lambda k: hook.get(k, lambda: None)()
            if 'noprio' not in EXP:
                a(f"s_setprio {[2, 1, 1, 0][u] if u < 4 else 3 - ((u + 2) & 3)}")
            e(0, 2)
            if not first:
                sm(N, N, 3)
            if k2:
                a(rd("R", u + 2))
            e(2, 5)
            a(f"s_waitcnt lgkmcnt({2 if last else 3 + (1 if k2 else 0)})")
            if not last:
                m4(N, N)
            if v1:
                a(rd("V", u + 1, 0))
            H(0)
            e(5, 13)
            sm(P, P, 0)
            if v1:
                a(rd("V", u + 1, 1))
            e(13, 18)
            sm(P, P, 1)
            if k2:
                a(rd("K", u + 2, 0))
            e(18, 22)
            if not last:
                mf(N, N, 0)
            if v1:
                a(rd("V", u + 1, 2))
            H(1)
            e(22, 26)
            a(f"s_waitcnt lgkmcnt({(2 if k2 else 0) + (3 if v1 else 0)})")
            sm(P, P, 2)
            if k2:
                a(rd("K", u + 2, 1))
            e(26, 29)
            if not last:
                mf(N, N, 1)
            if v1:
                a(rd("V", u + 1, 3))
            e(29, 32)
            if last:
                a("s_nop 1")
                sm(P, P, 3)
        self.stamp(9)
        a("s_setprio 0")
        O = R.O
        a(f"""
        v_and_b32 v6, 31, v2
        v_lshrrev_b32 v7, 5, v2
        v_and_b32 v8, 15, v2
        v_lshlrev_b32 v8, 1, v8
        v_bfe_u32 v9, v2, 4, 1
        v_add_u32 v8, v8, v9               ; tau(n)
        s_lshl_b32 s60, {sT}, 5
        v_add_u32 v8, s60, v8
        v_lshlrev_b32 v9, 4, v8
        v_lshl_add_u32 v9, v7, 12, v9
        v_lshlrev_b32 v8, 2, v8
        s_lshl_b32 s60, {sLayer}, 3
        s_add_u32 s60, s60, {sX}
        s_lshl_b32 s71, s60, 5             ; (layer*8+X)*32
        s_add_u32 s60, s71, {sJ}
        s_lshl_b32 s61, s60, 13
        s_add_u32 s61, s61, {W_OM}
        s_lshl_b32 s62, s60, 10
        s_add_u32 s62, s62, {W_OR}
        s_mov_b32 s72, 0
        L_att_norm:
        s_nop 3
        v_mov_b32 v10, v{O+10}
        v_mov_b32 v11, v{O+10}
        v_add_f32 v12, abs(v{O}), abs(v{O+1})
        v_add_f32 v13, abs(v{O+2}), abs(v{O+3})
        v_permlane32_swap_b32 v10, v11
        v_add_f32 v12, v12, abs(v{O+4})
        v_add_f32 v13, v13, abs(v{O+5})
        v_add_f32 v12, v12, abs(v{O+6})
        v_add_f32 v13, v13, abs(v{O+7})
        v_add_f32 v12, v12, abs(v{O+8})
        v_add_f32 v13, v13, abs(v{O+9})
        v_add_f32 v12, v12, v13
        v_rcp_f32 v11, v10
        v_cmp_le_f32 vcc, {f32hex(2.0**-60)}, v10
        v_cmp_ge_f32 s[64:65], {"s73"}, v10
        v_cmp_ge_f32 s[66:67], {"s74"}, v12
        s_nop 0
        s_and_b64 vcc, vcc, s[64:65]
        s_and_b64 vcc, vcc, s[66:67]
        s_cmp_eq_u64 vcc, exec
        s_cbranch_scc1 L_att_ok
        s_cmp_eq_u32 s72, 0
        s_cbranch_scc1 L_att_fallback
        L_att_ok:
        """)
        for i in range(10):
            a(f"v_mul_f32 v{O+i}, v11, v{O+i}")
        for i in range(5):
            a(f"v_cvt_pk_bf16_f32 v{12+i}, v{O+2*i}, v{O+2*i+1}")
        a(f"""
        buffer_store_dwordx4 v[12:15], v9, {sWS}, s61 offen sc1
        s_mov_b32 exec_hi, 0
        buffer_store_dword v16, v8, {sWS}, s62 offen sc1
        s_mov_b64 exec, -1
        s_waitcnt vmcnt(0)
        s_barrier
        """)
        self.stamp(10)

    def fetch_wo(self, first, n, va, step=1):
        Ll = self.lab()
        self.a(f"""
        s_and_b32 s60, {sJ}, 7
        s_mul_i32 s60, s60, {WO_B}
        s_add_u32 s60, s60, {W_WO + 1024*first}
        s_add_u32 s61, s60, {1024*n}
        s_mov_b32 m0, {L_WO + 1024*first}
        """)
        if step > 1:
            self.a("s_lshl_b32 s62, s62, 10\ns_add_u32 s60, s60, s62\ns_add_u32 m0, m0, s62\ns_nop 0")
        else:
            self.a("s_nop 0")
        self.a(f"""
        {Ll}:
        buffer_load_dwordx4 v{va}, {sWS}, s60 offen sc1 lds
        s_add_u32 m0, m0, {1024*step}
        s_add_u32 s60, s60, {1024*step}
        s_cmp_lt_u32 s60, s61
        s_cbranch_scc1 {Ll}
        """)

    def fallback(self):
        a, R = self.a, self.R
        S0 = R.S[0]
        a("L_att_fallback:")
        a(".reset_waits")
        a(f"""
        s_mov_b32 s72, 1
        s_mul_i32 s75, s69, {KV_B}
        s_add_u32 s75, s75, {W_KV}
        v_mov_b32 v221, 0xff7fffff
        s_waitcnt vmcnt(0)
        """)
        for p in range(2):
            Lb = self.lab("Lfb")
            a(f"s_mov_b32 s76, 0\n{Lb}:")
            a(f"""
            s_lshr_b32 s77, s76, 2
            s_and_b32 s78, s76, 3
            s_mul_i32 s77, s77, {KV_B}
            s_add_u32 s77, s77, s75
            s_lshl_b32 s79, s78, 11
            s_add_u32 s79, s79, s77
            buffer_load_dwordx4 {vr(R.K[0]+8,4)}, v218, {sWS}, s79 offen sc1
            buffer_load_dwordx4 {vr(R.K[0]+12,4)}, v218, {sWS}, s79 offen offset:1024 sc1
            s_lshl_b32 s79, s78, 8
            s_add_u32 s79, s79, s77
            s_add_u32 s79, s79, {KV_R}
            buffer_load_dword v{R.Kr[0]}, v219, {sWS}, s79 offen sc1
            """)
            if p:
                a(f"s_mul_i32 s79, s78, 2560\ns_add_u32 s79, s79, s77\ns_add_u32 s79, s79, {KV_V}")
                for i in range(4):
                    a(f"buffer_load_dwordx4 {vr(R.V[0]+4*i,4)}, v220, {sWS}, s79 offen offset:{640*i} sc1")
            a(f"""
            s_waitcnt vmcnt(0)
            v_mfma_f32_32x32x4bf16_1k {vr(S0,32)}, {vr(R.Kr[0],2)}, {vr(R.Qr,2)}, 0
            s_nop 15
            s_nop 3
            v_mfma_f32_32x32x16_bf16 {vr(S0,16)}, {vr(R.K[0]+8,4)}, {vr(R.Q,4)}, {vr(S0,16)}
            v_mfma_f32_32x32x16_bf16 {vr(S0+16,16)}, {vr(R.K[0]+12,4)}, {vr(R.Q,4)}, {vr(S0+16,16)}
            s_nop 15
            """)
            if p == 0:
                for i in range(16):
                    a(f"v_max3_f32 v221, v221, v{S0+2*i}, v{S0+2*i+1}")
            else:
                for i in range(32):
                    a(f"v_sub_f32 v{S0+i}, v{S0+i}, v221")
                for i in range(32):
                    a(f"v_exp_f32 v{S0+i}, v{S0+i}")
                a("s_nop 1")
                for g in range(4):
                    a(f"v_smfmac_f32_32x32x32_bf16 {vr(R.O,16)}, {vr(R.V[0]+4*g,4)}, {vr(S0+8*g,8)}, v{R.idx}")
            a(f"s_add_u32 s76, s76, 1\ns_cmp_lt_u32 s76, 32\ns_cbranch_scc1 {Lb}")
            if p == 0:
                a("v_mov_b32 v222, v221\ns_nop 1\nv_permlane32_swap_b32 v221, v222\ns_nop 1\nv_max_f32 v221, v221, v222")
                for i in range(16):
                    a(f"v_mov_b32 v{R.O+i}, 0")
        a("s_nop 15\ns_branch L_att_norm")

    def outproj(self):
        a = self.a
        OF, ACC, WF, XR, YR = 64, 16, 144, 36, 46
        L = self.lab()
        a(f"""
        s_cmp_lg_u32 {sW}, 0
        s_cbranch_scc1 {L}
        s_add_u32 s60, s71, {sJ}
        s_lshl_b32 s60, s60, 6
        s_add_u32 s60, s60, {W_F6}
        """)
        self.flag_store("s60", 4)
        a(f"{L}:")
        a(f"s_cmp_ge_u32 {sW}, 4\ns_cbranch_scc1 L_op_help")
        a(f"""
        v_and_b32 v6, 15, v2
        v_lshrrev_b32 v7, 4, v2            ; g
        s_lshr_b32 s64, {sJ}, 3            ; sub
        s_and_b32 s65, {sJ}, 7             ; slice
        s_lshl_b32 s66, s64, 6
        s_lshl_b32 s67, {sT4}, 4
        s_add_u32 s66, s66, s67
        v_add_u32 v8, s66, v6
        v_lshlrev_b32 v9, 8, v7
        v_lshl_add_u32 v9, v6, 3, v9       ; g*256 + tok*8
        v_mov_b32 v11, 0x7fffffff
        v_cmp_gt_u32 vcc, 2, v7
        s_mul_i32 s60, s65, {18*256}
        s_lshl_b32 s61, {sX}, 3
        s_lshr_b32 s62, s66, 5
        s_add_u32 s61, s61, s62
        s_mul_i32 s61, s61, 36864
        s_add_u32 s60, s60, s61
        s_and_b32 s62, s66, 16
        s_lshl_b32 s62, s62, 3
        s_add_u32 s67, s60, s62
        v_cndmask_b32 v10, v11, v9, vcc
        s_mul_i32 s60, s65, {18*256}
        s_lshr_b32 s61, {sX}, 1
        s_lshl_b32 s61, s61, 6
        s_add_u32 s60, s60, s61
        s_add_u32 s60, s60, {W_F10}
        v_min_u32 v4, 17, v2
        v_lshlrev_b32 v4, 8, v4
        """)
        L = self.lab()
        a(f"s_cmp_lg_u32 {sLayer}, 0\ns_cbranch_scc1 {L}")
        self.poll([(4, "s60", 0)], 56, 10)
        a(f"{L}:")
        a(f"""
        s_add_u32 s60, s67, s68
        s_add_u32 s61, s67, {W_Y}
        """)
        for ft in range(5):
            va = 10 if ft == 4 else 9
            a(f"buffer_load_dwordx2 {vr(XR+2*ft,2)}, v{va}, {sWS}, s60 offen sc1")
            a(f"buffer_load_dwordx2 {vr(YR+2*ft,2)}, v{va}, {sWS}, s61 offen sc1")
            if ft < 4:
                a("s_add_u32 s60, s60, 1024\ns_add_u32 s61, s61, 1024")
        a(f"""
        v_lshrrev_b32 v11, 1, v7
        v_lshlrev_b32 v11, 13, v11
        v_and_b32 v12, 1, v7
        v_lshl_add_u32 v11, v12, 12, v11
        v_lshl_add_u32 v11, v8, 4, v11     ; o main
        v_lshlrev_b32 v12, 12, v7
        v_lshl_add_u32 v12, v8, 2, v12     ; o rem
        v_lshlrev_b32 v13, 4, v2           ; W ft<4
        v_and_b32 v14, 7, v2
        v_lshlrev_b32 v14, 4, v14
        v_lshl_add_u32 v14, v7, 7, v14
        v_add_u32 v14, 4096, v14           ; W ft==4
        v_add_u32 v15, {9*4608}, v13
        v_add_u32 v3, {9*4608}, v14
        """)
        L = self.lab()
        a(f"""
        s_cmp_lg_u32 {sW}, 0
        s_cbranch_scc1 {L}
        v_and_b32 v4, 31, v2
        v_lshlrev_b32 v4, 6, v4
        s_lshl_b32 s60, s71, 6
        s_add_u32 s60, s60, {W_F6}
        """)
        self.poll([(4, "s60", 0)], 56, 6, nap=0)
        a(f"{L}:")
        a(f"""
        s_barrier
        s_lshl_b32 s60, s71, 13
        s_add_u32 s60, s60, {W_OM}
        s_lshl_b32 s61, s71, 10
        s_add_u32 s61, s61, {W_OR}
        """)
        self.stamp(11)
        for s in range(16):
            a(f"buffer_load_dwordx4 {vr(OF+4*s,4)}, v11, {sWS}, s60 offen sc1")
            if s < 15:
                a("s_add_u32 s60, s60, 0x4000")
        for s in range(2):
            for i in range(4):
                a(f"buffer_load_dword v{OF+64+4*s+i}, v12, {sWS}, s61 offen offset:{1024*i} sc1")
            if s == 0:
                a("s_add_u32 s61, s61, 0x4000")

        def rdW(s):
            hi = s >= 9
            out = []
            for ft in range(5):
                va = (15 if hi else 13) if ft < 4 else (3 if hi else 14)
                off = L_WO + 4608 * (s - 9 * hi) + (1024 * ft if ft < 4 else 0)
                out.append(f"ds_read_b128 {vr(WF+20*(s%3)+4*ft,4)}, v{va} offset:{off}")
            return out
        for l in rdW(0) + rdW(1):
            a(l)
        for s in range(18):
            nxt = rdW(s + 2) if s < 16 else []
            a(f"s_waitcnt vmcnt({23-s if s < 16 else (4 if s == 16 else 0)}) lgkmcnt({5 if s < 17 else 0})")
            for ft in range(5):
                d = vr(ACC + 4 * ft, 4)
                a(f"v_mfma_f32_16x16x32_bf16 {d}, {vr(WF+20*(s%3)+4*ft,4)}, {vr(OF+4*s,4)}, {d if s else 0}")
                if nxt:
                    a(nxt[ft])
        self.stamp(12)
        XF, YF = 64, 84
        a("s_mov_b32 s63, 0xffff0000")
        for i in range(10):
            a(f"v_lshlrev_b32 v{XF+2*i}, 16, v{XR+i}")
            a(f"v_and_b32 v{XF+2*i+1}, s63, v{XR+i}")
        for i in range(20):
            a(f"v_add_f32 v{XF+i}, v{XF+i}, v{ACC+i}")
        a(f"s_cmp_lg_u32 {sLayer}, 0\ns_cbranch_scc1 L_op_final")
        a("v_cmp_gt_u32 vcc, 2, v7\nv_mov_b32 v16, 0\nv_mov_b32 v17, 0")
        for i in range(16, 20):
            a(f"v_cndmask_b32 v{XF+i}, 0, v{XF+i}, vcc")
        for i in range(20):
            a(f"v_add_f32 v16, v16, v{XF+i}")
            a(f"v_fmac_f32 v17, v{XF+i}, v{XF+i}")

        def xsum():
            for op in ("v_permlane16_swap_b32", "v_permlane32_swap_b32"):
                a(f"""
                v_mov_b32 v20, v16
                v_mov_b32 v21, v17
                s_nop 1
                {op} v16, v20
                {op} v17, v21
                s_nop 0
                v_add_f32 v16, v16, v20
                v_add_f32 v17, v17, v21
                """)
        xsum()
        a(f"""
        v_mov_b32 v18, s28
        v_mov_b32 v19, s29
        s_lshl_b32 s60, {sX}, 2
        s_add_u32 s60, s60, s64
        s_lshl_b32 s60, s60, 13
        s_add_u32 s60, s60, {W_G7}
        s_lshl_b32 s61, {sT4}, 8
        s_add_u32 s60, s60, s61
        s_lshl_b32 s61, s65, 10
        s_add_u32 s61, s61, s60
        v_lshlrev_b32 v4, 4, v6
        s_mov_b64 exec, 0xffff
        buffer_store_dwordx4 v[16:19], v4, {sWS}, s61 offen sc1
        s_mov_b64 exec, -1
        v_lshl_add_u32 v4, v7, 10, v4
        s_add_u32 s61, s60, 4096
        """)
        for i in range(10):
            a(f"v_lshlrev_b32 v{YF+2*i}, 16, v{YR+i}")
            a(f"v_and_b32 v{YF+2*i+1}, s63, v{YR+i}")
        Lp, Ld = self.lab("Lg"), self.lab("Lgd")
        a(f"""
        s_mov_b32 s96, {SPIN_MAX}
        {Lp}:
        buffer_load_dwordx4 v[24:27], v4, {sWS}, s60 offen sc1
        buffer_load_dwordx4 v[28:31], v4, {sWS}, s61 offen sc1
        s_waitcnt vmcnt(0)
        v_cmp_eq_u64 vcc, {sTag}, v[26:27]
        v_cmp_eq_u64 s[94:95], {sTag}, v[30:31]
        s_and_b64 vcc, vcc, s[94:95]
        s_cmp_eq_u64 vcc, exec
        s_cbranch_scc1 {Ld}
        s_sub_u32 s96, s96, 1
        s_cmp_lg_u32 s96, 0
        s_cbranch_scc1 {Lp}
        """)
        self.timeout_mark(7, 20)
        a(f"{Ld}:")
        a("v_add_f32 v16, v24, v28\nv_add_f32 v17, v25, v29")
        xsum()
        self.stats(16, 17, 18, 19, 20)
        for i in range(20):
            a(f"v_fma_f32 v{ACC+6+i}, v{XF+i}, v18, v19")
        for i in range(20):
            a(f"v_fmac_f32 v{XF+i}, v{ACC+6+i}, v{YF+i}")
        a(f"s_add_u32 s60, s67, {W_X3}")
        for ft in range(5):
            a(f"v_cvt_pk_bf16_f32 v{YF+2*ft}, v{XF+4*ft}, v{XF+4*ft+1}")
            a(f"v_cvt_pk_bf16_f32 v{YF+2*ft+1}, v{XF+4*ft+2}, v{XF+4*ft+3}")
            a(f"buffer_store_dwordx2 {vr(YF+2*ft,2)}, v{10 if ft == 4 else 9}, {sWS}, s60 offen sc1")
            if ft < 4:
                a("s_add_u32 s60, s60, 1024")
        a(f"""
        s_lshl_b32 s60, {sX}, 5
        s_add_u32 s60, s60, {sJ}
        s_lshl_b32 s60, s60, 2
        s_add_u32 s60, s60, {sW}
        s_lshl_b32 s60, s60, 6
        s_add_u32 s60, s60, {W_F8}
        s_waitcnt vmcnt(0)
        """)
        self.flag_store("s60", 20)
        self.stamp(13)
        L = self.lab()
        a(f"""
        s_cmp_lg_u32 {sW}, 0
        s_cbranch_scc1 {L}
        v_lshlrev_b32 v8, 6, v2
        s_lshl_b32 s60, {sX}, 13
        s_add_u32 s60, s60, {W_F8}
        s_add_u32 s61, s60, 4096
        """)
        self.poll([(8, "s60", 0), (8, "s61", 0)], 12, 8, nap=0)
        a(f"{L}:")
        a("s_branch L_next_layer")

        a("L_op_help:")
        a(".reset_waits")
        a(f"s_sub_u32 s62, {sW}, 4")
        self.fetch_wo(55, 26, 218, step=4)
        a("s_waitcnt vmcnt(0)\ns_barrier")
        a(f"s_cmp_lg_u32 {sLayer}, 0\ns_cbranch_scc1 L_end")
        a("L_next_layer:")
        a(f"""
        s_mov_b32 {sLayer}, 1
        s_mov_b32 s68, {W_X3}
        v_lshlrev_b32 v4, 4, v2
        v_add_u32 v4, {L_WQ}, v4
        v_and_b32 v6, 31, v2
        v_min_u32 v5, 23, v6
        v_lshlrev_b32 v5, 4, v5
        v_lshrrev_b32 v7, 5, v2
        v_mul_u32_u24 v7, 384, v7
        v_add_u32 v5, v5, v7
        v_add_u32 v5, {L_WQ+1024}, v5
        """)
        if self.stop == "gate2":
            a("s_branch L_end")
        a("s_branch L_qkv")

        a("L_op_final:")
        a(".reset_waits")
        self.srd(sA, "out", NB)
        a(f"""
        s_lshl_b32 s60, {sX}, 8
        v_add_u32 v8, s60, v8
        v_mul_u32_u24 v8, 1152, v8
        v_lshl_add_u32 v8, v7, 3, v8
        v_mov_b32 v11, 0x7fffffff
        v_cmp_gt_u32 vcc, 2, v7
        s_mul_i32 s60, s65, 144
        s_nop 0
        v_cndmask_b32 v9, v11, v8, vcc
        """)
        for ft in range(5):
            a(f"v_cvt_pk_bf16_f32 v{YF+2*ft}, v{XF+4*ft}, v{XF+4*ft+1}")
            a(f"v_cvt_pk_bf16_f32 v{YF+2*ft+1}, v{XF+4*ft+2}, v{XF+4*ft+3}")
            a(f"buffer_store_dwordx2 {vr(YF+2*ft,2)}, v{9 if ft == 4 else 8}, {sA}, s60 offen offset:{32*ft}")
        a(f"""
        s_or_b32 s60, s2, {sW}
        s_cmp_lg_u32 s60, 0
        s_cbranch_scc1 L_end
        s_mov_b32 s60, {W_NONCE}
        """)
        self.flag_store("s60", 20)

    def build(self):
        a = self.a
        self.R = G.Regs
        self.prologue()
        self.prep()
        self.finish_if("prep")
        self.conv()
        self.relayout()
        self.colsum()
        self.finish_if("conv")
        a(f"s_mov_b32 s73, {f32hex(2.0**60)}\ns_mov_b32 s74, {f32hex(2.0**120)}")
        self.qkv()
        if self.stop == "qkv":
            a("s_waitcnt vmcnt(0)\ns_branch L_end")
        self.attention()
        self.finish_if("attn")
        self.outproj()
        a("L_end:")
        if self.ts:
            self.stamp(15)
            a(f"""
            s_lshl_b32 s60, s2, 3
            s_add_u32 s60, s60, {sW}
            s_lshl_b32 s60, s60, 8
            s_add_u32 s60, s60, {W_TS}
            v_lshlrev_b32 v4, 2, v2
            buffer_store_dword v255, v4, {sWS}, s60 offen
            """)
            if 'dbgts' in EXP:
                wg = int(os.environ.get("DBGWG", 0))
                a(f"""
                s_cmp_lg_u32 s2, {wg}
                s_cbranch_scc1 L_nodbg
                s_cmp_lg_u32 {sW}, 0
                s_cbranch_scc1 L_nodbg
                v_readlane_b32 s60, v255, 0
                s_nop 3
                v_subrev_u32 v5, s60, v255
                """)
                for n, i in enumerate((16, 1, 2, 3, 4, 5, 7, 8, 9, 11, 13, 21, 24, 25, 27, 31)):
                    a(f"v_readlane_b32 s61, v5, {i}\ns_nop 3\nv_writelane_b32 v6, s61, {n}")
                a(f"s_mov_b64 exec, 0xffff\nglobal_store_dword v4, v6, s[{PTR['dbg']}:{PTR['dbg']+1}]\nL_nodbg:")
        a("s_waitcnt vmcnt(0)")
        a("L_exit:")
        a("s_endpgm")
        self.fallback()
        a("L_code_end:")
        lines, added = fix_hazards(a.lines, verbose=True, tag="k")
        errs = check_waits(lines, "k")
        for e in errs:
            print(e)
        lines = [l for l in lines if not l.startswith(".reset_waits")]
        a.lines = lines
        body = a.text().replace("CODE_AFTER", "(L_code_end-L_pc_here)")
        ref = open(f"cdna_kernels/{NAME}.s.ref").read()
        head = ref[:ref.index("; Override launch")]
        txt = head + f"""; @launch grid=(256,1,1) block=(512,1,1) lds={LDS_BYTES}
.amdgcn_target "amdgcn-amd-amdhsa--gfx950"
.text
.globl {NAME}_kernel
.p2align 12
.type {NAME}_kernel,@function
{NAME}_kernel:
""" + body + f""".section .rodata,"a"
.p2align 6
.amdhsa_kernel {NAME}_kernel
  .amdhsa_next_free_vgpr 256
  .amdhsa_next_free_sgpr 102
  .amdhsa_accum_offset 256
  .amdhsa_group_segment_fixed_size 0
  .amdhsa_kernarg_size 96
  .amdhsa_user_sgpr_count 2
  .amdhsa_user_sgpr_kernarg_segment_ptr 1
  .amdhsa_system_sgpr_workgroup_id_x 1
.end_amdhsa_kernel
"""
        return txt, errs


if __name__ == "__main__":
    out = sys.argv[1]
    stop = None
    ts = False
    for x in sys.argv[2:]:
        if x == "ts":
            ts = True
        else:
            stop = x
    txt, errs = G(stop, ts).build()
    open(out, "w").write(txt)
    print("written", out, len(txt), "bytes;", len(errs), "wait errors")
```

```python
import sys
from asmlib import Asm, fix_hazards, check_waits

NAME = "interleave_layers__ssm_conv_h3__softmax_full_mha__prompt"
S, D = 2048, 576
NB = S * D * 2

W_NONCE = 0
W_F1 = 0x1000
W_F3 = 0x5000
W_F2 = 0x6C000
W_F4 = 0x8000
W_F5 = 0x12000
W_F6 = 0x52000
W_F8 = 0x5A000
W_G7 = 0x70000
W_ST0 = 0xB0000
W_CSP = 0x1C0000
W_F10 = 0x110000
W_G9 = 0x100000
W_TS = 0x140000
W_U = 0x210000
W_WQ = 0x500000
W_WO = 0x700000
W_X1 = 0x800000
W_X0 = 0x2000000
W_Y = 0xB00000
W_X3 = 0xE00000
W_KV = 0x1100000
W_OM = 0x1B00000
W_OR = 0x1F00000
W_SIZE = 0x2400000
WQ_B, WO_B, KV_B = 64512, 82944, 19456
KV_V, KV_R = 8192, 18432

L_HC, HC_B = 0, 4160
L_U, U_B = 66560, 4608
L_WO = 0
L_OWN = 0
L_RING = 37632
L_CS = 96000
L_ST = 96256
L_REM = 96256
L_QR = 98304
L_WQ = 99328
L_PK = L_WQ
L_PV = L_WQ + 10240
L_CNT = 98304
L_PX = L_PV + 9216
LDS_BYTES = 163840

sWS = "s[4:7]"
sA, sB, sC, sD_ = "s[8:11]", "s[12:15]", "s[16:19]", "s[20:23]"
sX, sJ, sW, sLayer = "s24", "s25", "s26", "s27"
sT, sT4 = "s30", "s31"
sTag = "s[28:29]"
sP = 32
PTR = dict(q=32, k=34, v=36, sk=38, h=40, dd=42, bx=44, wqkv=46, wo=48, out=50, dbg=52, ws=54)
SPIN_MAX = 400000
PUB_AT = int(__import__('os').environ.get('PUB', 1))
TRY_AT = [int(x) for x in __import__('os').environ.get('TRY', '2,3').split(',')]
WQ1 = int(__import__('os').environ.get('WQ1', 63))

C_SCALE = 18 ** -0.5 * 1.4426950408889634


def f32hex(x):
    import struct
    return "0x%08x" % struct.unpack("<I", struct.pack("<f", x))[0]


def vr(a, n):
    return f"v[{a}:{a+n-1}]" if n > 1 else f"v{a}"


import os
EXP = os.environ.get('EXP', '').split(',') + ['hearly', 'f2first']


class G:
    def __init__(self, stop=None, ts=False):
        self.a = Asm()
        self.stop = stop
        self.ts = ts
        self.nlab = 0

    def lab(self, p="L"):
        self.nlab += 1
        return f"{p}_{self.nlab}"

    def srd(self, s, ptr, nbytes):
        b = int(s[2:s.index(":")])
        p = PTR[ptr]
        self.a(f"s_mov_b32 s{b}, s{p}\ns_mov_b32 s{b+1}, s{p+1}\ns_mov_b32 s{b+2}, {nbytes}\ns_mov_b32 s{b+3}, 0x20000")

    def stamp(self, i):
        if not self.ts or (self.ts == 2 and i not in (0, 5, 15)):
            return
        self.a(f"s_memrealtime s[98:99]\ns_memtime s[92:93]\ns_lshl_b32 s97, {sLayer}, 4\ns_add_u32 m0, s97, {i}\ns_waitcnt lgkmcnt(0)\nv_writelane_b32 v255, s98, m0\ns_add_u32 m0, m0, 32\ns_nop 0\nv_writelane_b32 v255, s92, m0")

    def flag_store(self, soff, vtmp):
        self.a(f"""
        v_mov_b32 v{vtmp}, s28
        v_mov_b32 v{vtmp+1}, s29
        v_mov_b32 v{vtmp+2}, 0
        s_mov_b64 exec, 1
        buffer_store_dwordx2 {vr(vtmp,2)}, v{vtmp+2}, {sWS}, {soff} offen sc1
        s_mov_b64 exec, -1
        """)

    def poll(self, loads, vt, code, first=0, nap=1):
        a = self.a
        L, Ld = self.lab("Lpoll"), self.lab("Lpolld")
        a(f"s_mov_b32 s96, {SPIN_MAX}")
        if first:
            L1, L1d = self.lab("Lp1"), self.lab("Lp1d")
            va, so, im = loads[0]
            a(f"""
            s_mov_b64 exec, 1
            {L1}:
            buffer_load_dwordx2 {vr(vt,2)}, v{va}, {sWS}, {so} offen offset:{im} sc1
            s_waitcnt vmcnt(0)
            v_cmp_eq_u64 vcc, {sTag}, {vr(vt,2)}
            s_cmp_lg_u64 vcc, 0
            s_cbranch_scc1 {L1d}
            s_sleep {first}
            s_sub_u32 s96, s96, 1
            s_cmp_gt_u32 s96, 1
            s_cbranch_scc1 {L1}
            {L1d}:
            s_mov_b64 exec, -1
            """)
        a(f"{L}:")
        for i, (va, so, im) in enumerate(loads):
            a(f"buffer_load_dwordx2 {vr(vt+2*i,2)}, v{va}, {sWS}, {so} offen offset:{im} sc1")
        a("s_waitcnt vmcnt(0)")
        for i in range(len(loads)):
            if i == 0:
                a(f"v_cmp_ne_u64 vcc, {sTag}, {vr(vt,2)}")
            else:
                a(f"v_cmp_ne_u64 s[94:95], {sTag}, {vr(vt+2*i,2)}\ns_or_b64 vcc, vcc, s[94:95]")
        a(f"""
        s_cmp_eq_u64 vcc, 0
        s_cbranch_scc1 {Ld}
        s_mov_b64 exec, vcc
        """)
        if nap:
            a(f"s_sleep {nap}")
        a(f"""
        s_sub_u32 s96, s96, 1
        s_cmp_lg_u32 s96, 0
        s_cbranch_scc1 {L}
        """)
        self.timeout_mark(code, vt)
        a(f"{Ld}:\ns_mov_b64 exec, -1")

    def poll2(self, loads, vt, code, width=2, first=0):
        a = self.a
        n = len(loads)
        if width == 2 and 'pipe' not in EXP:
            return self.poll(loads, vt, code, first=first or int(os.environ.get('FIRST', 0)), nap=int(os.environ.get('NAP', 0)))
        L, Ld0, Ld1, Ld = self.lab("Lq"), self.lab("Lq0"), self.lab("Lq1"), self.lab("Lqd")
        op = "buffer_load_dwordx2" if width == 2 else "buffer_load_dwordx4"

        def issue(k):
            for i, (va, so, im) in enumerate(loads):
                a(f"{op} {vr(vt+width*(n*k+i),width)}, v{va}, {sWS}, {so} offen offset:{im} sc1")

        def check(k, tgt):
            a(f"s_waitcnt vmcnt({n})")
            for i in range(n):
                r = vr(vt + width * (n * k + i) + width - 2, 2)
                if i == 0:
                    a(f"v_cmp_ne_u64 vcc, {sTag}, {r}")
                else:
                    a(f"v_cmp_ne_u64 s[94:95], {sTag}, {r}\ns_or_b64 vcc, vcc, s[94:95]")
            a(f"s_cmp_eq_u64 vcc, 0\ns_cbranch_scc1 {tgt}")
            if width == 2:
                a("s_mov_b64 exec, vcc")
        a(f"s_mov_b32 s96, {SPIN_MAX}")
        if first:
            L1, L1d = self.lab("Lp1"), self.lab("Lp1d")
            va, so, im = loads[0]
            a(f"""
            s_mov_b64 exec, 1
            {L1}:
            buffer_load_dwordx2 {vr(vt,2)}, v{va}, {sWS}, {so} offen offset:{im} sc1
            s_waitcnt vmcnt(0)
            v_cmp_eq_u64 vcc, {sTag}, {vr(vt,2)}
            s_cmp_lg_u64 vcc, 0
            s_cbranch_scc1 {L1d}
            s_sleep {first}
            s_sub_u32 s96, s96, 1
            s_cmp_gt_u32 s96, 1
            s_cbranch_scc1 {L1}
            {L1d}:
            s_mov_b64 exec, -1
            """)
        if 'pipe' not in EXP and 'gpipe' not in EXP:
            a(f"{L}:")
            issue(0)
            n0, n = n, 0
            a("s_waitcnt vmcnt(0)")
            for i in range(n0):
                r = vr(vt + width * i + width - 2, 2)
                a(f"v_cmp_ne_u64 vcc, {sTag}, {r}" if i == 0 else f"v_cmp_ne_u64 s[94:95], {sTag}, {r}\ns_or_b64 vcc, vcc, s[94:95]")
            a(f"s_cmp_eq_u64 vcc, 0\ns_cbranch_scc1 {Ld0}\n{'s_sleep ' + os.environ['GNAP'] if os.environ.get('GNAP') else ''}\ns_sub_u32 s96, s96, 1\ns_cmp_lg_u32 s96, 0\ns_cbranch_scc1 {L}")
            self.timeout_mark(code, vt)
            return Ld0, Ld1
        issue(0)
        a(f"{L}:")
        issue(1)
        check(0, Ld0 if width > 2 else Ld)
        issue(0)
        check(1, Ld1 if width > 2 else Ld)
        a(f"""
        s_sub_u32 s96, s96, 1
        s_cmp_lg_u32 s96, 0
        s_cbranch_scc1 {L}
        s_waitcnt vmcnt(0)
        """)
        self.timeout_mark(code, vt)
        if width > 2:
            return Ld0, Ld1
        a(f"{Ld}:\ns_mov_b64 exec, -1")

    def timeout_mark(self, code, vt):
        self.a(f"""
        v_mov_b32 v{vt}, {code}
        v_mov_b32 v{vt+1}, 0
        global_store_dword v{vt+1}, v{vt}, s[{PTR['dbg']}:{PTR['dbg']+1}]
        s_waitcnt vmcnt(0)
        """)

    def finish_if(self, name):
        if self.stop == name:
            self.a("s_branch L_end")

    def prologue(self):
        a = self.a
        a(f"""
        s_cmp_ge_u32 s2, 256
        s_cbranch_scc1 L_exit
        s_load_dwordx16 s[32:47], s[0:1], 0
        s_load_dwordx8 s[48:55], s[0:1], 64
        s_getpc_b64 s[16:17]
        L_pc_here:
        s_and_b32 s17, s17, 0xffff
        s_mov_b32 s18, CODE_AFTER
        s_mov_b32 s19, 0x20000
        s_lshr_b32 s3, s2, 3
        s_lshl_b32 s3, s3, 10
        v_lshlrev_b32 v1, 7, v0
        v_cmp_gt_u32 vcc, 8, v0
        v_bfrev_b32 v2, -2
        v_cndmask_b32 v1, v2, v1, vcc
        buffer_load_dword v254, v1, {sC}, s3 offen
        v_lshrrev_b32 v1, 6, v0
        v_and_b32 v2, 63, v0
        s_and_b32 {sX}, s2, 7
        v_readfirstlane_b32 {sW}, v1
        s_lshr_b32 {sJ}, s2, 3
        s_mov_b32 {sLayer}, 0
        s_add_u32 {sT}, {sW}, {sJ}
        s_and_b32 {sT4}, {sT}, 3
        s_and_b32 {sT}, {sT}, 7
        s_waitcnt lgkmcnt(0)
        """)
        self.srd(sWS, "ws", W_SIZE)
        a("v_mov_b32 v248, 0")
        if self.ts:
            a("v_mov_b32 v255, 0")

    def div9(self, vidx, vrow, vj):
        self.a(f"""
        v_mul_hi_u32 v{vrow}, v{vidx}, s64
        v_mul_u32_u24 v{vj}, 9, v{vrow}
        v_sub_u32 v{vj}, v{vidx}, v{vj}
        """)

    def prep(self):
        a = self.a
        HR = 128
        self.stamp(0)
        a(f"s_load_dwordx2 {sTag}, s[54:55], {W_NONCE}")
        self.srd(sA, "k", NB)
        self.srd(sB, "v", NB)
        a(f"""
        s_mov_b32 s64, 0x1c71c71d
        s_mul_i32 s60, {sJ}, {64*1152}
        s_mul_i32 s61, {sX}, 144
        s_add_u32 s60, s60, s61
        s_sub_u32 s61, s60, {4*1152}
        """)
        self.div9(0, 3, 4)
        a(f"""
        v_mul_u32_u24 v3, 1152, v3
        v_lshl_add_u32 v5, v4, 4, v3
        v_add_u32 v6, s61, v5
        s_lshl_b32 s62, {sW}, 10
        s_add_u32 m0, s62, {L_PK}
        v_add_u32 v7, 512, v0
        buffer_load_dwordx4 v6, {sA}, 0 offen lds
        s_add_u32 m0, s62, {L_PV}
        s_cmp_ge_u32 {sW}, 3
        buffer_load_dwordx4 v5, {sB}, s60 offen lds
        s_cbranch_scc1 L_prep_d3
        s_cmp_eq_u32 {sW}, 2
        s_cbranch_scc1 L_prep_d2
        """)
        self.div9(7, 3, 4)
        a(f"""
        v_mul_u32_u24 v3, 1152, v3
        v_lshl_add_u32 v5, v4, 4, v3
        v_add_u32 v6, s61, v5
        s_add_u32 m0, s62, {L_PK+8192}
        s_nop 0
        buffer_load_dwordx4 v6, {sA}, 0 offen lds
        s_branch L_prep_d3
        L_prep_d2:
        v_add_u32 v7, 512, v2
        """)
        self.div9(7, 3, 4)
        a(f"""
        v_mul_u32_u24 v3, 1152, v3
        v_lshl_add_u32 v5, v4, 4, v3
        s_mov_b32 m0, {L_PV+8192}
        s_nop 0
        buffer_load_dwordx4 v5, {sB}, s60 offen lds
        L_prep_d3:
        s_cmp_ge_u32 {sW}, 5
        s_cbranch_scc1 L_prep_other
        """)
        self.sk_load()
        if 'hearly' in EXP:
            a(f"s_cmp_lg_u32 {sW}, 4\ns_cbranch_scc1 L_prep_k0\ns_cmp_ge_u32 {sJ}, 18\ns_cbranch_scc1 L_prep_k0")
            self.h_issue(HR)
            a("s_waitcnt vmcnt(8)\ns_branch L_prep_k1\nL_prep_k0:\ns_waitcnt vmcnt(0)\nL_prep_k1:")
        else:
            a("s_waitcnt vmcnt(0)")
        a(f"""
        v_bfe_u32 v5, v2, 2, 2
        v_lshl_add_u32 v5, v4, 3, v5      ; 8G + j
        v_mul_u32_u24 v5, 144, v5
        v_and_b32 v6, 3, v2
        v_lshl_add_u32 v5, v6, 3, v5
        s_lshl_b32 s62, {sW}, 5
        s_add_u32 s62, s62, {L_PK}
        v_add_u32 v5, s62, v5
        s_waitcnt lgkmcnt(0)
        """)
        self.stamp(19)
        a("s_barrier")
        self.stamp(16)
        KR, VR_, KF, AC, WT = 12, 24, 32, 56, 72
        for o in range(2):
            for i in range(3):
                a(f"ds_read_b64_tr_b16 {vr(KR+6*o+2*i,2)}, v5 offset:{4608*o+576*i}")
            for i in range(2):
                a(f"ds_read_b64_tr_b16 {vr(VR_+4*o+2*i,2)}, v5 offset:{L_PV-L_PK+4608*o+576*i}")
        a(f"""
        s_mov_b32 s65, 0xffff0000
        v_lshlrev_b32 v{WT}, 16, v10
        v_and_b32 v{WT+1}, s65, v10
        v_lshlrev_b32 v{WT+2}, 16, v11
        v_and_b32 v{WT+3}, s65, v11
        v_lshlrev_b32 v6, 12, v3
        v_lshl_add_u32 v6, v4, 4, v6
        v_mov_b32 v7, 0x7fffffff
        s_mul_i32 s62, {sW}, 16
        v_add_u32 v8, s62, v3
        v_cmp_gt_u32 vcc, 72, v8
        s_lshl_b32 s62, s61, 12
        s_lshl_b32 s63, {sJ}, 7
        s_add_u32 s62, s62, s63
        s_add_u32 s62, s62, {W_U}
        v_cndmask_b32 v6, v7, v6, vcc
        """)
        for o in range(2):
            a(f"s_waitcnt lgkmcnt({7 if o == 0 else 2})")
            kf = KF + 12 * o
            for d in range(6):
                if d:
                    a(f"v_lshlrev_b32 v{kf+2*d}, 16, v{KR+6*o+d}")
                a(f"v_and_b32 v{kf+2*d+1}, s65, v{KR+6*o+d}")
            ac = AC + 8 * o
            for t in range(8):
                a(f"v_mul_f32 v{ac+t}, v{WT}, v{kf+4+t}")
            for i in range(1, 4):
                for t in range(8):
                    a(f"v_fmac_f32 v{ac+t}, v{WT+i}, v{kf+4+t-i}")
            a(f"s_waitcnt lgkmcnt({5 if o == 0 else 0})")
            for d in range(4):
                a(f"v_lshlrev_b32 v{kf+2*d}, 16, v{VR_+4*o+d}")
                a(f"v_and_b32 v{kf+2*d+1}, s65, v{VR_+4*o+d}")
            for t in range(8):
                a(f"v_mul_f32 v{ac+t}, v{ac+t}, v{kf+t}")
            for d in range(4):
                a(f"v_cvt_pk_bf16_f32 v{76+4*o+d}, v{ac+7-2*d}, v{ac+6-2*d}")
            a(f"buffer_store_dwordx4 {vr(76+4*o,4)}, v6, {sWS}, s62 offen offset:{64*o} sc1")
        self.stamp(17)
        a(f"""
        s_add_u32 s28, s28, 1
        s_addc_u32 s29, s29, 0
        s_lshl_b32 s60, {sX}, 5
        s_add_u32 s60, s60, {sJ}
        s_lshl_b32 s60, s60, 6
        s_add_u32 s60, s60, {W_F1}
        v_mov_b32 v10, s28
        v_mov_b32 v11, s29
        v_mov_b32 v12, 0
        s_mov_b32 s81, 256
        s_cmp_lg_u32 {sW}, 0
        s_waitcnt vmcnt(0)
        s_barrier
        s_cbranch_scc1 L_prep_nf
        s_mov_b64 exec, 1
        buffer_store_dwordx2 v[10:11], v12, {sWS}, s60 offen sc1
        s_mov_b64 exec, -1
        L_prep_nf:
        s_cmp_lt_u32 {sW}, 4
        s_cbranch_scc1 L_prep_done
        s_branch L_prep_second
        """)

        a("L_prep_other:")
        a(".reset_waits")
        a(f"""
        s_mul_i32 s70, {sX}, 14
        s_add_u32 s70, s70, {sJ}
        s_sub_u32 s70, s70, 18            ; unit
        s_cmp_ge_u32 {sJ}, 18
        s_cbranch_scc1 L_prep_r
        """)
        a(f"""
        s_lshl_b32 s81, {sX}, 4
        s_add_u32 s81, s81, {sJ}
        s_cmp_lt_u32 {sJ}, 16
        s_cselect_b32 s81, s81, 256
        s_cmp_eq_u32 {sW}, 5
        s_cselect_b32 s81, s81, 256
        """)
        if 'hearly' in EXP:
            self.h_issue(HR)
            a("s_cmp_lt_u32 s81, 128\ns_cbranch_scc1 L_prep_hx\ns_waitcnt vmcnt(8) lgkmcnt(0)\ns_branch L_prep_w1\nL_prep_hx:")
            self.x0_issue()
            a("s_waitcnt vmcnt(26) lgkmcnt(0)\ns_branch L_prep_w1")
        else:
            a("s_branch L_prep_w0")
        a(f"""
        L_prep_r:
        s_cmp_ge_u32 s70, 72
        s_cbranch_scc1 L_prep_w0
        s_cmp_lt_u32 {sW}, 6
        s_cbranch_scc1 L_prep_w0
        """)
        self.dma_wraw("q")
        a("s_waitcnt vmcnt(13) lgkmcnt(0)\ns_branch L_prep_w1")
        a(f"""
        L_prep_w0:
        s_waitcnt vmcnt(0) lgkmcnt(0)
        L_prep_w1:
        s_barrier                        ; B0
        s_add_u32 s28, s28, 1
        s_addc_u32 s29, s29, 0
        s_barrier                        ; B1
        L_prep_second:
        s_sub_u32 s67, {sW}, 4
        s_cmp_ge_u32 {sJ}, 18
        s_cbranch_scc1 L_prep_done
        """)
        if 'hearly' not in EXP:
            self.h_issue(HR)
        a("s_mov_b32 s61, s67\ns_waitcnt vmcnt(0)")
        self.build_h(HR)
        a("s_cmp_ge_u32 s81, 128\ns_cbranch_scc1 L_prep_b2")
        self.x0_stats()
        a("L_prep_b2:\ns_waitcnt lgkmcnt(0)")
        a("s_barrier\ns_cmp_ge_u32 s81, 128\ns_cbranch_scc1 L_prep_b3")
        self.x0_store(wait=False)
        a("s_barrier\ns_waitcnt vmcnt(0)")
        self.flag_store("s82", 10)
        a("s_branch L_prep_done\nL_prep_b3:\ns_barrier")
        a("L_prep_done:")
        a(".reset_waits")
        self.stamp(1)

    def h_issue(self, HR):
        a = self.a
        self.srd(sD_, "h", NB)
        a(f"""
        s_mul_i32 s63, {sX}, 18
        s_add_u32 s63, s63, {sJ}
        v_lshlrev_b32 v9, 4, v2
        s_lshl_b32 s63, s63, 2
        s_add_u32 s63, s63, {sW}
        s_sub_u32 s63, s63, 4
        s_lshl_b32 s63, s63, 12
        """)
        for i in range(4):
            b = HR + 8 * i
            a(f"buffer_load_dwordx4 {vr(b,4)}, v9, {sD_}, s63 offen offset:{1024*i}")
            a(f"buffer_load_dwordx4 {vr(b+4,4)}, v9, {sD_}, s63 offen offset:{1024*i+8}")

    def x0_issue(self):
        a = self.a
        self.srd(sC, "q", NB)
        a(f"""
        s_mul_i32 s61, s81, {16*1152}
        v_lshrrev_b32 v24, 3, v2
        v_and_b32 v25, 7, v2
        v_mul_u32_u24 v26, 2304, v24
        v_lshl_add_u32 v26, v25, 4, v26
        """)
        for i in range(9):
            a(f"buffer_load_dwordx4 {vr(168+8*i,4)}, v26, {sC}, s61 offen offset:{128*i}")
            a(f"buffer_load_dwordx4 {vr(172+8*i,4)}, v26, {sC}, s61 offen offset:{128*i+1152}")

    def x0_stats(self):
        a = self.a
        a("""
        v_mov_b32 v28, 0
        v_mov_b32 v29, 0
        v_mov_b32 v30, 0
        v_mov_b32 v31, 0
        v_mov_b32 v27, 0x3f803f80
        s_waitcnt vmcnt(0)
        """)
        for i in range(9):
            b = 168 + 8 * i
            for j in range(4):
                for h in range(2):
                    a(f"v_dot2c_f32_bf16 v{28+2*h}, v{b+4*h+j}, v27")
                    a(f"v_dot2c_f32_bf16 v{29+2*h}, v{b+4*h+j}, v{b+4*h+j}")
            a(f"v_swap_b32 v{b+2}, v{b+4}\nv_swap_b32 v{b+3}, v{b+5}")
        for m in ("quad_perm:[1,0,3,2]", "quad_perm:[2,3,0,1]", "row_half_mirror"):
            for j in range(4):
                a(f"v_add_f32_dpp v{28+j}, v{28+j}, v{28+j} {m} row_mask:0xf bank_mask:0xf bound_ctrl:0")
        self.stats(28, 29, 32, 33, 27)
        self.stats(30, 31, 34, 35, 27)

    def x0_store(self, wait=True):
        a = self.a
        a(f"""
        s_lshl_b32 s82, s81, 6
        s_add_u32 s82, s82, {W_F2}
        s_lshl_b32 s63, s81, 7
        s_add_u32 s63, s63, {W_ST0}
        v_lshlrev_b32 v24, 4, v24
        v_lshl_add_u32 v26, v25, 9, v24
        v_cmp_eq_u32 vcc, 0, v25
        s_lshr_b32 s60, s81, 1
        s_mul_i32 s60, s60, 36864
        s_and_b32 s61, s81, 1
        s_lshl_b32 s61, s61, 7
        s_add_u32 s60, s60, s61
        s_add_u32 s60, s60, {W_X0}
        s_mov_b64 exec, vcc
        buffer_store_dwordx4 v[32:35], v24, {sWS}, s63 offen sc1
        s_mov_b64 exec, -1
        """)
        for i in range(9):
            b = 168 + 8 * i
            a(f"buffer_store_dwordx4 {vr(b,4)}, v26, {sWS}, s60 offen sc1")
            a(f"buffer_store_dwordx4 {vr(b+4,4)}, v26, {sWS}, s60 offen offset:256 sc1")
            if i < 8:
                a("s_add_u32 s60, s60, 4096")
        if wait:
            a("s_waitcnt vmcnt(0)")
            self.flag_store("s82", 10)

    def sk_load(self):
        self.srd(sC, "sk", D * 8)
        self.a(f"""
        v_and_b32 v3, 15, v2
        v_lshrrev_b32 v4, 4, v2           ; G
        s_mul_i32 s61, {sX}, 72
        s_lshl_b32 s62, {sW}, 4
        s_add_u32 s61, s61, s62
        v_add_u32 v5, s61, v3
        v_lshlrev_b32 v5, 3, v5
        buffer_load_dwordx2 v[10:11], v5, {sC}, 0 offen
        """)

    def arrive(self, cnt, last, base, index, vm=0):
        L = self.lab()
        self.a(f"""
        v_mov_b32 v8, {cnt}
        v_mov_b32 v9, 1
        s_waitcnt vmcnt({vm})
        s_mov_b64 exec, 1
        ds_add_rtn_u32 v9, v8, v9
        s_mov_b64 exec, -1
        {index}
        s_lshl_b32 s60, s60, 6
        s_add_u32 s60, s60, {base}
        s_waitcnt lgkmcnt(0)
        v_readfirstlane_b32 s61, v9
        s_cmp_lg_u32 s61, {last}
        s_cbranch_scc1 {L}
        """)
        self.flag_store("s60", 10)
        self.a(f"{L}:")

    def build_h(self, HR):
        a = self.a
        T = 84
        a(f"""
        s_mul_i32 s63, s61, {4*HC_B}
        s_add_u32 s63, s63, {L_HC+32}
        v_lshl_add_u32 v7, v2, 4, s63
        """)
        for i in range(4):
            A, C = HR + 8 * i, HR + 8 * i + 4
            t = T + 12 * (i & 1)
            d = [A, A + 1, A + 2, A + 3, C + 2, C + 3]
            if i == 0:
                a(f"v_readlane_b32 s60, v{HR}, 0\nv_readlane_b32 s62, v{HR+1}, 0")
            a(f"ds_write_b128 v7, {vr(A,4)} offset:{1024*i}")
            for j in range(4):
                a(f"v_alignbyte_b32 v{t+j}, v{d[j+1]}, v{d[j]}, 2")
            a(f"ds_write_b128 v7, {vr(t,4)} offset:{HC_B+1024*i}")
            for j in range(4):
                a(f"v_mov_b32 v{t+4+j}, v{d[j+1]}")
            a(f"ds_write_b128 v7, {vr(t+4,4)} offset:{2*HC_B+1024*i}")
            for j in range(4):
                a(f"v_alignbyte_b32 v{t+8+j}, v{d[j+2]}, v{d[j+1]}, 2")
            a(f"ds_write_b128 v7, {vr(t+8,4)} offset:{3*HC_B+1024*i}")
        a(f"""
        v_mov_b32 v16, s60
        v_mov_b32 v17, s62
        v_mov_b32 v18, 0
        v_mov_b32 v19, 0
        v_mov_b32 v20, 0
        v_mov_b32 v21, 0
        v_lshlrev_b32 v8, 4, v2
        v_sub_u32 v8, 64, v8
        v_cmp_eq_u32 vcc, 0, v2
        v_lshlrev_b64 v[22:23], v8, v[16:17]
        s_sub_u32 s63, s63, 32
        v_mul_u32_u24 v7, {HC_B}, v2
        v_add_u32 v7, s63, v7
        v_cndmask_b32 v22, v22, v18, vcc
        v_cndmask_b32 v23, v23, v18, vcc
        s_mul_i32 s63, s61, {U_B}
        s_add_u32 s63, s63, {L_U}
        v_lshl_add_u32 v8, v2, 3, s63
        ds_write_b64 v8, v[18:19]
        s_mov_b64 exec, 15
        ds_write_b128 v7, v[18:21]
        ds_write_b128 v7, v[20:23] offset:16
        s_mov_b64 exec, -1
        """)

    def stats(self, vs, vq, vrs, vmr, vt, n=576):
        self.a(f"""
        v_mul_f32 v{vs}, {f32hex(1.0/n)}, v{vs}
        v_mul_f32 v{vq}, {f32hex(1.0/n)}, v{vq}
        v_fma_f32 v{vt}, -v{vs}, v{vs}, v{vq}
        v_max_f32 v{vt}, 0, v{vt}
        v_add_f32 v{vt}, {f32hex(1e-5)}, v{vt}
        v_rsq_f32 v{vrs}, v{vt}
        s_nop 0
        v_mul_f32 v{vmr}, v{vs}, v{vrs}
        v_sub_f32 v{vmr}, 0, v{vmr}
        """)

    def dma_wraw(self, kind):
        a = self.a
        L1, L2 = self.lab(), self.lab()
        a(f"""
        s_mul_i32 s70, {sX}, 14
        s_add_u32 s70, s70, {sJ}
        s_sub_u32 s70, s70, 18
        s_sub_u32 s62, {sW}, 6
        """)
        if kind == "q":
            self.wraw_q(L1)
        elif kind == "q4":
            self.wraw_q(L1, 4)
        else:
            self.wraw_o(L2)

    def wraw_q(self, L1, shift=0):
        a = self.a
        a(f"""
        s_lshr_b32 s71, s70, 1
        s_and_b32 s72, s70, 1
        s_mul_i32 s60, s71, {16*3456}
        s_mul_i32 s61, s72, 576
        s_add_u32 s60, s60, s61
        s_add_u32 s60, s60, {shift}
        """)
        self.srd(sB, "wqkv", D * 3 * D * 2)
        a(f"{L1}:\nv_lshl_add_u32 v4, s62, 6, v2\nv_lshrrev_b32 v7, 2, v4")
        self.div9(7, 5, 6)
        a(f"""
        v_mul_u32_u24 v5, {1152-576}, v5
        v_lshl_add_u32 v8, v4, 4, v5
        s_lshl_b32 s63, s62, 10
        s_add_u32 m0, s63, {27648 if shift else 0}
        s_add_u32 s62, s62, 2
        buffer_load_dwordx4 v8, {sB}, s60 offen lds
        s_cmp_lt_u32 s62, 27
        s_cbranch_scc1 {L1}
        """)

    def wraw_o(self, L2):
        a = self.a
        a(f"""
        s_sub_u32 s71, s70, 72           ; S
        s_mul_i32 s60, s71, {36*1152}
        s_sub_u32 s61, s71, 16
        s_mul_i32 s61, s61, {288*1152}
        s_add_u32 s61, s61, {16*1152}
        s_cmp_lt_u32 s71, 16
        s_cselect_b32 s60, s60, s61
        s_cselect_b64 s[74:75], -1, 0
        """)
        self.srd(sB, "wo", D * D * 2)
        a(f"{L2}:\nv_lshl_add_u32 v4, s62, 6, v2\nv_lshrrev_b32 v9, 3, v4")
        self.div9(9, 5, 6)
        a(f"""
        v_mul_u32_u24 v6, 72, v5
        v_sub_u32 v6, v4, v6
        v_lshrrev_b32 v7, 4, v5
        v_mul_u32_u24 v7, 18, v7
        v_bfe_u32 v8, v5, 3, 1
        v_lshl_add_u32 v7, v8, 2, v7
        v_bfe_u32 v8, v5, 2, 1
        v_lshl_add_u32 v7, v8, 3, v7
        v_and_b32 v8, 3, v5
        v_add_u32 v7, v7, v8
        v_lshrrev_b32 v8, 1, v5
        v_mul_u32_u24 v8, 18, v8
        v_and_b32 v9, 1, v5
        v_add_u32 v8, v8, v9
        v_cndmask_b32 v7, v8, v7, s[74:75]
        v_mul_u32_u24 v7, 1152, v7
        v_lshl_add_u32 v8, v6, 4, v7
        s_lshl_b32 m0, s62, 10
        s_add_u32 s62, s62, 2
        buffer_load_dwordx4 v8, {sB}, s60 offen lds
        s_cmp_lt_u32 s62, 36
        s_cbranch_scc1 {L2}
        """)

    def relayout(self):
        a = self.a
        a("L_relayout:")
        a(".reset_waits")
        a(f"""
        L_rel_nx:
        s_mul_i32 s70, {sX}, 14
        s_add_u32 s70, s70, {sJ}
        s_sub_u32 s70, s70, 18
        s_cmp_lt_u32 {sW}, 6
        s_cbranch_scc1 L_rel_nx1
        s_cmp_lt_u32 s70, 72
        s_cbranch_scc1 L_rel_nq
        s_cmp_ge_u32 s70, 90
        s_cbranch_scc1 L_rel_nx1
        """)
        self.dma_wraw("o")
        a("s_branch L_rel_nx1\nL_rel_nq:")
        self.dma_wraw("q4")
        a(f"""
        L_rel_nx1:
        s_waitcnt vmcnt(0)
        s_barrier
        """)
        self.stamp(20)
        a(f"""
        v_lshrrev_b32 v3, 4, v2          ; G
        v_bfe_u32 v4, v2, 2, 2           ; j
        v_and_b32 v5, 3, v2              ; m
        v_lshrrev_b32 v6, 5, v2          ; half
        v_and_b32 v7, 31, v2             ; col
        s_cmp_ge_u32 s70, 90
        s_cbranch_scc1 L_rel_nf
        s_cmp_ge_u32 s70, 72
        s_cbranch_scc1 L_rel_o
        s_lshr_b32 s71, s70, 1           ; k-step
        s_and_b32 s72, s70, 1
        s_mul_i32 s73, s71, 1792
        s_mul_i32 s74, s72, {16*WQ_B}
        s_add_u32 s73, s73, s74
        s_add_u32 s73, s73, {W_WQ}
        v_lshl_add_u32 v8, v6, 3, v4
        v_mul_u32_u24 v8, 1728, v8
        v_and_b32 v9, 1, v3              ; G&1
        s_lshr_b32 s75, {sW}, 1
        s_and_b32 s76, {sW}, 1           ; tile
        s_mul_i32 s77, s75, 36
        s_and_b32 s79, s75, 1
        s_mul_i32 s79, s79, {27648-4}
        s_add_u32 s77, s77, s79
        s_mul_i32 s78, s75, {WQ_B}
        s_add_u32 s73, s73, s78
        s_cmp_lg_u32 s76, 0
        s_cbranch_scc1 L_rel_t1
        v_mul_u32_u24 v10, 576, v9
        v_lshl_add_u32 v10, v5, 3, v10
        v_add3_u32 v8, v8, v10, s77
        v_lshlrev_b32 v11, 4, v2
        v_lshlrev_b32 v14, 2, v7
        s_branch L_rel_go
        L_rel_t1:
        ; G&1==0: 96+8m ; else m: 0->128 1->32 2->80 3->128
        v_lshlrev_b32 v10, 3, v5
        v_add_u32 v10, 1152, v10
        v_mov_b32 v12, {1152+32}
        v_cmp_eq_u32 vcc, 1, v5
        s_nop 1
        v_cndmask_b32 v12, v12, 32, vcc
        v_mov_b32 v13, {576+32}
        v_cmp_eq_u32 vcc, 2, v5
        s_nop 1
        v_cndmask_b32 v12, v12, v13, vcc
        v_cmp_eq_u32 vcc, 1, v9
        s_nop 1
        v_cndmask_b32 v10, v10, v12, vcc
        v_add3_u32 v8, v8, v10, s77
        v_subrev_u32 v12, 2, v7
        v_cmp_gt_u32 vcc, 22, v7
        s_nop 1
        v_cndmask_b32 v12, v12, v7, vcc
        v_lshlrev_b32 v14, 2, v12
        v_lshlrev_b32 v12, 4, v12
        v_mul_u32_u24 v13, 384, v6
        v_add_u32 v11, v12, v13
        v_add_u32 v11, 1024, v11
        v_and_b32 v13, 30, v7
        v_cmp_eq_u32 s[62:63], 24, v13
        s_nop 1
        s_or_b64 vcc, vcc, s[62:63]
        v_mov_b32 v13, 0x7fffffff
        s_nop 0
        v_cndmask_b32 v11, v13, v11, vcc
        v_cndmask_b32 v14, v13, v14, vcc
        L_rel_go:
        """)
        for n in range(4):
            a(f"ds_read_b64_tr_b16 {vr(68+4*n,2)}, v8 offset:{144*n}")
            a(f"ds_read_b64_tr_b16 {vr(70+4*n,2)}, v8 offset:{144*n+4*1728}")
        a(f"""
        s_lshl_b32 s74, s72, 4
        s_add_u32 s74, s74, s75
        s_mul_i32 s74, s74, 36
        s_add_u32 s74, s74, s71
        s_lshl_b32 s74, s74, 8
        s_lshl_b32 s77, s76, 7
        s_add_u32 s74, s74, s77
        s_add_u32 s74, s74, {W_CSP}
        v_mov_b32 v15, 0x3f803f80
        """)
        for n in range(4):
            a(f"v_mov_b32 v{84+n}, 0")
        for n in range(4):
            a(f"s_waitcnt lgkmcnt({6-2*n})")
            a(f"buffer_store_dwordx4 {vr(68+4*n,4)}, v11, {sWS}, s73 offen sc1")
            a(f"s_add_u32 s73, s73, {4*WQ_B}")
            for j in range(4):
                a(f"v_dot2c_f32_bf16 v{84+n}, v{68+4*n+j}, v15")
        for n in range(4):
            a(f"v_mov_b32 v{88+n}, v{84+n}")
        for n in range(4):
            a(f"v_permlane32_swap_b32 v{84+n}, v{88+n}")
        for n in range(4):
            a(f"v_add_f32 v{84+n}, v{84+n}, v{88+n}")
        a("s_mov_b32 exec_hi, 0")
        for n in range(4):
            a(f"buffer_store_dword v{84+n}, v14, {sWS}, s74 offen sc1")
            a(f"s_add_u32 s74, s74, {4*36*256}")
        a("s_mov_b64 exec, -1")
        a("s_branch L_rel_fin")
        a(f"""
        L_rel_o:
        .reset_waits
        s_sub_u32 s71, s70, 72
        s_mul_i32 s73, {sW}, {WO_B}
        s_mul_i32 s74, s71, 4608
        s_add_u32 s73, s73, s74
        s_add_u32 s73, s73, {W_WO}
        v_lshl_add_u32 v10, v3, 3, v4
        v_mul_u32_u24 v10, 1152, v10
        v_lshl_add_u32 v10, v5, 3, v10
        s_mul_i32 s74, {sW}, 144
        v_add_u32 v10, s74, v10
        v_lshlrev_b32 v12, 4, v2
        v_and_b32 v13, 15, v2
        v_lshlrev_b32 v14, 4, v13
        v_lshl_add_u32 v14, v3, 7, v14
        v_mov_b32 v15, 0x7fffffff
        v_cmp_gt_u32 vcc, 8, v13
        s_add_u32 s74, s73, 4096
        s_nop 0
        v_cndmask_b32 v14, v15, v14, vcc
        """)
        for ft in range(5):
            a(f"ds_read_b64_tr_b16 {vr(68+4*ft,2)}, v10 offset:{32*ft}")
            a(f"ds_read_b64_tr_b16 {vr(70+4*ft,2)}, v10 offset:{32*ft+4608}")
        for ft in range(5):
            a(f"s_waitcnt lgkmcnt({8-2*ft})")
            if ft < 4:
                a(f"buffer_store_dwordx4 {vr(68+4*ft,4)}, v12, {sWS}, s73 offen offset:{1024*ft} sc1")
            else:
                a(f"buffer_store_dwordx4 {vr(68+4*ft,4)}, v14, {sWS}, s74 offen sc1")
        a(f"""
        L_rel_fin:
        s_waitcnt vmcnt(0)
        s_barrier
        s_cmp_lg_u32 {sW}, 0
        s_cbranch_scc1 L_rel_nf
        s_lshl_b32 s60, s70, 6
        s_add_u32 s60, s60, {W_F3}
        """)
        self.flag_store("s60", 10)
        a("L_rel_nf:")
        a(f"s_cmp_lt_u32 {sW}, 4\ns_cbranch_scc1 L_rel_nw")
        self.wq_flags()
        self.poll([(5, "s62", 0)], 6, 3, first=4)
        self.stamp(29)
        self.wq_fetch()
        a(f"s_cmp_lg_u32 {sW}, 7\ns_cbranch_scc1 L_rel_nw")
        self.cs_issue()
        a("s_waitcnt vmcnt(0)")
        self.cs_finish()
        a("L_rel_nw:")
        a("s_waitcnt vmcnt(0)\ns_barrier\ns_branch L_qkv_pre")

    def wq_flags(self):
        self.a(f"""
        s_lshr_b32 s60, {sJ}, 4
        v_min_u32 v5, 35, v2
        v_lshl_add_u32 v5, v5, 1, s60
        v_lshlrev_b32 v5, 6, v5
        s_mov_b32 s62, {W_F3}
        """)

    def cs_issue(self):
        a = self.a
        a(f"""
        s_mul_i32 s60, {sJ}, {36*256}
        s_add_u32 s60, s60, {W_CSP}
        v_lshlrev_b32 v4, 4, v2
        """)
        for i in range(9):
            a(f"buffer_load_dwordx4 {vr(168+4*i,4)}, v4, {sWS}, s60 offen sc1")
            if i < 8:
                a("s_add_u32 s60, s60, 1024")

    def cs_finish(self):
        a = self.a
        for i in range(1, 9):
            for j in range(4):
                a(f"v_add_f32 v{168+j}, v{168+j}, v{168+4*i+j}")
        for op in ("v_permlane16_swap_b32", "v_permlane32_swap_b32"):
            for j in range(4):
                a(f"v_mov_b32 v{172+j}, v{168+j}")
            for j in range(4):
                a(f"{op} v{168+j}, v{172+j}")
            for j in range(4):
                a(f"v_add_f32 v{168+j}, v{168+j}, v{172+j}")
        a(f"""
        v_and_b32 v4, 15, v2
        v_lshlrev_b32 v4, 4, v4
        v_add_u32 v4, {L_CS}, v4
        ds_write_b128 v4, v[168:171]
        s_waitcnt lgkmcnt(0)
        """)

    def wq_fetch(self, last=63):
        L = self.lab()
        self.a(f"""
        s_mul_i32 s60, {sJ}, {WQ_B}
        s_add_u32 s60, s60, {W_WQ}
        s_sub_u32 s62, {sW}, 4
        v_lshlrev_b32 v4, 4, v2
        {L}:
        s_lshl_b32 s63, s62, 10
        s_add_u32 m0, s63, {L_WQ}
        s_add_u32 s63, s63, s60
        s_add_u32 s62, s62, 4
        buffer_load_dwordx4 v4, {sWS}, s63 offen sc1 lds
        s_cmp_lt_u32 s62, {last}
        s_cbranch_scc1 {L}
        """)

    def conv(self):
        a = self.a
        a(f"s_cmp_ge_u32 {sJ}, 18\ns_cbranch_scc1 L_relayout")
        a(f"""
        s_mul_i32 s66, {sX}, 18
        s_add_u32 s66, s66, {sJ}          ; quad
        s_cmp_ge_u32 {sW}, 4
        s_cbranch_scc1 L_conv_help
        """)
        self.srd(sA, "dd", D * 2)
        a(f"""
        s_lshl_b32 s61, s66, 2
        s_add_u32 s61, s61, {sW}           ; channel
        s_lshl_b32 s62, s61, 1
        v_mov_b32 v4, s62
        buffer_load_ushort v5, v4, {sA}, 0 offen
        s_mul_i32 s62, {sW}, {U_B}
        s_add_u32 s62, s62, {L_U+512}
        s_cmp_lg_u32 {sW}, 0
        s_cbranch_scc1 L_conv_nu
        v_and_b32 v4, 31, v2
        v_lshlrev_b32 v4, 6, v4
        s_lshl_b32 s60, {sX}, 11
        s_add_u32 s60, s60, {W_F1}
        """)
        self.poll2([(4, "s60", 0)], 176, 1)
        a(f"""
        s_lshl_b32 s61, s61, 12
        s_add_u32 s61, s61, {W_U}
        v_lshlrev_b32 v4, 4, v2
        """)
        for c in range(4):
            for i in range(4):
                a(f"s_mov_b32 m0, {L_U+512+U_B*c+1024*i}\ns_add_u32 s63, s61, {4096*c+1024*i}")
                a(f"buffer_load_dwordx4 v4, {sWS}, s63 offen sc1 lds")
        a("L_conv_nu:")
        a("s_barrier")
        self.stamp(2)
        vBA, vAA, AD = 6, 7, 8
        ACC, A0, B0 = 16, 48, 112
        a(f"""
        v_and_b32 v12, 15, v2              ; nn / r
        v_lshrrev_b32 v13, 5, v2           ; g>>1
        v_bfe_u32 v14, v2, 4, 1            ; g&1
        s_sub_u32 s62, s62, {448}          ; u base + 64
        v_sub_u32 v15, v12, v13
        v_lshlrev_b32 v15, 5, v15
        v_lshl_add_u32 v15, v14, 4, v15
        v_add_u32 v{vBA}, s62, v15
        v_add_u32 v15, 1, v12
        v_and_b32 v3, 3, v15               ; sigma
        v_lshl_add_u32 v15, v13, 4, v12
        v_lshlrev_b32 v1, 3, v14
        v_sub_u32 v15, v15, v1
        v_sub_u32 v15, v15, v3
        v_add_u32 v15, 9, v15
        v_lshlrev_b32 v15, 1, v15
        v_mul_u32_u24 v3, {HC_B}, v3
        s_mul_i32 s63, {sW}, {4*HC_B}
        v_add3_u32 v{vAA}, v15, v3, s63
        v_add_u32 v1, 7, v1
        v_sub_u32 v1, v1, v12              ; j0
        v_lshl_add_u32 v1, v13, 6, v1
        v_and_b32 v3, 1, v1
        v_lshlrev_b32 v3, 4, v3
        v_lshrrev_b32 v1, 1, v1
        s_waitcnt vmcnt(16)
        s_cmp_eq_u32 {sW}, 0
        s_cbranch_scc1 L_conv_d
        s_waitcnt vmcnt(0)
        L_conv_d:
        v_lshlrev_b32 v5, v3, v5
        """)
        for i in range(4):
            a(f"v_cmp_eq_u32 vcc, {i}, v1\ns_nop 1\nv_cndmask_b32 v{AD+i}, 0, v5, vcc")

        def rdA(rho, q):
            b = A0 + 32 * (rho & 1) + 4 * q
            off = L_HC + 64 * (rho + 8 * q)
            return [f"ds_read_b64 {vr(b,2)}, v{vAA} offset:{off}", f"ds_read_b64 {vr(b+2,2)}, v{vAA} offset:{off+8}"]

        def rdB(rho, j):
            b = B0 + 32 * (rho & 1) + 4 * j
            return [f"ds_read_b128 {vr(b,4)}, v{vBA} offset:{64*(8*j-rho+7)}"]

        def reads(rho):
            r = rdA(rho, 0)
            for j in range(8):
                r += rdB(rho, j)
            for q in range(1, 8):
                r += rdA(rho, q)
            return r
        a("s_waitcnt vmcnt(0)\ns_barrier")
        for q in range(8):
            for l in rdA(0, q):
                a(l)
        for j in range(8):
            a(rdB(0, j)[0])
        for rho in range(8):
            a("s_waitcnt lgkmcnt(0)")
            nxt = reads(rho + 1) if rho < 7 else []
            ab, bb = A0 + 32 * (rho & 1), B0 + 32 * (rho & 1)
            ms = []
            if rho == 0:
                for n in range(8):
                    ms.append(f"v_mfma_f32_16x16x32_bf16 {vr(ACC+4*n,4)}, {vr(AD,4)}, {vr(bb+4*n,4)}, 0")
            for q in range(8):
                for n in range(q, 8):
                    ms.append(f"v_mfma_f32_16x16x32_bf16 {vr(ACC+4*n,4)}, {vr(ab+4*q,4)}, {vr(bb+4*(n-q),4)}, {vr(ACC+4*n,4)}")
            for m in ms:
                a(m)
                if nxt:
                    a(nxt.pop(0))
        self.stamp(3)
        a(f"""
        v_lshlrev_b32 v12, 5, v12
        v_lshrrev_b32 v13, 4, v2
        v_lshl_add_u32 v12, v13, 3, v12
        s_mul_i32 s63, {sW}, {4*HC_B+32}
        v_add_u32 v12, s63, v12
        """)
        for n in range(8):
            a(f"v_cvt_pk_bf16_f32 v{A0+2*n}, v{ACC+4*n}, v{ACC+4*n+1}")
            a(f"v_cvt_pk_bf16_f32 v{A0+2*n+1}, v{ACC+4*n+2}, v{ACC+4*n+3}")
            a(f"ds_write_b64 v12, {vr(A0+2*n,2)} offset:{L_HC+512*n}")
        a("s_waitcnt lgkmcnt(0)\ns_barrier")
        a("s_branch L_qkv_pre")

        a("L_conv_help:")
        a(".reset_waits")
        X0, ST, Y, T = 16, 32, 232, 64
        self.wq_flags()
        a(f"""
        v_and_b32 v4, 31, v2
        v_lshlrev_b32 v4, 6, v4
        s_lshl_b32 s63, s67, 11
        s_add_u32 s63, s63, {W_F2}
        v_lshlrev_b32 v3, 3, v2
        s_lshl_b32 s60, s67, 12
        s_add_u32 s60, s60, {W_ST0}
        v_and_b32 v14, 31, v2
        v_lshrrev_b32 v15, 5, v2
        v_mul_u32_u24 v15, 36864, v15
        v_lshl_add_u32 v14, v14, 3, v15
        s_mul_i32 s76, s67, {16*36864}
        s_lshl_b32 s61, s66, 8
        s_add_u32 s76, s76, s61
        s_add_u32 s61, s76, {W_X0}
        """)
        self.poll([(4, "s63", 0), (5, "s62", 0)], 6, 2, first=4)
        self.stamp(18)
        for i in range(8):
            a(f"buffer_load_dwordx2 {vr(ST+2*i,2)}, v3, {sWS}, s60 offen offset:{512*i} sc1")
            a(f"buffer_load_dwordx2 {vr(X0+2*i,2)}, v14, {sWS}, s61 offen sc1")
            if i < 7:
                a(f"s_add_u32 s61, s61, {2*36864}")
        self.wq_fetch(last=WQ1)
        a(f"s_cmp_lg_u32 {sW}, 7\ns_cbranch_scc1 L_help_c0")
        self.cs_issue()
        a(f"""
        s_waitcnt vmcnt({WQ1//4 + 9})
        s_branch L_help_c1
        L_help_c0:
        s_waitcnt vmcnt({WQ1//4})
        L_help_c1:
        v_bfe_u32 v4, v2, 2, 2
        v_mul_u32_u24 v4, {4*HC_B+32}, v4
        v_lshrrev_b32 v5, 4, v2
        v_lshl_add_u32 v4, v5, 5, v4
        v_and_b32 v5, 3, v2
        v_lshl_add_u32 v4, v5, 3, v4
        s_lshl_b32 s60, s67, 10
        v_add_u32 v4, s60, v4
        s_mov_b32 s64, 0xffff0000
        s_add_u32 s61, s76, {W_Y}
        s_add_u32 s60, s76, {W_X1}
        """)
        a(".reset_waits")
        for i in range(8):
            t = T + 8 * i
            for d in range(2):
                a(f"v_lshlrev_b32 v{t+2*d}, 16, v{X0+2*i+d}")
                a(f"v_and_b32 v{t+2*d+1}, s64, v{X0+2*i+d}")
            for c in range(4):
                a(f"v_fma_f32 v{t+4+c}, v{t+c}, v{ST+2*i}, v{ST+2*i+1}")
        a("s_barrier")
        for i in range(8):
            a(f"ds_read_b64_tr_b16 {vr(Y+2*i,2)}, v4 offset:{L_HC+128*i}")
        for i in range(8):
            t = T + 8 * i
            a(f"s_waitcnt lgkmcnt({7-i})")
            for d in range(2):
                a(f"v_lshlrev_b32 v8, 16, v{Y+2*i+d}")
                a(f"v_and_b32 v9, s64, v{Y+2*i+d}")
                a(f"v_fmac_f32 v{t+2*d}, v{t+4+2*d}, v8")
                a(f"v_fmac_f32 v{t+2*d+1}, v{t+5+2*d}, v9")
            a(f"v_cvt_pk_bf16_f32 v{X0+2*i}, v{t}, v{t+1}")
            a(f"v_cvt_pk_bf16_f32 v{X0+2*i+1}, v{t+2}, v{t+3}")
            a(f"buffer_store_dwordx2 {vr(X0+2*i,2)}, v14, {sWS}, s60 offen sc1")
            a(f"s_add_u32 s60, s60, {2*36864}")
        a(f"""
        v_mov_b32 v248, v14
        s_mov_b32 s79, s61
        s_lshl_b32 s80, s66, 2
        s_add_u32 s80, s80, s67
        s_lshl_b32 s80, s80, 6
        s_add_u32 s80, s80, {W_F10}
        """)
        a(f"""
        s_lshl_b32 s60, s66, 2
        s_add_u32 s60, s60, s67
        s_lshl_b32 s60, s60, 6
        s_add_u32 s60, s60, {W_F4}
        s_waitcnt vmcnt(0)
        """)
        self.flag_store("s60", 10)
        a(f"s_cmp_lg_u32 {sW}, 7\ns_cbranch_scc1 L_qkv_pre")
        self.cs_finish()
        a("s_branch L_qkv_pre")

    def colsum(self):
        a = self.a
        a("L_qkv_pre:")
        a(".reset_waits")
        self.stamp(4)
        self.qkv_setup()

    def qkv_setup(self):
        self.a(f"""
        v_lshlrev_b32 v4, 4, v2
        v_add_u32 v4, {L_WQ}, v4           ; W tile 0
        v_and_b32 v6, 31, v2
        v_min_u32 v5, 23, v6
        v_lshlrev_b32 v5, 4, v5
        v_lshrrev_b32 v7, 5, v2            ; hh
        v_mul_u32_u24 v53, 384, v7
        v_add_u32 v5, v5, v53
        v_add_u32 v5, {L_WQ+1024}, v5      ; W tile 1
        v_and_b32 v53, 15, v2
        v_lshlrev_b32 v53, 1, v53
        v_bfe_u32 v54, v2, 4, 1
        v_add_u32 v53, v53, v54
        v_lshlrev_b32 v53, 4, v53
        v_and_b32 v58, 19, v6
        v_bfe_u32 v54, v6, 2, 1
        v_lshl_add_u32 v58, v54, 3, v58
        v_bfe_u32 v54, v6, 3, 1
        v_lshl_add_u32 v58, v54, 2, v58    ; sigma(n)
        v_lshlrev_b32 v54, 4, v58
        v_lshl_add_u32 v54, v7, 9, v54
        s_lshl_b32 s61, {sT}, 10
        v_add_u32 v54, s61, v54
        v_min_u32 v56, 19, v6
        v_cmp_eq_u32 vcc, 4, v56
        v_cmp_eq_u32 s[62:63], 19, v56
        s_mul_i32 s61, {sT}, 1280
        s_add_u32 s61, s61, {KV_V}
        v_cndmask_b32 v56, v56, 19, vcc
        v_cndmask_b32 v56, v56, 4, s[62:63]
        v_lshlrev_b32 v56, 4, v56
        v_mul_u32_u24 v55, 320, v7
        v_add_u32 v56, v56, v55
        v_add_u32 v55, s61, v56
        s_lshl_b32 s62, {sT}, 7
        s_add_u32 s63, s62, {L_QR}
        s_add_u32 s62, s62, {KV_R}
        v_mov_b32 v59, s62
        v_mov_b32 v60, s63
        v_cmp_gt_u32 vcc, 22, v6
        v_and_b32 v57, 1, v6
        v_lshlrev_b32 v57, 1, v57
        v_lshl_add_u32 v57, v7, 5, v57
        v_cndmask_b32 v61, v59, v60, vcc
        v_add_u32 v57, v57, v61
        v_lshl_add_u32 v58, v58, 2, v60
        v_lshl_add_u32 v59, v6, 2, v59
        s_lshl_b32 s60, {sW}, 8
        s_add_u32 s60, s60, {L_ST}
        v_lshl_add_u32 v60, v6, 2, s60
        v_mov_b32 v61, s60
        v_and_b32 v62, 30, v6
        v_cmp_eq_u32 vcc, 20, v62
        v_add_u32 v62, 128, v61
        s_nop 0
        v_cndmask_b32 v61, v61, v62, vcc
        v_cmp_eq_u32 vcc, 18, v6
        v_lshl_add_u32 v61, v7, 4, v61
        v_mov_b32 v62, 0x3f803f80
        v_cndmask_b32 v62, 0, v62, vcc
        s_lshl_b32 s69, {sLayer}, 5
        s_add_u32 s69, s69, {sJ}
        s_lshl_b32 s69, s69, 3             ; (layer*32+head)*8
        s_add_u32 s89, s69, {sX}
        s_mul_i32 s89, s89, {KV_B}
        s_add_u32 s89, s89, {W_KV}
        """)

    def qkv(self):
        a = self.a
        L = self.lab()
        a(f"s_cmp_lg_u32 {sW}, 0\ns_cbranch_scc1 {L}")
        a(f"""
        v_lshlrev_b32 v8, 8, v2
        v_add_u32 v9, {64*256}, v8
        v_add_u32 v10, {128*256}, v8
        v_min_u32 v10, {143*256}, v10
        s_lshr_b32 s60, {sX}, 1
        s_lshl_b32 s60, s60, 6
        s_add_u32 s60, s60, {W_F4}
        """)
        self.poll2([(8, "s60", 0), (9, "s60", 0), (10, "s60", 0)], 220, 4, first=2)
        a(f"{L}:")
        a(f"""
        s_mov_b32 s68, {W_X1}
        s_cmp_eq_u32 {sW}, 0
        s_cselect_b32 s3, 3, 0
        s_add_u32 s88, {sW}, {WQ1-4}
        s_lshl_b32 s88, s88, 10            ; first remaining piece of the wqkv slice (waves 4-7)
        s_mul_i32 s87, {sJ}, {WQ_B}
        s_add_u32 s87, s87, s88
        s_add_u32 s87, s87, {W_WQ}
        s_cmp_lt_u32 {sJ}, 18
        s_cselect_b32 s87, s87, 0
        s_cmp_ge_u32 {sW}, 4
        s_cselect_b32 s87, s87, 0
        """)
        a("L_qkv:")
        a(".reset_waits")
        XF, D0, D1, WF, RS = 64, 16, 32, 208, 96
        a(f"""
        s_lshl_b32 s75, {sLayer}, 15
        s_lshl_b32 s61, {sX}, 12
        s_add_u32 s75, s75, s61
        s_add_u32 s75, s75, {W_G9}
        s_mul_i32 s60, {sX}, {8*36864}
        s_add_u32 s60, s60, s68
        s_cmp_lg_u32 s3, 3
        s_cbranch_scc1 L_qkv_ns
        v_lshrrev_b32 v10, 2, v2
        v_and_b32 v11, 3, v2
        v_lshlrev_b32 v10, 8, v10
        v_lshl_add_u32 v10, v11, 4, v10
        s_lshr_b32 s61, {sJ}, 2
        s_mul_i32 s61, s61, 36864
        s_and_b32 s62, {sJ}, 3
        s_lshl_b32 s62, s62, 6
        s_add_u32 s61, s61, s62
        s_add_u32 s61, s61, s60
        """)
        for i in range(9):
            a(f"buffer_load_dwordx4 {vr(16+4*i,4)}, v10, {sWS}, s61 offen sc1")
            if i < 8:
                a("s_add_u32 s61, s61, 4096")
        a("L_qkv_ns:")
        a(f"""
        v_lshlrev_b32 v8, 4, v2
        s_mul_i32 s61, {sT}, 36864
        s_add_u32 s60, s60, s61
        s_barrier
        """)
        self.stamp(5)
        WIN = int(os.environ.get("WIN", 8))

        def ldx(s):
            a(f"buffer_load_dwordx4 {vr(XF+4*s,4)}, v8, {sWS}, s60 offen offset:{1024*(s&3)} sc1")
            if s & 3 == 3 and s < 35:
                a("s_add_u32 s60, s60, 4096")
        for s in range(WIN):
            ldx(s)
        a(f"s_cmp_lg_u32 s3, 3\ns_cbranch_scc1 L_qkv_ns2")
        a("v_mov_b32 v12, 0\nv_mov_b32 v13, 0\nv_mov_b32 v14, 0\nv_mov_b32 v15, 0\nv_mov_b32 v52, 0x3f803f80")
        for i in range(9):
            a(f"s_waitcnt vmcnt({8+WIN-i})")
            for j in range(4):
                r = 16 + 4 * i + j
                a(f"v_dot2c_f32_bf16 v{12+(j&2)}, v{r}, v52")
                a(f"v_dot2c_f32_bf16 v{13+(j&2)}, v{r}, v{r}")
        for m in ("row_ror:4", "row_ror:8"):
            for j in range(4):
                a(f"v_add_f32_dpp v{12+j}, v{12+j}, v{12+j} {m} row_mask:0xf bank_mask:0xf bound_ctrl:0")
        for op in ("v_permlane16_swap_b32", "v_permlane32_swap_b32"):
            for j in range(4):
                a(f"v_mov_b32 v{16+j}, v{12+j}")
            for j in range(4):
                a(f"{op} v{12+j}, v{16+j}")
            for j in range(4):
                a(f"v_add_f32 v{12+j}, v{12+j}, v{16+j}")
        self.stats(12, 13, 17, 22, 23)
        self.stats(14, 15, 21, 22, 23)
        a(f"""
        v_sub_f32 v16, 0, v12
        v_sub_f32 v20, 0, v14
        v_mov_b32 v18, s28
        v_mov_b32 v19, s29
        v_mov_b32 v22, s28
        v_mov_b32 v23, s29
        v_lshlrev_b32 v11, 5, v11
        s_lshl_b32 s61, {sJ}, 7
        s_add_u32 s61, s61, s75
        s_mov_b64 exec, 15
        buffer_store_dwordx4 v[16:19], v11, {sWS}, s61 offen sc1
        buffer_store_dwordx4 v[20:23], v11, {sWS}, s61 offen offset:16 sc1
        s_mov_b64 exec, -1
        L_qkv_ns2:
        """)

        def rdW(s):
            b = WF + 8 * (s % 3)
            a(f"ds_read_b128 {vr(b,4)}, v4 offset:{1792*s}")
            a(f"ds_read_b128 {vr(b+4,4)}, v5 offset:{1792*s}")
        a(f"""
        v_lshlrev_b32 v9, 2, v6
        v_add_u32 v10, {L_CS}, v9
        ds_read_b32 v250, v10
        ds_read_b32 v252, v10 offset:128
        s_lshl_b32 s61, {sT}, 9
        s_add_u32 s75, s75, s61
        s_mov_b32 s64, 0xffff0000
        s_waitcnt lgkmcnt(0)
        """)
        for r in (250, 252):
            a(f"""
            v_and_b32 v9, s64, v{r}
            v_sub_f32 v10, v{r}, v9
            v_cvt_pk_bf16_f32 v{r}, v9, v9
            v_cvt_pk_bf16_f32 v{r+1}, v10, 0
            """)
        rdW(0)
        rdW(1)
        def swap(s):
            x = XF + 4 * s
            a(f"s_waitcnt vmcnt({min(35 - s, WIN - 1)})")
            a(f"v_permlane16_swap_b32 v{x}, v{x+2}")
            a(f"v_permlane16_swap_b32 v{x+1}, v{x+3}")
        swap(0)
        for s in range(36):
            x, b = XF + 4 * s, WF + 8 * (s % 3)
            if s % 9 == 0 and 'noprio' not in EXP:
                a(f"s_setprio {3 - s // 9}")
            npc = (64 - WQ1) // 4
            if 2 * s < npc and WQ1 < 63:
                L = self.lab()
                a(f"s_cmp_eq_u32 s87, 0\ns_cbranch_scc1 {L}")
                for j in range(2 * s, min(2 * s + 2, npc)):
                    if j == npc - 1:
                        a(f"s_cmp_eq_u32 {sW}, 7\ns_cbranch_scc1 {L}")
                    a(f"s_add_u32 m0, s88, {L_WQ + 4096*j}\ns_add_u32 s86, s87, {4096*j}")
                    a(f"buffer_load_dwordx4 v8, {sWS}, s86 offen sc1 lds")
                a(f"{L}:")
            if s == WQ1 * 1024 // 1792 - 2 and WQ1 < 63:
                L = self.lab()
                a(f"s_cmp_lg_u32 {sLayer}, 0\ns_cbranch_scc1 {L}\ns_barrier\n{L}:")
            if s + WIN < 36:
                ldx(s + WIN)
            if s + 1 < 36:
                swap(s + 1)
            a(f"s_waitcnt lgkmcnt({2 if s + 1 < 36 else 0})")
            if 'nomfma' not in EXP or s == 0:
                a(f"v_mfma_f32_32x32x16_bf16 {vr(D0,16)}, {vr(b,4)}, {vr(x,4)}, {vr(D0,16) if s else 0}")
                a(f"v_mfma_f32_32x32x16_bf16 {vr(D1,16)}, {vr(x,4)}, {vr(b+4,4)}, {vr(D1,16) if s else 0}")
            if s + 2 < 36:
                rdW(s + 2)
            if s == 20:
                a(f"buffer_load_dwordx4 v[10:13], v53, {sWS}, s75 offen sc1")
            if s == 31:
                Lp, Ld = self.lab("Ls"), self.lab("Lsd")
                a(f"""
                s_mov_b32 s96, {SPIN_MAX}
                {Lp}:
                v_cmp_eq_u64 vcc, {sTag}, v[12:13]
                s_cmp_eq_u64 vcc, exec
                s_cbranch_scc1 {Ld}
                buffer_load_dwordx4 v[10:13], v53, {sWS}, s75 offen sc1
                s_sub_u32 s96, s96, 1
                s_cmp_lg_u32 s96, 0
                s_waitcnt vmcnt(0)
                s_cbranch_scc1 {Lp}
                """)
                self.timeout_mark(9, 12)
                a(f"""
                {Ld}:
                v_mul_f32 v12, {f32hex(C_SCALE)}, v11
                ds_write_b32 v60, v11
                ds_write_b32 v60, v12 offset:128
                """)
                for g in range(4):
                    a(f"ds_read_b128 {vr(RS+4*g,4)}, v61 offset:{32*g}")
                a("""
                s_mov_b32 s62, -1
                s_mov_b32 s63, 0
                v_cndmask_b32 v10, 0, v10, s[62:63]
                v_and_b32 v13, s64, v10
                v_sub_f32 v14, v10, v13
                v_cvt_pk_bf16_f32 v14, v13, v14
                v_cvt_pk_bf16_f32 v15, v13, 0
                """)
        self.stamp(6)
        KF, VF = 112, 120
        R = self.R
        a(f"""
        s_mov_b32 s62, 0xfffff
        s_mov_b32 s63, 0xfffff
        v_mfma_f32_32x32x8bf16_1k {vr(D1,16)}, v[14:15], v[252:253], {vr(D1,16)}
        v_mfma_f32_32x32x8bf16_1k {vr(D0,16)}, v[250:251], v[14:15], {vr(D0,16)}
        s_mov_b32 s66, 0xf00000
        s_mov_b32 s67, 0xf00000
        """)
        for i in range(16):
            a(f"v_mov_b32 v{R.O+i}, 0")
        a("s_waitcnt lgkmcnt(0)")
        for i in range(16):
            a(f"v_mul_f32 v{D1+i}, v{RS+i}, v{D1+i}")
        for i in range(8):
            a(f"v_cvt_pk_bf16_f32 v{VF+i}, v{D1+2*i}, v{D1+2*i+1}")
        a("s_mov_b64 exec, s[66:67]")
        assert L_OWN == 0
        for i in range(8):
            g, r = i >> 1, 2 * (i & 1)
            off = 64 * (g >> 1) + 16 * (g & 1) + 4 * r
            a(f"ds_write_b16 v57, v{VF+i} offset:{off}")
            a(f"ds_write_b16_d16_hi v57, v{VF+i} offset:{off+4}")
        a("s_mov_b64 exec, -1")
        a(f"ds_read_b32 v63, v59\nds_read_b32 v{R.Qr}, v58\ns_mov_b32 s66, 0xc0000\ns_mov_b32 s67, 0xc0000")
        for i in range(8):
            a(f"v_cndmask_b32 v{VF+i}, v{VF+i}, v62, s[66:67]")
        a(f"""
        s_mov_b64 exec, s[62:63]
        buffer_store_dwordx4 {vr(VF,4)}, v55, {sWS}, s89 offen sc1
        buffer_store_dwordx4 {vr(VF+4,4)}, v55, {sWS}, s89 offen offset:640 sc1
        s_mov_b64 exec, -1
        """)
        for i in range(8, 16):
            a(f"v_mul_f32 v{D0+i}, v11, v{D0+i}")
        for i in range(4):
            a(f"v_cvt_pk_bf16_f32 v{KF+i}, v{D0+8+2*i}, v{D0+9+2*i}")
        a(f"""
        buffer_store_dwordx4 {vr(KF,4)}, v54, {sWS}, s89 offen sc1
        s_waitcnt lgkmcnt(0)
        s_mov_b32 exec_hi, 0
        buffer_store_dword v63, v59, {sWS}, s89 offen sc1
        s_mov_b64 exec, s[62:63]
        ds_write_b128 v55, {vr(VF,4)} offset:{L_OWN}
        ds_write_b128 v55, {vr(VF+4,4)} offset:{L_OWN+640}
        s_mov_b64 exec, -1
        ds_write_b128 v54, {vr(KF,4)} offset:{L_OWN}
        """)
        for i in range(8):
            a(f"v_mul_f32 v{D0+i}, v12, v{D0+i}")
        for i in range(4):
            a(f"v_cvt_pk_bf16_f32 v{R.Q+i}, v{D0+2*i}, v{D0+1+2*i}")
        a(f"v_mov_b32 v{R.aV}, v56\ns_waitcnt lgkmcnt(0)")
        self.stamp(7)

    class Regs:
        S = [128, 160]
        O = 192
        Q = 208
        Qr = 212
        K = [8, 16]
        Kr = [24, 26]
        V = [28, 44]
        idx, aK, aR, aV = 214, 215, 216, 217

    def attention(self):
        a, R = self.a, self.R
        slot = lambda blk: L_OWN if blk == 0 else L_RING + ((blk - 2) % 3) * KV_B
        aK0, aR0, aV0 = 218, 219, 220

        def rd(kind, u, i=0):
            blk, dt = u >> 2, u & 3
            own = blk == 0
            base = slot(blk) - (0 if own else L_RING)
            buf = u & 1
            if kind == "R":
                return f"ds_read_b32 v{R.Kr[buf]}, v{aR0 if own else R.aR} offset:{base + KV_R + 256*dt}"
            if kind == "K":
                return f"ds_read_b128 {vr(R.K[buf]+4*i,4)}, v{aK0 if own else R.aK} offset:{base + 2048*dt + 1024*i}"
            return f"ds_read_b128 {vr(R.V[buf]+4*i,4)}, v{aV0 if own else R.aV} offset:{base + KV_V + 2560*dt + 640*i}"

        def m4(sb, kb):
            a(f"v_mfma_f32_32x32x4bf16_1k {vr(R.S[sb],32)}, {vr(R.Kr[kb],2)}, {vr(R.Qr,2)}, 0")

        def mf(sb, kb, hi):
            d = vr(R.S[sb] + 16 * hi, 16)
            a(f"v_mfma_f32_32x32x16_bf16 {d}, {vr(R.K[kb]+4*hi,4)}, {vr(R.Q,4)}, {d}")

        def sm(sb, vb, g):
            a(f"v_smfmac_f32_32x32x32_bf16 {vr(R.O,16)}, {vr(R.V[vb]+4*g,4)}, {vr(R.S[sb]+8*g,8)}, v{R.idx}")

        def call_try():
            a("s_call_b64 s[76:77], L_try")

        def try_body():
            Ln, Lr = self.lab(), self.lab()
            a(f"""
            L_try:
            .reset_waits
            s_waitcnt vmcnt(0)
            v_cmp_eq_u64 vcc, {sTag}, v[6:7]
            s_lshr_b64 s[100:101], vcc, 1
            s_and_b64 vcc, vcc, s[100:101]
            s_lshr_b64 s[100:101], vcc, 2
            s_and_b64 vcc, vcc, s[100:101]
            s_lshr_b64 s[100:101], vcc, 4
            s_and_b64 vcc, vcc, s[100:101]
            s_and_b64 s[100:101], vcc, s[90:91]
            {Ln}:
            s_cbranch_scc0 {Lr}
            s_ff1_i32_b64 s60, s[100:101]
            s_bitset0_b64 s[100:101], s60
            s_bitset0_b64 s[90:91], s60
            s_lshr_b32 s60, s60, 3
            s_add_u32 s60, s60, s69
            s_mul_i32 s60, s60, {KV_B}
            s_add_u32 s60, s60, {W_KV}
            s_mul_i32 s63, s62, {slot(1) - slot(2)}
            s_sub_u32 s63, {slot(1)}, s63
            """)
            for i in range(19):
                a(f"s_add_u32 m0, s63, {1024*i}")
                a(f"s_add_u32 s86, s60, {1024*i}")
                a(f"buffer_load_dwordx4 v{aK0}, {sWS}, s86 offen sc1 lds")
            a(f"""
            s_add_u32 s62, s62, 1
            s_cmp_ge_u32 s62, 2
            s_cbranch_scc1 L_try_ret
            s_cmp_lg_u64 s[100:101], 0
            s_branch {Ln}
            {Lr}:
            buffer_load_dwordx2 v[6:7], v4, {sWS}, s61 offen sc1
            L_try_ret:
            s_setpc_b64 s[76:77]
            """)
        self.try_body = try_body

        def try_until(n):
            L, Ld = self.lab(), self.lab()
            a(f"""
            s_mov_b32 s96, {SPIN_MAX}
            {L}:
            s_cmp_ge_u32 s62, {n}
            s_cbranch_scc1 {Ld}
            """)
            call_try()
            a(f"""
            s_sub_u32 s96, s96, 1
            s_cmp_lg_u32 s96, 0
            s_cbranch_scc1 {L}
            """)
            self.timeout_mark(5, 222)
            a(f"{Ld}:")

        def on_wave(w, fn):
            if 'nofetch' in EXP:
                return
            L = self.lab()
            a(f"s_cmp_lg_u32 {sW}, {w}\ns_cbranch_scc1 {L}\ns_setprio 3")
            fn()
            a(f"{L}:")

        a(f"""
        v_lshlrev_b32 v{aK0}, 4, v2
        v_lshlrev_b32 v{aR0}, 2, v2
        v_mov_b32 v{aV0}, v{R.aV}
        v_add_u32 v{R.aK}, {L_RING}, v{aK0}
        v_add_u32 v{R.aR}, {L_RING}, v{aR0}
        v_add_u32 v{R.aV}, {L_RING}, v{aV0}
        v_mov_b32 v{R.idx}, 0xdddddddd
        v_mov_b32 v{R.Qr+1}, 0
        v_mov_b32 v{R.Kr[0]+1}, 0
        v_mov_b32 v{R.Kr[1]+1}, 0
        s_add_u32 s70, s69, {sX}
        s_lshl_b32 s70, s70, 3
        s_add_u32 s70, s70, {sW}
        s_lshl_b32 s70, s70, 6
        s_add_u32 s70, s70, {W_F5}
        """)
        a(f"""
        s_lshl_b32 s83, {sW}, 10
        s_and_b32 s84, {sJ}, 7
        s_mul_i32 s84, s84, {WO_B}
        s_add_u32 s84, s84, {W_WO}
        s_add_u32 s84, s84, s83
        v_mov_b32 v222, s28
        v_mov_b32 v223, s29
        v_mov_b32 v224, 0
        """)
        a("s_barrier")

        def publish():
            a(f"""
            s_waitcnt vmcnt(0)
            s_mov_b64 exec, 1
            buffer_store_dwordx2 v[222:223], v224, {sWS}, s70 offen sc1
            s_mov_b64 exec, -1
            """)

        def seg_start(u):
            for l in (rd("R", u), rd("K", u, 0), rd("K", u, 1), rd("V", u, 0), rd("V", u, 1), rd("R", u + 1), rd("K", u + 1, 0),
                      rd("V", u, 2), rd("K", u + 1, 1), rd("V", u, 3)):
                a(l)

        def seg_qk():
            a("s_waitcnt lgkmcnt(7)")
            m4(0, 0)
            a("s_nop 15\ns_nop 1")
            mf(0, 0, 0)
            mf(0, 0, 1)
            a("s_nop 10")

        def piece(src, lds, off, maxw=8):
            if 'nofetch' in EXP:
                return
            L = self.lab()
            if maxw < 8:
                a(f"s_cmp_ge_u32 {sW}, {maxw}\ns_cbranch_scc1 {L}")
            a(f"s_add_u32 m0, s83, {lds + off}\ns_add_u32 s86, {src}, {off}")
            a(f"buffer_load_dwordx4 v{aK0}, {sWS}, s86 offen sc1 lds")
            if maxw < 8:
                a(f"{L}:")

        def poll_all():
            a(f"""
            s_lshl_b32 s61, s69, 9
            s_add_u32 s61, s61, {W_F5}
            v_lshlrev_b32 v4, 6, v2
            v_min_u32 v5, 17, v2
            v_lshlrev_b32 v5, 6, v5
            s_mov_b32 s60, {W_F3 + 72*64}
            """)
            self.poll([(4, "s61", 0), (5, "s60", 0)], 222, 5)
        seg_start(0)
        L = self.lab()
        a(f"s_cmp_lt_u32 {sW}, 4\ns_cbranch_scc1 {L}")
        publish()
        a(f"s_cmp_lg_u32 {sLayer}, 0\ns_cbranch_scc1 {L}\ns_cmp_ge_u32 {sJ}, 18\ns_cbranch_scc1 {L}")
        for i in range(8):
            a(f"buffer_store_dwordx2 {vr(232+2*i,2)}, v248, {sWS}, s79 offen sc1")
            a(f"s_add_u32 s79, s79, {2*36864}")
        a(f"{L}:")
        seg_qk()
        self.stamp(8)
        for u in range(32):
            P = u & 1
            N = P ^ 1
            end = 4 if u < 4 else 32
            first = u in (0, 4)
            last = u == end - 1
            e = lambda i, j: [a(f"v_exp_f32 v{R.S[P]+k}, v{R.S[P]+k}") for k in range(i, j)]
            k2 = u + 2 < end
            v1 = u + 1 < end
            blk, dt = u >> 2, u & 3
            hook = {}
            if u == PUB_AT:
                L = self.lab()
                a(f"s_cmp_ge_u32 {sW}, 4\ns_cbranch_scc1 {L}")
                publish()
                a(f"""
                s_cmp_lg_u32 {sW}, 0
                s_cbranch_scc1 {L}
                s_mov_b32 s62, 0
                s_mov_b32 s90, 0x01010101
                s_mov_b32 s91, 0x01010101
                s_lshl_b32 s60, {sX}, 3
                s_bitset0_b64 s[90:91], s60
                s_lshl_b32 s61, s69, 9
                s_add_u32 s61, s61, {W_F5}
                v_lshlrev_b32 v4, 6, v2
                buffer_load_dwordx2 v[6:7], v4, {sWS}, s61 offen sc1
                {L}:
                """)
            if u in TRY_AT:
                L = self.lab()
                a(f"s_cmp_lg_u32 {sW}, 0\ns_cbranch_scc1 {L}\ns_cmp_ge_u32 s62, 2\ns_cbranch_scc1 {L}")
                call_try()
                a(f"{L}:")
            if u == 4:
                L0, L1 = self.lab(), self.lab()
                a(f"s_cmp_lg_u32 {sW}, 0\ns_cbranch_scc1 {L0}")
                try_until(1)
                a(f"""
                s_cmp_lg_u32 s62, 2
                s_cbranch_scc1 {L0}
                s_waitcnt vmcnt(19)
                s_branch {L1}
                {L0}:
                s_waitcnt vmcnt(0)
                {L1}:
                s_barrier
                """)
                self.stamp(14)
                seg_start(4)
                L0, L1 = self.lab(), self.lab()
                a(f"s_cmp_lg_u32 {sW}, 0\ns_cbranch_scc1 {L0}\ns_setprio 3")
                try_until(2)
                a(f"""
                {L1}:
                v_mov_b32 v4, {L_REM}
                v_mov_b32 v6, s90
                v_mov_b32 v7, s91
                ds_write_b64 v4, v[6:7]
                s_waitcnt lgkmcnt(0)
                {L0}:
                """)
                L = self.lab()
                a(f"s_cmp_lt_u32 {sW}, 4\ns_cbranch_scc1 {L}\ns_cmp_lg_u32 {sLayer}, 0\ns_cbranch_scc1 {L}\ns_cmp_ge_u32 {sJ}, 18\ns_cbranch_scc1 {L}")
                self.flag_store("s80", 4)
                a(f"{L}:")
                on_wave(6, poll_all)
                seg_qk()
            if 1 <= blk < 7 and dt == 2 and 'nobar' not in EXP:
                a("s_waitcnt vmcnt(0)\ns_barrier")
                if blk + 2 < 8:
                    if blk == 1:
                        a(f"""
                        v_mov_b32 v4, {L_REM}
                        ds_read_b64 v[6:7], v4
                        s_waitcnt lgkmcnt(0)
                        v_readfirstlane_b32 s90, v6
                        v_readfirstlane_b32 s91, v7
                        """)
                    a(f"""
                    s_ff1_i32_b64 s85, s[90:91]
                    s_bitset0_b64 s[90:91], s85
                    s_lshr_b32 s85, s85, 3
                    s_add_u32 s85, s85, s69
                    s_mul_i32 s85, s85, {KV_B}
                    s_add_u32 s85, s85, {W_KV}
                    s_add_u32 s85, s85, s83
                    """)
            if 1 <= blk < 7 and dt >= 2:
                src, lds, o = ("s85", slot(blk + 2), 0) if blk < 6 else ("s84", L_WO, 36 * 1024)
                if dt == 2:
                    hook[0] = lambda: piece(src, lds, o)
                    hook[1] = lambda: piece(src, lds, o + 8192)
                else:
                    hook[0] = lambda: piece(src, lds, o + 16384, 3)
                    if blk < 6:
                        hook[1] = lambda: piece("s84", L_WO, 8192 * (blk - 1), 8 if blk < 5 else 4)
            H = lambda k: hook.get(k, lambda: None)()
            if 'noprio' not in EXP and u >= 4:
                a(f"s_setprio {3 - ((u + 2) & 3)}")
            e(0, 2)
            if not first:
                sm(N, N, 3)
            if k2:
                a(rd("R", u + 2))
            e(2, 5)
            a(f"s_waitcnt lgkmcnt({2 if last else 3 + (1 if k2 else 0)})")
            if not last:
                m4(N, N)
            if v1:
                a(rd("V", u + 1, 0))
            H(0)
            e(5, 13)
            sm(P, P, 0)
            if v1:
                a(rd("V", u + 1, 1))
            e(13, 18)
            sm(P, P, 1)
            if k2:
                a(rd("K", u + 2, 0))
            e(18, 22)
            if not last:
                mf(N, N, 0)
            if v1:
                a(rd("V", u + 1, 2))
            H(1)
            e(22, 26)
            a(f"s_waitcnt lgkmcnt({(2 if k2 else 0) + (3 if v1 else 0)})")
            sm(P, P, 2)
            if k2:
                a(rd("K", u + 2, 1))
            e(26, 29)
            if not last:
                mf(N, N, 1)
            if v1:
                a(rd("V", u + 1, 3))
            e(29, 32)
            if last:
                a("s_nop 1")
                sm(P, P, 3)
        self.stamp(9)
        a("s_setprio 0")
        O = R.O
        a(f"""
        v_and_b32 v6, 31, v2
        v_lshrrev_b32 v7, 5, v2
        v_and_b32 v8, 15, v2
        v_lshlrev_b32 v8, 1, v8
        v_bfe_u32 v9, v2, 4, 1
        v_add_u32 v8, v8, v9               ; tau(n)
        s_lshl_b32 s60, {sT}, 5
        v_add_u32 v8, s60, v8
        v_lshlrev_b32 v9, 4, v8
        v_lshl_add_u32 v9, v7, 12, v9
        v_lshlrev_b32 v8, 2, v8
        s_lshl_b32 s60, {sLayer}, 3
        s_add_u32 s60, s60, {sX}
        s_lshl_b32 s71, s60, 5             ; (layer*8+X)*32
        s_add_u32 s60, s71, {sJ}
        s_lshl_b32 s61, s60, 13
        s_add_u32 s61, s61, {W_OM}
        s_lshl_b32 s62, s60, 10
        s_add_u32 s62, s62, {W_OR}
        s_mov_b32 s72, 0
        L_att_norm:
        s_nop 3
        v_mov_b32 v10, v{O+10}
        v_mov_b32 v11, v{O+10}
        v_add_f32 v12, abs(v{O}), abs(v{O+1})
        v_add_f32 v13, abs(v{O+2}), abs(v{O+3})
        v_permlane32_swap_b32 v10, v11
        v_add_f32 v12, v12, abs(v{O+4})
        v_add_f32 v13, v13, abs(v{O+5})
        v_add_f32 v12, v12, abs(v{O+6})
        v_add_f32 v13, v13, abs(v{O+7})
        v_add_f32 v12, v12, abs(v{O+8})
        v_add_f32 v13, v13, abs(v{O+9})
        v_add_f32 v12, v12, v13
        v_rcp_f32 v11, v10
        v_cmp_le_f32 vcc, {f32hex(2.0**-60)}, v10
        v_cmp_ge_f32 s[64:65], {"s73"}, v10
        v_cmp_ge_f32 s[66:67], {"s74"}, v12
        s_nop 0
        s_and_b64 vcc, vcc, s[64:65]
        s_and_b64 vcc, vcc, s[66:67]
        s_cmp_eq_u64 vcc, exec
        s_cbranch_scc1 L_att_ok
        s_cmp_eq_u32 s72, 0
        s_cbranch_scc1 L_att_fallback
        L_att_ok:
        """)
        for i in range(10):
            a(f"v_mul_f32 v{O+i}, v11, v{O+i}")
        for i in range(5):
            a(f"v_cvt_pk_bf16_f32 v{12+i}, v{O+2*i}, v{O+2*i+1}")
        a(f"""
        buffer_store_dwordx4 v[12:15], v9, {sWS}, s61 offen sc1
        s_mov_b32 exec_hi, 0
        buffer_store_dword v16, v8, {sWS}, s62 offen sc1
        s_mov_b64 exec, -1
        s_waitcnt vmcnt(0)
        s_barrier
        """)
        self.stamp(10)

    def next_layer(self):
        self.a(f"s_mov_b32 {sLayer}, 1\ns_mov_b32 s68, {W_X3}\ns_mov_b32 s87, 0")
        self.qkv_setup()

    def fetch_wo(self, first, n, va, step=1):
        Ll = self.lab()
        self.a(f"""
        s_and_b32 s60, {sJ}, 7
        s_mul_i32 s60, s60, {WO_B}
        s_add_u32 s60, s60, {W_WO + 1024*first}
        s_add_u32 s61, s60, {1024*n}
        s_mov_b32 m0, {L_WO + 1024*first}
        """)
        if step > 1:
            self.a("s_lshl_b32 s62, s62, 10\ns_add_u32 s60, s60, s62\ns_add_u32 m0, m0, s62\ns_nop 0")
        else:
            self.a("s_nop 0")
        self.a(f"""
        {Ll}:
        buffer_load_dwordx4 v{va}, {sWS}, s60 offen sc1 lds
        s_add_u32 m0, m0, {1024*step}
        s_add_u32 s60, s60, {1024*step}
        s_cmp_lt_u32 s60, s61
        s_cbranch_scc1 {Ll}
        """)

    def fallback(self):
        a, R = self.a, self.R
        S0 = R.S[0]
        a("L_att_fallback:")
        a(".reset_waits")
        a(f"""
        s_mov_b32 s72, 1
        s_mul_i32 s75, s69, {KV_B}
        s_add_u32 s75, s75, {W_KV}
        v_mov_b32 v221, 0xff7fffff
        s_waitcnt vmcnt(0)
        """)
        for p in range(2):
            Lb = self.lab("Lfb")
            a(f"s_mov_b32 s76, 0\n{Lb}:")
            a(f"""
            s_lshr_b32 s77, s76, 2
            s_and_b32 s78, s76, 3
            s_mul_i32 s77, s77, {KV_B}
            s_add_u32 s77, s77, s75
            s_lshl_b32 s79, s78, 11
            s_add_u32 s79, s79, s77
            buffer_load_dwordx4 {vr(R.K[0]+8,4)}, v218, {sWS}, s79 offen sc1
            buffer_load_dwordx4 {vr(R.K[0]+12,4)}, v218, {sWS}, s79 offen offset:1024 sc1
            s_lshl_b32 s79, s78, 8
            s_add_u32 s79, s79, s77
            s_add_u32 s79, s79, {KV_R}
            buffer_load_dword v{R.Kr[0]}, v219, {sWS}, s79 offen sc1
            """)
            if p:
                a(f"s_mul_i32 s79, s78, 2560\ns_add_u32 s79, s79, s77\ns_add_u32 s79, s79, {KV_V}")
                for i in range(4):
                    a(f"buffer_load_dwordx4 {vr(R.V[0]+4*i,4)}, v220, {sWS}, s79 offen offset:{640*i} sc1")
            a(f"""
            s_waitcnt vmcnt(0)
            v_mfma_f32_32x32x4bf16_1k {vr(S0,32)}, {vr(R.Kr[0],2)}, {vr(R.Qr,2)}, 0
            s_nop 15
            s_nop 3
            v_mfma_f32_32x32x16_bf16 {vr(S0,16)}, {vr(R.K[0]+8,4)}, {vr(R.Q,4)}, {vr(S0,16)}
            v_mfma_f32_32x32x16_bf16 {vr(S0+16,16)}, {vr(R.K[0]+12,4)}, {vr(R.Q,4)}, {vr(S0+16,16)}
            s_nop 15
            """)
            if p == 0:
                for i in range(16):
                    a(f"v_max3_f32 v221, v221, v{S0+2*i}, v{S0+2*i+1}")
            else:
                for i in range(32):
                    a(f"v_sub_f32 v{S0+i}, v{S0+i}, v221")
                for i in range(32):
                    a(f"v_exp_f32 v{S0+i}, v{S0+i}")
                a("s_nop 1")
                for g in range(4):
                    a(f"v_smfmac_f32_32x32x32_bf16 {vr(R.O,16)}, {vr(R.V[0]+4*g,4)}, {vr(S0+8*g,8)}, v{R.idx}")
            a(f"s_add_u32 s76, s76, 1\ns_cmp_lt_u32 s76, 32\ns_cbranch_scc1 {Lb}")
            if p == 0:
                a("v_mov_b32 v222, v221\ns_nop 1\nv_permlane32_swap_b32 v221, v222\ns_nop 1\nv_max_f32 v221, v221, v222")
                for i in range(16):
                    a(f"v_mov_b32 v{R.O+i}, 0")
        a("s_nop 15\ns_branch L_att_norm")

    def outproj(self):
        a = self.a
        OF, ACC, WF, XR, YR = 64, 16, 144, 36, 46
        L = self.lab()
        a(f"""
        s_cmp_lg_u32 {sW}, 0
        s_cbranch_scc1 {L}
        s_add_u32 s60, s71, {sJ}
        s_lshl_b32 s60, s60, 6
        s_add_u32 s60, s60, {W_F6}
        """)
        self.flag_store("s60", 4)
        a(f"{L}:")
        a(f"s_cmp_ge_u32 {sW}, 4\ns_cbranch_scc1 L_op_help")
        a(f"""
        v_and_b32 v6, 15, v2
        v_lshrrev_b32 v7, 4, v2            ; g
        s_lshr_b32 s64, {sJ}, 3            ; sub
        s_and_b32 s65, {sJ}, 7             ; slice
        s_lshl_b32 s66, s64, 6
        s_lshl_b32 s67, {sT4}, 4
        s_add_u32 s66, s66, s67
        v_add_u32 v8, s66, v6
        v_lshlrev_b32 v9, 8, v7
        v_lshl_add_u32 v9, v6, 3, v9       ; g*256 + tok*8
        v_mov_b32 v11, 0x7fffffff
        v_cmp_gt_u32 vcc, 2, v7
        s_mul_i32 s60, s65, {18*256}
        s_lshl_b32 s61, {sX}, 3
        s_lshr_b32 s62, s66, 5
        s_add_u32 s61, s61, s62
        s_mul_i32 s61, s61, 36864
        s_add_u32 s60, s60, s61
        s_and_b32 s62, s66, 16
        s_lshl_b32 s62, s62, 3
        s_add_u32 s67, s60, s62
        v_cndmask_b32 v10, v11, v9, vcc
        s_mul_i32 s60, s65, {18*256}
        s_lshr_b32 s61, {sX}, 1
        s_lshl_b32 s61, s61, 6
        s_add_u32 s60, s60, s61
        s_add_u32 s60, s60, {W_F10}
        v_min_u32 v4, 17, v2
        v_lshlrev_b32 v4, 8, v4
        """)
        L = self.lab()
        a(f"s_cmp_lg_u32 {sLayer}, 0\ns_cbranch_scc1 {L}")
        self.poll([(4, "s60", 0)], 56, 10)
        a(f"{L}:")
        a(f"""
        s_add_u32 s60, s67, s68
        s_add_u32 s61, s67, {W_Y}
        """)
        for ft in range(5):
            va = 10 if ft == 4 else 9
            a(f"buffer_load_dwordx2 {vr(XR+2*ft,2)}, v{va}, {sWS}, s60 offen sc1")
            a(f"buffer_load_dwordx2 {vr(YR+2*ft,2)}, v{va}, {sWS}, s61 offen sc1")
            if ft < 4:
                a("s_add_u32 s60, s60, 1024\ns_add_u32 s61, s61, 1024")
        a(f"""
        v_lshrrev_b32 v11, 1, v7
        v_lshlrev_b32 v11, 13, v11
        v_and_b32 v12, 1, v7
        v_lshl_add_u32 v11, v12, 12, v11
        v_lshl_add_u32 v11, v8, 4, v11     ; o main
        v_lshlrev_b32 v12, 12, v7
        v_lshl_add_u32 v12, v8, 2, v12     ; o rem
        v_lshlrev_b32 v13, 4, v2           ; W ft<4
        v_and_b32 v14, 7, v2
        v_lshlrev_b32 v14, 4, v14
        v_lshl_add_u32 v14, v7, 7, v14
        v_add_u32 v14, 4096, v14           ; W ft==4
        v_add_u32 v15, {9*4608}, v13
        v_add_u32 v3, {9*4608}, v14
        """)
        L = self.lab()
        a(f"""
        s_cmp_lg_u32 {sW}, 0
        s_cbranch_scc1 {L}
        v_and_b32 v4, 31, v2
        v_lshlrev_b32 v4, 6, v4
        s_lshl_b32 s60, s71, 6
        s_add_u32 s60, s60, {W_F6}
        """)
        self.poll2([(4, "s60", 0)], 56, 6)
        a(f"{L}:")
        a(f"""
        s_barrier
        s_lshl_b32 s60, s71, 13
        s_add_u32 s60, s60, {W_OM}
        s_lshl_b32 s61, s71, 10
        s_add_u32 s61, s61, {W_OR}
        """)
        self.stamp(11)
        for s in range(16):
            a(f"buffer_load_dwordx4 {vr(OF+4*s,4)}, v11, {sWS}, s60 offen sc1")
            if s < 15:
                a("s_add_u32 s60, s60, 0x4000")
        for s in range(2):
            for i in range(4):
                a(f"buffer_load_dword v{OF+64+4*s+i}, v12, {sWS}, s61 offen offset:{1024*i} sc1")
            if s == 0:
                a("s_add_u32 s61, s61, 0x4000")

        def rdW(s):
            hi = s >= 9
            out = []
            for ft in range(5):
                va = (15 if hi else 13) if ft < 4 else (3 if hi else 14)
                off = L_WO + 4608 * (s - 9 * hi) + (1024 * ft if ft < 4 else 0)
                out.append(f"ds_read_b128 {vr(WF+20*(s%3)+4*ft,4)}, v{va} offset:{off}")
            return out
        for l in rdW(0) + rdW(1):
            a(l)
        for s in range(18):
            nxt = rdW(s + 2) if s < 16 else []
            a(f"s_waitcnt vmcnt({23-s if s < 16 else (4 if s == 16 else 0)}) lgkmcnt({5 if s < 17 else 0})")
            for ft in range(5):
                d = vr(ACC + 4 * ft, 4)
                a(f"v_mfma_f32_16x16x32_bf16 {d}, {vr(WF+20*(s%3)+4*ft,4)}, {vr(OF+4*s,4)}, {d if s else 0}")
                if nxt:
                    a(nxt[ft])
        self.stamp(12)
        XF, YF = 64, 84
        a("s_mov_b32 s63, 0xffff0000")
        for i in range(10):
            a(f"v_lshlrev_b32 v{XF+2*i}, 16, v{XR+i}")
            a(f"v_and_b32 v{XF+2*i+1}, s63, v{XR+i}")
        for i in range(20):
            a(f"v_add_f32 v{XF+i}, v{XF+i}, v{ACC+i}")
        a(f"s_cmp_lg_u32 {sLayer}, 0\ns_cbranch_scc1 L_op_final")
        a("v_cmp_gt_u32 vcc, 2, v7\nv_mov_b32 v16, 0\nv_mov_b32 v17, 0")
        for i in range(16, 20):
            a(f"v_cndmask_b32 v{XF+i}, 0, v{XF+i}, vcc")
        for i in range(20):
            a(f"v_add_f32 v16, v16, v{XF+i}")
            a(f"v_fmac_f32 v17, v{XF+i}, v{XF+i}")

        def xsum():
            for op in ("v_permlane16_swap_b32", "v_permlane32_swap_b32"):
                a(f"""
                v_mov_b32 v20, v16
                v_mov_b32 v21, v17
                s_nop 1
                {op} v16, v20
                {op} v17, v21
                s_nop 0
                v_add_f32 v16, v16, v20
                v_add_f32 v17, v17, v21
                """)
        xsum()
        a(f"""
        v_mov_b32 v18, s28
        v_mov_b32 v19, s29
        s_lshl_b32 s60, {sX}, 2
        s_add_u32 s60, s60, s64
        s_lshl_b32 s60, s60, 13
        s_add_u32 s60, s60, {W_G7}
        s_lshl_b32 s61, {sT4}, 8
        s_add_u32 s60, s60, s61
        s_lshl_b32 s61, s65, 10
        s_add_u32 s61, s61, s60
        v_lshlrev_b32 v4, 4, v6
        s_mov_b64 exec, 0xffff
        buffer_store_dwordx4 v[16:19], v4, {sWS}, s61 offen sc1
        s_mov_b64 exec, -1
        v_lshl_add_u32 v4, v7, 10, v4
        s_add_u32 s61, s60, 4096
        """)
        for i in range(10):
            a(f"v_lshlrev_b32 v{YF+2*i}, 16, v{YR+i}")
            a(f"v_and_b32 v{YF+2*i+1}, s63, v{YR+i}")
        Ld0, Ld1 = self.poll2([(4, "s60", 0), (4, "s61", 0)], 104, 7, width=4)
        Lj = self.lab()
        a(f"""
        {Ld0}:
        v_add_f32 v16, v104, v108
        v_add_f32 v17, v105, v109
        s_branch {Lj}
        {Ld1}:
        .reset_waits
        v_add_f32 v16, v112, v116
        v_add_f32 v17, v113, v117
        {Lj}:
        """)
        xsum()
        self.stats(16, 17, 18, 19, 20)
        for i in range(20):
            a(f"v_fma_f32 v{ACC+6+i}, v{XF+i}, v18, v19")
        for i in range(20):
            a(f"v_fmac_f32 v{XF+i}, v{ACC+6+i}, v{YF+i}")
        a(f"s_add_u32 s60, s67, {W_X3}")
        for ft in range(5):
            a(f"v_cvt_pk_bf16_f32 v{YF+2*ft}, v{XF+4*ft}, v{XF+4*ft+1}")
            a(f"v_cvt_pk_bf16_f32 v{YF+2*ft+1}, v{XF+4*ft+2}, v{XF+4*ft+3}")
            a(f"buffer_store_dwordx2 {vr(YF+2*ft,2)}, v{10 if ft == 4 else 9}, {sWS}, s60 offen sc1")
            if ft < 4:
                a("s_add_u32 s60, s60, 1024")
        self.next_layer()
        L = self.lab()
        a(f"""
        s_lshl_b32 s60, {sX}, 11
        s_add_u32 s60, s60, {W_F8}
        s_lshl_b32 s61, {sJ}, 6
        s_add_u32 s61, s61, s60
        v_lshlrev_b32 v8, 6, v6
        v_mov_b32 v10, s28
        v_mov_b32 v11, s29
        v_mov_b32 v12, 0
        v_mov_b32 v13, {L_CNT}
        v_mov_b32 v14, 1
        s_waitcnt vmcnt(0)
        s_mov_b64 exec, 1
        ds_add_rtn_u32 v14, v13, v14
        s_waitcnt lgkmcnt(0)
        v_readfirstlane_b32 s3, v14
        s_mov_b64 exec, -1
        s_cmp_lg_u32 s3, 3
        s_cbranch_scc1 {L}
        s_mov_b64 exec, 1
        buffer_store_dwordx2 v[10:11], v12, {sWS}, s61 offen sc1
        s_mov_b64 exec, -1
        """)
        self.poll2([(8, "s60", 0)], 220, 8)
        a(f"{L}:")
        a("s_branch L_next_layer")

        a("L_op_help:")
        a(".reset_waits")
        a(f"s_sub_u32 s62, {sW}, 4\ns_mov_b32 s3, 0\nv_mov_b32 v4, {L_CNT}\nv_mov_b32 v5, 0\nds_write_b32 v4, v5")
        self.fetch_wo(55, 26, 218, step=4)
        a("s_waitcnt vmcnt(0) lgkmcnt(0)\ns_barrier")
        a(f"s_cmp_lg_u32 {sLayer}, 0\ns_cbranch_scc1 L_end")
        self.next_layer()
        a("L_next_layer:")
        if self.stop == "gate2":
            a("s_branch L_end")
        a("s_branch L_qkv")

        a("L_op_final:")
        a(".reset_waits")
        self.srd(sA, "out", NB)
        a(f"""
        s_lshl_b32 s60, {sX}, 8
        v_add_u32 v8, s60, v8
        v_mul_u32_u24 v8, 1152, v8
        v_lshl_add_u32 v8, v7, 3, v8
        v_mov_b32 v11, 0x7fffffff
        v_cmp_gt_u32 vcc, 2, v7
        s_mul_i32 s60, s65, 144
        s_nop 0
        v_cndmask_b32 v9, v11, v8, vcc
        """)
        for ft in range(5):
            a(f"v_cvt_pk_bf16_f32 v{YF+2*ft}, v{XF+4*ft}, v{XF+4*ft+1}")
            a(f"v_cvt_pk_bf16_f32 v{YF+2*ft+1}, v{XF+4*ft+2}, v{XF+4*ft+3}")
            a(f"buffer_store_dwordx2 {vr(YF+2*ft,2)}, v{9 if ft == 4 else 8}, {sA}, s60 offen offset:{32*ft}")
        a(f"""
        s_or_b32 s60, s2, {sW}
        s_cmp_lg_u32 s60, 0
        s_cbranch_scc1 L_end
        s_mov_b32 s60, {W_NONCE}
        """)
        self.flag_store("s60", 20)

    def build(self):
        a = self.a
        self.R = G.Regs
        self.prologue()
        self.prep()
        self.finish_if("prep")
        self.conv()
        self.relayout()
        self.colsum()
        self.finish_if("conv")
        a(f"s_mov_b32 s73, {f32hex(2.0**60)}\ns_mov_b32 s74, {f32hex(2.0**120)}")
        self.qkv()
        if self.stop == "qkv":
            a("s_waitcnt vmcnt(0)\ns_branch L_end")
        self.attention()
        self.finish_if("attn")
        self.outproj()
        a("L_end:")
        if self.ts:
            self.stamp(15)
            a(f"""
            s_lshl_b32 s60, s2, 3
            s_add_u32 s60, s60, {sW}
            s_lshl_b32 s60, s60, 8
            s_add_u32 s60, s60, {W_TS}
            v_lshlrev_b32 v4, 2, v2
            buffer_store_dword v255, v4, {sWS}, s60 offen
            """)
            if 'dbgts' in EXP:
                wg = int(os.environ.get("DBGWG", 0))
                a(f"""
                s_cmp_lg_u32 s2, {wg}
                s_cbranch_scc1 L_nodbg
                s_cmp_lg_u32 {sW}, 0
                s_cbranch_scc1 L_nodbg
                v_readlane_b32 s60, v255, 0
                s_nop 3
                v_subrev_u32 v5, s60, v255
                """)
                for n, i in enumerate((16, 1, 2, 3, 4, 5, 7, 8, 9, 11, 13, 21, 24, 25, 27, 31)):
                    a(f"v_readlane_b32 s61, v5, {i}\ns_nop 3\nv_writelane_b32 v6, s61, {n}")
                a(f"s_mov_b64 exec, 0xffff\nglobal_store_dword v4, v6, s[{PTR['dbg']}:{PTR['dbg']+1}]\nL_nodbg:")
        a("s_waitcnt vmcnt(0)")
        a("L_exit:")
        a("s_endpgm")
        self.fallback()
        self.try_body()
        a("L_code_end:")
        lines, added = fix_hazards(a.lines, verbose=True, tag="k")
        errs = check_waits(lines, "k")
        for e in errs:
            print(e)
        lines = [l for l in lines if not l.startswith(".reset_waits")]
        a.lines = lines
        body = a.text().replace("CODE_AFTER", "(L_code_end-L_pc_here)")
        ref = open(f"cdna_kernels/{NAME}.s.ref").read()
        head = ref[:ref.index("; Override launch")]
        txt = head + f"""; @launch grid=(256,1,1) block=(512,1,1) lds={LDS_BYTES}
.amdgcn_target "amdgcn-amd-amdhsa--gfx950"
.text
.globl {NAME}_kernel
.p2align 12
.type {NAME}_kernel,@function
{NAME}_kernel:
""" + body + f""".section .rodata,"a"
.p2align 6
.amdhsa_kernel {NAME}_kernel
  .amdhsa_next_free_vgpr 256
  .amdhsa_next_free_sgpr 102
  .amdhsa_accum_offset 256
  .amdhsa_group_segment_fixed_size 0
  .amdhsa_kernarg_size 96
  .amdhsa_user_sgpr_count 2
  .amdhsa_user_sgpr_kernarg_segment_ptr 1
  .amdhsa_system_sgpr_workgroup_id_x 1
.end_amdhsa_kernel
"""
        return txt, errs


if __name__ == "__main__":
    out = sys.argv[1]
    stop = None
    ts = False
    for x in sys.argv[2:]:
        if x == "ts":
            ts = True
        elif x == "ts2":
            ts = 2
        else:
            stop = x
    txt, errs = G(stop, ts).build()
    open(out, "w").write(txt)
    print("written", out, len(txt), "bytes;", len(errs), "wait errors")
```

```python
import sys
from asmlib import Asm, fix_hazards, check_waits

NAME = "interleave_layers__ssm_conv_h3__softmax_full_mha__prompt"
S, D = 2048, 576
NB = S * D * 2

W_NONCE = 0
W_F1 = 0x1000
W_F3 = 0x5000
W_F2 = 0x6C000
W_F4 = 0x8000
W_F5 = 0x12000
W_F6 = 0x52000
W_F8 = 0x5A000
W_G7 = 0x70000
W_ST0 = 0xB0000
W_CSP = 0x1C0000
W_F10 = 0x110000
W_G9 = 0x100000
W_TS = 0x140000
W_U = 0x210000
W_WQ = 0x500000
W_WO = 0x700000
W_X1 = 0x800000
W_X0 = 0x2000000
W_Y = 0xB00000
W_X3 = 0xE00000
W_KV = 0x1100000
W_OM = 0x1B00000
W_OR = 0x1F00000
W_SIZE = 0x2400000
WQ_B, WO_B, KV_B = 64512, 82944, 19456
KV_V, KV_R = 8192, 18432

L_HC, HC_B = 0, 4160
L_U, U_B = 66560, 4608
L_WO = 0
L_OWN = 0
L_RING = 37632
L_CS = 96000
L_ST = 96256
L_REM = 96256
L_QR = 98304
L_WQ = 99328
L_PK = L_WQ
L_PV = L_WQ + 10240
L_CNT = 98304
L_PX = L_PV + 9216
LDS_BYTES = 163840

sWS = "s[4:7]"
sA, sB, sC, sD_ = "s[8:11]", "s[12:15]", "s[16:19]", "s[20:23]"
sX, sJ, sW, sLayer = "s24", "s25", "s26", "s27"
sT, sT4 = "s30", "s31"
sTag = "s[28:29]"
sP = 32
PTR = dict(q=32, k=34, v=36, sk=38, h=40, dd=42, bx=44, wqkv=46, wo=48, out=50, dbg=52, ws=54)
SPIN_MAX = 400000
PUB_AT = int(__import__('os').environ.get('PUB', 1))
TRY_AT = [int(x) for x in __import__('os').environ.get('TRY', '2,3').split(',')]
WQ1 = int(__import__('os').environ.get('WQ1', 63))

C_SCALE = 18 ** -0.5 * 1.4426950408889634


def f32hex(x):
    import struct
    return "0x%08x" % struct.unpack("<I", struct.pack("<f", x))[0]


def vr(a, n):
    return f"v[{a}:{a+n-1}]" if n > 1 else f"v{a}"


import os
EXP = os.environ.get('EXP', '').split(',') + ['hearly', 'f2first', 'fixorder', 'tmap']


class G:
    def __init__(self, stop=None, ts=False):
        self.a = Asm()
        self.stop = stop
        self.ts = ts
        self.nlab = 0

    def lab(self, p="L"):
        self.nlab += 1
        return f"{p}_{self.nlab}"

    def srd(self, s, ptr, nbytes):
        b = int(s[2:s.index(":")])
        p = PTR[ptr]
        self.a(f"s_mov_b32 s{b}, s{p}\ns_mov_b32 s{b+1}, s{p+1}\ns_mov_b32 s{b+2}, {nbytes}\ns_mov_b32 s{b+3}, 0x20000")

    def stamp(self, i):
        if not self.ts or (self.ts == 2 and i not in (0, 5, 15)):
            return
        self.a(f"s_memrealtime s[98:99]\ns_memtime s[92:93]\ns_lshl_b32 s97, {sLayer}, 4\ns_add_u32 m0, s97, {i}\ns_waitcnt lgkmcnt(0)\nv_writelane_b32 v255, s98, m0\ns_add_u32 m0, m0, 32\ns_nop 0\nv_writelane_b32 v255, s92, m0")

    def flag_store(self, soff, vtmp):
        self.a(f"""
        v_mov_b32 v{vtmp}, s28
        v_mov_b32 v{vtmp+1}, s29
        v_mov_b32 v{vtmp+2}, 0
        s_mov_b64 exec, 1
        buffer_store_dwordx2 {vr(vtmp,2)}, v{vtmp+2}, {sWS}, {soff} offen sc1
        s_mov_b64 exec, -1
        """)

    def poll(self, loads, vt, code, first=0, nap=1):
        a = self.a
        L, Ld = self.lab("Lpoll"), self.lab("Lpolld")
        a(f"s_mov_b32 s96, {SPIN_MAX}")
        if first:
            L1, L1d = self.lab("Lp1"), self.lab("Lp1d")
            va, so, im = loads[0]
            a(f"""
            s_mov_b64 exec, 1
            {L1}:
            buffer_load_dwordx2 {vr(vt,2)}, v{va}, {sWS}, {so} offen offset:{im} sc1
            s_waitcnt vmcnt(0)
            v_cmp_eq_u64 vcc, {sTag}, {vr(vt,2)}
            s_cmp_lg_u64 vcc, 0
            s_cbranch_scc1 {L1d}
            s_sleep {first}
            s_sub_u32 s96, s96, 1
            s_cmp_gt_u32 s96, 1
            s_cbranch_scc1 {L1}
            {L1d}:
            s_mov_b64 exec, -1
            """)
        a(f"{L}:")
        for i, (va, so, im) in enumerate(loads):
            a(f"buffer_load_dwordx2 {vr(vt+2*i,2)}, v{va}, {sWS}, {so} offen offset:{im} sc1")
        a("s_waitcnt vmcnt(0)")
        for i in range(len(loads)):
            if i == 0:
                a(f"v_cmp_ne_u64 vcc, {sTag}, {vr(vt,2)}")
            else:
                a(f"v_cmp_ne_u64 s[94:95], {sTag}, {vr(vt+2*i,2)}\ns_or_b64 vcc, vcc, s[94:95]")
        a(f"""
        s_cmp_eq_u64 vcc, 0
        s_cbranch_scc1 {Ld}
        s_mov_b64 exec, vcc
        """)
        if nap:
            a(f"s_sleep {nap}")
        a(f"""
        s_sub_u32 s96, s96, 1
        s_cmp_lg_u32 s96, 0
        s_cbranch_scc1 {L}
        """)
        self.timeout_mark(code, vt)
        a(f"{Ld}:\ns_mov_b64 exec, -1")

    def poll2(self, loads, vt, code, width=2, first=0):
        a = self.a
        n = len(loads)
        if width == 2 and 'pipe' not in EXP:
            return self.poll(loads, vt, code, first=first or int(os.environ.get('FIRST', 0)), nap=int(os.environ.get('NAP', 0)))
        L, Ld0, Ld1, Ld = self.lab("Lq"), self.lab("Lq0"), self.lab("Lq1"), self.lab("Lqd")
        op = "buffer_load_dwordx2" if width == 2 else "buffer_load_dwordx4"

        def issue(k):
            for i, (va, so, im) in enumerate(loads):
                a(f"{op} {vr(vt+width*(n*k+i),width)}, v{va}, {sWS}, {so} offen offset:{im} sc1")

        def check(k, tgt):
            a(f"s_waitcnt vmcnt({n})")
            for i in range(n):
                r = vr(vt + width * (n * k + i) + width - 2, 2)
                if i == 0:
                    a(f"v_cmp_ne_u64 vcc, {sTag}, {r}")
                else:
                    a(f"v_cmp_ne_u64 s[94:95], {sTag}, {r}\ns_or_b64 vcc, vcc, s[94:95]")
            a(f"s_cmp_eq_u64 vcc, 0\ns_cbranch_scc1 {tgt}")
            if width == 2:
                a("s_mov_b64 exec, vcc")
        a(f"s_mov_b32 s96, {SPIN_MAX}")
        if first:
            L1, L1d = self.lab("Lp1"), self.lab("Lp1d")
            va, so, im = loads[0]
            a(f"""
            s_mov_b64 exec, 1
            {L1}:
            buffer_load_dwordx2 {vr(vt,2)}, v{va}, {sWS}, {so} offen offset:{im} sc1
            s_waitcnt vmcnt(0)
            v_cmp_eq_u64 vcc, {sTag}, {vr(vt,2)}
            s_cmp_lg_u64 vcc, 0
            s_cbranch_scc1 {L1d}
            s_sleep {first}
            s_sub_u32 s96, s96, 1
            s_cmp_gt_u32 s96, 1
            s_cbranch_scc1 {L1}
            {L1d}:
            s_mov_b64 exec, -1
            """)
        if 'pipe' not in EXP and 'gpipe' not in EXP:
            a(f"{L}:")
            issue(0)
            n0, n = n, 0
            a("s_waitcnt vmcnt(0)")
            for i in range(n0):
                r = vr(vt + width * i + width - 2, 2)
                a(f"v_cmp_ne_u64 vcc, {sTag}, {r}" if i == 0 else f"v_cmp_ne_u64 s[94:95], {sTag}, {r}\ns_or_b64 vcc, vcc, s[94:95]")
            a(f"s_cmp_eq_u64 vcc, 0\ns_cbranch_scc1 {Ld0}\n{'s_sleep ' + os.environ['GNAP'] if os.environ.get('GNAP') else ''}\ns_sub_u32 s96, s96, 1\ns_cmp_lg_u32 s96, 0\ns_cbranch_scc1 {L}")
            self.timeout_mark(code, vt)
            return Ld0, Ld1
        issue(0)
        a(f"{L}:")
        issue(1)
        check(0, Ld0 if width > 2 else Ld)
        issue(0)
        check(1, Ld1 if width > 2 else Ld)
        a(f"""
        s_sub_u32 s96, s96, 1
        s_cmp_lg_u32 s96, 0
        s_cbranch_scc1 {L}
        s_waitcnt vmcnt(0)
        """)
        self.timeout_mark(code, vt)
        if width > 2:
            return Ld0, Ld1
        a(f"{Ld}:\ns_mov_b64 exec, -1")

    def timeout_mark(self, code, vt):
        self.a(f"""
        v_mov_b32 v{vt}, {code}
        v_mov_b32 v{vt+1}, 0
        global_store_dword v{vt+1}, v{vt}, s[{PTR['dbg']}:{PTR['dbg']+1}]
        s_waitcnt vmcnt(0)
        """)

    def finish_if(self, name):
        if self.stop == name:
            self.a("s_branch L_end")

    def prologue(self):
        a = self.a
        a(f"""
        s_cmp_ge_u32 s2, 256
        s_cbranch_scc1 L_exit
        s_load_dwordx16 s[32:47], s[0:1], 0
        s_load_dwordx8 s[48:55], s[0:1], 64
        s_getpc_b64 s[16:17]
        L_pc_here:
        s_and_b32 s17, s17, 0xffff
        s_mov_b32 s18, CODE_AFTER
        s_mov_b32 s19, 0x20000
        s_lshr_b32 s3, s2, 3
        s_lshl_b32 s3, s3, 10
        v_lshlrev_b32 v1, 7, v0
        v_cmp_gt_u32 vcc, 8, v0
        v_bfrev_b32 v2, -2
        v_cndmask_b32 v1, v2, v1, vcc
        buffer_load_dword v254, v1, {sC}, s3 offen
        v_lshrrev_b32 v1, 6, v0
        v_and_b32 v2, 63, v0
        s_and_b32 {sX}, s2, 7
        v_readfirstlane_b32 {sW}, v1
        s_lshr_b32 {sJ}, s2, 3
        s_mov_b32 {sLayer}, 0
        s_add_u32 {sT}, {sW}, {sJ}
        s_and_b32 {sT4}, {sT}, 3
        s_and_b32 {sT}, {sT}, 7
        s_waitcnt lgkmcnt(0)
        """)
        self.srd(sWS, "ws", W_SIZE)
        a("v_mov_b32 v248, 0")
        if self.ts:
            a("v_mov_b32 v255, 0")

    def div9(self, vidx, vrow, vj):
        self.a(f"""
        v_mul_hi_u32 v{vrow}, v{vidx}, s64
        v_mul_u32_u24 v{vj}, 9, v{vrow}
        v_sub_u32 v{vj}, v{vidx}, v{vj}
        """)

    def prep(self):
        a = self.a
        HR = 128
        self.stamp(0)
        a(f"s_load_dwordx2 {sTag}, s[54:55], {W_NONCE}")
        self.srd(sA, "k", NB)
        self.srd(sB, "v", NB)
        a(f"""
        s_mov_b32 s64, 0x1c71c71d
        """)
        if 'tmap' in EXP:
            a(f"s_and_b32 s84, {sJ}, 7\ns_lshr_b32 s85, {sJ}, 3\ns_lshl_b32 s60, {sX}, 2\ns_add_u32 s85, s85, s60")
        else:
            a(f"s_mov_b32 s84, {sX}\ns_mov_b32 s85, {sJ}")
        a(f"""
        s_mul_i32 s60, s85, {64*1152}
        s_mul_i32 s61, s84, 144
        s_add_u32 s60, s60, s61
        s_sub_u32 s61, s60, {4*1152}
        """)
        self.div9(0, 3, 4)
        a(f"""
        v_mul_u32_u24 v3, 1152, v3
        v_lshl_add_u32 v5, v4, 4, v3
        v_add_u32 v6, s61, v5
        s_lshl_b32 s62, {sW}, 10
        s_add_u32 m0, s62, {L_PK}
        v_add_u32 v7, 512, v0
        buffer_load_dwordx4 v6, {sA}, 0 offen lds
        s_add_u32 m0, s62, {L_PV}
        s_cmp_ge_u32 {sW}, 3
        buffer_load_dwordx4 v5, {sB}, s60 offen lds
        s_cbranch_scc1 L_prep_d3
        s_cmp_eq_u32 {sW}, 2
        s_cbranch_scc1 L_prep_d2
        """)
        self.div9(7, 3, 4)
        a(f"""
        v_mul_u32_u24 v3, 1152, v3
        v_lshl_add_u32 v5, v4, 4, v3
        v_add_u32 v6, s61, v5
        s_add_u32 m0, s62, {L_PK+8192}
        s_nop 0
        buffer_load_dwordx4 v6, {sA}, 0 offen lds
        s_branch L_prep_d3
        L_prep_d2:
        v_add_u32 v7, 512, v2
        """)
        self.div9(7, 3, 4)
        a(f"""
        v_mul_u32_u24 v3, 1152, v3
        v_lshl_add_u32 v5, v4, 4, v3
        s_mov_b32 m0, {L_PV+8192}
        s_nop 0
        buffer_load_dwordx4 v5, {sB}, s60 offen lds
        L_prep_d3:
        s_cmp_ge_u32 {sW}, 5
        s_cbranch_scc1 L_prep_other
        """)
        self.sk_load()
        if 'hearly' in EXP:
            a(f"s_cmp_lg_u32 {sW}, 4\ns_cbranch_scc1 L_prep_k0\ns_cmp_ge_u32 {sJ}, 18\ns_cbranch_scc1 L_prep_k0")
            self.h_issue(HR)
            a("s_waitcnt vmcnt(8)\ns_branch L_prep_k1\nL_prep_k0:\ns_waitcnt vmcnt(0)\nL_prep_k1:")
        else:
            a("s_waitcnt vmcnt(0)")
        a(f"""
        v_bfe_u32 v5, v2, 2, 2
        v_lshl_add_u32 v5, v4, 3, v5      ; 8G + j
        v_mul_u32_u24 v5, 144, v5
        v_and_b32 v6, 3, v2
        v_lshl_add_u32 v5, v6, 3, v5
        s_lshl_b32 s62, {sW}, 5
        s_add_u32 s62, s62, {L_PK}
        v_add_u32 v5, s62, v5
        s_waitcnt lgkmcnt(0)
        """)
        self.stamp(19)
        a("s_barrier")
        self.stamp(16)
        KR, VR_, KF, AC, WT = 12, 24, 32, 56, 72
        for o in range(2):
            for i in range(3):
                a(f"ds_read_b64_tr_b16 {vr(KR+6*o+2*i,2)}, v5 offset:{4608*o+576*i}")
            for i in range(2):
                a(f"ds_read_b64_tr_b16 {vr(VR_+4*o+2*i,2)}, v5 offset:{L_PV-L_PK+4608*o+576*i}")
        a(f"""
        s_mov_b32 s65, 0xffff0000
        v_lshlrev_b32 v{WT}, 16, v10
        v_and_b32 v{WT+1}, s65, v10
        v_lshlrev_b32 v{WT+2}, 16, v11
        v_and_b32 v{WT+3}, s65, v11
        v_lshlrev_b32 v6, 12, v3
        v_lshl_add_u32 v6, v4, 4, v6
        v_mov_b32 v7, 0x7fffffff
        s_mul_i32 s62, {sW}, 16
        v_add_u32 v8, s62, v3
        v_cmp_gt_u32 vcc, 72, v8
        s_lshl_b32 s62, s61, 12
        s_lshl_b32 s63, s85, 7
        s_add_u32 s62, s62, s63
        s_add_u32 s62, s62, {W_U}
        v_cndmask_b32 v6, v7, v6, vcc
        """)
        for o in range(2):
            a(f"s_waitcnt lgkmcnt({7 if o == 0 else 2})")
            kf = KF + 12 * o
            for d in range(6):
                if d:
                    a(f"v_lshlrev_b32 v{kf+2*d}, 16, v{KR+6*o+d}")
                a(f"v_and_b32 v{kf+2*d+1}, s65, v{KR+6*o+d}")
            ac = AC + 8 * o
            for t in range(8):
                a(f"v_mul_f32 v{ac+t}, v{WT}, v{kf+4+t}")
            for i in range(1, 4):
                for t in range(8):
                    a(f"v_fmac_f32 v{ac+t}, v{WT+i}, v{kf+4+t-i}")
            a(f"s_waitcnt lgkmcnt({5 if o == 0 else 0})")
            for d in range(4):
                a(f"v_lshlrev_b32 v{kf+2*d}, 16, v{VR_+4*o+d}")
                a(f"v_and_b32 v{kf+2*d+1}, s65, v{VR_+4*o+d}")
            for t in range(8):
                a(f"v_mul_f32 v{ac+t}, v{ac+t}, v{kf+t}")
            for d in range(4):
                a(f"v_cvt_pk_bf16_f32 v{76+4*o+d}, v{ac+7-2*d}, v{ac+6-2*d}")
            a(f"buffer_store_dwordx4 {vr(76+4*o,4)}, v6, {sWS}, s62 offen offset:{64*o} sc1")
        self.stamp(17)
        a(f"""
        s_add_u32 s28, s28, 1
        s_addc_u32 s29, s29, 0
        s_lshl_b32 s60, s84, 5
        s_add_u32 s60, s60, s85
        s_lshl_b32 s60, s60, 6
        s_add_u32 s60, s60, {W_F1}
        v_mov_b32 v10, s28
        v_mov_b32 v11, s29
        v_mov_b32 v12, 0
        s_mov_b32 s81, 256
        s_cmp_lg_u32 {sW}, 0
        s_waitcnt vmcnt(0)
        s_barrier
        s_cbranch_scc1 L_prep_nf
        s_mov_b64 exec, 1
        buffer_store_dwordx2 v[10:11], v12, {sWS}, s60 offen sc1
        s_mov_b64 exec, -1
        L_prep_nf:
        s_cmp_lt_u32 {sW}, 4
        s_cbranch_scc1 L_prep_done
        s_branch L_prep_second
        """)

        a("L_prep_other:")
        a(".reset_waits")
        a(f"""
        s_mul_i32 s70, {sX}, 14
        s_add_u32 s70, s70, {sJ}
        s_sub_u32 s70, s70, 18            ; unit
        s_cmp_ge_u32 {sJ}, 18
        s_cbranch_scc1 L_prep_r
        """)
        a(f"""
        s_lshl_b32 s81, {sX}, 4
        s_add_u32 s81, s81, {sJ}
        s_cmp_lt_u32 {sJ}, 16
        s_cselect_b32 s81, s81, 256
        s_cmp_eq_u32 {sW}, 5
        s_cselect_b32 s81, s81, 256
        """)
        if 'hearly' in EXP:
            self.h_issue(HR)
            if 'x0late' in EXP:
                a("s_waitcnt vmcnt(8) lgkmcnt(0)\ns_branch L_prep_w1")
            else:
                a("s_cmp_lt_u32 s81, 128\ns_cbranch_scc1 L_prep_hx\ns_waitcnt vmcnt(8) lgkmcnt(0)\ns_branch L_prep_w1\nL_prep_hx:")
                self.x0_issue()
                a("s_waitcnt vmcnt(26) lgkmcnt(0)\ns_branch L_prep_w1")
        else:
            a("s_branch L_prep_w0")
        a(f"""
        L_prep_r:
        s_cmp_ge_u32 s70, 72
        s_cbranch_scc1 L_prep_w0
        s_cmp_lt_u32 {sW}, 6
        s_cbranch_scc1 L_prep_w0
        """)
        if 'rawlate' not in EXP:
            self.dma_wraw("q")
            a(f"s_waitcnt vmcnt(13) lgkmcnt(0)\ns_branch L_prep_w1")
        a(f"""
        L_prep_w0:
        s_waitcnt vmcnt(0) lgkmcnt(0)
        L_prep_w1:
        s_barrier                        ; B0
        s_add_u32 s28, s28, 1
        s_addc_u32 s29, s29, 0
        s_barrier                        ; B1
        L_prep_second:
        s_sub_u32 s67, {sW}, 4
        s_cmp_ge_u32 {sJ}, 18
        s_cbranch_scc1 L_prep_done
        """)
        if 'hearly' not in EXP:
            self.h_issue(HR)
        if 'x0late' in EXP:
            a("s_waitcnt vmcnt(0)\ns_cmp_ge_u32 s81, 128\ns_cbranch_scc1 L_prep_b1")
            self.x0_issue()
            a("L_prep_b1:\ns_mov_b32 s61, s67")
            self.build_h(HR)
            a("s_cmp_ge_u32 s81, 128\ns_cbranch_scc1 L_prep_b2")
            self.x0_stats()
            self.x0_store(wait=False)
            a("L_prep_b2:\ns_waitcnt lgkmcnt(0)\ns_barrier")
        else:
            a("s_waitcnt vmcnt(0)\ns_cmp_ge_u32 s81, 128\ns_cbranch_scc1 L_prep_b2")
            self.x0_stats()
            self.x0_store(wait=False)
            a("L_prep_b2:\ns_mov_b32 s61, s67")
            self.build_h(HR)
        a("s_cmp_ge_u32 s81, 128\ns_cbranch_scc1 L_prep_b3\ns_waitcnt vmcnt(0)")
        self.flag_store("s82", 10)
        a("L_prep_b3:" if 'x0late' in EXP else "L_prep_b3:\ns_waitcnt lgkmcnt(0)\ns_barrier")
        a("L_prep_done:")
        a(".reset_waits")
        self.stamp(1)

    def h_issue(self, HR):
        a = self.a
        self.srd(sD_, "h", NB)
        a(f"""
        s_mul_i32 s63, {sX}, 18
        s_add_u32 s63, s63, {sJ}
        v_lshlrev_b32 v9, 4, v2
        s_lshl_b32 s63, s63, 2
        s_add_u32 s63, s63, {sW}
        s_sub_u32 s63, s63, 4
        s_lshl_b32 s63, s63, 12
        """)
        for i in range(4):
            b = HR + 8 * i
            a(f"buffer_load_dwordx4 {vr(b,4)}, v9, {sD_}, s63 offen offset:{1024*i}")
            a(f"buffer_load_dwordx4 {vr(b+4,4)}, v9, {sD_}, s63 offen offset:{1024*i+8}")

    def x0_issue(self):
        a = self.a
        self.srd(sC, "q", NB)
        a(f"""
        s_mul_i32 s61, s81, {16*1152}
        v_lshrrev_b32 v24, 3, v2
        v_and_b32 v25, 7, v2
        v_mul_u32_u24 v26, 2304, v24
        v_lshl_add_u32 v26, v25, 4, v26
        """)
        for i in range(9):
            a(f"buffer_load_dwordx4 {vr(168+8*i,4)}, v26, {sC}, s61 offen offset:{128*i}")
            a(f"buffer_load_dwordx4 {vr(172+8*i,4)}, v26, {sC}, s61 offen offset:{128*i+1152}")

    def x0_stats(self):
        a = self.a
        a("""
        v_mov_b32 v28, 0
        v_mov_b32 v29, 0
        v_mov_b32 v30, 0
        v_mov_b32 v31, 0
        v_mov_b32 v27, 0x3f803f80
        s_waitcnt vmcnt(0)
        """)
        for i in range(9):
            b = 168 + 8 * i
            for j in range(4):
                for h in range(2):
                    a(f"v_dot2c_f32_bf16 v{28+2*h}, v{b+4*h+j}, v27")
                    a(f"v_dot2c_f32_bf16 v{29+2*h}, v{b+4*h+j}, v{b+4*h+j}")
            a(f"v_swap_b32 v{b+2}, v{b+4}\nv_swap_b32 v{b+3}, v{b+5}")
        for m in ("quad_perm:[1,0,3,2]", "quad_perm:[2,3,0,1]", "row_half_mirror"):
            for j in range(4):
                a(f"v_add_f32_dpp v{28+j}, v{28+j}, v{28+j} {m} row_mask:0xf bank_mask:0xf bound_ctrl:0")
        self.stats(28, 29, 32, 33, 27)
        self.stats(30, 31, 34, 35, 27)

    def x0_store(self, wait=True):
        a = self.a
        a(f"""
        s_lshl_b32 s82, s81, 6
        s_add_u32 s82, s82, {W_F2}
        s_lshl_b32 s63, s81, 7
        s_add_u32 s63, s63, {W_ST0}
        v_lshlrev_b32 v24, 4, v24
        v_lshl_add_u32 v26, v25, 9, v24
        v_cmp_eq_u32 vcc, 0, v25
        s_lshr_b32 s60, s81, 1
        s_mul_i32 s60, s60, 36864
        s_and_b32 s61, s81, 1
        s_lshl_b32 s61, s61, 7
        s_add_u32 s60, s60, s61
        s_add_u32 s60, s60, {W_X0}
        s_mov_b64 exec, vcc
        buffer_store_dwordx4 v[32:35], v24, {sWS}, s63 offen sc1
        s_mov_b64 exec, -1
        """)
        for i in range(9):
            b = 168 + 8 * i
            a(f"buffer_store_dwordx4 {vr(b,4)}, v26, {sWS}, s60 offen sc1")
            a(f"buffer_store_dwordx4 {vr(b+4,4)}, v26, {sWS}, s60 offen offset:256 sc1")
            if i < 8:
                a("s_add_u32 s60, s60, 4096")
        if wait:
            a("s_waitcnt vmcnt(0)")
            self.flag_store("s82", 10)

    def sk_load(self):
        self.srd(sC, "sk", D * 8)
        self.a(f"""
        v_and_b32 v3, 15, v2
        v_lshrrev_b32 v4, 4, v2           ; G
        s_mul_i32 s61, s84, 72
        s_lshl_b32 s62, {sW}, 4
        s_add_u32 s61, s61, s62
        v_add_u32 v5, s61, v3
        v_lshlrev_b32 v5, 3, v5
        buffer_load_dwordx2 v[10:11], v5, {sC}, 0 offen
        """)

    def arrive(self, cnt, last, base, index, vm=0):
        L = self.lab()
        self.a(f"""
        v_mov_b32 v8, {cnt}
        v_mov_b32 v9, 1
        s_waitcnt vmcnt({vm})
        s_mov_b64 exec, 1
        ds_add_rtn_u32 v9, v8, v9
        s_mov_b64 exec, -1
        {index}
        s_lshl_b32 s60, s60, 6
        s_add_u32 s60, s60, {base}
        s_waitcnt lgkmcnt(0)
        v_readfirstlane_b32 s61, v9
        s_cmp_lg_u32 s61, {last}
        s_cbranch_scc1 {L}
        """)
        self.flag_store("s60", 10)
        self.a(f"{L}:")

    def build_h(self, HR):
        a = self.a
        T = 84
        a(f"""
        s_mul_i32 s63, s61, {4*HC_B}
        s_add_u32 s63, s63, {L_HC+32}
        v_lshl_add_u32 v7, v2, 4, s63
        """)
        for i in range(4):
            A, C = HR + 8 * i, HR + 8 * i + 4
            t = T + 12 * (i & 1)
            d = [A, A + 1, A + 2, A + 3, C + 2, C + 3]
            if i == 0:
                a(f"v_readlane_b32 s60, v{HR}, 0\nv_readlane_b32 s62, v{HR+1}, 0")
            a(f"ds_write_b128 v7, {vr(A,4)} offset:{1024*i}")
            for j in range(4):
                a(f"v_alignbyte_b32 v{t+j}, v{d[j+1]}, v{d[j]}, 2")
            a(f"ds_write_b128 v7, {vr(t,4)} offset:{HC_B+1024*i}")
            for j in range(4):
                a(f"v_mov_b32 v{t+4+j}, v{d[j+1]}")
            a(f"ds_write_b128 v7, {vr(t+4,4)} offset:{2*HC_B+1024*i}")
            for j in range(4):
                a(f"v_alignbyte_b32 v{t+8+j}, v{d[j+2]}, v{d[j+1]}, 2")
            a(f"ds_write_b128 v7, {vr(t+8,4)} offset:{3*HC_B+1024*i}")
        a(f"""
        v_mov_b32 v16, s60
        v_mov_b32 v17, s62
        v_mov_b32 v18, 0
        v_mov_b32 v19, 0
        v_mov_b32 v20, 0
        v_mov_b32 v21, 0
        v_lshlrev_b32 v8, 4, v2
        v_sub_u32 v8, 64, v8
        v_cmp_eq_u32 vcc, 0, v2
        v_lshlrev_b64 v[22:23], v8, v[16:17]
        s_sub_u32 s63, s63, 32
        v_mul_u32_u24 v7, {HC_B}, v2
        v_add_u32 v7, s63, v7
        v_cndmask_b32 v22, v22, v18, vcc
        v_cndmask_b32 v23, v23, v18, vcc
        s_mul_i32 s63, s61, {U_B}
        s_add_u32 s63, s63, {L_U}
        v_lshl_add_u32 v8, v2, 3, s63
        ds_write_b64 v8, v[18:19]
        s_mov_b64 exec, 15
        ds_write_b128 v7, v[18:21]
        ds_write_b128 v7, v[20:23] offset:16
        s_mov_b64 exec, -1
        """)

    def stats(self, vs, vq, vrs, vmr, vt, n=576):
        self.a(f"""
        v_mul_f32 v{vs}, {f32hex(1.0/n)}, v{vs}
        v_mul_f32 v{vq}, {f32hex(1.0/n)}, v{vq}
        v_fma_f32 v{vt}, -v{vs}, v{vs}, v{vq}
        v_max_f32 v{vt}, 0, v{vt}
        v_add_f32 v{vt}, {f32hex(1e-5)}, v{vt}
        v_rsq_f32 v{vrs}, v{vt}
        s_nop 0
        v_mul_f32 v{vmr}, v{vs}, v{vrs}
        v_sub_f32 v{vmr}, 0, v{vmr}
        """)

    def dma_wraw(self, kind):
        a = self.a
        L1, L2 = self.lab(), self.lab()
        a(f"""
        s_mul_i32 s70, {sX}, 14
        s_add_u32 s70, s70, {sJ}
        s_sub_u32 s70, s70, 18
        s_sub_u32 s62, {sW}, 6
        """)
        if kind == "q":
            self.wraw_q(L1)
        elif kind == "q4":
            self.wraw_q(L1, 4)
        else:
            self.wraw_o(L2)

    def wraw_q(self, L1, shift=0):
        a = self.a
        a(f"""
        s_lshr_b32 s71, s70, 1
        s_and_b32 s72, s70, 1
        s_mul_i32 s60, s71, {16*3456}
        s_mul_i32 s61, s72, 576
        s_add_u32 s60, s60, s61
        s_add_u32 s60, s60, {shift}
        """)
        self.srd(sB, "wqkv", D * 3 * D * 2)
        a(f"{L1}:\nv_lshl_add_u32 v4, s62, 6, v2\nv_lshrrev_b32 v7, 2, v4")
        self.div9(7, 5, 6)
        a(f"""
        v_mul_u32_u24 v5, {1152-576}, v5
        v_lshl_add_u32 v8, v4, 4, v5
        s_lshl_b32 s63, s62, 10
        s_add_u32 m0, s63, {27648 if shift else 0}
        s_add_u32 s62, s62, 2
        buffer_load_dwordx4 v8, {sB}, s60 offen lds
        s_cmp_lt_u32 s62, 27
        s_cbranch_scc1 {L1}
        """)

    def wraw_o(self, L2):
        a = self.a
        a(f"""
        s_sub_u32 s71, s70, 72           ; S
        s_mul_i32 s60, s71, {36*1152}
        s_sub_u32 s61, s71, 16
        s_mul_i32 s61, s61, {288*1152}
        s_add_u32 s61, s61, {16*1152}
        s_cmp_lt_u32 s71, 16
        s_cselect_b32 s60, s60, s61
        s_cselect_b64 s[74:75], -1, 0
        """)
        self.srd(sB, "wo", D * D * 2)
        a(f"{L2}:\nv_lshl_add_u32 v4, s62, 6, v2\nv_lshrrev_b32 v9, 3, v4")
        self.div9(9, 5, 6)
        a(f"""
        v_mul_u32_u24 v6, 72, v5
        v_sub_u32 v6, v4, v6
        v_lshrrev_b32 v7, 4, v5
        v_mul_u32_u24 v7, 18, v7
        v_bfe_u32 v8, v5, 3, 1
        v_lshl_add_u32 v7, v8, 2, v7
        v_bfe_u32 v8, v5, 2, 1
        v_lshl_add_u32 v7, v8, 3, v7
        v_and_b32 v8, 3, v5
        v_add_u32 v7, v7, v8
        v_lshrrev_b32 v8, 1, v5
        v_mul_u32_u24 v8, 18, v8
        v_and_b32 v9, 1, v5
        v_add_u32 v8, v8, v9
        v_cndmask_b32 v7, v8, v7, s[74:75]
        v_mul_u32_u24 v7, 1152, v7
        v_lshl_add_u32 v8, v6, 4, v7
        s_lshl_b32 m0, s62, 10
        s_add_u32 s62, s62, 2
        buffer_load_dwordx4 v8, {sB}, s60 offen lds
        s_cmp_lt_u32 s62, 36
        s_cbranch_scc1 {L2}
        """)

    def relayout(self):
        a = self.a
        a("L_relayout:")
        a(".reset_waits")
        a(f"""
        L_rel_nx:
        s_mul_i32 s70, {sX}, 14
        s_add_u32 s70, s70, {sJ}
        s_sub_u32 s70, s70, 18
        s_cmp_lt_u32 {sW}, 6
        s_cbranch_scc1 L_rel_nx1
        s_cmp_lt_u32 s70, 72
        s_cbranch_scc1 L_rel_nq
        s_cmp_ge_u32 s70, 90
        s_cbranch_scc1 L_rel_nx1
        """)
        self.dma_wraw("o")
        a("s_branch L_rel_nx1\nL_rel_nq:")
        if 'rawlate' in EXP:
            self.dma_wraw("q")
        self.dma_wraw("q4")
        a(f"""
        L_rel_nx1:
        s_waitcnt vmcnt(0)
        s_barrier
        """)
        self.stamp(20)
        a(f"""
        v_lshrrev_b32 v3, 4, v2          ; G
        v_bfe_u32 v4, v2, 2, 2           ; j
        v_and_b32 v5, 3, v2              ; m
        v_lshrrev_b32 v6, 5, v2          ; half
        v_and_b32 v7, 31, v2             ; col
        s_cmp_ge_u32 s70, 90
        s_cbranch_scc1 L_rel_nf
        s_cmp_ge_u32 s70, 72
        s_cbranch_scc1 L_rel_o
        s_lshr_b32 s71, s70, 1           ; k-step
        s_and_b32 s72, s70, 1
        s_mul_i32 s73, s71, 1792
        s_mul_i32 s74, s72, {16*WQ_B}
        s_add_u32 s73, s73, s74
        s_add_u32 s73, s73, {W_WQ}
        v_lshl_add_u32 v8, v6, 3, v4
        v_mul_u32_u24 v8, 1728, v8
        v_and_b32 v9, 1, v3              ; G&1
        s_lshr_b32 s75, {sW}, 1
        s_and_b32 s76, {sW}, 1           ; tile
        s_mul_i32 s77, s75, 36
        s_and_b32 s79, s75, 1
        s_mul_i32 s79, s79, {27648-4}
        s_add_u32 s77, s77, s79
        s_mul_i32 s78, s75, {WQ_B}
        s_add_u32 s73, s73, s78
        s_cmp_lg_u32 s76, 0
        s_cbranch_scc1 L_rel_t1
        v_mul_u32_u24 v10, 576, v9
        v_lshl_add_u32 v10, v5, 3, v10
        v_add3_u32 v8, v8, v10, s77
        v_lshlrev_b32 v11, 4, v2
        v_lshlrev_b32 v14, 2, v7
        s_branch L_rel_go
        L_rel_t1:
        ; G&1==0: 96+8m ; else m: 0->128 1->32 2->80 3->128
        v_lshlrev_b32 v10, 3, v5
        v_add_u32 v10, 1152, v10
        v_mov_b32 v12, {1152+32}
        v_cmp_eq_u32 vcc, 1, v5
        s_nop 1
        v_cndmask_b32 v12, v12, 32, vcc
        v_mov_b32 v13, {576+32}
        v_cmp_eq_u32 vcc, 2, v5
        s_nop 1
        v_cndmask_b32 v12, v12, v13, vcc
        v_cmp_eq_u32 vcc, 1, v9
        s_nop 1
        v_cndmask_b32 v10, v10, v12, vcc
        v_add3_u32 v8, v8, v10, s77
        v_subrev_u32 v12, 2, v7
        v_cmp_gt_u32 vcc, 22, v7
        s_nop 1
        v_cndmask_b32 v12, v12, v7, vcc
        v_lshlrev_b32 v14, 2, v12
        v_lshlrev_b32 v12, 4, v12
        v_mul_u32_u24 v13, 384, v6
        v_add_u32 v11, v12, v13
        v_add_u32 v11, 1024, v11
        v_and_b32 v13, 30, v7
        v_cmp_eq_u32 s[62:63], 24, v13
        s_nop 1
        s_or_b64 vcc, vcc, s[62:63]
        v_mov_b32 v13, 0x7fffffff
        s_nop 0
        v_cndmask_b32 v11, v13, v11, vcc
        v_cndmask_b32 v14, v13, v14, vcc
        L_rel_go:
        """)
        for n in range(4):
            a(f"ds_read_b64_tr_b16 {vr(68+4*n,2)}, v8 offset:{144*n}")
            a(f"ds_read_b64_tr_b16 {vr(70+4*n,2)}, v8 offset:{144*n+4*1728}")
        a(f"""
        s_lshl_b32 s74, s72, 4
        s_add_u32 s74, s74, s75
        s_mul_i32 s74, s74, 36
        s_add_u32 s74, s74, s71
        s_lshl_b32 s74, s74, 8
        s_lshl_b32 s77, s76, 7
        s_add_u32 s74, s74, s77
        s_add_u32 s74, s74, {W_CSP}
        v_mov_b32 v15, 0x3f803f80
        """)
        for n in range(4):
            a(f"v_mov_b32 v{84+n}, 0")
        for n in range(4):
            a(f"s_waitcnt lgkmcnt({6-2*n})")
            a(f"buffer_store_dwordx4 {vr(68+4*n,4)}, v11, {sWS}, s73 offen sc1")
            a(f"s_add_u32 s73, s73, {4*WQ_B}")
            for j in range(4):
                a(f"v_dot2c_f32_bf16 v{84+n}, v{68+4*n+j}, v15")
        for n in range(4):
            a(f"v_mov_b32 v{88+n}, v{84+n}")
        for n in range(4):
            a(f"v_permlane32_swap_b32 v{84+n}, v{88+n}")
        for n in range(4):
            a(f"v_add_f32 v{84+n}, v{84+n}, v{88+n}")
        a(f"""
        s_mov_b32 s62, 0
        s_mov_b32 s63, -1
        v_mul_u32_u24 v13, {4*36*256}, v6
        v_add_u32 v14, v14, v13
        v_cndmask_b32 v84, v84, v85, s[62:63]
        v_cndmask_b32 v86, v86, v87, s[62:63]
        buffer_store_dword v84, v14, {sWS}, s74 offen sc1
        s_add_u32 s74, s74, {8*36*256}
        buffer_store_dword v86, v14, {sWS}, s74 offen sc1
        """)
        a("s_branch L_rel_fin")
        a(f"""
        L_rel_o:
        .reset_waits
        s_sub_u32 s71, s70, 72
        s_mul_i32 s73, {sW}, {WO_B}
        s_mul_i32 s74, s71, 4608
        s_add_u32 s73, s73, s74
        s_add_u32 s73, s73, {W_WO}
        v_lshl_add_u32 v10, v3, 3, v4
        v_mul_u32_u24 v10, 1152, v10
        v_lshl_add_u32 v10, v5, 3, v10
        s_mul_i32 s74, {sW}, 144
        v_add_u32 v10, s74, v10
        v_lshlrev_b32 v12, 4, v2
        v_and_b32 v13, 15, v2
        v_lshlrev_b32 v14, 4, v13
        v_lshl_add_u32 v14, v3, 7, v14
        v_mov_b32 v15, 0x7fffffff
        v_cmp_gt_u32 vcc, 8, v13
        s_add_u32 s74, s73, 4096
        s_nop 0
        v_cndmask_b32 v14, v15, v14, vcc
        """)
        for ft in range(5):
            a(f"ds_read_b64_tr_b16 {vr(68+4*ft,2)}, v10 offset:{32*ft}")
            a(f"ds_read_b64_tr_b16 {vr(70+4*ft,2)}, v10 offset:{32*ft+4608}")
        for ft in range(5):
            a(f"s_waitcnt lgkmcnt({8-2*ft})")
            if ft < 4:
                a(f"buffer_store_dwordx4 {vr(68+4*ft,4)}, v12, {sWS}, s73 offen offset:{1024*ft} sc1")
            else:
                a(f"buffer_store_dwordx4 {vr(68+4*ft,4)}, v14, {sWS}, s74 offen sc1")
        a(f"""
        L_rel_fin:
        s_waitcnt vmcnt(0)
        s_barrier
        s_cmp_lg_u32 {sW}, 0
        s_cbranch_scc1 L_rel_nf
        s_lshl_b32 s60, s70, 6
        s_add_u32 s60, s60, {W_F3}
        """)
        self.flag_store("s60", 10)
        a("L_rel_nf:")
        a(f"s_cmp_lt_u32 {sW}, 4\ns_cbranch_scc1 L_rel_nw")
        self.wq_flags()
        self.poll([(5, "s62", 0)], 6, 3, first=4)
        self.stamp(29)
        self.wq_fetch()
        a(f"s_cmp_lg_u32 {sW}, 7\ns_cbranch_scc1 L_rel_nw")
        self.cs_issue()
        a("s_waitcnt vmcnt(0)")
        self.cs_finish()
        a("L_rel_nw:")
        a("s_waitcnt vmcnt(0)\ns_barrier\ns_branch L_qkv_pre")

    def wq_flags(self):
        self.a(f"""
        s_lshr_b32 s60, {sJ}, 4
        v_min_u32 v5, 35, v2
        v_lshl_add_u32 v5, v5, 1, s60
        v_lshlrev_b32 v5, 6, v5
        s_mov_b32 s62, {W_F3}
        """)

    def cs_issue(self):
        a = self.a
        a(f"""
        s_mul_i32 s60, {sJ}, {36*256}
        s_add_u32 s60, s60, {W_CSP}
        v_lshlrev_b32 v4, 4, v2
        """)
        for i in range(9):
            a(f"buffer_load_dwordx4 {vr(168+4*i,4)}, v4, {sWS}, s60 offen sc1")
            if i < 8:
                a("s_add_u32 s60, s60, 1024")

    def cs_finish(self):
        a = self.a
        for i in range(1, 9):
            for j in range(4):
                a(f"v_add_f32 v{168+j}, v{168+j}, v{168+4*i+j}")
        for op in ("v_permlane16_swap_b32", "v_permlane32_swap_b32"):
            for j in range(4):
                a(f"v_mov_b32 v{172+j}, v{168+j}")
            for j in range(4):
                a(f"{op} v{168+j}, v{172+j}")
            for j in range(4):
                a(f"v_add_f32 v{168+j}, v{168+j}, v{172+j}")
        a(f"""
        v_and_b32 v4, 15, v2
        v_lshlrev_b32 v4, 4, v4
        v_add_u32 v4, {L_CS}, v4
        ds_write_b128 v4, v[168:171]
        s_waitcnt lgkmcnt(0)
        """)

    def wq_fetch(self, first=0, last=63):
        L = self.lab()
        self.a(f"""
        s_mul_i32 s60, {sJ}, {WQ_B}
        s_add_u32 s60, s60, {W_WQ}
        s_sub_u32 s62, {sW}, 4
        s_add_u32 s62, s62, {first}
        v_lshlrev_b32 v4, 4, v2
        {L}:
        s_lshl_b32 s63, s62, 10
        s_add_u32 m0, s63, {L_WQ}
        s_add_u32 s63, s63, s60
        s_add_u32 s62, s62, 4
        buffer_load_dwordx4 v4, {sWS}, s63 offen sc1 lds
        s_cmp_lt_u32 s62, {last}
        s_cbranch_scc1 {L}
        """)

    def conv(self):
        a = self.a
        a(f"s_cmp_ge_u32 {sJ}, 18\ns_cbranch_scc1 L_relayout")
        a(f"""
        s_mul_i32 s66, {sX}, 18
        s_add_u32 s66, s66, {sJ}          ; quad
        s_cmp_ge_u32 {sW}, 4
        s_cbranch_scc1 L_conv_help
        """)
        self.srd(sA, "dd", D * 2)
        a(f"""
        s_lshl_b32 s61, s66, 2
        s_add_u32 s61, s61, {sW}           ; channel
        s_lshl_b32 s62, s61, 1
        v_mov_b32 v4, s62
        buffer_load_ushort v5, v4, {sA}, 0 offen
        s_mul_i32 s62, {sW}, {U_B}
        s_add_u32 s62, s62, {L_U+512}
        s_cmp_lg_u32 {sW}, 0
        s_cbranch_scc1 L_conv_nu
        v_and_b32 v4, 31, v2
        v_lshlrev_b32 v4, 6, v4
        s_lshl_b32 s60, {sX}, 11
        s_add_u32 s60, s60, {W_F1}
        """)
        self.poll2([(4, "s60", 0)], 176, 1)
        a(f"""
        s_lshl_b32 s61, s61, 12
        s_add_u32 s61, s61, {W_U}
        v_lshlrev_b32 v4, 4, v2
        """)
        for c in range(4):
            for i in range(4):
                a(f"s_mov_b32 m0, {L_U+512+U_B*c+1024*i}\ns_add_u32 s63, s61, {4096*c+1024*i}")
                a(f"buffer_load_dwordx4 v4, {sWS}, s63 offen sc1 lds")
        a("L_conv_nu:")
        self.stamp(2)
        vBA, vAA, AD = 6, 7, 8
        ACC, A0, B0 = 16, 48, 112
        a(f"""
        v_and_b32 v12, 15, v2              ; nn / r
        v_lshrrev_b32 v13, 5, v2           ; g>>1
        v_bfe_u32 v14, v2, 4, 1            ; g&1
        s_sub_u32 s62, s62, {448}          ; u base + 64
        v_sub_u32 v15, v12, v13
        v_lshlrev_b32 v15, 5, v15
        v_lshl_add_u32 v15, v14, 4, v15
        v_add_u32 v{vBA}, s62, v15
        v_add_u32 v15, 1, v12
        v_and_b32 v3, 3, v15               ; sigma
        v_lshl_add_u32 v15, v13, 4, v12
        v_lshlrev_b32 v1, 3, v14
        v_sub_u32 v15, v15, v1
        v_sub_u32 v15, v15, v3
        v_add_u32 v15, 9, v15
        v_lshlrev_b32 v15, 1, v15
        v_mul_u32_u24 v3, {HC_B}, v3
        s_mul_i32 s63, {sW}, {4*HC_B}
        v_add3_u32 v{vAA}, v15, v3, s63
        v_add_u32 v1, 7, v1
        v_sub_u32 v1, v1, v12              ; j0
        v_lshl_add_u32 v1, v13, 6, v1
        v_and_b32 v3, 1, v1
        v_lshlrev_b32 v3, 4, v3
        v_lshrrev_b32 v1, 1, v1
        s_waitcnt vmcnt(16)
        s_cmp_eq_u32 {sW}, 0
        s_cbranch_scc1 L_conv_d
        s_waitcnt vmcnt(0)
        L_conv_d:
        v_lshlrev_b32 v5, v3, v5
        """)
        for i in range(4):
            a(f"v_cmp_eq_u32 vcc, {i}, v1\ns_nop 1\nv_cndmask_b32 v{AD+i}, 0, v5, vcc")

        def rdA(rho, q):
            b = A0 + 32 * (rho & 1) + 4 * q
            off = L_HC + 64 * (rho + 8 * q)
            return [f"ds_read_b64 {vr(b,2)}, v{vAA} offset:{off}", f"ds_read_b64 {vr(b+2,2)}, v{vAA} offset:{off+8}"]

        def rdB(rho, j):
            b = B0 + 32 * (rho & 1) + 4 * j
            return [f"ds_read_b128 {vr(b,4)}, v{vBA} offset:{64*(8*j-rho+7)}"]

        def reads(rho):
            r = rdA(rho, 0)
            for j in range(8):
                r += rdB(rho, j)
            for q in range(1, 8):
                r += rdA(rho, q)
            return r
        a("s_waitcnt vmcnt(0)\ns_barrier")
        for q in range(8):
            for l in rdA(0, q):
                a(l)
        for j in range(8):
            a(rdB(0, j)[0])
        for rho in range(8):
            a("s_waitcnt lgkmcnt(0)")
            nxt = reads(rho + 1) if rho < 7 else []
            ab, bb = A0 + 32 * (rho & 1), B0 + 32 * (rho & 1)
            ms = []
            if rho == 0:
                for n in range(8):
                    ms.append(f"v_mfma_f32_16x16x32_bf16 {vr(ACC+4*n,4)}, {vr(AD,4)}, {vr(bb+4*n,4)}, 0")
            for q in range(8):
                for n in range(q, 8):
                    ms.append(f"v_mfma_f32_16x16x32_bf16 {vr(ACC+4*n,4)}, {vr(ab+4*q,4)}, {vr(bb+4*(n-q),4)}, {vr(ACC+4*n,4)}")
            for m in ms:
                a(m)
                if nxt:
                    a(nxt.pop(0))
        self.stamp(3)
        a(f"""
        v_lshlrev_b32 v12, 5, v12
        v_lshrrev_b32 v13, 4, v2
        v_lshl_add_u32 v12, v13, 3, v12
        s_mul_i32 s63, {sW}, {4*HC_B+32}
        v_add_u32 v12, s63, v12
        """)
        for n in range(8):
            a(f"v_cvt_pk_bf16_f32 v{A0+2*n}, v{ACC+4*n}, v{ACC+4*n+1}")
            a(f"v_cvt_pk_bf16_f32 v{A0+2*n+1}, v{ACC+4*n+2}, v{ACC+4*n+3}")
            a(f"ds_write_b64 v12, {vr(A0+2*n,2)} offset:{L_HC+512*n}")
        a("s_waitcnt lgkmcnt(0)\ns_barrier")
        a("s_branch L_qkv_pre")

        a("L_conv_help:")
        a(".reset_waits")
        X0, ST, Y, T = 16, 32, 232, 64
        self.wq_flags()
        a(f"""
        v_and_b32 v4, 31, v2
        v_lshlrev_b32 v4, 6, v4
        s_lshl_b32 s63, s67, 11
        s_add_u32 s63, s63, {W_F2}
        v_lshlrev_b32 v3, 3, v2
        s_lshl_b32 s60, s67, 12
        s_add_u32 s60, s60, {W_ST0}
        v_and_b32 v14, 31, v2
        v_lshrrev_b32 v15, 5, v2
        v_mul_u32_u24 v15, 36864, v15
        v_lshl_add_u32 v14, v14, 3, v15
        s_mul_i32 s76, s67, {16*36864}
        s_lshl_b32 s61, s66, 8
        s_add_u32 s76, s76, s61
        s_add_u32 s61, s76, {W_X0}
        """)
        self.poll([(4, "s63", 0)], 6, 2, first=4)
        self.stamp(18)
        for i in range(8):
            a(f"buffer_load_dwordx2 {vr(ST+2*i,2)}, v3, {sWS}, s60 offen offset:{512*i} sc1")
            a(f"buffer_load_dwordx2 {vr(X0+2*i,2)}, v14, {sWS}, s61 offen sc1")
            if i < 7:
                a(f"s_add_u32 s61, s61, {2*36864}")
        a("v_mov_b32 v13, v5\ns_waitcnt vmcnt(0)")
        a(f"""
        v_bfe_u32 v4, v2, 2, 2
        v_mul_u32_u24 v4, {4*HC_B+32}, v4
        v_lshrrev_b32 v5, 4, v2
        v_lshl_add_u32 v4, v5, 5, v4
        v_and_b32 v5, 3, v2
        v_lshl_add_u32 v4, v5, 3, v4
        s_lshl_b32 s60, s67, 10
        v_add_u32 v4, s60, v4
        s_mov_b32 s64, 0xffff0000
        s_add_u32 s61, s76, {W_Y}
        s_add_u32 s60, s76, {W_X1}
        """)
        a(".reset_waits")
        for i in range(8):
            t = T + 8 * i
            for d in range(2):
                a(f"v_lshlrev_b32 v{t+2*d}, 16, v{X0+2*i+d}")
                a(f"v_and_b32 v{t+2*d+1}, s64, v{X0+2*i+d}")
            for c in range(4):
                a(f"v_fma_f32 v{t+4+c}, v{t+c}, v{ST+2*i}, v{ST+2*i+1}")
        PRE = int(os.environ.get("PRE", 0))
        a(f"buffer_load_dwordx2 v[128:129], v13, {sWS}, s62 offen sc1\ns_mov_b32 s77, 0")
        if PRE:
            L = self.lab()
            a(f"s_waitcnt vmcnt(0)\nv_cmp_ne_u64 vcc, {sTag}, v[128:129]\ns_cmp_lg_u64 vcc, 0\ns_cbranch_scc1 {L}")
            a("s_mov_b32 s78, s60\nv_mov_b32 v12, v4")
            self.wq_fetch(last=PRE)
            a(f"s_mov_b32 s60, s78\nv_mov_b32 v4, v12\ns_mov_b32 s77, {PRE}\n{L}:")
        a("s_barrier")
        for i in range(8):
            a(f"ds_read_b64_tr_b16 {vr(Y+2*i,2)}, v4 offset:{L_HC+128*i}")
        for i in range(8):
            t = T + 8 * i
            a(f"s_waitcnt lgkmcnt({7-i})")
            for d in range(2):
                a(f"v_lshlrev_b32 v8, 16, v{Y+2*i+d}")
                a(f"v_and_b32 v9, s64, v{Y+2*i+d}")
                a(f"v_fmac_f32 v{t+2*d}, v{t+4+2*d}, v8")
                a(f"v_fmac_f32 v{t+2*d+1}, v{t+5+2*d}, v9")
            a(f"v_cvt_pk_bf16_f32 v{X0+2*i}, v{t}, v{t+1}")
            a(f"v_cvt_pk_bf16_f32 v{X0+2*i+1}, v{t+2}, v{t+3}")
            a(f"buffer_store_dwordx2 {vr(X0+2*i,2)}, v14, {sWS}, s60 offen sc1")
            a(f"s_add_u32 s60, s60, {2*36864}")
        a(f"""
        s_lshl_b32 s60, s66, 2
        s_add_u32 s60, s60, s67
        s_lshl_b32 s60, s60, 6
        s_add_u32 s60, s60, {W_F4}
        s_waitcnt vmcnt(0)
        """)
        self.flag_store("s60", 10)
        a(f"""
        v_mov_b32 v248, v14
        s_mov_b32 s79, s61
        s_add_u32 s80, s60, {W_F10 - W_F4}
        """)
        L = self.lab()
        a(f"v_cmp_ne_u64 vcc, {sTag}, v[128:129]\ns_cmp_eq_u64 vcc, 0\ns_cbranch_scc1 {L}")
        self.poll([(13, "s62", 0)], 128, 3)
        a(f"{L}:")
        self.wq_fetch(first="s77", last=WQ1)
        a(f"s_cmp_eq_u32 {sW}, 7\ns_cbranch_scc1 L_help_c0\ns_waitcnt vmcnt(0)\ns_branch L_qkv_pre\nL_help_c0:")
        self.cs_issue()
        a("s_waitcnt vmcnt(0)")
        self.cs_finish()
        a("s_branch L_qkv_pre")

    def colsum(self):
        a = self.a
        a("L_qkv_pre:")
        a(".reset_waits")
        self.stamp(4)
        self.qkv_setup()

    def qkv_setup(self):
        self.a(f"""
        v_lshlrev_b32 v4, 4, v2
        v_add_u32 v4, {L_WQ}, v4           ; W tile 0
        v_and_b32 v6, 31, v2
        v_min_u32 v5, 23, v6
        v_lshlrev_b32 v5, 4, v5
        v_lshrrev_b32 v7, 5, v2            ; hh
        v_mul_u32_u24 v53, 384, v7
        v_add_u32 v5, v5, v53
        v_add_u32 v5, {L_WQ+1024}, v5      ; W tile 1
        v_and_b32 v53, 15, v2
        v_lshlrev_b32 v53, 1, v53
        v_bfe_u32 v54, v2, 4, 1
        v_add_u32 v53, v53, v54
        v_lshlrev_b32 v53, 4, v53
        v_and_b32 v58, 19, v6
        v_bfe_u32 v54, v6, 2, 1
        v_lshl_add_u32 v58, v54, 3, v58
        v_bfe_u32 v54, v6, 3, 1
        v_lshl_add_u32 v58, v54, 2, v58    ; sigma(n)
        v_lshlrev_b32 v54, 4, v58
        v_lshl_add_u32 v54, v7, 9, v54
        s_lshl_b32 s61, {sT}, 10
        v_add_u32 v54, s61, v54
        v_min_u32 v56, 19, v6
        v_cmp_eq_u32 vcc, 4, v56
        v_cmp_eq_u32 s[62:63], 19, v56
        s_mul_i32 s61, {sT}, 1280
        s_add_u32 s61, s61, {KV_V}
        v_cndmask_b32 v56, v56, 19, vcc
        v_cndmask_b32 v56, v56, 4, s[62:63]
        v_lshlrev_b32 v56, 4, v56
        v_mul_u32_u24 v55, 320, v7
        v_add_u32 v56, v56, v55
        v_add_u32 v55, s61, v56
        s_lshl_b32 s62, {sT}, 7
        s_add_u32 s63, s62, {L_QR}
        s_add_u32 s62, s62, {KV_R}
        v_mov_b32 v59, s62
        v_mov_b32 v60, s63
        v_cmp_gt_u32 vcc, 22, v6
        v_and_b32 v57, 1, v6
        v_lshlrev_b32 v57, 1, v57
        v_lshl_add_u32 v57, v7, 5, v57
        v_cndmask_b32 v61, v59, v60, vcc
        v_add_u32 v57, v57, v61
        v_lshl_add_u32 v58, v58, 2, v60
        v_lshl_add_u32 v59, v6, 2, v59
        s_lshl_b32 s60, {sW}, 8
        s_add_u32 s60, s60, {L_ST}
        v_lshl_add_u32 v60, v6, 2, s60
        v_mov_b32 v61, s60
        v_and_b32 v62, 30, v6
        v_cmp_eq_u32 vcc, 20, v62
        v_add_u32 v62, 128, v61
        s_nop 0
        v_cndmask_b32 v61, v61, v62, vcc
        v_cmp_eq_u32 vcc, 18, v6
        v_lshl_add_u32 v61, v7, 4, v61
        v_mov_b32 v62, 0x3f803f80
        v_cndmask_b32 v62, 0, v62, vcc
        s_lshl_b32 s69, {sLayer}, 5
        s_add_u32 s69, s69, {sJ}
        s_lshl_b32 s69, s69, 3             ; (layer*32+head)*8
        s_add_u32 s89, s69, {sX}
        s_mul_i32 s89, s89, {KV_B}
        s_add_u32 s89, s89, {W_KV}
        """)

    def qkv(self):
        a = self.a
        L = self.lab()
        a(f"s_cmp_lg_u32 {sW}, 0\ns_cbranch_scc1 {L}")
        a(f"""
        v_lshlrev_b32 v8, 8, v2
        v_add_u32 v9, {64*256}, v8
        v_add_u32 v10, {128*256}, v8
        v_min_u32 v10, {143*256}, v10
        s_lshr_b32 s60, {sX}, 1
        s_lshl_b32 s60, s60, 6
        s_add_u32 s60, s60, {W_F4}
        """)
        self.poll2([(8, "s60", 0), (9, "s60", 0), (10, "s60", 0)], 220, 4, first=2)
        a(f"{L}:")
        a(f"""
        s_mov_b32 s68, {W_X1}
        s_cmp_eq_u32 {sW}, 0
        s_cselect_b32 s3, 3, 0
        s_add_u32 s88, {sW}, {WQ1-4}
        s_lshl_b32 s88, s88, 10            ; first remaining piece of the wqkv slice (waves 4-7)
        s_mul_i32 s87, {sJ}, {WQ_B}
        s_add_u32 s87, s87, s88
        s_add_u32 s87, s87, {W_WQ}
        s_cmp_lt_u32 {sJ}, 18
        s_cselect_b32 s87, s87, 0
        s_cmp_ge_u32 {sW}, 4
        s_cselect_b32 s87, s87, 0
        """)
        a("L_qkv:")
        a(".reset_waits")
        XF, D0, D1, WF, RS = 64, 16, 32, 208, 96
        a(f"""
        s_lshl_b32 s75, {sLayer}, 15
        s_lshl_b32 s61, {sX}, 12
        s_add_u32 s75, s75, s61
        s_add_u32 s75, s75, {W_G9}
        s_mul_i32 s60, {sX}, {8*36864}
        s_add_u32 s60, s60, s68
        s_cmp_lg_u32 s3, 3
        s_cbranch_scc1 L_qkv_ns
        v_lshrrev_b32 v10, 2, v2
        v_and_b32 v11, 3, v2
        v_lshlrev_b32 v10, 8, v10
        v_lshl_add_u32 v10, v11, 4, v10
        s_lshr_b32 s61, {sJ}, 2
        s_mul_i32 s61, s61, 36864
        s_and_b32 s62, {sJ}, 3
        s_lshl_b32 s62, s62, 6
        s_add_u32 s61, s61, s62
        s_add_u32 s61, s61, s60
        """)
        for i in range(9):
            a(f"buffer_load_dwordx4 {vr(16+4*i,4)}, v10, {sWS}, s61 offen sc1")
            if i < 8:
                a("s_add_u32 s61, s61, 4096")
        a("L_qkv_ns:")
        a(f"""
        v_lshlrev_b32 v8, 4, v2
        s_mul_i32 s61, {sT}, 36864
        s_add_u32 s60, s60, s61
        s_barrier
        """)
        self.stamp(5)
        WIN = int(os.environ.get("WIN", 8))

        def ldx(s):
            a(f"buffer_load_dwordx4 {vr(XF+4*s,4)}, v8, {sWS}, s60 offen offset:{1024*(s&3)} sc1")
            if s & 3 == 3 and s < 35:
                a("s_add_u32 s60, s60, 4096")
        for s in range(WIN):
            ldx(s)
        a(f"s_cmp_lg_u32 s3, 3\ns_cbranch_scc1 L_qkv_ns2")
        a("v_mov_b32 v12, 0\nv_mov_b32 v13, 0\nv_mov_b32 v14, 0\nv_mov_b32 v15, 0\nv_mov_b32 v52, 0x3f803f80")
        for i in range(9):
            a(f"s_waitcnt vmcnt({8+WIN-i})")
            for j in range(4):
                r = 16 + 4 * i + j
                a(f"v_dot2c_f32_bf16 v{12+(j&2)}, v{r}, v52")
                a(f"v_dot2c_f32_bf16 v{13+(j&2)}, v{r}, v{r}")
        for m in ("row_ror:4", "row_ror:8"):
            for j in range(4):
                a(f"v_add_f32_dpp v{12+j}, v{12+j}, v{12+j} {m} row_mask:0xf bank_mask:0xf bound_ctrl:0")
        for op in ("v_permlane16_swap_b32", "v_permlane32_swap_b32"):
            for j in range(4):
                a(f"v_mov_b32 v{16+j}, v{12+j}")
            for j in range(4):
                a(f"{op} v{12+j}, v{16+j}")
            for j in range(4):
                a(f"v_add_f32 v{12+j}, v{12+j}, v{16+j}")
        self.stats(12, 13, 17, 22, 23)
        self.stats(14, 15, 21, 22, 23)
        a(f"""
        v_sub_f32 v16, 0, v12
        v_sub_f32 v20, 0, v14
        v_mov_b32 v18, s28
        v_mov_b32 v19, s29
        v_mov_b32 v22, s28
        v_mov_b32 v23, s29
        v_lshlrev_b32 v11, 5, v11
        s_lshl_b32 s61, {sJ}, 7
        s_add_u32 s61, s61, s75
        s_mov_b64 exec, 15
        buffer_store_dwordx4 v[16:19], v11, {sWS}, s61 offen sc1
        buffer_store_dwordx4 v[20:23], v11, {sWS}, s61 offen offset:16 sc1
        s_mov_b64 exec, -1
        L_qkv_ns2:
        """)

        def rdW(s):
            b = WF + 8 * (s % 3)
            a(f"ds_read_b128 {vr(b,4)}, v4 offset:{1792*s}")
            a(f"ds_read_b128 {vr(b+4,4)}, v5 offset:{1792*s}")
        a(f"""
        v_lshlrev_b32 v9, 2, v6
        v_add_u32 v10, {L_CS}, v9
        ds_read_b32 v250, v10
        ds_read_b32 v252, v10 offset:128
        s_lshl_b32 s61, {sT}, 9
        s_add_u32 s75, s75, s61
        s_mov_b32 s64, 0xffff0000
        s_waitcnt lgkmcnt(0)
        """)
        for r in (250, 252):
            a(f"""
            v_and_b32 v9, s64, v{r}
            v_sub_f32 v10, v{r}, v9
            v_cvt_pk_bf16_f32 v{r}, v9, v9
            v_cvt_pk_bf16_f32 v{r+1}, v10, 0
            """)
        rdW(0)
        rdW(1)
        def swap(s):
            x = XF + 4 * s
            a(f"s_waitcnt vmcnt({min(35 - s, WIN - 1)})")
            a(f"v_permlane16_swap_b32 v{x}, v{x+2}")
            a(f"v_permlane16_swap_b32 v{x+1}, v{x+3}")
        swap(0)
        for s in range(36):
            x, b = XF + 4 * s, WF + 8 * (s % 3)
            if s % 9 == 0 and 'noprio' not in EXP:
                a(f"s_setprio {3 - s // 9}")
            npc = (64 - WQ1) // 4
            if 2 * s < npc and WQ1 < 63:
                L = self.lab()
                a(f"s_cmp_eq_u32 s87, 0\ns_cbranch_scc1 {L}")
                for j in range(2 * s, min(2 * s + 2, npc)):
                    if j == npc - 1:
                        a(f"s_cmp_eq_u32 {sW}, 7\ns_cbranch_scc1 {L}")
                    a(f"s_add_u32 m0, s88, {L_WQ + 4096*j}\ns_add_u32 s86, s87, {4096*j}")
                    a(f"buffer_load_dwordx4 v8, {sWS}, s86 offen sc1 lds")
                a(f"{L}:")
            if s == WQ1 * 1024 // 1792 - 2 and WQ1 < 63:
                L = self.lab()
                a(f"s_cmp_lg_u32 {sLayer}, 0\ns_cbranch_scc1 {L}\ns_barrier\n{L}:")
            if s + WIN < 36:
                ldx(s + WIN)
            if s + 1 < 36:
                swap(s + 1)
            a(f"s_waitcnt lgkmcnt({2 if s + 1 < 36 else 0})")
            if 'nomfma' not in EXP or s == 0:
                a(f"v_mfma_f32_32x32x16_bf16 {vr(D0,16)}, {vr(b,4)}, {vr(x,4)}, {vr(D0,16) if s else 0}")
                a(f"v_mfma_f32_32x32x16_bf16 {vr(D1,16)}, {vr(x,4)}, {vr(b+4,4)}, {vr(D1,16) if s else 0}")
            if s + 2 < 36:
                rdW(s + 2)
            if s == 20:
                a(f"buffer_load_dwordx4 v[10:13], v53, {sWS}, s75 offen sc1")
            if s == 31:
                Lp, Ld = self.lab("Ls"), self.lab("Lsd")
                a(f"""
                s_mov_b32 s96, {SPIN_MAX}
                {Lp}:
                v_cmp_eq_u64 vcc, {sTag}, v[12:13]
                s_cmp_eq_u64 vcc, exec
                s_cbranch_scc1 {Ld}
                buffer_load_dwordx4 v[10:13], v53, {sWS}, s75 offen sc1
                s_sub_u32 s96, s96, 1
                s_cmp_lg_u32 s96, 0
                s_waitcnt vmcnt(0)
                s_cbranch_scc1 {Lp}
                """)
                self.timeout_mark(9, 12)
                a(f"""
                {Ld}:
                v_mul_f32 v12, {f32hex(C_SCALE)}, v11
                ds_write_b32 v60, v11
                ds_write_b32 v60, v12 offset:128
                """)
                for g in range(4):
                    a(f"ds_read_b128 {vr(RS+4*g,4)}, v61 offset:{32*g}")
                a("""
                s_mov_b32 s62, -1
                s_mov_b32 s63, 0
                v_cndmask_b32 v10, 0, v10, s[62:63]
                v_and_b32 v13, s64, v10
                v_sub_f32 v14, v10, v13
                v_cvt_pk_bf16_f32 v14, v13, v14
                v_cvt_pk_bf16_f32 v15, v13, 0
                """)
        self.stamp(6)
        KF, VF = 112, 120
        R = self.R
        a(f"""
        s_mov_b32 s62, 0xfffff
        s_mov_b32 s63, 0xfffff
        v_mfma_f32_32x32x8bf16_1k {vr(D1,16)}, v[14:15], v[252:253], {vr(D1,16)}
        v_mfma_f32_32x32x8bf16_1k {vr(D0,16)}, v[250:251], v[14:15], {vr(D0,16)}
        s_mov_b32 s66, 0xf00000
        s_mov_b32 s67, 0xf00000
        """)
        for i in range(16):
            a(f"v_mov_b32 v{R.O+i}, 0")
        a("s_waitcnt lgkmcnt(0)")
        for i in range(16):
            a(f"v_mul_f32 v{D1+i}, v{RS+i}, v{D1+i}")
        for i in range(8):
            a(f"v_cvt_pk_bf16_f32 v{VF+i}, v{D1+2*i}, v{D1+2*i+1}")
        a("s_mov_b64 exec, s[66:67]")
        assert L_OWN == 0
        for i in range(8):
            g, r = i >> 1, 2 * (i & 1)
            off = 64 * (g >> 1) + 16 * (g & 1) + 4 * r
            a(f"ds_write_b16 v57, v{VF+i} offset:{off}")
            a(f"ds_write_b16_d16_hi v57, v{VF+i} offset:{off+4}")
        a("s_mov_b64 exec, -1")
        a(f"ds_read_b32 v63, v59\nds_read_b32 v{R.Qr}, v58\ns_mov_b32 s66, 0xc0000\ns_mov_b32 s67, 0xc0000")
        for i in range(8):
            a(f"v_cndmask_b32 v{VF+i}, v{VF+i}, v62, s[66:67]")
        a(f"""
        s_mov_b64 exec, s[62:63]
        buffer_store_dwordx4 {vr(VF,4)}, v55, {sWS}, s89 offen sc1
        buffer_store_dwordx4 {vr(VF+4,4)}, v55, {sWS}, s89 offen offset:640 sc1
        s_mov_b64 exec, -1
        """)
        for i in range(8, 16):
            a(f"v_mul_f32 v{D0+i}, v11, v{D0+i}")
        for i in range(4):
            a(f"v_cvt_pk_bf16_f32 v{KF+i}, v{D0+8+2*i}, v{D0+9+2*i}")
        a(f"""
        buffer_store_dwordx4 {vr(KF,4)}, v54, {sWS}, s89 offen sc1
        s_waitcnt lgkmcnt(0)
        s_mov_b32 exec_hi, 0
        buffer_store_dword v63, v59, {sWS}, s89 offen sc1
        s_mov_b64 exec, s[62:63]
        ds_write_b128 v55, {vr(VF,4)} offset:{L_OWN}
        ds_write_b128 v55, {vr(VF+4,4)} offset:{L_OWN+640}
        s_mov_b64 exec, -1
        ds_write_b128 v54, {vr(KF,4)} offset:{L_OWN}
        """)
        for i in range(8):
            a(f"v_mul_f32 v{D0+i}, v12, v{D0+i}")
        for i in range(4):
            a(f"v_cvt_pk_bf16_f32 v{R.Q+i}, v{D0+2*i}, v{D0+1+2*i}")
        a(f"v_mov_b32 v{R.aV}, v56\ns_waitcnt lgkmcnt(0)")
        self.stamp(7)

    class Regs:
        S = [128, 160]
        O = 192
        Q = 208
        Qr = 212
        K = [8, 16]
        Kr = [24, 26]
        V = [28, 44]
        idx, aK, aR, aV = 214, 215, 216, 217

    def attention(self):
        a, R = self.a, self.R
        slot = lambda blk: L_OWN if blk == 0 else L_RING + ((blk - 2) % 3) * KV_B
        aK0, aR0, aV0 = 218, 219, 220

        def rd(kind, u, i=0):
            blk, dt = u >> 2, u & 3
            own = blk == 0
            base = slot(blk) - (0 if own else L_RING)
            buf = u & 1
            if kind == "R":
                return f"ds_read_b32 v{R.Kr[buf]}, v{aR0 if own else R.aR} offset:{base + KV_R + 256*dt}"
            if kind == "K":
                return f"ds_read_b128 {vr(R.K[buf]+4*i,4)}, v{aK0 if own else R.aK} offset:{base + 2048*dt + 1024*i}"
            return f"ds_read_b128 {vr(R.V[buf]+4*i,4)}, v{aV0 if own else R.aV} offset:{base + KV_V + 2560*dt + 640*i}"

        def m4(sb, kb):
            a(f"v_mfma_f32_32x32x4bf16_1k {vr(R.S[sb],32)}, {vr(R.Kr[kb],2)}, {vr(R.Qr,2)}, 0")

        def mf(sb, kb, hi):
            d = vr(R.S[sb] + 16 * hi, 16)
            a(f"v_mfma_f32_32x32x16_bf16 {d}, {vr(R.K[kb]+4*hi,4)}, {vr(R.Q,4)}, {d}")

        def sm(sb, vb, g):
            a(f"v_smfmac_f32_32x32x32_bf16 {vr(R.O,16)}, {vr(R.V[vb]+4*g,4)}, {vr(R.S[sb]+8*g,8)}, v{R.idx}")

        def call_try():
            a("s_call_b64 s[76:77], L_try")

        def try_body():
            Ln, Lr = self.lab(), self.lab()
            a(f"""
            L_try:
            .reset_waits
            s_waitcnt vmcnt(0)
            v_cmp_eq_u64 vcc, {sTag}, v[6:7]
            s_lshr_b64 s[100:101], vcc, 1
            s_and_b64 vcc, vcc, s[100:101]
            s_lshr_b64 s[100:101], vcc, 2
            s_and_b64 vcc, vcc, s[100:101]
            s_lshr_b64 s[100:101], vcc, 4
            s_and_b64 vcc, vcc, s[100:101]
            s_and_b64 s[100:101], vcc, s[90:91]
            {Ln}:
            """)
            if 'fixorder' in EXP:
                a(f"""
                s_add_u32 s60, {sX}, s62
                s_add_u32 s60, s60, 1
                s_and_b32 s60, s60, 7
                s_lshl_b32 s60, s60, 3
                s_bitcmp1_b64 s[100:101], s60
                s_cbranch_scc0 {Lr}
                """)
            else:
                a(f"s_cbranch_scc0 {Lr}\ns_ff1_i32_b64 s60, s[100:101]")
            a(f"""
            s_bitset0_b64 s[100:101], s60
            s_bitset0_b64 s[90:91], s60
            s_lshr_b32 s60, s60, 3
            s_add_u32 s60, s60, s69
            s_mul_i32 s60, s60, {KV_B}
            s_add_u32 s60, s60, {W_KV}
            s_mul_i32 s63, s62, {slot(1) - slot(2)}
            s_sub_u32 s63, {slot(1)}, s63
            """)
            for i in range(19):
                a(f"s_add_u32 m0, s63, {1024*i}")
                a(f"s_add_u32 s86, s60, {1024*i}")
                a(f"buffer_load_dwordx4 v{aK0}, {sWS}, s86 offen sc1 lds")
            a(f"""
            s_add_u32 s62, s62, 1
            s_cmp_ge_u32 s62, 2
            s_cbranch_scc1 L_try_ret
            s_cmp_lg_u64 s[100:101], 0
            s_branch {Ln}
            {Lr}:
            buffer_load_dwordx2 v[6:7], v4, {sWS}, s61 offen sc1
            L_try_ret:
            s_setpc_b64 s[76:77]
            """)
        self.try_body = try_body

        def try_until(n):
            L, Ld = self.lab(), self.lab()
            a(f"""
            s_mov_b32 s96, {SPIN_MAX}
            {L}:
            s_cmp_ge_u32 s62, {n}
            s_cbranch_scc1 {Ld}
            """)
            call_try()
            a(f"""
            s_sub_u32 s96, s96, 1
            s_cmp_lg_u32 s96, 0
            s_cbranch_scc1 {L}
            """)
            self.timeout_mark(5, 228)
            a(f"{Ld}:")

        def on_wave(w, fn):
            if 'nofetch' in EXP:
                return
            L = self.lab()
            a(f"s_cmp_lg_u32 {sW}, {w}\ns_cbranch_scc1 {L}\ns_setprio 3")
            fn()
            a(f"{L}:")

        a(f"""
        v_lshlrev_b32 v{aK0}, 4, v2
        v_lshlrev_b32 v{aR0}, 2, v2
        v_mov_b32 v{aV0}, v{R.aV}
        v_add_u32 v{R.aK}, {L_RING}, v{aK0}
        v_add_u32 v{R.aR}, {L_RING}, v{aR0}
        v_add_u32 v{R.aV}, {L_RING}, v{aV0}
        v_mov_b32 v{R.idx}, 0xdddddddd
        v_mov_b32 v{R.Qr+1}, 0
        v_mov_b32 v{R.Kr[0]+1}, 0
        v_mov_b32 v{R.Kr[1]+1}, 0
        s_add_u32 s70, s69, {sX}
        s_lshl_b32 s70, s70, 3
        s_add_u32 s70, s70, {sW}
        s_lshl_b32 s70, s70, 6
        s_add_u32 s70, s70, {W_F5}
        """)
        a(f"""
        s_lshl_b32 s83, {sW}, 10
        s_and_b32 s84, {sJ}, 7
        s_mul_i32 s84, s84, {WO_B}
        s_add_u32 s84, s84, {W_WO}
        s_add_u32 s84, s84, s83
        v_mov_b32 v222, s28
        v_mov_b32 v223, s29
        v_mov_b32 v224, 0
        """)
        a("s_barrier")

        def publish():
            a(f"""
            s_waitcnt vmcnt(0)
            s_mov_b64 exec, 1
            buffer_store_dwordx2 v[222:223], v224, {sWS}, s70 offen sc1
            s_mov_b64 exec, -1
            """)

        def seg_start(u):
            for l in (rd("R", u), rd("K", u, 0), rd("K", u, 1), rd("V", u, 0), rd("V", u, 1), rd("R", u + 1), rd("K", u + 1, 0),
                      rd("V", u, 2), rd("K", u + 1, 1), rd("V", u, 3)):
                a(l)

        def seg_qk():
            a("s_waitcnt lgkmcnt(7)")
            m4(0, 0)
            a("s_nop 15\ns_nop 1")
            mf(0, 0, 0)
            mf(0, 0, 1)
            a("s_nop 10")

        def piece(src, lds, off, maxw=8):
            if 'nofetch' in EXP:
                return
            L = self.lab()
            if maxw < 8:
                a(f"s_cmp_ge_u32 {sW}, {maxw}\ns_cbranch_scc1 {L}")
            a(f"s_add_u32 m0, s83, {lds + off}\ns_add_u32 s86, {src}, {off}")
            a(f"buffer_load_dwordx4 v{aK0}, {sWS}, s86 offen sc1 lds")
            if maxw < 8:
                a(f"{L}:")

        def poll_all():
            a(f"""
            s_lshl_b32 s61, s69, 9
            s_add_u32 s61, s61, {W_F5}
            v_lshlrev_b32 v4, 6, v2
            v_min_u32 v5, 17, v2
            v_lshlrev_b32 v5, 6, v5
            s_mov_b32 s60, {W_F3 + 72*64}
            """)
            self.poll([(4, "s61", 0), (5, "s60", 0)], 60, 5)

        seg_start(0)
        L = self.lab()
        a(f"s_cmp_lt_u32 {sW}, 4\ns_cbranch_scc1 {L}")
        publish()
        a(f"s_cmp_lg_u32 {sLayer}, 0\ns_cbranch_scc1 {L}\ns_cmp_ge_u32 {sJ}, 18\ns_cbranch_scc1 {L}")
        for i in range(8):
            a(f"buffer_store_dwordx2 {vr(232+2*i,2)}, v248, {sWS}, s79 offen sc1")
            a(f"s_add_u32 s79, s79, {2*36864}")
        a(f"{L}:")
        seg_qk()
        self.stamp(8)
        for u in range(32):
            P = u & 1
            N = P ^ 1
            end = 4 if u < 4 else 32
            first = u in (0, 4)
            last = u == end - 1
            e = lambda i, j: [a(f"v_exp_f32 v{R.S[P]+k}, v{R.S[P]+k}") for k in range(i, j)]
            k2 = u + 2 < end
            v1 = u + 1 < end
            blk, dt = u >> 2, u & 3
            hook = {}
            if u == PUB_AT:
                L = self.lab()
                a(f"s_cmp_ge_u32 {sW}, 4\ns_cbranch_scc1 {L}")
                publish()
                a(f"""
                s_cmp_lg_u32 {sW}, 0
                s_cbranch_scc1 {L}
                s_mov_b32 s62, 0
                s_mov_b32 s90, 0x01010101
                s_mov_b32 s91, 0x01010101
                s_lshl_b32 s60, {sX}, 3
                s_bitset0_b64 s[90:91], s60
                s_lshl_b32 s61, s69, 9
                s_add_u32 s61, s61, {W_F5}
                v_lshlrev_b32 v4, 6, v2
                buffer_load_dwordx2 v[6:7], v4, {sWS}, s61 offen sc1
                {L}:
                """)
            if u in TRY_AT:
                L = self.lab()
                a(f"s_cmp_lg_u32 {sW}, 0\ns_cbranch_scc1 {L}\ns_cmp_ge_u32 s62, 2\ns_cbranch_scc1 {L}")
                call_try()
                a(f"{L}:")
            if u == 4:
                L0, L1 = self.lab(), self.lab()
                a(f"s_cmp_lg_u32 {sW}, 0\ns_cbranch_scc1 {L1}")
                try_until(1)
                a(f"{L1}:")
                self.out_setup()
                L1 = self.lab()
                a(f"""
                s_cmp_lg_u32 {sW}, 0
                s_cbranch_scc1 {L0}
                s_cmp_lg_u32 s62, 2
                s_cbranch_scc1 {L0}
                s_waitcnt vmcnt(19)
                s_branch {L1}
                {L0}:
                s_waitcnt vmcnt(0)
                {L1}:
                s_barrier
                """)
                self.stamp(14)
                seg_start(4)
                L0, L1 = self.lab(), self.lab()
                a(f"s_cmp_lg_u32 {sW}, 0\ns_cbranch_scc1 {L0}\ns_setprio 3")
                try_until(2)
                a(f"""
                {L1}:
                v_mov_b32 v4, {L_REM}
                v_mov_b32 v6, s90
                v_mov_b32 v7, s91
                ds_write_b64 v4, v[6:7]
                s_waitcnt lgkmcnt(0)
                {L0}:
                """)
                L = self.lab()
                a(f"""
                s_cmp_lt_u32 {sW}, 4
                s_cbranch_scc1 {L}
                s_cmp_lg_u32 {sLayer}, 0
                s_cbranch_scc1 {L}
                s_cmp_ge_u32 {sJ}, 18
                s_cbranch_scc1 {L}
                s_mov_b64 exec, 1
                buffer_store_dwordx2 v[222:223], v224, {sWS}, s80 offen sc1
                s_mov_b64 exec, -1
                {L}:
                """)
                on_wave(6, poll_all)
                seg_qk()
            if 1 <= blk < 7 and dt == 2 and 'nobar' not in EXP:
                a("s_waitcnt vmcnt(0)\ns_barrier")
                if blk == 3:
                    L = self.lab()
                    a(f"s_cmp_ge_u32 {sW}, 4\ns_cbranch_scc1 {L}\nv_cmp_ne_u64 vcc, {sTag}, v[74:75]\ns_cmp_eq_u64 vcc, 0\ns_cbranch_scc1 {L}")
                    self.poll([(72, "s78", 0)], 74, 10)
                    a(f"{L}:")
                if blk + 2 < 8:
                    if blk == 1 and 'fixorder' not in EXP:
                        a(f"""
                        v_mov_b32 v4, {L_REM}
                        ds_read_b64 v[6:7], v4
                        s_waitcnt lgkmcnt(0)
                        v_readfirstlane_b32 s90, v6
                        v_readfirstlane_b32 s91, v7
                        """)
                    if 'fixorder' in EXP:
                        a(f"s_add_u32 s85, {sX}, {blk+2}\ns_and_b32 s85, s85, 7")
                    else:
                        a("s_ff1_i32_b64 s85, s[90:91]\ns_bitset0_b64 s[90:91], s85\ns_lshr_b32 s85, s85, 3")
                    a(f"""
                    s_add_u32 s85, s85, s69
                    s_mul_i32 s85, s85, {KV_B}
                    s_add_u32 s85, s85, {W_KV}
                    s_add_u32 s85, s85, s83
                    """)
            if 1 <= blk < 7 and dt >= 2:
                src, lds, o = ("s85", slot(blk + 2), 0) if blk < 6 else ("s84", L_WO, 36 * 1024)
                if dt == 2:
                    hook[0] = lambda: piece(src, lds, o)
                    hook[1] = lambda: piece(src, lds, o + 8192)
                else:
                    hook[0] = lambda: piece(src, lds, o + 16384, 3)
                    if blk < 6:
                        hook[1] = lambda: piece("s84", L_WO, 8192 * (blk - 1), 8 if blk < 5 else 4)
            if u == 12:
                def yflag():
                    L = self.lab()
                    a(f"s_cmp_ge_u32 {sW}, 4\ns_cbranch_scc1 {L}\nbuffer_load_dwordx2 v[74:75], v72, {sWS}, s78 offen sc1\n{L}:")
                hook[0] = yflag
            if u == 16:
                def resid():
                    L = self.lab()
                    a(f"s_cmp_ge_u32 {sW}, 4\ns_cbranch_scc1 {L}\ns_add_u32 s60, s67, s68\ns_add_u32 s61, s67, {W_Y}")
                    for ft in range(5):
                        va = 64 if ft == 4 else 63
                        a(f"buffer_load_dwordx2 {vr(76+2*ft,2)}, v{va}, {sWS}, s60 offen sc1")
                        a(f"buffer_load_dwordx2 {vr(86+2*ft,2)}, v{va}, {sWS}, s61 offen sc1")
                        if ft < 4:
                            a("s_add_u32 s60, s60, 1024\ns_add_u32 s61, s61, 1024")
                    a(f"{L}:")
                hook[0] = resid
            H = lambda k: hook.get(k, lambda: None)()
            if 'noprio' not in EXP and u >= 4:
                a(f"s_setprio {3 - ((u + 2) & 3)}")
            e(0, 2)
            if not first:
                sm(N, N, 3)
            if k2:
                a(rd("R", u + 2))
            e(2, 5)
            a(f"s_waitcnt lgkmcnt({2 if last else 3 + (1 if k2 else 0)})")
            if not last:
                m4(N, N)
            if v1:
                a(rd("V", u + 1, 0))
            H(0)
            e(5, 13)
            sm(P, P, 0)
            if v1:
                a(rd("V", u + 1, 1))
            e(13, 18)
            sm(P, P, 1)
            if k2:
                a(rd("K", u + 2, 0))
            e(18, 22)
            if not last:
                mf(N, N, 0)
            if v1:
                a(rd("V", u + 1, 2))
            H(1)
            e(22, 26)
            a(f"s_waitcnt lgkmcnt({(2 if k2 else 0) + (3 if v1 else 0)})")
            sm(P, P, 2)
            if k2:
                a(rd("K", u + 2, 1))
            e(26, 29)
            if not last:
                mf(N, N, 1)
            if v1:
                a(rd("V", u + 1, 3))
            e(29, 32)
            if last:
                a("s_nop 1")
                sm(P, P, 3)
        self.stamp(9)
        a("s_setprio 0")
        O = R.O
        a(f"""
        s_add_u32 s60, s71, {sJ}
        s_lshl_b32 s60, s60, 6
        s_add_u32 s70, s60, {W_F6}
        s_lshl_b32 s61, s71, 6
        s_add_u32 s83, s61, {W_F6}
        s_mov_b32 s72, 0
        L_att_norm:
        s_nop 5
        v_mov_b32 v10, v{O+10}
        v_mov_b32 v11, v{O+10}
        v_add_f32 v12, abs(v{O}), abs(v{O+1})
        v_add_f32 v13, abs(v{O+2}), abs(v{O+3})
        v_permlane32_swap_b32 v10, v11
        v_add_f32 v12, v12, abs(v{O+4})
        v_add_f32 v13, v13, abs(v{O+5})
        v_add_f32 v12, v12, abs(v{O+6})
        v_add_f32 v13, v13, abs(v{O+7})
        v_add_f32 v12, v12, abs(v{O+8})
        v_add_f32 v13, v13, abs(v{O+9})
        v_add_f32 v12, v12, v13
        v_rcp_f32 v11, v10
        v_cmp_le_f32 vcc, {f32hex(2.0**-100)}, v10
        v_cmp_ge_f32 s[94:95], {"s73"}, v10
        v_cmp_ge_f32 s[100:101], {"s74"}, v12
        s_nop 0
        s_and_b64 vcc, vcc, s[94:95]
        s_and_b64 vcc, vcc, s[100:101]
        s_cmp_eq_u64 vcc, exec
        s_cbranch_scc1 L_att_ok
        s_cmp_eq_u32 s72, 0
        s_cbranch_scc1 L_att_fallback
        L_att_ok:
        """)
        for i in range(10):
            a(f"v_mul_f32 v{O+i}, v11, v{O+i}")
        for i in range(5):
            a(f"v_cvt_pk_bf16_f32 v{12+i}, v{O+2*i}, v{O+2*i+1}")
        a(f"""
        buffer_store_dwordx4 v[12:15], v225, {sWS}, s81 offen sc1
        s_mov_b32 exec_hi, 0
        buffer_store_dword v16, v226, {sWS}, s82 offen sc1
        s_mov_b64 exec, -1
        s_cmp_lg_u32 {sW}, 0
        s_waitcnt vmcnt(0)
        s_barrier
        """)

    def out_setup(self):
        a = self.a
        L = self.lab()
        a(f"""
        v_lshrrev_b32 v61, 5, v2
        v_and_b32 v60, 15, v2
        v_lshlrev_b32 v226, 1, v60
        v_bfe_u32 v225, v2, 4, 1
        v_add_u32 v226, v226, v225         ; tau(n)
        s_lshl_b32 s60, {sT}, 5
        v_add_u32 v226, s60, v226
        v_lshlrev_b32 v225, 4, v226
        v_lshl_add_u32 v225, v61, 12, v225
        v_lshlrev_b32 v226, 2, v226
        s_lshl_b32 s60, {sLayer}, 3
        s_add_u32 s60, s60, {sX}
        s_lshl_b32 s71, s60, 5             ; (layer*8+X)*32
        s_add_u32 s60, s71, {sJ}
        s_lshl_b32 s81, s60, 13
        s_add_u32 s81, s81, {W_OM}
        s_lshl_b32 s82, s60, 10
        s_add_u32 s82, s82, {W_OR}
        s_cmp_ge_u32 {sW}, 4
        s_cbranch_scc1 {L}
        v_lshrrev_b32 v61, 4, v2
        s_lshr_b32 s64, {sJ}, 3            ; sub
        s_and_b32 s65, {sJ}, 7             ; slice
        s_lshl_b32 s66, s64, 6
        s_lshl_b32 s67, {sT4}, 4
        s_add_u32 s66, s66, s67
        v_add_u32 v62, s66, v60
        v_lshlrev_b32 v63, 8, v61
        v_lshl_add_u32 v63, v60, 3, v63    ; g*256 + tok*8
        v_mov_b32 v65, 0x7fffffff
        v_cmp_gt_u32 vcc, 2, v61
        s_mul_i32 s60, s65, {18*256}
        s_lshl_b32 s63, {sX}, 3
        s_lshr_b32 s67, s66, 5
        s_add_u32 s63, s63, s67
        s_mul_i32 s63, s63, 36864
        s_add_u32 s60, s60, s63
        s_and_b32 s63, s66, 16
        s_lshl_b32 s63, s63, 3
        s_add_u32 s67, s60, s63
        v_cndmask_b32 v64, v65, v63, vcc
        v_lshrrev_b32 v65, 1, v61
        v_lshlrev_b32 v65, 13, v65
        v_and_b32 v66, 1, v61
        v_lshl_add_u32 v65, v66, 12, v65
        v_lshl_add_u32 v65, v62, 4, v65    ; o main
        v_lshlrev_b32 v66, 12, v61
        v_lshl_add_u32 v66, v62, 2, v66    ; o rem
        v_lshlrev_b32 v67, 4, v2           ; W ft<4
        v_and_b32 v68, 7, v2
        v_lshlrev_b32 v68, 4, v68
        v_lshl_add_u32 v68, v61, 7, v68
        v_add_u32 v68, 4096, v68           ; W ft==4
        v_add_u32 v69, {9*4608}, v67
        v_add_u32 v70, {9*4608}, v68
        v_and_b32 v71, 31, v2
        v_lshlrev_b32 v71, 6, v71          ; flags
        v_min_u32 v72, 17, v2
        v_lshlrev_b32 v72, 8, v72          ; y flags
        s_mul_i32 s78, s65, {18*256}
        s_lshr_b32 s63, {sX}, 1
        s_lshl_b32 s63, s63, 6
        s_add_u32 s78, s78, s63
        s_add_u32 s78, s78, {W_F10}
        {L}:
        """)

    def next_layer(self):
        self.a(f"s_mov_b32 {sLayer}, 1\ns_mov_b32 s68, {W_X3}\ns_mov_b32 s87, 0")
        self.qkv_setup()

    def fetch_wo(self, first, n, va, step=1):
        Ll = self.lab()
        self.a(f"""
        s_and_b32 s60, {sJ}, 7
        s_mul_i32 s60, s60, {WO_B}
        s_add_u32 s60, s60, {W_WO + 1024*first}
        s_add_u32 s61, s60, {1024*n}
        s_mov_b32 m0, {L_WO + 1024*first}
        """)
        if step > 1:
            self.a("s_lshl_b32 s62, s62, 10\ns_add_u32 s60, s60, s62\ns_add_u32 m0, m0, s62\ns_nop 0")
        else:
            self.a("s_nop 0")
        self.a(f"""
        {Ll}:
        buffer_load_dwordx4 v{va}, {sWS}, s60 offen sc1 lds
        s_add_u32 m0, m0, {1024*step}
        s_add_u32 s60, s60, {1024*step}
        s_cmp_lt_u32 s60, s61
        s_cbranch_scc1 {Ll}
        """)

    def fallback(self):
        a, R = self.a, self.R
        S0 = R.S[0]
        a("L_att_fallback:")
        a(".reset_waits")
        a(f"""
        s_mov_b32 s72, 1
        s_mul_i32 s75, s69, {KV_B}
        s_add_u32 s75, s75, {W_KV}
        v_mov_b32 v221, 0xff7fffff
        s_waitcnt vmcnt(0)
        """)
        for p in range(2):
            Lb = self.lab("Lfb")
            a(f"s_mov_b32 s76, 0\n{Lb}:")
            a(f"""
            s_lshr_b32 s77, s76, 2
            s_and_b32 s78, s76, 3
            s_mul_i32 s77, s77, {KV_B}
            s_add_u32 s77, s77, s75
            s_lshl_b32 s79, s78, 11
            s_add_u32 s79, s79, s77
            buffer_load_dwordx4 {vr(R.K[0]+8,4)}, v218, {sWS}, s79 offen sc1
            buffer_load_dwordx4 {vr(R.K[0]+12,4)}, v218, {sWS}, s79 offen offset:1024 sc1
            s_lshl_b32 s79, s78, 8
            s_add_u32 s79, s79, s77
            s_add_u32 s79, s79, {KV_R}
            buffer_load_dword v{R.Kr[0]}, v219, {sWS}, s79 offen sc1
            """)
            if p:
                a(f"s_mul_i32 s79, s78, 2560\ns_add_u32 s79, s79, s77\ns_add_u32 s79, s79, {KV_V}")
                for i in range(4):
                    a(f"buffer_load_dwordx4 {vr(R.V[0]+4*i,4)}, v220, {sWS}, s79 offen offset:{640*i} sc1")
            a(f"""
            s_waitcnt vmcnt(0)
            v_mfma_f32_32x32x4bf16_1k {vr(S0,32)}, {vr(R.Kr[0],2)}, {vr(R.Qr,2)}, 0
            s_nop 15
            s_nop 3
            v_mfma_f32_32x32x16_bf16 {vr(S0,16)}, {vr(R.K[0]+8,4)}, {vr(R.Q,4)}, {vr(S0,16)}
            v_mfma_f32_32x32x16_bf16 {vr(S0+16,16)}, {vr(R.K[0]+12,4)}, {vr(R.Q,4)}, {vr(S0+16,16)}
            s_nop 15
            """)
            if p == 0:
                for i in range(16):
                    a(f"v_max3_f32 v221, v221, v{S0+2*i}, v{S0+2*i+1}")
            else:
                for i in range(32):
                    a(f"v_sub_f32 v{S0+i}, v{S0+i}, v221")
                for i in range(32):
                    a(f"v_exp_f32 v{S0+i}, v{S0+i}")
                a("s_nop 1")
                for g in range(4):
                    a(f"v_smfmac_f32_32x32x32_bf16 {vr(R.O,16)}, {vr(R.V[0]+4*g,4)}, {vr(S0+8*g,8)}, v{R.idx}")
            a(f"s_add_u32 s76, s76, 1\ns_cmp_lt_u32 s76, 32\ns_cbranch_scc1 {Lb}")
            if p == 0:
                a("v_mov_b32 v227, v221\ns_nop 1\nv_permlane32_swap_b32 v221, v227\ns_nop 1\nv_max_f32 v221, v221, v227")
                for i in range(16):
                    a(f"v_mov_b32 v{R.O+i}, 0")
        a("s_nop 15\ns_branch L_att_norm")

    def outproj(self):
        a = self.a
        OF, ACC, XR, YR = 128, 16, 76, 86
        WF = [36, 200, 220]
        a(f"""
        s_cbranch_scc1 L_op_nf
        s_mov_b64 exec, 1
        buffer_store_dwordx2 v[222:223], v224, {sWS}, s70 offen sc1
        s_mov_b64 exec, -1
        """)
        self.stamp(10)
        a(f"""
        L_op_nf:
        s_cmp_ge_u32 {sW}, 4
        s_cbranch_scc1 L_op_help
        s_mov_b32 s63, 0xffff0000
        """)
        XF = 96
        YF = [116 + i for i in range(12)] + [240 + i for i in range(8)]
        for i in range(10):
            a(f"v_lshlrev_b32 v{XF+2*i}, 16, v{XR+i}")
            a(f"v_and_b32 v{XF+2*i+1}, s63, v{XR+i}")
            a(f"v_lshlrev_b32 v{YF[2*i]}, 16, v{YR+i}")
            a(f"v_and_b32 v{YF[2*i+1]}, s63, v{YR+i}")
        L = self.lab()
        a(f"s_cmp_lg_u32 {sW}, 0\ns_cbranch_scc1 {L}")
        self.poll2([(71, "s83", 0)], 56, 6)
        a(f"""
        {L}:
        s_barrier
        s_lshl_b32 s60, s71, 13
        s_add_u32 s60, s60, {W_OM}
        s_lshl_b32 s61, s71, 10
        s_add_u32 s61, s61, {W_OR}
        """)
        self.stamp(11)
        for s in range(16):
            a(f"buffer_load_dwordx4 {vr(OF+4*s,4)}, v65, {sWS}, s60 offen sc1")
            if s < 15:
                a("s_add_u32 s60, s60, 0x4000")
        for s in range(2):
            for i in range(4):
                a(f"buffer_load_dword v{OF+64+4*s+i}, v66, {sWS}, s61 offen offset:{1024*i} sc1")
            if s == 0:
                a("s_add_u32 s61, s61, 0x4000")

        def rdW(s):
            hi = s >= 9
            out = []
            for ft in range(5):
                va = (69 if hi else 67) if ft < 4 else (70 if hi else 68)
                off = L_WO + 4608 * (s - 9 * hi) + (1024 * ft if ft < 4 else 0)
                out.append(f"ds_read_b128 {vr(WF[s%3]+4*ft,4)}, v{va} offset:{off}")
            return out
        for l in rdW(0) + rdW(1):
            a(l)
        for s in range(18):
            nxt = rdW(s + 2) if s < 16 else []
            a(f"s_waitcnt vmcnt({23-s if s < 16 else (4 if s == 16 else 0)}) lgkmcnt({5 if s < 17 else 0})")
            for ft in range(5):
                d = vr(ACC + 4 * ft, 4)
                a(f"v_mfma_f32_16x16x32_bf16 {d}, {vr(WF[s%3]+4*ft,4)}, {vr(OF+4*s,4)}, {d if s else vr(XF+4*ft,4)}")
                if nxt:
                    a(nxt[ft])
        self.stamp(12)
        XF = ACC
        a(f"""
        s_lshl_b32 s60, {sX}, 2
        s_add_u32 s60, s60, s64
        s_lshl_b32 s60, s60, 13
        s_add_u32 s60, s60, {W_G7}
        s_lshl_b32 s61, {sT4}, 8
        s_add_u32 s60, s60, s61
        s_lshl_b32 s61, s65, 10
        s_add_u32 s61, s61, s60
        v_lshlrev_b32 v4, 4, v60
        v_cmp_gt_u32 vcc, 2, v61
        v_mov_b32 v10, s28
        v_mov_b32 v11, s29
        s_cmp_lg_u32 {sLayer}, 0
        s_cbranch_scc1 L_op_final
        """)
        a(f"v_pk_add_f32 v[12:13], {vr(XF,2)}, {vr(XF+2,2)}\nv_pk_mul_f32 v[14:15], {vr(XF,2)}, {vr(XF,2)}")
        a(f"v_pk_fma_f32 v[14:15], {vr(XF+2,2)}, {vr(XF+2,2)}, v[14:15]")
        for i in range(2, 10):
            if i == 8:
                for j in range(16, 20):
                    a(f"v_cndmask_b32 v{XF+j}, 0, v{XF+j}, vcc")
            a(f"v_pk_add_f32 v[12:13], v[12:13], {vr(XF+2*i,2)}")
            a(f"v_pk_fma_f32 v[14:15], {vr(XF+2*i,2)}, {vr(XF+2*i,2)}, v[14:15]")
        a("v_add_f32 v8, v12, v13\nv_add_f32 v9, v14, v15")

        def xsum():
            for op in ("v_permlane16_swap_b32", "v_permlane32_swap_b32"):
                a(f"""
                v_mov_b32 v12, v8
                v_mov_b32 v13, v9
                s_nop 1
                {op} v8, v12
                {op} v9, v13
                s_nop 0
                v_add_f32 v8, v8, v12
                v_add_f32 v9, v9, v13
                """)
        xsum()
        a(f"""
        s_mov_b64 exec, 0xffff
        buffer_store_dwordx4 v[8:11], v4, {sWS}, s61 offen sc1
        s_mov_b64 exec, -1
        v_lshl_add_u32 v4, v61, 10, v4
        s_add_u32 s61, s60, 4096
        """)
        Ld0, Ld1 = self.poll2([(4, "s60", 0), (4, "s61", 0)], 136, 7, width=4)
        a(f"""
        {Ld0}:
        v_add_f32 v8, v136, v140
        v_add_f32 v9, v137, v141
        """)
        xsum()
        self.stats(8, 9, 12, 14, 10)
        a("v_mov_b32 v13, v12\nv_mov_b32 v15, v14")
        a(f"s_add_u32 s60, s67, {W_X3}")
        for ft in range(5):
            for p in range(2):
                x, y, t = XF + 4 * ft + 2 * p, YF[4 * ft + 2 * p], 96 + 4 * ft + 2 * p
                a(f"v_pk_fma_f32 {vr(t,2)}, {vr(x,2)}, v[12:13], v[14:15]")
                a(f"v_pk_fma_f32 {vr(x,2)}, {vr(t,2)}, {vr(y,2)}, {vr(x,2)}")
            a(f"v_cvt_pk_bf16_f32 v{76+2*ft}, v{XF+4*ft}, v{XF+4*ft+1}")
            a(f"v_cvt_pk_bf16_f32 v{77+2*ft}, v{XF+4*ft+2}, v{XF+4*ft+3}")
            a(f"buffer_store_dwordx2 {vr(76+2*ft,2)}, v{64 if ft == 4 else 63}, {sWS}, s60 offen sc1")
            if ft < 4:
                a("s_add_u32 s60, s60, 1024")
        self.next_layer()
        L = self.lab()
        a(f"""
        s_lshl_b32 s60, {sX}, 11
        s_add_u32 s60, s60, {W_F8}
        s_lshl_b32 s61, {sJ}, 6
        s_add_u32 s61, s61, s60
        v_lshlrev_b32 v8, 6, v6
        v_mov_b32 v10, s28
        v_mov_b32 v11, s29
        v_mov_b32 v12, 0
        v_mov_b32 v13, {L_CNT}
        v_mov_b32 v14, 1
        s_waitcnt vmcnt(0)
        s_mov_b64 exec, 1
        ds_add_rtn_u32 v14, v13, v14
        s_waitcnt lgkmcnt(0)
        v_readfirstlane_b32 s3, v14
        s_mov_b64 exec, -1
        s_cmp_lg_u32 s3, 3
        s_cbranch_scc1 {L}
        s_mov_b64 exec, 1
        buffer_store_dwordx2 v[10:11], v12, {sWS}, s61 offen sc1
        s_mov_b64 exec, -1
        """)
        self.poll2([(8, "s60", 0)], 220, 8)
        a(f"{L}:")
        a("s_branch L_next_layer")

        a("L_op_help:")
        a(".reset_waits")
        a(f"s_sub_u32 s62, {sW}, 4\ns_mov_b32 s3, 0\nv_mov_b32 v4, {L_CNT}\nv_mov_b32 v5, 0\nds_write_b32 v4, v5")
        self.fetch_wo(55, 26, 218, step=4)
        a("s_waitcnt vmcnt(0) lgkmcnt(0)\ns_barrier")
        a(f"s_cmp_lg_u32 {sLayer}, 0\ns_cbranch_scc1 L_end")
        self.next_layer()
        a("L_next_layer:")
        if self.stop == "gate2":
            a("s_branch L_end")
        a("s_branch L_qkv")

        a("L_op_final:")
        a(".reset_waits")
        self.srd(sA, "out", NB)
        a(f"""
        s_lshl_b32 s60, {sX}, 8
        v_add_u32 v8, s60, v62
        v_mul_u32_u24 v8, 1152, v8
        v_lshl_add_u32 v8, v61, 3, v8
        v_mov_b32 v11, 0x7fffffff
        v_cmp_gt_u32 vcc, 2, v61
        s_mul_i32 s60, s65, 144
        s_nop 0
        v_cndmask_b32 v9, v11, v8, vcc
        """)
        for ft in range(5):
            a(f"v_cvt_pk_bf16_f32 v{76+2*ft}, v{XF+4*ft}, v{XF+4*ft+1}")
            a(f"v_cvt_pk_bf16_f32 v{77+2*ft}, v{XF+4*ft+2}, v{XF+4*ft+3}")
            a(f"buffer_store_dwordx2 {vr(76+2*ft,2)}, v{9 if ft == 4 else 8}, {sA}, s60 offen offset:{32*ft} {os.environ.get('OUTF', '')}")
        a(f"""
        s_or_b32 s60, s2, {sW}
        s_cmp_lg_u32 s60, 0
        s_cbranch_scc1 L_end
        s_mov_b32 s60, {W_NONCE}
        """)
        self.flag_store("s60", 10)

    def build(self):
        a = self.a
        self.R = G.Regs
        self.prologue()
        self.prep()
        self.finish_if("prep")
        self.conv()
        self.relayout()
        self.colsum()
        self.finish_if("conv")
        a(f"s_mov_b32 s73, {f32hex(2.0**120)}\ns_mov_b32 s74, {f32hex(2.0**120)}")
        self.qkv()
        if self.stop == "qkv":
            a("s_waitcnt vmcnt(0)\ns_branch L_end")
        self.attention()
        self.finish_if("attn")
        self.outproj()
        a("L_end:")
        if self.ts:
            self.stamp(15)
            a(f"""
            s_lshl_b32 s60, s2, 3
            s_add_u32 s60, s60, {sW}
            s_lshl_b32 s60, s60, 8
            s_add_u32 s60, s60, {W_TS}
            v_lshlrev_b32 v4, 2, v2
            buffer_store_dword v255, v4, {sWS}, s60 offen
            """)
            if 'dbgts' in EXP:
                wg = int(os.environ.get("DBGWG", 0))
                a(f"""
                s_cmp_lg_u32 s2, {wg}
                s_cbranch_scc1 L_nodbg
                s_cmp_lg_u32 {sW}, 0
                s_cbranch_scc1 L_nodbg
                v_readlane_b32 s60, v255, 0
                s_nop 3
                v_subrev_u32 v5, s60, v255
                """)
                for n, i in enumerate((16, 1, 2, 3, 4, 5, 7, 8, 9, 11, 13, 21, 24, 25, 27, 31)):
                    a(f"v_readlane_b32 s61, v5, {i}\ns_nop 3\nv_writelane_b32 v6, s61, {n}")
                a(f"s_mov_b64 exec, 0xffff\nglobal_store_dword v4, v6, s[{PTR['dbg']}:{PTR['dbg']+1}]\nL_nodbg:")
        a("s_waitcnt vmcnt(0)")
        a("L_exit:")
        a("s_endpgm")
        self.fallback()
        self.try_body()
        a("L_code_end:")
        lines, added = fix_hazards(a.lines, verbose=True, tag="k")
        errs = check_waits(lines, "k")
        for e in errs:
            print(e)
        lines = [l for l in lines if not l.startswith(".reset_waits")]
        a.lines = lines
        body = a.text().replace("CODE_AFTER", "(L_code_end-L_pc_here)")
        ref = open(f"cdna_kernels/{NAME}.s.ref").read()
        head = ref[:ref.index("; Override launch")]
        txt = head + f"""; @launch grid=(256,1,1) block=(512,1,1) lds={LDS_BYTES}
.amdgcn_target "amdgcn-amd-amdhsa--gfx950"
.text
.globl {NAME}_kernel
.p2align 12
.type {NAME}_kernel,@function
{NAME}_kernel:
""" + body + f""".section .rodata,"a"
.p2align 6
.amdhsa_kernel {NAME}_kernel
  .amdhsa_next_free_vgpr 256
  .amdhsa_next_free_sgpr 102
  .amdhsa_accum_offset 256
  .amdhsa_group_segment_fixed_size 0
  .amdhsa_kernarg_size 96
  .amdhsa_user_sgpr_count 2
  .amdhsa_user_sgpr_kernarg_segment_ptr 1
  .amdhsa_system_sgpr_workgroup_id_x 1
.end_amdhsa_kernel
"""
        return txt, errs


if __name__ == "__main__":
    out = sys.argv[1]
    stop = None
    ts = False
    for x in sys.argv[2:]:
        if x == "ts":
            ts = True
        elif x == "ts2":
            ts = 2
        else:
            stop = x
    txt, errs = G(stop, ts).build()
    open(out, "w").write(txt)
    print("written", out, len(txt), "bytes;", len(errs), "wait errors")
```

```python
import sys
from asmlib import Asm, fix_hazards, check_waits

NAME = "interleave_layers__ssm_conv_h3__softmax_full_mha__prompt"
S, D = 2048, 576
NB = S * D * 2

W_NONCE = 0
W_F1 = 0x1000
W_F3 = 0x5000
W_F2 = 0x6C000
W_F4 = 0x8000
W_F5 = 0x12000
W_F6 = 0x52000
W_F8 = 0x5A000
W_G7 = 0x70000
W_ST0 = 0xB0000
W_CSP = 0x1C0000
W_F10 = 0x110000
W_G9 = 0x100000
W_TS = 0x140000
W_U = 0x210000
W_WQ = 0x500000
W_WO = 0x700000
W_X1 = 0x800000
W_X0 = 0x2000000
W_Y = 0xB00000
W_X3 = 0xE00000
W_KV = 0x1100000
W_OM = 0x1B00000
W_OR = 0x1F00000
W_SIZE = 0x2400000
WQ_B, WO_B, KV_B = 64512, 82944, 19456
KV_V, KV_R = 8192, 18432

L_HC, HC_B = 0, 4160
L_U, U_B = 66560, 4608
L_WO = 0
L_OWN = 0
L_RING = 37632
L_CS = 96000
L_ST = 96256
L_REM = 96256
L_QR = 98304
L_WQ = 99328
L_PK = L_WQ
L_PV = L_WQ + 10240
L_CNT = 98304
L_PX = L_PV + 9216
LDS_BYTES = 163840

sWS = "s[4:7]"
sA, sB, sC, sD_ = "s[8:11]", "s[12:15]", "s[16:19]", "s[20:23]"
sX, sJ, sW, sLayer = "s24", "s25", "s26", "s27"
sT, sT4 = "s30", "s31"
sTag = "s[28:29]"
sP = 32
PTR = dict(q=32, k=34, v=36, sk=38, h=40, dd=42, bx=44, wqkv=46, wo=48, out=50, dbg=52, ws=54)
SPIN_MAX = 400000
PUB_AT = int(__import__('os').environ.get('PUB', 1))
TRY_AT = [int(x) for x in __import__('os').environ.get('TRY', '2,3').split(',')]
WQ1 = int(__import__('os').environ.get('WQ1', 63))

C_SCALE = 18 ** -0.5 * 1.4426950408889634


def f32hex(x):
    import struct
    return "0x%08x" % struct.unpack("<I", struct.pack("<f", x))[0]


def vr(a, n):
    return f"v[{a}:{a+n-1}]" if n > 1 else f"v{a}"


import os
EXP = os.environ.get('EXP', '').split(',') + ['hearly', 'f2first', 'fixorder', 'tmap']


class G:
    def __init__(self, stop=None, ts=False):
        self.a = Asm()
        self.stop = stop
        self.ts = ts
        self.nlab = 0

    def lab(self, p="L"):
        self.nlab += 1
        return f"{p}_{self.nlab}"

    def srd(self, s, ptr, nbytes):
        b = int(s[2:s.index(":")])
        p = PTR[ptr]
        self.a(f"s_mov_b32 s{b}, s{p}\ns_mov_b32 s{b+1}, s{p+1}\ns_mov_b32 s{b+2}, {nbytes}\ns_mov_b32 s{b+3}, 0x20000")

    def stamp(self, i):
        if not self.ts or (self.ts == 2 and i not in (0, 5, 15)):
            return
        self.a(f"s_memrealtime s[98:99]\ns_memtime s[92:93]\ns_lshl_b32 s97, {sLayer}, 4\ns_add_u32 m0, s97, {i}\ns_waitcnt lgkmcnt(0)\nv_writelane_b32 v255, s98, m0\ns_add_u32 m0, m0, 32\ns_nop 0\nv_writelane_b32 v255, s92, m0")

    def flag_store(self, soff, vtmp):
        self.a(f"""
        v_mov_b32 v{vtmp}, s28
        v_mov_b32 v{vtmp+1}, s29
        v_mov_b32 v{vtmp+2}, 0
        s_mov_b64 exec, 1
        buffer_store_dwordx2 {vr(vtmp,2)}, v{vtmp+2}, {sWS}, {soff} offen sc1
        s_mov_b64 exec, -1
        """)

    def poll(self, loads, vt, code, first=0, nap=1):
        a = self.a
        L, Ld = self.lab("Lpoll"), self.lab("Lpolld")
        a(f"s_mov_b32 s96, {SPIN_MAX}")
        if first:
            L1, L1d = self.lab("Lp1"), self.lab("Lp1d")
            va, so, im = loads[0]
            a(f"""
            s_mov_b64 exec, 1
            {L1}:
            buffer_load_dwordx2 {vr(vt,2)}, v{va}, {sWS}, {so} offen offset:{im} sc1
            s_waitcnt vmcnt(0)
            v_cmp_eq_u64 vcc, {sTag}, {vr(vt,2)}
            s_cmp_lg_u64 vcc, 0
            s_cbranch_scc1 {L1d}
            s_sleep {first}
            s_sub_u32 s96, s96, 1
            s_cmp_gt_u32 s96, 1
            s_cbranch_scc1 {L1}
            {L1d}:
            s_mov_b64 exec, -1
            """)
        a(f"{L}:")
        for i, (va, so, im) in enumerate(loads):
            a(f"buffer_load_dwordx2 {vr(vt+2*i,2)}, v{va}, {sWS}, {so} offen offset:{im} sc1")
        a("s_waitcnt vmcnt(0)")
        for i in range(len(loads)):
            if i == 0:
                a(f"v_cmp_ne_u64 vcc, {sTag}, {vr(vt,2)}")
            else:
                a(f"v_cmp_ne_u64 s[94:95], {sTag}, {vr(vt+2*i,2)}\ns_or_b64 vcc, vcc, s[94:95]")
        a(f"""
        s_cmp_eq_u64 vcc, 0
        s_cbranch_scc1 {Ld}
        s_mov_b64 exec, vcc
        """)
        if nap:
            a(f"s_sleep {nap}")
        a(f"""
        s_sub_u32 s96, s96, 1
        s_cmp_lg_u32 s96, 0
        s_cbranch_scc1 {L}
        """)
        self.timeout_mark(code, vt)
        a(f"{Ld}:\ns_mov_b64 exec, -1")

    def poll2(self, loads, vt, code, width=2, first=0):
        a = self.a
        n = len(loads)
        if width == 2 and 'pipe' not in EXP:
            return self.poll(loads, vt, code, first=first or int(os.environ.get('FIRST', 0)), nap=int(os.environ.get('NAP', 0)))
        L, Ld0, Ld1, Ld = self.lab("Lq"), self.lab("Lq0"), self.lab("Lq1"), self.lab("Lqd")
        op = "buffer_load_dwordx2" if width == 2 else "buffer_load_dwordx4"

        def issue(k):
            for i, (va, so, im) in enumerate(loads):
                a(f"{op} {vr(vt+width*(n*k+i),width)}, v{va}, {sWS}, {so} offen offset:{im} sc1")

        def check(k, tgt):
            a(f"s_waitcnt vmcnt({n})")
            for i in range(n):
                r = vr(vt + width * (n * k + i) + width - 2, 2)
                if i == 0:
                    a(f"v_cmp_ne_u64 vcc, {sTag}, {r}")
                else:
                    a(f"v_cmp_ne_u64 s[94:95], {sTag}, {r}\ns_or_b64 vcc, vcc, s[94:95]")
            a(f"s_cmp_eq_u64 vcc, 0\ns_cbranch_scc1 {tgt}")
            if width == 2:
                a("s_mov_b64 exec, vcc")
        a(f"s_mov_b32 s96, {SPIN_MAX}")
        if first:
            L1, L1d = self.lab("Lp1"), self.lab("Lp1d")
            va, so, im = loads[0]
            a(f"""
            s_mov_b64 exec, 1
            {L1}:
            buffer_load_dwordx2 {vr(vt,2)}, v{va}, {sWS}, {so} offen offset:{im} sc1
            s_waitcnt vmcnt(0)
            v_cmp_eq_u64 vcc, {sTag}, {vr(vt,2)}
            s_cmp_lg_u64 vcc, 0
            s_cbranch_scc1 {L1d}
            s_sleep {first}
            s_sub_u32 s96, s96, 1
            s_cmp_gt_u32 s96, 1
            s_cbranch_scc1 {L1}
            {L1d}:
            s_mov_b64 exec, -1
            """)
        if 'pipe' not in EXP and 'gpipe' not in EXP:
            a(f"{L}:")
            issue(0)
            n0, n = n, 0
            a("s_waitcnt vmcnt(0)")
            for i in range(n0):
                r = vr(vt + width * i + width - 2, 2)
                a(f"v_cmp_ne_u64 vcc, {sTag}, {r}" if i == 0 else f"v_cmp_ne_u64 s[94:95], {sTag}, {r}\ns_or_b64 vcc, vcc, s[94:95]")
            a(f"s_cmp_eq_u64 vcc, 0\ns_cbranch_scc1 {Ld0}\n{'s_sleep ' + os.environ['GNAP'] if os.environ.get('GNAP') else ''}\ns_sub_u32 s96, s96, 1\ns_cmp_lg_u32 s96, 0\ns_cbranch_scc1 {L}")
            self.timeout_mark(code, vt)
            return Ld0, Ld1
        issue(0)
        a(f"{L}:")
        issue(1)
        check(0, Ld0 if width > 2 else Ld)
        issue(0)
        check(1, Ld1 if width > 2 else Ld)
        a(f"""
        s_sub_u32 s96, s96, 1
        s_cmp_lg_u32 s96, 0
        s_cbranch_scc1 {L}
        s_waitcnt vmcnt(0)
        """)
        self.timeout_mark(code, vt)
        if width > 2:
            return Ld0, Ld1
        a(f"{Ld}:\ns_mov_b64 exec, -1")

    def timeout_mark(self, code, vt):
        self.a(f"""
        v_mov_b32 v{vt}, {code}
        v_mov_b32 v{vt+1}, 0
        global_store_dword v{vt+1}, v{vt}, s[{PTR['dbg']}:{PTR['dbg']+1}]
        s_waitcnt vmcnt(0)
        """)

    def finish_if(self, name):
        if self.stop == name:
            self.a("s_branch L_end")

    def prologue(self):
        a = self.a
        a(f"""
        s_cmp_ge_u32 s2, 256
        s_cbranch_scc1 L_exit
        s_load_dwordx16 s[32:47], s[0:1], 0
        s_load_dwordx8 s[48:55], s[0:1], 64
        s_getpc_b64 s[16:17]
        L_pc_here:
        s_and_b32 s17, s17, 0xffff
        s_mov_b32 s18, CODE_AFTER
        s_mov_b32 s19, 0x20000
        s_lshr_b32 s3, s2, 3
        s_lshl_b32 s3, s3, 10
        v_lshlrev_b32 v1, 7, v0
        v_cmp_gt_u32 vcc, 8, v0
        v_bfrev_b32 v2, -2
        v_cndmask_b32 v1, v2, v1, vcc
        buffer_load_dword v254, v1, {sC}, s3 offen
        v_lshrrev_b32 v1, 6, v0
        v_and_b32 v2, 63, v0
        s_and_b32 {sX}, s2, 7
        v_readfirstlane_b32 {sW}, v1
        s_lshr_b32 {sJ}, s2, 3
        s_mov_b32 {sLayer}, 0
        s_add_u32 {sT}, {sW}, {sJ}
        s_and_b32 {sT4}, {sT}, 3
        s_and_b32 {sT}, {sT}, 7
        s_waitcnt lgkmcnt(0)
        """)
        self.srd(sWS, "ws", W_SIZE)
        a("v_mov_b32 v248, 0")
        if self.ts:
            a("v_mov_b32 v255, 0")

    def div9(self, vidx, vrow, vj):
        self.a(f"""
        v_mul_hi_u32 v{vrow}, v{vidx}, s64
        v_mul_u32_u24 v{vj}, 9, v{vrow}
        v_sub_u32 v{vj}, v{vidx}, v{vj}
        """)

    def prep(self):
        a = self.a
        HR = 128
        self.stamp(0)
        a(f"s_load_dwordx2 {sTag}, s[54:55], {W_NONCE}")
        self.srd(sA, "k", NB)
        self.srd(sB, "v", NB)
        a(f"""
        s_mov_b32 s64, 0x1c71c71d
        """)
        if 'tmap' in EXP:
            a(f"s_and_b32 s84, {sJ}, 7\ns_lshr_b32 s85, {sJ}, 3\ns_lshl_b32 s60, {sX}, 2\ns_add_u32 s85, s85, s60")
        else:
            a(f"s_mov_b32 s84, {sX}\ns_mov_b32 s85, {sJ}")
        a(f"""
        s_mul_i32 s60, s85, {64*1152}
        s_mul_i32 s61, s84, 144
        s_add_u32 s60, s60, s61
        s_sub_u32 s61, s60, {4*1152}
        """)
        self.div9(0, 3, 4)
        a(f"""
        v_mul_u32_u24 v3, 1152, v3
        v_lshl_add_u32 v5, v4, 4, v3
        v_add_u32 v6, s61, v5
        s_lshl_b32 s62, {sW}, 10
        s_add_u32 m0, s62, {L_PK}
        v_add_u32 v7, 512, v0
        buffer_load_dwordx4 v6, {sA}, 0 offen lds
        s_add_u32 m0, s62, {L_PV}
        s_cmp_ge_u32 {sW}, 3
        buffer_load_dwordx4 v5, {sB}, s60 offen lds
        s_cbranch_scc1 L_prep_d3
        s_cmp_eq_u32 {sW}, 2
        s_cbranch_scc1 L_prep_d2
        """)
        self.div9(7, 3, 4)
        a(f"""
        v_mul_u32_u24 v3, 1152, v3
        v_lshl_add_u32 v5, v4, 4, v3
        v_add_u32 v6, s61, v5
        s_add_u32 m0, s62, {L_PK+8192}
        s_nop 0
        buffer_load_dwordx4 v6, {sA}, 0 offen lds
        s_branch L_prep_d3
        L_prep_d2:
        v_add_u32 v7, 512, v2
        """)
        self.div9(7, 3, 4)
        a(f"""
        v_mul_u32_u24 v3, 1152, v3
        v_lshl_add_u32 v5, v4, 4, v3
        s_mov_b32 m0, {L_PV+8192}
        s_nop 0
        buffer_load_dwordx4 v5, {sB}, s60 offen lds
        L_prep_d3:
        s_cmp_ge_u32 {sW}, 5
        s_cbranch_scc1 L_prep_other
        """)
        self.sk_load()
        if 'hearly' in EXP:
            a(f"s_cmp_lg_u32 {sW}, 4\ns_cbranch_scc1 L_prep_k0\ns_cmp_ge_u32 {sJ}, 18\ns_cbranch_scc1 L_prep_k0")
            self.h_issue(HR)
            a("s_waitcnt vmcnt(8)\ns_branch L_prep_k1\nL_prep_k0:\ns_waitcnt vmcnt(0)\nL_prep_k1:")
        else:
            a("s_waitcnt vmcnt(0)")
        a(f"""
        v_bfe_u32 v5, v2, 2, 2
        v_lshl_add_u32 v5, v4, 3, v5      ; 8G + j
        v_mul_u32_u24 v5, 144, v5
        v_and_b32 v6, 3, v2
        v_lshl_add_u32 v5, v6, 3, v5
        s_lshl_b32 s62, {sW}, 5
        s_add_u32 s62, s62, {L_PK}
        v_add_u32 v5, s62, v5
        s_waitcnt lgkmcnt(0)
        """)
        self.stamp(19)
        a("s_barrier")
        self.stamp(16)
        KR, VR_, KF, AC, WT = 12, 24, 32, 56, 72
        for o in range(2):
            for i in range(3):
                a(f"ds_read_b64_tr_b16 {vr(KR+6*o+2*i,2)}, v5 offset:{4608*o+576*i}")
            for i in range(2):
                a(f"ds_read_b64_tr_b16 {vr(VR_+4*o+2*i,2)}, v5 offset:{L_PV-L_PK+4608*o+576*i}")
        a(f"""
        s_mov_b32 s65, 0xffff0000
        v_lshlrev_b32 v{WT}, 16, v10
        v_and_b32 v{WT+1}, s65, v10
        v_lshlrev_b32 v{WT+2}, 16, v11
        v_and_b32 v{WT+3}, s65, v11
        v_lshlrev_b32 v6, 12, v3
        v_lshl_add_u32 v6, v4, 4, v6
        v_mov_b32 v7, 0x7fffffff
        s_mul_i32 s62, {sW}, 16
        v_add_u32 v8, s62, v3
        v_cmp_gt_u32 vcc, 72, v8
        s_lshl_b32 s62, s61, 12
        s_lshl_b32 s63, s85, 7
        s_add_u32 s62, s62, s63
        s_add_u32 s62, s62, {W_U}
        v_cndmask_b32 v6, v7, v6, vcc
        """)
        for o in range(2):
            a(f"s_waitcnt lgkmcnt({7 if o == 0 else 2})")
            kf = KF + 12 * o
            for d in range(6):
                if d:
                    a(f"v_lshlrev_b32 v{kf+2*d}, 16, v{KR+6*o+d}")
                a(f"v_and_b32 v{kf+2*d+1}, s65, v{KR+6*o+d}")
            ac = AC + 8 * o
            for t in range(8):
                a(f"v_mul_f32 v{ac+t}, v{WT}, v{kf+4+t}")
            for i in range(1, 4):
                for t in range(8):
                    a(f"v_fmac_f32 v{ac+t}, v{WT+i}, v{kf+4+t-i}")
            a(f"s_waitcnt lgkmcnt({5 if o == 0 else 0})")
            for d in range(4):
                a(f"v_lshlrev_b32 v{kf+2*d}, 16, v{VR_+4*o+d}")
                a(f"v_and_b32 v{kf+2*d+1}, s65, v{VR_+4*o+d}")
            for t in range(8):
                a(f"v_mul_f32 v{ac+t}, v{ac+t}, v{kf+t}")
            for d in range(4):
                a(f"v_cvt_pk_bf16_f32 v{76+4*o+d}, v{ac+7-2*d}, v{ac+6-2*d}")
            a(f"buffer_store_dwordx4 {vr(76+4*o,4)}, v6, {sWS}, s62 offen offset:{64*o} sc1")
        self.stamp(17)
        a(f"""
        s_add_u32 s28, s28, 1
        s_addc_u32 s29, s29, 0
        s_lshl_b32 s60, s84, 5
        s_add_u32 s60, s60, s85
        s_lshl_b32 s60, s60, 6
        s_add_u32 s60, s60, {W_F1}
        v_mov_b32 v10, s28
        v_mov_b32 v11, s29
        v_mov_b32 v12, 0
        s_mov_b32 s81, 256
        s_cmp_lg_u32 {sW}, 0
        s_waitcnt vmcnt(0)
        s_barrier
        s_cbranch_scc1 L_prep_nf
        s_mov_b64 exec, 1
        buffer_store_dwordx2 v[10:11], v12, {sWS}, s60 offen sc1
        s_mov_b64 exec, -1
        L_prep_nf:
        s_cmp_lt_u32 {sW}, 4
        s_cbranch_scc1 L_prep_done
        s_branch L_prep_second
        """)

        a("L_prep_other:")
        a(".reset_waits")
        a(f"""
        s_mul_i32 s70, {sX}, 14
        s_add_u32 s70, s70, {sJ}
        s_sub_u32 s70, s70, 18            ; unit
        s_cmp_ge_u32 {sJ}, 18
        s_cbranch_scc1 L_prep_r
        """)
        a(f"""
        s_lshl_b32 s81, {sX}, 4
        s_add_u32 s81, s81, {sJ}
        s_cmp_lt_u32 {sJ}, 16
        s_cselect_b32 s81, s81, 256
        s_cmp_eq_u32 {sW}, 5
        s_cselect_b32 s81, s81, 256
        """)
        if 'hearly' in EXP:
            self.h_issue(HR)
            if 'x0late' in EXP:
                a("s_waitcnt vmcnt(8) lgkmcnt(0)\ns_branch L_prep_w1")
            else:
                a("s_cmp_lt_u32 s81, 128\ns_cbranch_scc1 L_prep_hx\ns_waitcnt vmcnt(8) lgkmcnt(0)\ns_branch L_prep_w1\nL_prep_hx:")
                self.x0_issue()
                a("s_waitcnt vmcnt(26) lgkmcnt(0)\ns_branch L_prep_w1")
        else:
            a("s_branch L_prep_w0")
        a(f"""
        L_prep_r:
        s_cmp_ge_u32 s70, 72
        s_cbranch_scc1 L_prep_w0
        s_cmp_lt_u32 {sW}, 6
        s_cbranch_scc1 L_prep_w0
        """)
        if 'rawlate' not in EXP:
            self.dma_wraw("q")
            a(f"s_waitcnt vmcnt(13) lgkmcnt(0)\ns_branch L_prep_w1")
        a(f"""
        L_prep_w0:
        s_waitcnt vmcnt(0) lgkmcnt(0)
        L_prep_w1:
        s_barrier                        ; B0
        s_add_u32 s28, s28, 1
        s_addc_u32 s29, s29, 0
        s_barrier                        ; B1
        L_prep_second:
        s_sub_u32 s67, {sW}, 4
        s_cmp_ge_u32 {sJ}, 18
        s_cbranch_scc1 L_prep_done
        """)
        if 'hearly' not in EXP:
            self.h_issue(HR)
        if 'x0late' in EXP:
            a("s_waitcnt vmcnt(0)\ns_cmp_ge_u32 s81, 128\ns_cbranch_scc1 L_prep_b1")
            self.x0_issue()
            a("L_prep_b1:\ns_mov_b32 s61, s67")
            self.build_h(HR)
            a("s_cmp_ge_u32 s81, 128\ns_cbranch_scc1 L_prep_b2")
            self.x0_stats()
            self.x0_store(wait=False)
            a("L_prep_b2:\ns_waitcnt lgkmcnt(0)\ns_barrier")
        else:
            a("s_waitcnt vmcnt(0)\ns_cmp_ge_u32 s81, 128\ns_cbranch_scc1 L_prep_b2")
            self.x0_stats()
            self.x0_store(wait=False)
            a("L_prep_b2:\ns_mov_b32 s61, s67")
            self.build_h(HR)
        a("s_cmp_ge_u32 s81, 128\ns_cbranch_scc1 L_prep_b3\ns_waitcnt vmcnt(0)")
        self.flag_store("s82", 10)
        a("L_prep_b3:" if 'x0late' in EXP else "L_prep_b3:\ns_waitcnt lgkmcnt(0)\ns_barrier")
        a("L_prep_done:")
        a(".reset_waits")
        self.stamp(1)

    def h_issue(self, HR):
        a = self.a
        self.srd(sD_, "h", NB)
        a(f"""
        s_mul_i32 s63, {sX}, 18
        s_add_u32 s63, s63, {sJ}
        v_lshlrev_b32 v9, 4, v2
        s_lshl_b32 s63, s63, 2
        s_add_u32 s63, s63, {sW}
        s_sub_u32 s63, s63, 4
        s_lshl_b32 s63, s63, 12
        """)
        for i in range(4):
            b = HR + 8 * i
            a(f"buffer_load_dwordx4 {vr(b,4)}, v9, {sD_}, s63 offen offset:{1024*i}")
            a(f"buffer_load_dwordx4 {vr(b+4,4)}, v9, {sD_}, s63 offen offset:{1024*i+8}")

    def x0_issue(self):
        a = self.a
        self.srd(sC, "q", NB)
        a(f"""
        s_mul_i32 s61, s81, {16*1152}
        v_lshrrev_b32 v24, 3, v2
        v_and_b32 v25, 7, v2
        v_mul_u32_u24 v26, 2304, v24
        v_lshl_add_u32 v26, v25, 4, v26
        """)
        for i in range(9):
            a(f"buffer_load_dwordx4 {vr(168+8*i,4)}, v26, {sC}, s61 offen offset:{128*i}")
            a(f"buffer_load_dwordx4 {vr(172+8*i,4)}, v26, {sC}, s61 offen offset:{128*i+1152}")

    def x0_stats(self):
        a = self.a
        a("""
        v_mov_b32 v28, 0
        v_mov_b32 v29, 0
        v_mov_b32 v30, 0
        v_mov_b32 v31, 0
        v_mov_b32 v27, 0x3f803f80
        s_waitcnt vmcnt(0)
        """)
        for i in range(9):
            b = 168 + 8 * i
            for j in range(4):
                for h in range(2):
                    a(f"v_dot2c_f32_bf16 v{28+2*h}, v{b+4*h+j}, v27")
                    a(f"v_dot2c_f32_bf16 v{29+2*h}, v{b+4*h+j}, v{b+4*h+j}")
            a(f"v_swap_b32 v{b+2}, v{b+4}\nv_swap_b32 v{b+3}, v{b+5}")
        for m in ("quad_perm:[1,0,3,2]", "quad_perm:[2,3,0,1]", "row_half_mirror"):
            for j in range(4):
                a(f"v_add_f32_dpp v{28+j}, v{28+j}, v{28+j} {m} row_mask:0xf bank_mask:0xf bound_ctrl:0")
        self.stats(28, 29, 32, 33, 27)
        self.stats(30, 31, 34, 35, 27)

    def x0_store(self, wait=True):
        a = self.a
        a(f"""
        s_lshl_b32 s82, s81, 6
        s_add_u32 s82, s82, {W_F2}
        s_lshl_b32 s63, s81, 7
        s_add_u32 s63, s63, {W_ST0}
        v_lshlrev_b32 v24, 4, v24
        v_lshl_add_u32 v26, v25, 9, v24
        v_cmp_eq_u32 vcc, 0, v25
        s_lshr_b32 s60, s81, 1
        s_mul_i32 s60, s60, 36864
        s_and_b32 s61, s81, 1
        s_lshl_b32 s61, s61, 7
        s_add_u32 s60, s60, s61
        s_add_u32 s60, s60, {W_X0}
        s_mov_b64 exec, vcc
        buffer_store_dwordx4 v[32:35], v24, {sWS}, s63 offen sc1
        s_mov_b64 exec, -1
        """)
        for i in range(9):
            b = 168 + 8 * i
            a(f"buffer_store_dwordx4 {vr(b,4)}, v26, {sWS}, s60 offen sc1")
            a(f"buffer_store_dwordx4 {vr(b+4,4)}, v26, {sWS}, s60 offen offset:256 sc1")
            if i < 8:
                a("s_add_u32 s60, s60, 4096")
        if wait:
            a("s_waitcnt vmcnt(0)")
            self.flag_store("s82", 10)

    def sk_load(self):
        self.srd(sC, "sk", D * 8)
        self.a(f"""
        v_and_b32 v3, 15, v2
        v_lshrrev_b32 v4, 4, v2           ; G
        s_mul_i32 s61, s84, 72
        s_lshl_b32 s62, {sW}, 4
        s_add_u32 s61, s61, s62
        v_add_u32 v5, s61, v3
        v_lshlrev_b32 v5, 3, v5
        buffer_load_dwordx2 v[10:11], v5, {sC}, 0 offen
        """)

    def arrive(self, cnt, last, base, index, vm=0):
        L = self.lab()
        self.a(f"""
        v_mov_b32 v8, {cnt}
        v_mov_b32 v9, 1
        s_waitcnt vmcnt({vm})
        s_mov_b64 exec, 1
        ds_add_rtn_u32 v9, v8, v9
        s_mov_b64 exec, -1
        {index}
        s_lshl_b32 s60, s60, 6
        s_add_u32 s60, s60, {base}
        s_waitcnt lgkmcnt(0)
        v_readfirstlane_b32 s61, v9
        s_cmp_lg_u32 s61, {last}
        s_cbranch_scc1 {L}
        """)
        self.flag_store("s60", 10)
        self.a(f"{L}:")

    def build_h(self, HR):
        a = self.a
        T = 84
        a(f"""
        s_mul_i32 s63, s61, {4*HC_B}
        s_add_u32 s63, s63, {L_HC+32}
        v_lshl_add_u32 v7, v2, 4, s63
        """)
        for i in range(4):
            A, C = HR + 8 * i, HR + 8 * i + 4
            t = T + 12 * (i & 1)
            d = [A, A + 1, A + 2, A + 3, C + 2, C + 3]
            if i == 0:
                a(f"v_readlane_b32 s60, v{HR}, 0\nv_readlane_b32 s62, v{HR+1}, 0")
            a(f"ds_write_b128 v7, {vr(A,4)} offset:{1024*i}")
            for j in range(4):
                a(f"v_alignbyte_b32 v{t+j}, v{d[j+1]}, v{d[j]}, 2")
            a(f"ds_write_b128 v7, {vr(t,4)} offset:{HC_B+1024*i}")
            for j in range(4):
                a(f"v_mov_b32 v{t+4+j}, v{d[j+1]}")
            a(f"ds_write_b128 v7, {vr(t+4,4)} offset:{2*HC_B+1024*i}")
            for j in range(4):
                a(f"v_alignbyte_b32 v{t+8+j}, v{d[j+2]}, v{d[j+1]}, 2")
            a(f"ds_write_b128 v7, {vr(t+8,4)} offset:{3*HC_B+1024*i}")
        a(f"""
        v_mov_b32 v16, s60
        v_mov_b32 v17, s62
        v_mov_b32 v18, 0
        v_mov_b32 v19, 0
        v_mov_b32 v20, 0
        v_mov_b32 v21, 0
        v_lshlrev_b32 v8, 4, v2
        v_sub_u32 v8, 64, v8
        v_cmp_eq_u32 vcc, 0, v2
        v_lshlrev_b64 v[22:23], v8, v[16:17]
        s_sub_u32 s63, s63, 32
        v_mul_u32_u24 v7, {HC_B}, v2
        v_add_u32 v7, s63, v7
        v_cndmask_b32 v22, v22, v18, vcc
        v_cndmask_b32 v23, v23, v18, vcc
        s_mul_i32 s63, s61, {U_B}
        s_add_u32 s63, s63, {L_U}
        v_lshl_add_u32 v8, v2, 3, s63
        ds_write_b64 v8, v[18:19]
        s_mov_b64 exec, 15
        ds_write_b128 v7, v[18:21]
        ds_write_b128 v7, v[20:23] offset:16
        s_mov_b64 exec, -1
        """)

    def stats(self, vs, vq, vrs, vmr, vt, n=576):
        self.a(f"""
        v_mul_f32 v{vs}, {f32hex(1.0/n)}, v{vs}
        v_mul_f32 v{vq}, {f32hex(1.0/n)}, v{vq}
        v_fma_f32 v{vt}, -v{vs}, v{vs}, v{vq}
        v_max_f32 v{vt}, 0, v{vt}
        v_add_f32 v{vt}, {f32hex(1e-5)}, v{vt}
        v_rsq_f32 v{vrs}, v{vt}
        s_nop 0
        v_mul_f32 v{vmr}, v{vs}, v{vrs}
        v_sub_f32 v{vmr}, 0, v{vmr}
        """)

    def dma_wraw(self, kind):
        a = self.a
        L1, L2 = self.lab(), self.lab()
        a(f"""
        s_mul_i32 s70, {sX}, 14
        s_add_u32 s70, s70, {sJ}
        s_sub_u32 s70, s70, 18
        s_sub_u32 s62, {sW}, 6
        """)
        if kind == "q":
            self.wraw_q(L1)
        elif kind == "q4":
            self.wraw_q(L1, 4)
        else:
            self.wraw_o(L2)

    def wraw_q(self, L1, shift=0):
        a = self.a
        a(f"""
        s_lshr_b32 s71, s70, 1
        s_and_b32 s72, s70, 1
        s_mul_i32 s60, s71, {16*3456}
        s_mul_i32 s61, s72, 576
        s_add_u32 s60, s60, s61
        s_add_u32 s60, s60, {shift}
        """)
        self.srd(sB, "wqkv", D * 3 * D * 2)
        a(f"{L1}:\nv_lshl_add_u32 v4, s62, 6, v2\nv_lshrrev_b32 v7, 2, v4")
        self.div9(7, 5, 6)
        a(f"""
        v_mul_u32_u24 v5, {1152-576}, v5
        v_lshl_add_u32 v8, v4, 4, v5
        s_lshl_b32 s63, s62, 10
        s_add_u32 m0, s63, {27648 if shift else 0}
        s_add_u32 s62, s62, 2
        buffer_load_dwordx4 v8, {sB}, s60 offen lds
        s_cmp_lt_u32 s62, 27
        s_cbranch_scc1 {L1}
        """)

    def wraw_o(self, L2):
        a = self.a
        a(f"""
        s_sub_u32 s71, s70, 72           ; S
        s_mul_i32 s60, s71, {36*1152}
        s_sub_u32 s61, s71, 16
        s_mul_i32 s61, s61, {288*1152}
        s_add_u32 s61, s61, {16*1152}
        s_cmp_lt_u32 s71, 16
        s_cselect_b32 s60, s60, s61
        s_cselect_b64 s[74:75], -1, 0
        """)
        self.srd(sB, "wo", D * D * 2)
        a(f"{L2}:\nv_lshl_add_u32 v4, s62, 6, v2\nv_lshrrev_b32 v9, 3, v4")
        self.div9(9, 5, 6)
        a(f"""
        v_mul_u32_u24 v6, 72, v5
        v_sub_u32 v6, v4, v6
        v_lshrrev_b32 v7, 4, v5
        v_mul_u32_u24 v7, 18, v7
        v_bfe_u32 v8, v5, 3, 1
        v_lshl_add_u32 v7, v8, 2, v7
        v_bfe_u32 v8, v5, 2, 1
        v_lshl_add_u32 v7, v8, 3, v7
        v_and_b32 v8, 3, v5
        v_add_u32 v7, v7, v8
        v_lshrrev_b32 v8, 1, v5
        v_mul_u32_u24 v8, 18, v8
        v_and_b32 v9, 1, v5
        v_add_u32 v8, v8, v9
        v_cndmask_b32 v7, v8, v7, s[74:75]
        v_mul_u32_u24 v7, 1152, v7
        v_lshl_add_u32 v8, v6, 4, v7
        s_lshl_b32 m0, s62, 10
        s_add_u32 s62, s62, 2
        buffer_load_dwordx4 v8, {sB}, s60 offen lds
        s_cmp_lt_u32 s62, 36
        s_cbranch_scc1 {L2}
        """)

    def relayout(self):
        a = self.a
        a("L_relayout:")
        a(".reset_waits")
        a(f"""
        L_rel_nx:
        s_mul_i32 s70, {sX}, 14
        s_add_u32 s70, s70, {sJ}
        s_sub_u32 s70, s70, 18
        s_cmp_lt_u32 {sW}, 6
        s_cbranch_scc1 L_rel_nx1
        s_cmp_lt_u32 s70, 72
        s_cbranch_scc1 L_rel_nq
        s_cmp_ge_u32 s70, 90
        s_cbranch_scc1 L_rel_nx1
        """)
        self.dma_wraw("o")
        a("s_branch L_rel_nx1\nL_rel_nq:")
        if 'rawlate' in EXP:
            self.dma_wraw("q")
        self.dma_wraw("q4")
        a(f"""
        L_rel_nx1:
        s_waitcnt vmcnt(0)
        s_barrier
        """)
        self.stamp(20)
        a(f"""
        v_lshrrev_b32 v3, 4, v2          ; G
        v_bfe_u32 v4, v2, 2, 2           ; j
        v_and_b32 v5, 3, v2              ; m
        v_lshrrev_b32 v6, 5, v2          ; half
        v_and_b32 v7, 31, v2             ; col
        s_cmp_ge_u32 s70, 90
        s_cbranch_scc1 L_rel_nf
        s_cmp_ge_u32 s70, 72
        s_cbranch_scc1 L_rel_o
        s_lshr_b32 s71, s70, 1           ; k-step
        s_and_b32 s72, s70, 1
        s_mul_i32 s73, s71, 1792
        s_mul_i32 s74, s72, {16*WQ_B}
        s_add_u32 s73, s73, s74
        s_add_u32 s73, s73, {W_WQ}
        v_lshl_add_u32 v8, v6, 3, v4
        v_mul_u32_u24 v8, 1728, v8
        v_and_b32 v9, 1, v3              ; G&1
        s_lshr_b32 s75, {sW}, 1
        s_and_b32 s76, {sW}, 1           ; tile
        s_mul_i32 s77, s75, 36
        s_and_b32 s79, s75, 1
        s_mul_i32 s79, s79, {27648-4}
        s_add_u32 s77, s77, s79
        s_mul_i32 s78, s75, {WQ_B}
        s_add_u32 s73, s73, s78
        s_cmp_lg_u32 s76, 0
        s_cbranch_scc1 L_rel_t1
        v_mul_u32_u24 v10, 576, v9
        v_lshl_add_u32 v10, v5, 3, v10
        v_add3_u32 v8, v8, v10, s77
        v_lshlrev_b32 v11, 4, v2
        v_lshlrev_b32 v14, 2, v7
        s_branch L_rel_go
        L_rel_t1:
        ; G&1==0: 96+8m ; else m: 0->128 1->32 2->80 3->128
        v_lshlrev_b32 v10, 3, v5
        v_add_u32 v10, 1152, v10
        v_mov_b32 v12, {1152+32}
        v_cmp_eq_u32 vcc, 1, v5
        s_nop 1
        v_cndmask_b32 v12, v12, 32, vcc
        v_mov_b32 v13, {576+32}
        v_cmp_eq_u32 vcc, 2, v5
        s_nop 1
        v_cndmask_b32 v12, v12, v13, vcc
        v_cmp_eq_u32 vcc, 1, v9
        s_nop 1
        v_cndmask_b32 v10, v10, v12, vcc
        v_add3_u32 v8, v8, v10, s77
        v_subrev_u32 v12, 2, v7
        v_cmp_gt_u32 vcc, 22, v7
        s_nop 1
        v_cndmask_b32 v12, v12, v7, vcc
        v_lshlrev_b32 v14, 2, v12
        v_lshlrev_b32 v12, 4, v12
        v_mul_u32_u24 v13, 384, v6
        v_add_u32 v11, v12, v13
        v_add_u32 v11, 1024, v11
        v_and_b32 v13, 30, v7
        v_cmp_eq_u32 s[62:63], 24, v13
        s_nop 1
        s_or_b64 vcc, vcc, s[62:63]
        v_mov_b32 v13, 0x7fffffff
        s_nop 0
        v_cndmask_b32 v11, v13, v11, vcc
        v_cndmask_b32 v14, v13, v14, vcc
        L_rel_go:
        """)
        for n in range(4):
            a(f"ds_read_b64_tr_b16 {vr(68+4*n,2)}, v8 offset:{144*n}")
            a(f"ds_read_b64_tr_b16 {vr(70+4*n,2)}, v8 offset:{144*n+4*1728}")
        a(f"""
        s_lshl_b32 s74, s72, 4
        s_add_u32 s74, s74, s75
        s_mul_i32 s74, s74, 36
        s_add_u32 s74, s74, s71
        s_lshl_b32 s74, s74, 8
        s_lshl_b32 s77, s76, 7
        s_add_u32 s74, s74, s77
        s_add_u32 s74, s74, {W_CSP}
        v_mov_b32 v15, 0x3f803f80
        """)
        for n in range(4):
            a(f"v_mov_b32 v{84+n}, 0")
        for n in range(4):
            a(f"s_waitcnt lgkmcnt({6-2*n})")
            a(f"buffer_store_dwordx4 {vr(68+4*n,4)}, v11, {sWS}, s73 offen sc1")
            a(f"s_add_u32 s73, s73, {4*WQ_B}")
            for j in range(4):
                a(f"v_dot2c_f32_bf16 v{84+n}, v{68+4*n+j}, v15")
        for n in range(4):
            a(f"v_mov_b32 v{88+n}, v{84+n}")
        for n in range(4):
            a(f"v_permlane32_swap_b32 v{84+n}, v{88+n}")
        for n in range(4):
            a(f"v_add_f32 v{84+n}, v{84+n}, v{88+n}")
        a(f"""
        s_mov_b32 s62, 0
        s_mov_b32 s63, -1
        v_mul_u32_u24 v13, {4*36*256}, v6
        v_add_u32 v14, v14, v13
        v_cndmask_b32 v84, v84, v85, s[62:63]
        v_cndmask_b32 v86, v86, v87, s[62:63]
        buffer_store_dword v84, v14, {sWS}, s74 offen sc1
        s_add_u32 s74, s74, {8*36*256}
        buffer_store_dword v86, v14, {sWS}, s74 offen sc1
        """)
        a("s_branch L_rel_fin")
        a(f"""
        L_rel_o:
        .reset_waits
        s_sub_u32 s71, s70, 72
        s_mul_i32 s73, {sW}, {WO_B}
        s_mul_i32 s74, s71, 4608
        s_add_u32 s73, s73, s74
        s_add_u32 s73, s73, {W_WO}
        v_lshl_add_u32 v10, v3, 3, v4
        v_mul_u32_u24 v10, 1152, v10
        v_lshl_add_u32 v10, v5, 3, v10
        s_mul_i32 s74, {sW}, 144
        v_add_u32 v10, s74, v10
        v_lshlrev_b32 v12, 4, v2
        v_and_b32 v13, 15, v2
        v_lshlrev_b32 v14, 4, v13
        v_lshl_add_u32 v14, v3, 7, v14
        v_mov_b32 v15, 0x7fffffff
        v_cmp_gt_u32 vcc, 8, v13
        s_add_u32 s74, s73, 4096
        s_nop 0
        v_cndmask_b32 v14, v15, v14, vcc
        """)
        for ft in range(5):
            a(f"ds_read_b64_tr_b16 {vr(68+4*ft,2)}, v10 offset:{32*ft}")
            a(f"ds_read_b64_tr_b16 {vr(70+4*ft,2)}, v10 offset:{32*ft+4608}")
        for ft in range(5):
            a(f"s_waitcnt lgkmcnt({8-2*ft})")
            if ft < 4:
                a(f"buffer_store_dwordx4 {vr(68+4*ft,4)}, v12, {sWS}, s73 offen offset:{1024*ft} sc1")
            else:
                a(f"buffer_store_dwordx4 {vr(68+4*ft,4)}, v14, {sWS}, s74 offen sc1")
        a(f"""
        L_rel_fin:
        s_waitcnt vmcnt(0)
        s_barrier
        s_cmp_lg_u32 {sW}, 0
        s_cbranch_scc1 L_rel_nf
        s_lshl_b32 s60, s70, 6
        s_add_u32 s60, s60, {W_F3}
        """)
        self.flag_store("s60", 10)
        a("L_rel_nf:")
        a(f"s_cmp_lt_u32 {sW}, 4\ns_cbranch_scc1 L_rel_nw")
        self.wq_flags()
        self.poll([(5, "s62", 0)], 6, 3, first=4)
        self.stamp(29)
        self.wq_fetch()
        a(f"s_cmp_lg_u32 {sW}, 7\ns_cbranch_scc1 L_rel_nw")
        self.cs_issue()
        a("s_waitcnt vmcnt(0)")
        self.cs_finish()
        a("L_rel_nw:")
        a("s_waitcnt vmcnt(0)\ns_barrier\ns_branch L_qkv_pre")

    def wq_flags(self):
        self.a(f"""
        s_lshr_b32 s60, {sJ}, 4
        v_min_u32 v5, 35, v2
        v_lshl_add_u32 v5, v5, 1, s60
        v_lshlrev_b32 v5, 6, v5
        s_mov_b32 s62, {W_F3}
        """)

    def cs_issue(self):
        a = self.a
        a(f"""
        s_mul_i32 s60, {sJ}, {36*256}
        s_add_u32 s60, s60, {W_CSP}
        v_lshlrev_b32 v4, 4, v2
        """)
        for i in range(9):
            a(f"buffer_load_dwordx4 {vr(168+4*i,4)}, v4, {sWS}, s60 offen sc1")
            if i < 8:
                a("s_add_u32 s60, s60, 1024")

    def cs_finish(self):
        a = self.a
        for i in range(1, 9):
            for j in range(4):
                a(f"v_add_f32 v{168+j}, v{168+j}, v{168+4*i+j}")
        for op in ("v_permlane16_swap_b32", "v_permlane32_swap_b32"):
            for j in range(4):
                a(f"v_mov_b32 v{172+j}, v{168+j}")
            for j in range(4):
                a(f"{op} v{168+j}, v{172+j}")
            for j in range(4):
                a(f"v_add_f32 v{168+j}, v{168+j}, v{172+j}")
        a(f"""
        v_and_b32 v4, 15, v2
        v_lshlrev_b32 v4, 4, v4
        v_add_u32 v4, {L_CS}, v4
        ds_write_b128 v4, v[168:171]
        s_waitcnt lgkmcnt(0)
        """)

    def wq_fetch(self, first=0, last=63):
        L = self.lab()
        self.a(f"""
        s_mul_i32 s60, {sJ}, {WQ_B}
        s_add_u32 s60, s60, {W_WQ}
        s_sub_u32 s62, {sW}, 4
        s_add_u32 s62, s62, {first}
        v_lshlrev_b32 v4, 4, v2
        {L}:
        s_lshl_b32 s63, s62, 10
        s_add_u32 m0, s63, {L_WQ}
        s_add_u32 s63, s63, s60
        s_add_u32 s62, s62, 4
        buffer_load_dwordx4 v4, {sWS}, s63 offen sc1 lds
        s_cmp_lt_u32 s62, {last}
        s_cbranch_scc1 {L}
        """)

    def conv(self):
        a = self.a
        a(f"s_cmp_ge_u32 {sJ}, 18\ns_cbranch_scc1 L_relayout")
        a(f"""
        s_mul_i32 s66, {sX}, 18
        s_add_u32 s66, s66, {sJ}          ; quad
        s_cmp_ge_u32 {sW}, 4
        s_cbranch_scc1 L_conv_help
        """)
        self.srd(sA, "dd", D * 2)
        a(f"""
        s_lshl_b32 s61, s66, 2
        s_add_u32 s61, s61, {sW}           ; channel
        s_lshl_b32 s62, s61, 1
        v_mov_b32 v4, s62
        buffer_load_ushort v5, v4, {sA}, 0 offen
        s_mul_i32 s62, {sW}, {U_B}
        s_add_u32 s62, s62, {L_U+512}
        s_cmp_lg_u32 {sW}, 0
        s_cbranch_scc1 L_conv_nu
        v_and_b32 v4, 31, v2
        v_lshlrev_b32 v4, 6, v4
        s_lshl_b32 s60, {sX}, 11
        s_add_u32 s60, s60, {W_F1}
        """)
        self.poll2([(4, "s60", 0)], 176, 1)
        a(f"""
        s_lshl_b32 s61, s61, 12
        s_add_u32 s61, s61, {W_U}
        v_lshlrev_b32 v4, 4, v2
        """)
        for c in range(4):
            for i in range(4):
                a(f"s_mov_b32 m0, {L_U+512+U_B*c+1024*i}\ns_add_u32 s63, s61, {4096*c+1024*i}")
                a(f"buffer_load_dwordx4 v4, {sWS}, s63 offen sc1 lds")
        a("L_conv_nu:")
        self.stamp(2)
        vBA, vAA, AD = 6, 7, 8
        ACC, A0, B0 = 16, 48, 112
        a(f"""
        v_and_b32 v12, 15, v2              ; nn / r
        v_lshrrev_b32 v13, 5, v2           ; g>>1
        v_bfe_u32 v14, v2, 4, 1            ; g&1
        s_sub_u32 s62, s62, {448}          ; u base + 64
        v_sub_u32 v15, v12, v13
        v_lshlrev_b32 v15, 5, v15
        v_lshl_add_u32 v15, v14, 4, v15
        v_add_u32 v{vBA}, s62, v15
        v_add_u32 v15, 1, v12
        v_and_b32 v3, 3, v15               ; sigma
        v_lshl_add_u32 v15, v13, 4, v12
        v_lshlrev_b32 v1, 3, v14
        v_sub_u32 v15, v15, v1
        v_sub_u32 v15, v15, v3
        v_add_u32 v15, 9, v15
        v_lshlrev_b32 v15, 1, v15
        v_mul_u32_u24 v3, {HC_B}, v3
        s_mul_i32 s63, {sW}, {4*HC_B}
        v_add3_u32 v{vAA}, v15, v3, s63
        v_add_u32 v1, 7, v1
        v_sub_u32 v1, v1, v12              ; j0
        v_lshl_add_u32 v1, v13, 6, v1
        v_and_b32 v3, 1, v1
        v_lshlrev_b32 v3, 4, v3
        v_lshrrev_b32 v1, 1, v1
        s_waitcnt vmcnt(16)
        s_cmp_eq_u32 {sW}, 0
        s_cbranch_scc1 L_conv_d
        s_waitcnt vmcnt(0)
        L_conv_d:
        v_lshlrev_b32 v5, v3, v5
        """)
        for i in range(4):
            a(f"v_cmp_eq_u32 vcc, {i}, v1\ns_nop 1\nv_cndmask_b32 v{AD+i}, 0, v5, vcc")

        def rdA(rho, q):
            b = A0 + 32 * (rho & 1) + 4 * q
            off = L_HC + 64 * (rho + 8 * q)
            return [f"ds_read_b64 {vr(b,2)}, v{vAA} offset:{off}", f"ds_read_b64 {vr(b+2,2)}, v{vAA} offset:{off+8}"]

        def rdB(rho, j):
            b = B0 + 32 * (rho & 1) + 4 * j
            return [f"ds_read_b128 {vr(b,4)}, v{vBA} offset:{64*(8*j-rho+7)}"]

        def reads(rho):
            r = rdA(rho, 0)
            for j in range(8):
                r += rdB(rho, j)
            for q in range(1, 8):
                r += rdA(rho, q)
            return r
        a("s_waitcnt vmcnt(0)\ns_barrier")
        for q in range(8):
            for l in rdA(0, q):
                a(l)
        for j in range(8):
            a(rdB(0, j)[0])
        for rho in range(8):
            a("s_waitcnt lgkmcnt(0)")
            nxt = reads(rho + 1) if rho < 7 else []
            ab, bb = A0 + 32 * (rho & 1), B0 + 32 * (rho & 1)
            ms = []
            if rho == 0:
                for n in range(8):
                    ms.append(f"v_mfma_f32_16x16x32_bf16 {vr(ACC+4*n,4)}, {vr(AD,4)}, {vr(bb+4*n,4)}, 0")
            for q in range(8):
                for n in range(q, 8):
                    ms.append(f"v_mfma_f32_16x16x32_bf16 {vr(ACC+4*n,4)}, {vr(ab+4*q,4)}, {vr(bb+4*(n-q),4)}, {vr(ACC+4*n,4)}")
            for m in ms:
                a(m)
                if nxt:
                    a(nxt.pop(0))
        self.stamp(3)
        a(f"""
        v_lshlrev_b32 v12, 5, v12
        v_lshrrev_b32 v13, 4, v2
        v_lshl_add_u32 v12, v13, 3, v12
        s_mul_i32 s63, {sW}, {4*HC_B+32}
        v_add_u32 v12, s63, v12
        """)
        for n in range(8):
            a(f"v_cvt_pk_bf16_f32 v{A0+2*n}, v{ACC+4*n}, v{ACC+4*n+1}")
            a(f"v_cvt_pk_bf16_f32 v{A0+2*n+1}, v{ACC+4*n+2}, v{ACC+4*n+3}")
            a(f"ds_write_b64 v12, {vr(A0+2*n,2)} offset:{L_HC+512*n}")
        a("s_waitcnt lgkmcnt(0)\ns_barrier")
        a("s_branch L_qkv_pre")

        a("L_conv_help:")
        a(".reset_waits")
        X0, ST, Y, T = 16, 32, 232, 64
        self.wq_flags()
        a(f"""
        v_and_b32 v4, 31, v2
        v_lshlrev_b32 v4, 6, v4
        s_lshl_b32 s63, s67, 11
        s_add_u32 s63, s63, {W_F2}
        v_lshlrev_b32 v3, 3, v2
        s_lshl_b32 s60, s67, 12
        s_add_u32 s60, s60, {W_ST0}
        v_and_b32 v14, 31, v2
        v_lshrrev_b32 v15, 5, v2
        v_mul_u32_u24 v15, 36864, v15
        v_lshl_add_u32 v14, v14, 3, v15
        s_mul_i32 s76, s67, {16*36864}
        s_lshl_b32 s61, s66, 8
        s_add_u32 s76, s76, s61
        s_add_u32 s61, s76, {W_X0}
        """)
        self.poll([(4, "s63", 0)], 6, 2, first=4)
        self.stamp(18)
        for i in range(8):
            a(f"buffer_load_dwordx2 {vr(ST+2*i,2)}, v3, {sWS}, s60 offen offset:{512*i} sc1")
            a(f"buffer_load_dwordx2 {vr(X0+2*i,2)}, v14, {sWS}, s61 offen sc1")
            if i < 7:
                a(f"s_add_u32 s61, s61, {2*36864}")
        a("v_mov_b32 v13, v5\ns_waitcnt vmcnt(0)")
        a(f"""
        v_bfe_u32 v4, v2, 2, 2
        v_mul_u32_u24 v4, {4*HC_B+32}, v4
        v_lshrrev_b32 v5, 4, v2
        v_lshl_add_u32 v4, v5, 5, v4
        v_and_b32 v5, 3, v2
        v_lshl_add_u32 v4, v5, 3, v4
        s_lshl_b32 s60, s67, 10
        v_add_u32 v4, s60, v4
        s_mov_b32 s64, 0xffff0000
        s_add_u32 s61, s76, {W_Y}
        s_add_u32 s60, s76, {W_X1}
        """)
        a(".reset_waits")
        for i in range(8):
            t = T + 8 * i
            for d in range(2):
                a(f"v_lshlrev_b32 v{t+2*d}, 16, v{X0+2*i+d}")
                a(f"v_and_b32 v{t+2*d+1}, s64, v{X0+2*i+d}")
            for c in range(4):
                a(f"v_fma_f32 v{t+4+c}, v{t+c}, v{ST+2*i}, v{ST+2*i+1}")
        PRE = int(os.environ.get("PRE", 0))
        a(f"buffer_load_dwordx2 v[128:129], v13, {sWS}, s62 offen sc1\ns_mov_b32 s77, 0")
        if PRE:
            L = self.lab()
            a(f"s_waitcnt vmcnt(0)\nv_cmp_ne_u64 vcc, {sTag}, v[128:129]\ns_cmp_lg_u64 vcc, 0\ns_cbranch_scc1 {L}")
            a("s_mov_b32 s78, s60\nv_mov_b32 v12, v4")
            self.wq_fetch(last=PRE)
            a(f"s_mov_b32 s60, s78\nv_mov_b32 v4, v12\ns_mov_b32 s77, {PRE}\n{L}:")
        a("s_barrier")
        for i in range(8):
            a(f"ds_read_b64_tr_b16 {vr(Y+2*i,2)}, v4 offset:{L_HC+128*i}")
        for i in range(8):
            t = T + 8 * i
            a(f"s_waitcnt lgkmcnt({7-i})")
            for d in range(2):
                a(f"v_lshlrev_b32 v8, 16, v{Y+2*i+d}")
                a(f"v_and_b32 v9, s64, v{Y+2*i+d}")
                a(f"v_fmac_f32 v{t+2*d}, v{t+4+2*d}, v8")
                a(f"v_fmac_f32 v{t+2*d+1}, v{t+5+2*d}, v9")
            a(f"v_cvt_pk_bf16_f32 v{X0+2*i}, v{t}, v{t+1}")
            a(f"v_cvt_pk_bf16_f32 v{X0+2*i+1}, v{t+2}, v{t+3}")
            a(f"buffer_store_dwordx2 {vr(X0+2*i,2)}, v14, {sWS}, s60 offen sc1")
            a(f"s_add_u32 s60, s60, {2*36864}")
        a(f"""
        s_lshl_b32 s60, s66, 2
        s_add_u32 s60, s60, s67
        s_lshl_b32 s60, s60, 6
        s_add_u32 s60, s60, {W_F4}
        s_waitcnt vmcnt(0)
        """)
        self.flag_store("s60", 10)
        a(f"""
        v_mov_b32 v248, v14
        s_mov_b32 s79, s61
        s_add_u32 s80, s60, {W_F10 - W_F4}
        """)
        L = self.lab()
        a(f"v_cmp_ne_u64 vcc, {sTag}, v[128:129]\ns_cmp_eq_u64 vcc, 0\ns_cbranch_scc1 {L}")
        self.poll([(13, "s62", 0)], 128, 3)
        a(f"{L}:")
        self.wq_fetch(first="s77", last=WQ1)
        a(f"s_cmp_eq_u32 {sW}, 7\ns_cbranch_scc1 L_help_c0\ns_waitcnt vmcnt(0)\ns_branch L_qkv_pre\nL_help_c0:")
        self.cs_issue()
        a("s_waitcnt vmcnt(0)")
        self.cs_finish()
        a("s_branch L_qkv_pre")

    def colsum(self):
        a = self.a
        a("L_qkv_pre:")
        a(".reset_waits")
        self.stamp(4)
        self.qkv_setup()

    def qkv_setup(self):
        self.a(f"""
        v_lshlrev_b32 v4, 4, v2
        v_add_u32 v4, {L_WQ}, v4           ; W tile 0
        v_and_b32 v6, 31, v2
        v_min_u32 v5, 23, v6
        v_lshlrev_b32 v5, 4, v5
        v_lshrrev_b32 v7, 5, v2            ; hh
        v_mul_u32_u24 v53, 384, v7
        v_add_u32 v5, v5, v53
        v_add_u32 v5, {L_WQ+1024}, v5      ; W tile 1
        v_and_b32 v53, 15, v2
        v_lshlrev_b32 v53, 1, v53
        v_bfe_u32 v54, v2, 4, 1
        v_add_u32 v53, v53, v54
        v_lshlrev_b32 v53, 4, v53
        v_and_b32 v58, 19, v6
        v_bfe_u32 v54, v6, 2, 1
        v_lshl_add_u32 v58, v54, 3, v58
        v_bfe_u32 v54, v6, 3, 1
        v_lshl_add_u32 v58, v54, 2, v58    ; sigma(n)
        v_lshlrev_b32 v54, 4, v58
        v_lshl_add_u32 v54, v7, 9, v54
        s_lshl_b32 s61, {sT}, 10
        v_add_u32 v54, s61, v54
        v_min_u32 v56, 19, v6
        v_cmp_eq_u32 vcc, 4, v56
        v_cmp_eq_u32 s[62:63], 19, v56
        s_mul_i32 s61, {sT}, 1280
        s_add_u32 s61, s61, {KV_V}
        v_cndmask_b32 v56, v56, 19, vcc
        v_cndmask_b32 v56, v56, 4, s[62:63]
        v_lshlrev_b32 v56, 4, v56
        v_mul_u32_u24 v55, 320, v7
        v_add_u32 v56, v56, v55
        v_add_u32 v55, s61, v56
        s_lshl_b32 s62, {sT}, 7
        s_add_u32 s63, s62, {L_QR}
        s_add_u32 s62, s62, {KV_R}
        v_mov_b32 v59, s62
        v_mov_b32 v60, s63
        v_cmp_gt_u32 vcc, 22, v6
        v_and_b32 v57, 1, v6
        v_lshlrev_b32 v57, 1, v57
        v_lshl_add_u32 v57, v7, 5, v57
        v_cndmask_b32 v61, v59, v60, vcc
        v_add_u32 v57, v57, v61
        v_lshl_add_u32 v58, v58, 2, v60
        v_lshl_add_u32 v59, v6, 2, v59
        s_lshl_b32 s60, {sW}, 8
        s_add_u32 s60, s60, {L_ST}
        v_lshl_add_u32 v60, v6, 2, s60
        v_mov_b32 v61, s60
        v_and_b32 v62, 30, v6
        v_cmp_eq_u32 vcc, 20, v62
        v_add_u32 v62, 128, v61
        s_nop 0
        v_cndmask_b32 v61, v61, v62, vcc
        v_cmp_eq_u32 vcc, 18, v6
        v_lshl_add_u32 v61, v7, 4, v61
        v_mov_b32 v62, 0x3f803f80
        v_cndmask_b32 v62, 0, v62, vcc
        s_lshl_b32 s69, {sLayer}, 5
        s_add_u32 s69, s69, {sJ}
        s_lshl_b32 s69, s69, 3             ; (layer*32+head)*8
        s_add_u32 s89, s69, {sX}
        s_mul_i32 s89, s89, {KV_B}
        s_add_u32 s89, s89, {W_KV}
        """)

    def qkv(self):
        a = self.a
        L = self.lab()
        a(f"s_cmp_lg_u32 {sW}, 0\ns_cbranch_scc1 {L}")
        a(f"""
        v_lshlrev_b32 v8, 8, v2
        v_add_u32 v9, {64*256}, v8
        v_add_u32 v10, {128*256}, v8
        v_min_u32 v10, {143*256}, v10
        s_lshr_b32 s60, {sX}, 1
        s_lshl_b32 s60, s60, 6
        s_add_u32 s60, s60, {W_F4}
        """)
        self.poll2([(8, "s60", 0), (9, "s60", 0), (10, "s60", 0)], 220, 4, first=2)
        a(f"{L}:")
        a(f"""
        s_mov_b32 s68, {W_X1}
        s_cmp_eq_u32 {sW}, 0
        s_cselect_b32 s3, 3, 0
        s_add_u32 s88, {sW}, {WQ1-4}
        s_lshl_b32 s88, s88, 10            ; first remaining piece of the wqkv slice (waves 4-7)
        s_mul_i32 s87, {sJ}, {WQ_B}
        s_add_u32 s87, s87, s88
        s_add_u32 s87, s87, {W_WQ}
        s_cmp_lt_u32 {sJ}, 18
        s_cselect_b32 s87, s87, 0
        s_cmp_ge_u32 {sW}, 4
        s_cselect_b32 s87, s87, 0
        """)
        a("L_qkv:")
        a(".reset_waits")
        XF, D0, D1, WF, RS = 64, 16, 32, 208, 96
        a(f"""
        s_lshl_b32 s75, {sLayer}, 15
        s_lshl_b32 s61, {sX}, 12
        s_add_u32 s75, s75, s61
        s_add_u32 s75, s75, {W_G9}
        s_mul_i32 s60, {sX}, {8*36864}
        s_add_u32 s60, s60, s68
        s_cmp_lg_u32 s3, 3
        s_cbranch_scc1 L_qkv_ns
        v_lshrrev_b32 v10, 2, v2
        v_and_b32 v11, 3, v2
        v_lshlrev_b32 v10, 8, v10
        v_lshl_add_u32 v10, v11, 4, v10
        s_lshr_b32 s61, {sJ}, 2
        s_mul_i32 s61, s61, 36864
        s_and_b32 s62, {sJ}, 3
        s_lshl_b32 s62, s62, 6
        s_add_u32 s61, s61, s62
        s_add_u32 s61, s61, s60
        """)
        for i in range(9):
            a(f"buffer_load_dwordx4 {vr(16+4*i,4)}, v10, {sWS}, s61 offen sc1")
            if i < 8:
                a("s_add_u32 s61, s61, 4096")
        a("L_qkv_ns:")
        a(f"""
        v_lshlrev_b32 v8, 4, v2
        s_mul_i32 s61, {sT}, 36864
        s_add_u32 s60, s60, s61
        s_barrier
        """)
        self.stamp(5)
        WIN = int(os.environ.get("WIN", 8))

        def ldx(s):
            a(f"buffer_load_dwordx4 {vr(XF+4*s,4)}, v8, {sWS}, s60 offen offset:{1024*(s&3)} sc1")
            if s & 3 == 3 and s < 35:
                a("s_add_u32 s60, s60, 4096")
        for s in range(WIN):
            ldx(s)
        a(f"s_cmp_lg_u32 s3, 3\ns_cbranch_scc1 L_qkv_ns2")
        a("v_mov_b32 v12, 0\nv_mov_b32 v13, 0\nv_mov_b32 v14, 0\nv_mov_b32 v15, 0\nv_mov_b32 v52, 0x3f803f80")
        for i in range(9):
            a(f"s_waitcnt vmcnt({8+WIN-i})")
            for j in range(4):
                r = 16 + 4 * i + j
                a(f"v_dot2c_f32_bf16 v{12+(j&2)}, v{r}, v52")
                a(f"v_dot2c_f32_bf16 v{13+(j&2)}, v{r}, v{r}")
        for m in ("row_ror:4", "row_ror:8"):
            for j in range(4):
                a(f"v_add_f32_dpp v{12+j}, v{12+j}, v{12+j} {m} row_mask:0xf bank_mask:0xf bound_ctrl:0")
        for op in ("v_permlane16_swap_b32", "v_permlane32_swap_b32"):
            for j in range(4):
                a(f"v_mov_b32 v{16+j}, v{12+j}")
            for j in range(4):
                a(f"{op} v{12+j}, v{16+j}")
            for j in range(4):
                a(f"v_add_f32 v{12+j}, v{12+j}, v{16+j}")
        self.stats(12, 13, 17, 22, 23)
        self.stats(14, 15, 21, 22, 23)
        a(f"""
        v_sub_f32 v16, 0, v12
        v_sub_f32 v20, 0, v14
        v_mov_b32 v18, s28
        v_mov_b32 v19, s29
        v_mov_b32 v22, s28
        v_mov_b32 v23, s29
        v_lshlrev_b32 v11, 5, v11
        s_lshl_b32 s61, {sJ}, 7
        s_add_u32 s61, s61, s75
        s_mov_b64 exec, 15
        buffer_store_dwordx4 v[16:19], v11, {sWS}, s61 offen sc1
        buffer_store_dwordx4 v[20:23], v11, {sWS}, s61 offen offset:16 sc1
        s_mov_b64 exec, -1
        L_qkv_ns2:
        """)

        def rdW(s):
            b = WF + 8 * (s % 3)
            a(f"ds_read_b128 {vr(b,4)}, v4 offset:{1792*s}")
            a(f"ds_read_b128 {vr(b+4,4)}, v5 offset:{1792*s}")
        a(f"""
        v_lshlrev_b32 v9, 2, v6
        v_add_u32 v10, {L_CS}, v9
        ds_read_b32 v250, v10
        ds_read_b32 v252, v10 offset:128
        s_lshl_b32 s61, {sT}, 9
        s_add_u32 s75, s75, s61
        s_mov_b32 s64, 0xffff0000
        s_waitcnt lgkmcnt(0)
        """)
        for r in (250, 252):
            a(f"""
            v_and_b32 v9, s64, v{r}
            v_sub_f32 v10, v{r}, v9
            v_cvt_pk_bf16_f32 v{r}, v9, v9
            v_cvt_pk_bf16_f32 v{r+1}, v10, 0
            """)
        rdW(0)
        rdW(1)
        def swap(s):
            x = XF + 4 * s
            a(f"s_waitcnt vmcnt({min(35 - s, WIN - 1)})")
            a(f"v_permlane16_swap_b32 v{x}, v{x+2}")
            a(f"v_permlane16_swap_b32 v{x+1}, v{x+3}")
        swap(0)
        for s in range(36):
            x, b = XF + 4 * s, WF + 8 * (s % 3)
            if s % 9 == 0 and 'noprio' not in EXP:
                a(f"s_setprio {3 - s // 9}")
            npc = (64 - WQ1) // 4
            if 2 * s < npc and WQ1 < 63:
                L = self.lab()
                a(f"s_cmp_eq_u32 s87, 0\ns_cbranch_scc1 {L}")
                for j in range(2 * s, min(2 * s + 2, npc)):
                    if j == npc - 1:
                        a(f"s_cmp_eq_u32 {sW}, 7\ns_cbranch_scc1 {L}")
                    a(f"s_add_u32 m0, s88, {L_WQ + 4096*j}\ns_add_u32 s86, s87, {4096*j}")
                    a(f"buffer_load_dwordx4 v8, {sWS}, s86 offen sc1 lds")
                a(f"{L}:")
            if s == WQ1 * 1024 // 1792 - 2 and WQ1 < 63:
                L = self.lab()
                a(f"s_cmp_lg_u32 {sLayer}, 0\ns_cbranch_scc1 {L}\ns_barrier\n{L}:")
            if s + WIN < 36:
                ldx(s + WIN)
            if s + 1 < 36:
                swap(s + 1)
            a(f"s_waitcnt lgkmcnt({2 if s + 1 < 36 else 0})")
            if 'nomfma' not in EXP or s == 0:
                a(f"v_mfma_f32_32x32x16_bf16 {vr(D0,16)}, {vr(b,4)}, {vr(x,4)}, {vr(D0,16) if s else 0}")
                a(f"v_mfma_f32_32x32x16_bf16 {vr(D1,16)}, {vr(x,4)}, {vr(b+4,4)}, {vr(D1,16) if s else 0}")
            if s + 2 < 36:
                rdW(s + 2)
            if s == 20:
                a(f"buffer_load_dwordx4 v[10:13], v53, {sWS}, s75 offen sc1")
            if s == 31:
                Lp, Ld = self.lab("Ls"), self.lab("Lsd")
                a(f"""
                s_mov_b32 s96, {SPIN_MAX}
                {Lp}:
                v_cmp_eq_u64 vcc, {sTag}, v[12:13]
                s_cmp_eq_u64 vcc, exec
                s_cbranch_scc1 {Ld}
                buffer_load_dwordx4 v[10:13], v53, {sWS}, s75 offen sc1
                s_sub_u32 s96, s96, 1
                s_cmp_lg_u32 s96, 0
                s_waitcnt vmcnt(0)
                s_cbranch_scc1 {Lp}
                """)
                self.timeout_mark(9, 12)
                a(f"""
                {Ld}:
                v_mul_f32 v12, {f32hex(C_SCALE)}, v11
                ds_write_b32 v60, v11
                ds_write_b32 v60, v12 offset:128
                """)
                for g in range(4):
                    a(f"ds_read_b128 {vr(RS+4*g,4)}, v61 offset:{32*g}")
                a("""
                s_mov_b32 s62, -1
                s_mov_b32 s63, 0
                v_cndmask_b32 v10, 0, v10, s[62:63]
                v_and_b32 v13, s64, v10
                v_sub_f32 v14, v10, v13
                v_cvt_pk_bf16_f32 v14, v13, v14
                v_cvt_pk_bf16_f32 v15, v13, 0
                """)
        self.stamp(6)
        KF, VF = 112, 120
        R = self.R
        a(f"""
        s_mov_b32 s62, 0xfffff
        s_mov_b32 s63, 0xfffff
        v_mfma_f32_32x32x8bf16_1k {vr(D1,16)}, v[14:15], v[252:253], {vr(D1,16)}
        v_mfma_f32_32x32x8bf16_1k {vr(D0,16)}, v[250:251], v[14:15], {vr(D0,16)}
        s_mov_b32 s66, 0xf00000
        s_mov_b32 s67, 0xf00000
        """)
        for i in range(16):
            a(f"v_mov_b32 v{R.O+i}, 0")
        a("s_waitcnt lgkmcnt(0)")
        for i in range(16):
            a(f"v_mul_f32 v{D1+i}, v{RS+i}, v{D1+i}")
        for i in range(8):
            a(f"v_cvt_pk_bf16_f32 v{VF+i}, v{D1+2*i}, v{D1+2*i+1}")
        a("s_mov_b64 exec, s[66:67]")
        assert L_OWN == 0
        for i in range(8):
            g, r = i >> 1, 2 * (i & 1)
            off = 64 * (g >> 1) + 16 * (g & 1) + 4 * r
            a(f"ds_write_b16 v57, v{VF+i} offset:{off}")
            a(f"ds_write_b16_d16_hi v57, v{VF+i} offset:{off+4}")
        a("s_mov_b64 exec, -1")
        a(f"ds_read_b32 v63, v59\nds_read_b32 v{R.Qr}, v58\ns_mov_b32 s66, 0xc0000\ns_mov_b32 s67, 0xc0000")
        for i in range(8):
            a(f"v_cndmask_b32 v{VF+i}, v{VF+i}, v62, s[66:67]")
        a(f"""
        s_mov_b64 exec, s[62:63]
        buffer_store_dwordx4 {vr(VF,4)}, v55, {sWS}, s89 offen sc1
        buffer_store_dwordx4 {vr(VF+4,4)}, v55, {sWS}, s89 offen offset:640 sc1
        s_mov_b64 exec, -1
        """)
        for i in range(8, 16):
            a(f"v_mul_f32 v{D0+i}, v11, v{D0+i}")
        for i in range(4):
            a(f"v_cvt_pk_bf16_f32 v{KF+i}, v{D0+8+2*i}, v{D0+9+2*i}")
        a(f"""
        buffer_store_dwordx4 {vr(KF,4)}, v54, {sWS}, s89 offen sc1
        s_waitcnt lgkmcnt(0)
        s_mov_b32 exec_hi, 0
        buffer_store_dword v63, v59, {sWS}, s89 offen sc1
        s_mov_b64 exec, s[62:63]
        ds_write_b128 v55, {vr(VF,4)} offset:{L_OWN}
        ds_write_b128 v55, {vr(VF+4,4)} offset:{L_OWN+640}
        s_mov_b64 exec, -1
        ds_write_b128 v54, {vr(KF,4)} offset:{L_OWN}
        """)
        for i in range(8):
            a(f"v_mul_f32 v{D0+i}, v12, v{D0+i}")
        for i in range(4):
            a(f"v_cvt_pk_bf16_f32 v{R.Q+i}, v{D0+2*i}, v{D0+1+2*i}")
        a(f"v_mov_b32 v{R.aV}, v56\ns_waitcnt lgkmcnt(0)")
        self.stamp(7)

    class Regs:
        S = [128, 160]
        O = 192
        Q = 208
        Qr = 212
        K = [8, 16]
        Kr = [24, 26]
        V = [28, 44]
        idx, aK, aR, aV = 214, 215, 216, 217

    def attention(self):
        a, R = self.a, self.R
        slot = lambda blk: L_OWN if blk == 0 else L_RING + ((blk - 2) % 3) * KV_B
        aK0, aR0, aV0 = 218, 219, 220

        def rd(kind, u, i=0):
            blk, dt = u >> 2, u & 3
            own = blk == 0
            base = slot(blk) - (0 if own else L_RING)
            buf = u & 1
            if kind == "R":
                return f"ds_read_b32 v{R.Kr[buf]}, v{aR0 if own else R.aR} offset:{base + KV_R + 256*dt}"
            if kind == "K":
                return f"ds_read_b128 {vr(R.K[buf]+4*i,4)}, v{aK0 if own else R.aK} offset:{base + 2048*dt + 1024*i}"
            return f"ds_read_b128 {vr(R.V[buf]+4*i,4)}, v{aV0 if own else R.aV} offset:{base + KV_V + 2560*dt + 640*i}"

        def m4(sb, kb):
            a(f"v_mfma_f32_32x32x4bf16_1k {vr(R.S[sb],32)}, {vr(R.Kr[kb],2)}, {vr(R.Qr,2)}, 0")

        def mf(sb, kb, hi):
            d = vr(R.S[sb] + 16 * hi, 16)
            a(f"v_mfma_f32_32x32x16_bf16 {d}, {vr(R.K[kb]+4*hi,4)}, {vr(R.Q,4)}, {d}")

        def sm(sb, vb, g):
            a(f"v_smfmac_f32_32x32x32_bf16 {vr(R.O,16)}, {vr(R.V[vb]+4*g,4)}, {vr(R.S[sb]+8*g,8)}, v{R.idx}")

        def call_try():
            a("s_call_b64 s[76:77], L_try")

        def try_body():
            Ln, Lr = self.lab(), self.lab()
            a(f"""
            L_try:
            .reset_waits
            s_waitcnt vmcnt(0)
            v_cmp_eq_u64 vcc, {sTag}, v[6:7]
            s_lshr_b64 s[100:101], vcc, 1
            s_and_b64 vcc, vcc, s[100:101]
            s_lshr_b64 s[100:101], vcc, 2
            s_and_b64 vcc, vcc, s[100:101]
            s_lshr_b64 s[100:101], vcc, 4
            s_and_b64 vcc, vcc, s[100:101]
            s_and_b64 s[100:101], vcc, s[90:91]
            {Ln}:
            """)
            if 'fixorder' in EXP:
                a(f"""
                s_add_u32 s60, {sX}, s62
                s_add_u32 s60, s60, 1
                s_and_b32 s60, s60, 7
                s_lshl_b32 s60, s60, 3
                s_bitcmp1_b64 s[100:101], s60
                s_cbranch_scc0 {Lr}
                """)
            else:
                a(f"s_cbranch_scc0 {Lr}\ns_ff1_i32_b64 s60, s[100:101]")
            a(f"""
            s_bitset0_b64 s[100:101], s60
            s_bitset0_b64 s[90:91], s60
            s_lshr_b32 s60, s60, 3
            s_add_u32 s60, s60, s69
            s_mul_i32 s60, s60, {KV_B}
            s_add_u32 s60, s60, {W_KV}
            s_mul_i32 s63, s62, {slot(1) - slot(2)}
            s_sub_u32 s63, {slot(1)}, s63
            """)
            for i in range(19):
                a(f"s_add_u32 m0, s63, {1024*i}")
                a(f"s_add_u32 s86, s60, {1024*i}")
                a(f"buffer_load_dwordx4 v{aK0}, {sWS}, s86 offen sc1 lds")
            a(f"""
            s_add_u32 s62, s62, 1
            s_cmp_ge_u32 s62, 2
            s_cbranch_scc1 L_try_ret
            s_cmp_lg_u64 s[100:101], 0
            s_branch {Ln}
            {Lr}:
            buffer_load_dwordx2 v[6:7], v4, {sWS}, s61 offen sc1
            L_try_ret:
            s_setpc_b64 s[76:77]
            """)
        self.try_body = try_body

        def try_until(n):
            L, Ld = self.lab(), self.lab()
            a(f"""
            s_mov_b32 s96, {SPIN_MAX}
            {L}:
            s_cmp_ge_u32 s62, {n}
            s_cbranch_scc1 {Ld}
            """)
            call_try()
            a(f"""
            s_sub_u32 s96, s96, 1
            s_cmp_lg_u32 s96, 0
            s_cbranch_scc1 {L}
            """)
            self.timeout_mark(5, 228)
            a(f"{Ld}:")

        def on_wave(w, fn):
            if 'nofetch' in EXP:
                return
            L = self.lab()
            a(f"s_cmp_lg_u32 {sW}, {w}\ns_cbranch_scc1 {L}\ns_setprio 3")
            fn()
            a(f"{L}:")

        a(f"""
        v_lshlrev_b32 v{aK0}, 4, v2
        v_lshlrev_b32 v{aR0}, 2, v2
        v_mov_b32 v{aV0}, v{R.aV}
        v_add_u32 v{R.aK}, {L_RING}, v{aK0}
        v_add_u32 v{R.aR}, {L_RING}, v{aR0}
        v_add_u32 v{R.aV}, {L_RING}, v{aV0}
        v_mov_b32 v{R.idx}, 0xdddddddd
        v_mov_b32 v{R.Qr+1}, 0
        v_mov_b32 v{R.Kr[0]+1}, 0
        v_mov_b32 v{R.Kr[1]+1}, 0
        s_add_u32 s70, s69, {sX}
        s_lshl_b32 s70, s70, 3
        s_add_u32 s70, s70, {sW}
        s_lshl_b32 s70, s70, 6
        s_add_u32 s70, s70, {W_F5}
        """)
        a(f"""
        s_lshl_b32 s83, {sW}, 10
        s_and_b32 s84, {sJ}, 7
        s_mul_i32 s84, s84, {WO_B}
        s_add_u32 s84, s84, {W_WO}
        s_add_u32 s84, s84, s83
        v_mov_b32 v222, s28
        v_mov_b32 v223, s29
        v_mov_b32 v224, 0
        """)
        a("s_barrier")

        def publish():
            a(f"""
            s_waitcnt vmcnt(0)
            s_mov_b64 exec, 1
            buffer_store_dwordx2 v[222:223], v224, {sWS}, s70 offen sc1
            s_mov_b64 exec, -1
            """)

        def seg_start(u):
            for l in (rd("R", u), rd("K", u, 0), rd("K", u, 1), rd("V", u, 0), rd("V", u, 1), rd("R", u + 1), rd("K", u + 1, 0),
                      rd("V", u, 2), rd("K", u + 1, 1), rd("V", u, 3)):
                a(l)

        def seg_qk():
            a("s_waitcnt lgkmcnt(7)")
            m4(0, 0)
            a("s_nop 15\ns_nop 1")
            mf(0, 0, 0)
            mf(0, 0, 1)
            a("s_nop 10")

        def piece(src, lds, off, maxw=8):
            if 'nofetch' in EXP:
                return
            L = self.lab()
            if maxw < 8:
                a(f"s_cmp_ge_u32 {sW}, {maxw}\ns_cbranch_scc1 {L}")
            a(f"s_add_u32 m0, s83, {lds + off}\ns_add_u32 s86, {src}, {off}")
            a(f"buffer_load_dwordx4 v{aK0}, {sWS}, s86 offen sc1 lds")
            if maxw < 8:
                a(f"{L}:")

        def poll_all():
            a(f"""
            s_lshl_b32 s61, s69, 9
            s_add_u32 s61, s61, {W_F5}
            v_lshlrev_b32 v4, 6, v2
            v_min_u32 v5, 17, v2
            v_lshlrev_b32 v5, 6, v5
            s_mov_b32 s60, {W_F3 + 72*64}
            """)
            self.poll([(4, "s61", 0), (5, "s60", 0)], 60, 5)

        seg_start(0)
        L = self.lab()
        a(f"s_cmp_lt_u32 {sW}, 4\ns_cbranch_scc1 {L}")
        publish()
        a(f"s_cmp_lg_u32 {sLayer}, 0\ns_cbranch_scc1 {L}\ns_cmp_ge_u32 {sJ}, 18\ns_cbranch_scc1 {L}")
        for i in range(8):
            a(f"buffer_store_dwordx2 {vr(232+2*i,2)}, v248, {sWS}, s79 offen sc1")
            a(f"s_add_u32 s79, s79, {2*36864}")
        a(f"{L}:")
        seg_qk()
        self.stamp(8)
        for u in range(32):
            P = u & 1
            N = P ^ 1
            end = 4 if u < 4 else 32
            first = u in (0, 4)
            last = u == end - 1
            e = lambda i, j: [a(f"v_exp_f32 v{R.S[P]+k}, v{R.S[P]+k}") for k in range(i, j)]
            k2 = u + 2 < end
            v1 = u + 1 < end
            blk, dt = u >> 2, u & 3
            hook = {}
            if u == PUB_AT:
                L = self.lab()
                a(f"s_cmp_ge_u32 {sW}, 4\ns_cbranch_scc1 {L}")
                publish()
                a(f"""
                s_cmp_lg_u32 {sW}, 0
                s_cbranch_scc1 {L}
                s_mov_b32 s62, 0
                s_mov_b32 s90, 0x01010101
                s_mov_b32 s91, 0x01010101
                s_lshl_b32 s60, {sX}, 3
                s_bitset0_b64 s[90:91], s60
                s_lshl_b32 s61, s69, 9
                s_add_u32 s61, s61, {W_F5}
                v_lshlrev_b32 v4, 6, v2
                buffer_load_dwordx2 v[6:7], v4, {sWS}, s61 offen sc1
                {L}:
                """)
            if u in TRY_AT:
                L = self.lab()
                a(f"s_cmp_lg_u32 {sW}, 0\ns_cbranch_scc1 {L}\ns_cmp_ge_u32 s62, 2\ns_cbranch_scc1 {L}")
                call_try()
                a(f"{L}:")
            if u == 4:
                L0, L1 = self.lab(), self.lab()
                a(f"s_cmp_lg_u32 {sW}, 0\ns_cbranch_scc1 {L1}")
                try_until(1)
                a(f"{L1}:")
                self.out_setup()
                L1 = self.lab()
                a(f"""
                s_cmp_lg_u32 {sW}, 0
                s_cbranch_scc1 {L0}
                s_cmp_lg_u32 s62, 2
                s_cbranch_scc1 {L0}
                s_waitcnt vmcnt(19)
                s_branch {L1}
                {L0}:
                s_waitcnt vmcnt(0)
                {L1}:
                s_barrier
                """)
                self.stamp(14)
                seg_start(4)
                L0, L1 = self.lab(), self.lab()
                a(f"s_cmp_lg_u32 {sW}, 0\ns_cbranch_scc1 {L0}\ns_setprio 3")
                try_until(2)
                a(f"""
                {L1}:
                v_mov_b32 v4, {L_REM}
                v_mov_b32 v6, s90
                v_mov_b32 v7, s91
                ds_write_b64 v4, v[6:7]
                s_waitcnt lgkmcnt(0)
                {L0}:
                """)
                L = self.lab()
                a(f"""
                s_cmp_lt_u32 {sW}, 4
                s_cbranch_scc1 {L}
                s_cmp_lg_u32 {sLayer}, 0
                s_cbranch_scc1 {L}
                s_cmp_ge_u32 {sJ}, 18
                s_cbranch_scc1 {L}
                s_mov_b64 exec, 1
                buffer_store_dwordx2 v[222:223], v224, {sWS}, s80 offen sc1
                s_mov_b64 exec, -1
                {L}:
                """)
                on_wave(6, poll_all)
                seg_qk()
            if 1 <= blk < 7 and dt == 2 and 'nobar' not in EXP:
                a("s_waitcnt vmcnt(0)\ns_barrier")
                if blk == 3:
                    L = self.lab()
                    a(f"s_cmp_ge_u32 {sW}, 4\ns_cbranch_scc1 {L}\nv_cmp_ne_u64 vcc, {sTag}, v[74:75]\ns_cmp_eq_u64 vcc, 0\ns_cbranch_scc1 {L}")
                    self.poll([(72, "s78", 0)], 74, 10)
                    a(f"{L}:")
                if blk + 2 < 8:
                    if blk == 1 and 'fixorder' not in EXP:
                        a(f"""
                        v_mov_b32 v4, {L_REM}
                        ds_read_b64 v[6:7], v4
                        s_waitcnt lgkmcnt(0)
                        v_readfirstlane_b32 s90, v6
                        v_readfirstlane_b32 s91, v7
                        """)
                    if 'fixorder' in EXP:
                        a(f"s_add_u32 s85, {sX}, {blk+2}\ns_and_b32 s85, s85, 7")
                    else:
                        a("s_ff1_i32_b64 s85, s[90:91]\ns_bitset0_b64 s[90:91], s85\ns_lshr_b32 s85, s85, 3")
                    a(f"""
                    s_add_u32 s85, s85, s69
                    s_mul_i32 s85, s85, {KV_B}
                    s_add_u32 s85, s85, {W_KV}
                    s_add_u32 s85, s85, s83
                    """)
            if 1 <= blk < 7 and dt >= 2:
                src, lds, o = ("s85", slot(blk + 2), 0) if blk < 6 else ("s84", L_WO, 36 * 1024)
                if dt == 2:
                    hook[0] = lambda: piece(src, lds, o)
                    hook[1] = lambda: piece(src, lds, o + 8192)
                else:
                    hook[0] = lambda: piece(src, lds, o + 16384, 3)
                    if blk < 6:
                        hook[1] = lambda: piece("s84", L_WO, 8192 * (blk - 1), 8 if blk < 5 else 4)
            if u == 12:
                def yflag():
                    L = self.lab()
                    a(f"s_cmp_ge_u32 {sW}, 4\ns_cbranch_scc1 {L}\nbuffer_load_dwordx2 v[74:75], v72, {sWS}, s78 offen sc1\n{L}:")
                hook[0] = yflag
            if u == 16:
                def resid():
                    L = self.lab()
                    a(f"s_cmp_ge_u32 {sW}, 4\ns_cbranch_scc1 {L}\ns_add_u32 s60, s67, s68\ns_add_u32 s61, s67, {W_Y}")
                    for ft in range(5):
                        va = 64 if ft == 4 else 63
                        a(f"buffer_load_dwordx2 {vr(76+2*ft,2)}, v{va}, {sWS}, s60 offen sc1")
                        a(f"buffer_load_dwordx2 {vr(86+2*ft,2)}, v{va}, {sWS}, s61 offen sc1")
                        if ft < 4:
                            a("s_add_u32 s60, s60, 1024\ns_add_u32 s61, s61, 1024")
                    a(f"{L}:")
                hook[0] = resid
            H = lambda k: hook.get(k, lambda: None)()
            if 'noprio' not in EXP and u >= 4:
                a(f"s_setprio {3 - ((u + 2) & 3)}")
            e(0, 2)
            if not first:
                sm(N, N, 3)
            if k2:
                a(rd("R", u + 2))
            e(2, 5)
            a(f"s_waitcnt lgkmcnt({2 if last else 3 + (1 if k2 else 0)})")
            if not last:
                m4(N, N)
            if v1:
                a(rd("V", u + 1, 0))
            H(0)
            e(5, 13)
            sm(P, P, 0)
            if v1:
                a(rd("V", u + 1, 1))
            e(13, 18)
            sm(P, P, 1)
            if k2:
                a(rd("K", u + 2, 0))
            e(18, 22)
            if not last:
                mf(N, N, 0)
            if v1:
                a(rd("V", u + 1, 2))
            H(1)
            e(22, 26)
            a(f"s_waitcnt lgkmcnt({(2 if k2 else 0) + (3 if v1 else 0)})")
            sm(P, P, 2)
            if k2:
                a(rd("K", u + 2, 1))
            e(26, 29)
            if not last:
                mf(N, N, 1)
            if v1:
                a(rd("V", u + 1, 3))
            e(29, 32)
            if last:
                a("s_nop 1")
                sm(P, P, 3)
        self.stamp(9)
        a("s_setprio 0")
        O = R.O
        a(f"""
        s_add_u32 s60, s71, {sJ}
        s_lshl_b32 s60, s60, 6
        s_add_u32 s70, s60, {W_F6}
        s_lshl_b32 s61, s71, 6
        s_add_u32 s83, s61, {W_F6}
        s_mov_b32 s72, 0
        L_att_norm:
        s_nop 5
        v_mov_b32 v10, v{O+10}
        v_mov_b32 v11, v{O+10}
        v_add_f32 v12, abs(v{O}), abs(v{O+1})
        v_add_f32 v13, abs(v{O+2}), abs(v{O+3})
        v_permlane32_swap_b32 v10, v11
        v_add_f32 v12, v12, abs(v{O+4})
        v_add_f32 v13, v13, abs(v{O+5})
        v_add_f32 v12, v12, abs(v{O+6})
        v_add_f32 v13, v13, abs(v{O+7})
        v_add_f32 v12, v12, abs(v{O+8})
        v_add_f32 v13, v13, abs(v{O+9})
        v_add_f32 v12, v12, v13
        v_rcp_f32 v11, v10
        v_cmp_le_f32 vcc, {f32hex(2.0**-100)}, v10
        v_cmp_ge_f32 s[94:95], {"s73"}, v10
        v_cmp_ge_f32 s[100:101], {"s74"}, v12
        s_nop 0
        s_and_b64 vcc, vcc, s[94:95]
        s_and_b64 vcc, vcc, s[100:101]
        s_cmp_eq_u64 vcc, exec
        s_cbranch_scc1 L_att_ok
        s_cmp_eq_u32 s72, 0
        s_cbranch_scc1 L_att_fallback
        L_att_ok:
        """)
        for i in range(10):
            a(f"v_mul_f32 v{O+i}, v11, v{O+i}")
        for i in range(5):
            a(f"v_cvt_pk_bf16_f32 v{12+i}, v{O+2*i}, v{O+2*i+1}")
        a(f"""
        buffer_store_dwordx4 v[12:15], v225, {sWS}, s81 offen sc1
        s_mov_b32 exec_hi, 0
        buffer_store_dword v16, v226, {sWS}, s82 offen sc1
        s_mov_b64 exec, -1
        s_cmp_lg_u32 {sW}, 0
        s_waitcnt vmcnt(0)
        s_barrier
        """)

    def out_setup(self):
        a = self.a
        L = self.lab()
        a(f"""
        v_lshrrev_b32 v61, 5, v2
        v_and_b32 v60, 15, v2
        v_lshlrev_b32 v226, 1, v60
        v_bfe_u32 v225, v2, 4, 1
        v_add_u32 v226, v226, v225         ; tau(n)
        s_lshl_b32 s60, {sT}, 5
        v_add_u32 v226, s60, v226
        v_lshlrev_b32 v225, 4, v226
        v_lshl_add_u32 v225, v61, 12, v225
        v_lshlrev_b32 v226, 2, v226
        s_lshl_b32 s60, {sLayer}, 3
        s_add_u32 s60, s60, {sX}
        s_lshl_b32 s71, s60, 5             ; (layer*8+X)*32
        s_add_u32 s60, s71, {sJ}
        s_lshl_b32 s81, s60, 13
        s_add_u32 s81, s81, {W_OM}
        s_lshl_b32 s82, s60, 10
        s_add_u32 s82, s82, {W_OR}
        s_cmp_ge_u32 {sW}, 4
        s_cbranch_scc1 {L}
        v_lshrrev_b32 v61, 4, v2
        s_lshr_b32 s64, {sJ}, 3            ; sub
        s_and_b32 s65, {sJ}, 7             ; slice
        s_lshl_b32 s66, s64, 6
        s_lshl_b32 s67, {sT4}, 4
        s_add_u32 s66, s66, s67
        v_add_u32 v62, s66, v60
        v_lshlrev_b32 v63, 8, v61
        v_lshl_add_u32 v63, v60, 3, v63    ; g*256 + tok*8
        v_mov_b32 v65, 0x7fffffff
        v_cmp_gt_u32 vcc, 2, v61
        s_mul_i32 s60, s65, {18*256}
        s_lshl_b32 s63, {sX}, 3
        s_lshr_b32 s67, s66, 5
        s_add_u32 s63, s63, s67
        s_mul_i32 s63, s63, 36864
        s_add_u32 s60, s60, s63
        s_and_b32 s63, s66, 16
        s_lshl_b32 s63, s63, 3
        s_add_u32 s67, s60, s63
        v_cndmask_b32 v64, v65, v63, vcc
        v_lshrrev_b32 v65, 1, v61
        v_lshlrev_b32 v65, 13, v65
        v_and_b32 v66, 1, v61
        v_lshl_add_u32 v65, v66, 12, v65
        v_lshl_add_u32 v65, v62, 4, v65    ; o main
        v_lshlrev_b32 v66, 12, v61
        v_lshl_add_u32 v66, v62, 2, v66    ; o rem
        v_lshlrev_b32 v67, 4, v2           ; W ft<4
        v_and_b32 v68, 7, v2
        v_lshlrev_b32 v68, 4, v68
        v_lshl_add_u32 v68, v61, 7, v68
        v_add_u32 v68, 4096, v68           ; W ft==4
        v_add_u32 v69, {9*4608}, v67
        v_add_u32 v70, {9*4608}, v68
        v_and_b32 v71, 31, v2
        v_lshlrev_b32 v71, 6, v71          ; flags
        v_min_u32 v72, 17, v2
        v_lshlrev_b32 v72, 8, v72          ; y flags
        s_mul_i32 s78, s65, {18*256}
        s_lshr_b32 s63, {sX}, 1
        s_lshl_b32 s63, s63, 6
        s_add_u32 s78, s78, s63
        s_add_u32 s78, s78, {W_F10}
        {L}:
        """)

    def next_layer(self):
        self.a(f"s_mov_b32 {sLayer}, 1\ns_mov_b32 s68, {W_X3}\ns_mov_b32 s87, 0")
        self.qkv_setup()

    def fetch_wo(self, first, n, va, step=1):
        Ll = self.lab()
        self.a(f"""
        s_and_b32 s60, {sJ}, 7
        s_mul_i32 s60, s60, {WO_B}
        s_add_u32 s60, s60, {W_WO + 1024*first}
        s_add_u32 s61, s60, {1024*n}
        s_mov_b32 m0, {L_WO + 1024*first}
        """)
        if step > 1:
            self.a("s_lshl_b32 s62, s62, 10\ns_add_u32 s60, s60, s62\ns_add_u32 m0, m0, s62\ns_nop 0")
        else:
            self.a("s_nop 0")
        self.a(f"""
        {Ll}:
        buffer_load_dwordx4 v{va}, {sWS}, s60 offen sc1 lds
        s_add_u32 m0, m0, {1024*step}
        s_add_u32 s60, s60, {1024*step}
        s_cmp_lt_u32 s60, s61
        s_cbranch_scc1 {Ll}
        """)

    def fallback(self):
        a, R = self.a, self.R
        S0 = R.S[0]
        a("L_att_fallback:")
        a(".reset_waits")
        a(f"""
        s_mov_b32 s72, 1
        s_mul_i32 s75, s69, {KV_B}
        s_add_u32 s75, s75, {W_KV}
        v_mov_b32 v221, 0xff7fffff
        s_waitcnt vmcnt(0)
        """)
        for p in range(2):
            Lb = self.lab("Lfb")
            a(f"s_mov_b32 s76, 0\n{Lb}:")
            a(f"""
            s_lshr_b32 s77, s76, 2
            s_and_b32 s78, s76, 3
            s_mul_i32 s77, s77, {KV_B}
            s_add_u32 s77, s77, s75
            s_lshl_b32 s79, s78, 11
            s_add_u32 s79, s79, s77
            buffer_load_dwordx4 {vr(R.K[0]+8,4)}, v218, {sWS}, s79 offen sc1
            buffer_load_dwordx4 {vr(R.K[0]+12,4)}, v218, {sWS}, s79 offen offset:1024 sc1
            s_lshl_b32 s79, s78, 8
            s_add_u32 s79, s79, s77
            s_add_u32 s79, s79, {KV_R}
            buffer_load_dword v{R.Kr[0]}, v219, {sWS}, s79 offen sc1
            """)
            if p:
                a(f"s_mul_i32 s79, s78, 2560\ns_add_u32 s79, s79, s77\ns_add_u32 s79, s79, {KV_V}")
                for i in range(4):
                    a(f"buffer_load_dwordx4 {vr(R.V[0]+4*i,4)}, v220, {sWS}, s79 offen offset:{640*i} sc1")
            a(f"""
            s_waitcnt vmcnt(0)
            v_mfma_f32_32x32x4bf16_1k {vr(S0,32)}, {vr(R.Kr[0],2)}, {vr(R.Qr,2)}, 0
            s_nop 15
            s_nop 3
            v_mfma_f32_32x32x16_bf16 {vr(S0,16)}, {vr(R.K[0]+8,4)}, {vr(R.Q,4)}, {vr(S0,16)}
            v_mfma_f32_32x32x16_bf16 {vr(S0+16,16)}, {vr(R.K[0]+12,4)}, {vr(R.Q,4)}, {vr(S0+16,16)}
            s_nop 15
            """)
            if p == 0:
                for i in range(16):
                    a(f"v_max3_f32 v221, v221, v{S0+2*i}, v{S0+2*i+1}")
            else:
                for i in range(32):
                    a(f"v_sub_f32 v{S0+i}, v{S0+i}, v221")
                for i in range(32):
                    a(f"v_exp_f32 v{S0+i}, v{S0+i}")
                a("s_nop 1")
                for g in range(4):
                    a(f"v_smfmac_f32_32x32x32_bf16 {vr(R.O,16)}, {vr(R.V[0]+4*g,4)}, {vr(S0+8*g,8)}, v{R.idx}")
            a(f"s_add_u32 s76, s76, 1\ns_cmp_lt_u32 s76, 32\ns_cbranch_scc1 {Lb}")
            if p == 0:
                a("v_mov_b32 v227, v221\ns_nop 1\nv_permlane32_swap_b32 v221, v227\ns_nop 1\nv_max_f32 v221, v221, v227")
                for i in range(16):
                    a(f"v_mov_b32 v{R.O+i}, 0")
        a("s_nop 15\ns_branch L_att_norm")

    def outproj(self):
        a = self.a
        OF, ACC, XR, YR = 128, 16, 76, 86
        WF = [36, 200, 220]
        a(f"""
        s_cbranch_scc1 L_op_nf
        s_mov_b64 exec, 1
        buffer_store_dwordx2 v[222:223], v224, {sWS}, s70 offen sc1
        s_mov_b64 exec, -1
        """)
        self.stamp(10)
        a(f"""
        L_op_nf:
        s_cmp_ge_u32 {sW}, 4
        s_cbranch_scc1 L_op_help
        s_mov_b32 s63, 0xffff0000
        """)
        XF = 96
        YF = [116 + i for i in range(12)] + [240 + i for i in range(8)]
        for i in range(10):
            a(f"v_lshlrev_b32 v{XF+2*i}, 16, v{XR+i}")
            a(f"v_and_b32 v{XF+2*i+1}, s63, v{XR+i}")
            a(f"v_lshlrev_b32 v{YF[2*i]}, 16, v{YR+i}")
            a(f"v_and_b32 v{YF[2*i+1]}, s63, v{YR+i}")
        L = self.lab()
        a(f"s_cmp_lg_u32 {sW}, 0\ns_cbranch_scc1 {L}")
        self.poll2([(71, "s83", 0)], 56, 6)
        a(f"""
        {L}:
        s_barrier
        s_lshl_b32 s60, s71, 13
        s_add_u32 s60, s60, {W_OM}
        s_lshl_b32 s61, s71, 10
        s_add_u32 s61, s61, {W_OR}
        """)
        self.stamp(11)
        for s in range(16):
            a(f"buffer_load_dwordx4 {vr(OF+4*s,4)}, v65, {sWS}, s60 offen sc1")
            if s < 15:
                a("s_add_u32 s60, s60, 0x4000")
        for s in range(2):
            for i in range(4):
                a(f"buffer_load_dword v{OF+64+4*s+i}, v66, {sWS}, s61 offen offset:{1024*i} sc1")
            if s == 0:
                a("s_add_u32 s61, s61, 0x4000")

        def rdW(s):
            hi = s >= 9
            out = []
            for ft in range(5):
                va = (69 if hi else 67) if ft < 4 else (70 if hi else 68)
                off = L_WO + 4608 * (s - 9 * hi) + (1024 * ft if ft < 4 else 0)
                out.append(f"ds_read_b128 {vr(WF[s%3]+4*ft,4)}, v{va} offset:{off}")
            return out
        for l in rdW(0) + rdW(1):
            a(l)
        for s in range(18):
            nxt = rdW(s + 2) if s < 16 else []
            a(f"s_waitcnt vmcnt({23-s if s < 16 else (4 if s == 16 else 0)}) lgkmcnt({5 if s < 17 else 0})")
            for ft in range(5):
                d = vr(ACC + 4 * ft, 4)
                a(f"v_mfma_f32_16x16x32_bf16 {d}, {vr(WF[s%3]+4*ft,4)}, {vr(OF+4*s,4)}, {d if s else vr(XF+4*ft,4)}")
                if nxt:
                    a(nxt[ft])
        self.stamp(12)
        XF = ACC
        a(f"""
        s_lshl_b32 s60, {sX}, 2
        s_add_u32 s60, s60, s64
        s_lshl_b32 s60, s60, 13
        s_add_u32 s60, s60, {W_G7}
        s_lshl_b32 s61, {sT4}, 8
        s_add_u32 s60, s60, s61
        s_lshl_b32 s61, s65, 10
        s_add_u32 s61, s61, s60
        v_lshlrev_b32 v4, 4, v60
        v_cmp_gt_u32 vcc, 2, v61
        v_mov_b32 v10, s28
        v_mov_b32 v11, s29
        s_cmp_lg_u32 {sLayer}, 0
        s_cbranch_scc1 L_op_final
        """)
        a(f"v_pk_add_f32 v[12:13], {vr(XF,2)}, {vr(XF+2,2)}\nv_pk_mul_f32 v[14:15], {vr(XF,2)}, {vr(XF,2)}")
        a(f"v_pk_fma_f32 v[14:15], {vr(XF+2,2)}, {vr(XF+2,2)}, v[14:15]")
        for i in range(2, 10):
            if i == 8:
                for j in range(16, 20):
                    a(f"v_cndmask_b32 v{XF+j}, 0, v{XF+j}, vcc")
            a(f"v_pk_add_f32 v[12:13], v[12:13], {vr(XF+2*i,2)}")
            a(f"v_pk_fma_f32 v[14:15], {vr(XF+2*i,2)}, {vr(XF+2*i,2)}, v[14:15]")
        a("v_add_f32 v8, v12, v13\nv_add_f32 v9, v14, v15")

        def xsum():
            for op in ("v_permlane16_swap_b32", "v_permlane32_swap_b32"):
                a(f"""
                v_mov_b32 v12, v8
                v_mov_b32 v13, v9
                s_nop 1
                {op} v8, v12
                {op} v9, v13
                s_nop 0
                v_add_f32 v8, v8, v12
                v_add_f32 v9, v9, v13
                """)
        xsum()
        a(f"""
        s_mov_b64 exec, 0xffff
        buffer_store_dwordx4 v[8:11], v4, {sWS}, s61 offen sc1
        s_mov_b64 exec, -1
        v_lshl_add_u32 v4, v61, 10, v4
        s_add_u32 s61, s60, 4096
        """)
        Ld0, Ld1 = self.poll2([(4, "s60", 0), (4, "s61", 0)], 136, 7, width=4)
        a(f"""
        {Ld0}:
        v_add_f32 v8, v136, v140
        v_add_f32 v9, v137, v141
        """)
        xsum()
        self.stats(8, 9, 12, 14, 10)
        a("v_mov_b32 v13, v12\nv_mov_b32 v15, v14")
        a(f"s_add_u32 s60, s67, {W_X3}")
        for ft in range(5):
            for p in range(2):
                x, y, t = XF + 4 * ft + 2 * p, YF[4 * ft + 2 * p], 96 + 4 * ft + 2 * p
                a(f"v_pk_fma_f32 {vr(t,2)}, {vr(x,2)}, v[12:13], v[14:15]")
                a(f"v_pk_fma_f32 {vr(x,2)}, {vr(t,2)}, {vr(y,2)}, {vr(x,2)}")
            a(f"v_cvt_pk_bf16_f32 v{76+2*ft}, v{XF+4*ft}, v{XF+4*ft+1}")
            a(f"v_cvt_pk_bf16_f32 v{77+2*ft}, v{XF+4*ft+2}, v{XF+4*ft+3}")
            a(f"buffer_store_dwordx2 {vr(76+2*ft,2)}, v{64 if ft == 4 else 63}, {sWS}, s60 offen sc1")
            if ft < 4:
                a("s_add_u32 s60, s60, 1024")
        self.next_layer()
        L = self.lab()
        a(f"""
        s_lshl_b32 s60, {sX}, 11
        s_add_u32 s60, s60, {W_F8}
        s_lshl_b32 s61, {sJ}, 6
        s_add_u32 s61, s61, s60
        v_lshlrev_b32 v8, 6, v6
        v_mov_b32 v10, s28
        v_mov_b32 v11, s29
        v_mov_b32 v12, 0
        v_mov_b32 v13, {L_CNT}
        v_mov_b32 v14, 1
        s_waitcnt vmcnt(0)
        s_mov_b64 exec, 1
        ds_add_rtn_u32 v14, v13, v14
        s_waitcnt lgkmcnt(0)
        v_readfirstlane_b32 s3, v14
        s_mov_b64 exec, -1
        s_cmp_lg_u32 s3, 3
        s_cbranch_scc1 {L}
        s_mov_b64 exec, 1
        buffer_store_dwordx2 v[10:11], v12, {sWS}, s61 offen sc1
        s_mov_b64 exec, -1
        """)
        self.poll2([(8, "s60", 0)], 220, 8)
        a(f"{L}:")
        a("s_branch L_next_layer")

        a("L_op_help:")
        a(".reset_waits")
        a(f"s_sub_u32 s62, {sW}, 4\ns_mov_b32 s3, 0\nv_mov_b32 v4, {L_CNT}\nv_mov_b32 v5, 0\nds_write_b32 v4, v5")
        self.fetch_wo(55, 26, 218, step=4)
        a("s_waitcnt vmcnt(0) lgkmcnt(0)\ns_barrier")
        a(f"s_cmp_lg_u32 {sLayer}, 0\ns_cbranch_scc1 L_end")
        self.next_layer()
        a("L_next_layer:")
        if self.stop == "gate2":
            a("s_branch L_end")
        a("s_branch L_qkv")

        a("L_op_final:")
        a(".reset_waits")
        self.srd(sA, "out", NB)
        a(f"""
        s_lshl_b32 s60, {sX}, 8
        v_add_u32 v8, s60, v62
        v_mul_u32_u24 v8, 1152, v8
        v_lshl_add_u32 v8, v61, 3, v8
        v_mov_b32 v11, 0x7fffffff
        v_cmp_gt_u32 vcc, 2, v61
        s_mul_i32 s60, s65, 144
        s_nop 0
        v_cndmask_b32 v9, v11, v8, vcc
        """)
        for ft in range(5):
            a(f"v_cvt_pk_bf16_f32 v{76+2*ft}, v{XF+4*ft}, v{XF+4*ft+1}")
            a(f"v_cvt_pk_bf16_f32 v{77+2*ft}, v{XF+4*ft+2}, v{XF+4*ft+3}")
            a(f"buffer_store_dwordx2 {vr(76+2*ft,2)}, v{9 if ft == 4 else 8}, {sA}, s60 offen offset:{32*ft} {os.environ.get('OUTF', '')}")
        a(f"""
        s_or_b32 s60, s2, {sW}
        s_cmp_lg_u32 s60, 0
        s_cbranch_scc1 L_end
        s_mov_b32 s60, {W_NONCE}
        """)
        self.flag_store("s60", 10)

    def build(self):
        a = self.a
        self.R = G.Regs
        self.prologue()
        self.prep()
        self.finish_if("prep")
        self.conv()
        self.relayout()
        self.colsum()
        self.finish_if("conv")
        a(f"s_mov_b32 s73, {f32hex(2.0**120)}\ns_mov_b32 s74, {f32hex(2.0**120)}")
        self.qkv()
        if self.stop == "qkv":
            a("s_waitcnt vmcnt(0)\ns_branch L_end")
        self.attention()
        self.finish_if("attn")
        self.outproj()
        a("L_end:")
        if self.ts:
            self.stamp(15)
            a(f"""
            s_lshl_b32 s60, s2, 3
            s_add_u32 s60, s60, {sW}
            s_lshl_b32 s60, s60, 8
            s_add_u32 s60, s60, {W_TS}
            v_lshlrev_b32 v4, 2, v2
            buffer_store_dword v255, v4, {sWS}, s60 offen
            """)
            if 'dbgts' in EXP:
                wg = int(os.environ.get("DBGWG", 0))
                a(f"""
                s_cmp_lg_u32 s2, {wg}
                s_cbranch_scc1 L_nodbg
                s_cmp_lg_u32 {sW}, 0
                s_cbranch_scc1 L_nodbg
                v_readlane_b32 s60, v255, 0
                s_nop 3
                v_subrev_u32 v5, s60, v255
                """)
                for n, i in enumerate((16, 1, 2, 3, 4, 5, 7, 8, 9, 11, 13, 21, 24, 25, 27, 31)):
                    a(f"v_readlane_b32 s61, v5, {i}\ns_nop 3\nv_writelane_b32 v6, s61, {n}")
                a(f"s_mov_b64 exec, 0xffff\nglobal_store_dword v4, v6, s[{PTR['dbg']}:{PTR['dbg']+1}]\nL_nodbg:")
        pr = os.environ.get("PROBE")
        if pr:
            i, j, mul, wg = map(int, pr.split(","))
            a(f"""
            s_cmp_lg_u32 s2, {wg}
            s_cbranch_scc1 L_noprobe
            s_cmp_lg_u32 {sW}, 0
            s_cbranch_scc1 L_noprobe
            v_readlane_b32 s60, v255, {i}
            v_readlane_b32 s61, v255, {j}
            v_readlane_b32 s62, v255, 31
            s_nop 3
            s_sub_u32 s61, s61, s60
            s_mul_i32 s61, s61, {mul}
            L_probe:
            s_memrealtime s[64:65]
            s_waitcnt lgkmcnt(0)
            s_sub_u32 s64, s64, s62
            s_cmp_lt_u32 s64, s61
            s_cbranch_scc1 L_probe
            L_noprobe:
            """)
        a("s_waitcnt vmcnt(0)")
        a("L_exit:")
        a("s_endpgm")
        self.fallback()
        self.try_body()
        a("L_code_end:")
        lines, added = fix_hazards(a.lines, verbose=True, tag="k")
        errs = check_waits(lines, "k")
        for e in errs:
            print(e)
        lines = [l for l in lines if not l.startswith(".reset_waits")]
        a.lines = lines
        body = a.text().replace("CODE_AFTER", "(L_code_end-L_pc_here)")
        ref = open(f"cdna_kernels/{NAME}.s.ref").read()
        head = ref[:ref.index("; Override launch")]
        txt = head + f"""; @launch grid=(256,1,1) block=(512,1,1) lds={LDS_BYTES}
.amdgcn_target "amdgcn-amd-amdhsa--gfx950"
.text
.globl {NAME}_kernel
.p2align 12
.type {NAME}_kernel,@function
{NAME}_kernel:
""" + body + f""".section .rodata,"a"
.p2align 6
.amdhsa_kernel {NAME}_kernel
  .amdhsa_next_free_vgpr 256
  .amdhsa_next_free_sgpr 102
  .amdhsa_accum_offset 256
  .amdhsa_group_segment_fixed_size 0
  .amdhsa_kernarg_size 96
  .amdhsa_user_sgpr_count 2
  .amdhsa_user_sgpr_kernarg_segment_ptr 1
  .amdhsa_system_sgpr_workgroup_id_x 1
.end_amdhsa_kernel
"""
        return txt, errs


if __name__ == "__main__":
    out = sys.argv[1]
    stop = None
    ts = False
    for x in sys.argv[2:]:
        if x == "ts":
            ts = True
        elif x == "ts2":
            ts = 2
        else:
            stop = x
    txt, errs = G(stop, ts).build()
    open(out, "w").write(txt)
    print("written", out, len(txt), "bytes;", len(errs), "wait errors")
```

```python
import sys
from asmlib import Asm, fix_hazards, check_waits

NAME = "interleave_layers__ssm_conv_h3__softmax_full_mha__prompt"
S, D = 2048, 576
NB = S * D * 2

W_NONCE = 0
W_F1 = 0x1000
W_F3 = 0x5000
W_F2 = 0x6C000
W_F4 = 0x8000
W_F5 = 0x12000
W_F6 = 0x52000
W_F8 = 0x5A000
W_G7 = 0x70000
W_ST0 = 0xB0000
W_CSP = 0x1C0000
W_F11 = 0x120000
W_F10 = 0x110000
W_G9 = 0x100000
W_TS = 0x140000
W_U = 0x210000
W_WQ = 0x500000
W_WO = 0x700000
W_X1 = 0x800000
W_X0 = 0x2000000
W_Y = 0xB00000
W_X3 = 0xE00000
W_KV = 0x1100000
W_OM = 0x1B00000
W_OR = 0x1F00000
W_SIZE = 0x2400000
WQ_B, WO_B, KV_B = 64512, 82944, 19456
KV_V, KV_R = 8192, 18432

L_HC, HC_B = 0, 4160
L_U, U_B = 66560, 4608
L_WO = 0
L_OWN = 0
L_RING = 37632
L_CS = 96000
L_ST = 96256
L_REM = 96256
L_QR = 98304
L_WQ = 99328
L_PK = L_WQ
L_PV = L_WQ + 10240
L_CNT = 98304
L_PX = L_PV + 9216
LDS_BYTES = 163840

sWS = "s[4:7]"
sA, sB, sC, sD_ = "s[8:11]", "s[12:15]", "s[16:19]", "s[20:23]"
sX, sJ, sW, sLayer = "s24", "s25", "s26", "s27"
sT, sT4 = "s30", "s31"
sTag = "s[28:29]"
sP = 32
PTR = dict(q=32, k=34, v=36, sk=38, h=40, dd=42, bx=44, wqkv=46, wo=48, out=50, dbg=52, ws=54)
SPIN_MAX = 400000
LOOK_AT = int(__import__('os').environ.get('LOOK', 2))
POLLS = {1: '1,0,0', 4: '0,2,0', 6: '1,1,2', 8: '1,1,2'}
PUB_AT = int(__import__('os').environ.get('PUB', 1))
TRY_AT = [int(x) for x in __import__('os').environ.get('TRY', '3').split(',')]
WQ1 = int(__import__('os').environ.get('WQ1', 63))

C_SCALE = 18 ** -0.5 * 1.4426950408889634


def f32hex(x):
    import struct
    return "0x%08x" % struct.unpack("<I", struct.pack("<f", x))[0]


def vr(a, n):
    return f"v[{a}:{a+n-1}]" if n > 1 else f"v{a}"


import os
EXP = os.environ.get('EXP', '').split(',') + ['hearly', 'f2first', 'fixorder', 'warmx'] + ([] if os.environ.get('NOTMAP') else ['tmap'])


class G:
    def __init__(self, stop=None, ts=False):
        self.a = Asm()
        self.stop = stop
        self.ts = ts
        self.nlab = 0

    def lab(self, p="L"):
        self.nlab += 1
        return f"{p}_{self.nlab}"

    def srd(self, s, ptr, nbytes):
        b = int(s[2:s.index(":")])
        p = PTR[ptr]
        self.a(f"s_mov_b32 s{b}, s{p}\ns_mov_b32 s{b+1}, s{p+1}\ns_mov_b32 s{b+2}, {nbytes}\ns_mov_b32 s{b+3}, 0x20000")

    def stamp(self, i):
        if not self.ts or (self.ts == 2 and i not in (0, 5, 15)):
            return
        self.a(f"s_memrealtime s[98:99]\ns_memtime s[92:93]\ns_lshl_b32 s97, {sLayer}, 4\ns_add_u32 m0, s97, {i}\ns_waitcnt lgkmcnt(0)\nv_writelane_b32 v255, s98, m0\ns_add_u32 m0, m0, 32\ns_nop 0\nv_writelane_b32 v255, s92, m0")

    def flag_store(self, soff, vtmp):
        self.a(f"""
        v_mov_b32 v{vtmp}, s28
        v_mov_b32 v{vtmp+1}, s29
        v_mov_b32 v{vtmp+2}, 0
        s_mov_b64 exec, 1
        buffer_store_dwordx2 {vr(vtmp,2)}, v{vtmp+2}, {sWS}, {soff} offen sc1
        s_mov_b64 exec, -1
        """)

    def poll(self, loads, vt, code, first=0, nap=1):
        a = self.a
        L, Ld = self.lab("Lpoll"), self.lab("Lpolld")
        a(f"s_mov_b32 s96, {SPIN_MAX}")
        if first:
            L1, L1d = self.lab("Lp1"), self.lab("Lp1d")
            va, so, im = loads[0]
            a(f"""
            s_mov_b64 exec, 1
            {L1}:
            buffer_load_dwordx2 {vr(vt,2)}, v{va}, {sWS}, {so} offen offset:{im} sc1
            s_waitcnt vmcnt(0)
            v_cmp_eq_u64 vcc, {sTag}, {vr(vt,2)}
            s_cmp_lg_u64 vcc, 0
            s_cbranch_scc1 {L1d}
            s_sleep {first}
            s_sub_u32 s96, s96, 1
            s_cmp_gt_u32 s96, 1
            s_cbranch_scc1 {L1}
            {L1d}:
            s_mov_b64 exec, -1
            """)
        a(f"{L}:")
        for i, (va, so, im) in enumerate(loads):
            a(f"buffer_load_dwordx2 {vr(vt+2*i,2)}, v{va}, {sWS}, {so} offen offset:{im} sc1")
        a("s_waitcnt vmcnt(0)")
        for i in range(len(loads)):
            if i == 0:
                a(f"v_cmp_ne_u64 vcc, {sTag}, {vr(vt,2)}")
            else:
                a(f"v_cmp_ne_u64 s[94:95], {sTag}, {vr(vt+2*i,2)}\ns_or_b64 vcc, vcc, s[94:95]")
        a(f"""
        s_cmp_eq_u64 vcc, 0
        s_cbranch_scc1 {Ld}
        s_mov_b64 exec, vcc
        """)
        if nap:
            a(f"s_sleep {nap}")
        a(f"""
        s_sub_u32 s96, s96, 1
        s_cmp_lg_u32 s96, 0
        s_cbranch_scc1 {L}
        """)
        self.timeout_mark(code, vt)
        a(f"{Ld}:\ns_mov_b64 exec, -1")

    def poll2(self, loads, vt, code, width=2, first=0):
        a = self.a
        n = len(loads)
        if width == 2:
            ack, first, nap = map(int, os.environ.get(f"P{code}", POLLS[code]).split(","))
            if ack:
                a("s_waitcnt vmcnt(0)")
            return self.poll(loads, vt, code, first=first, nap=nap)
        L, Ld0, Ld1, Ld = self.lab("Lq"), self.lab("Lq0"), self.lab("Lq1"), self.lab("Lqd")
        op = "buffer_load_dwordx2" if width == 2 else "buffer_load_dwordx4"

        def issue(k):
            for i, (va, so, im) in enumerate(loads):
                a(f"{op} {vr(vt+width*(n*k+i),width)}, v{va}, {sWS}, {so} offen offset:{im} sc1")

        def check(k, tgt):
            a(f"s_waitcnt vmcnt({n})")
            for i in range(n):
                r = vr(vt + width * (n * k + i) + width - 2, 2)
                if i == 0:
                    a(f"v_cmp_ne_u64 vcc, {sTag}, {r}")
                else:
                    a(f"v_cmp_ne_u64 s[94:95], {sTag}, {r}\ns_or_b64 vcc, vcc, s[94:95]")
            a(f"s_cmp_eq_u64 vcc, 0\ns_cbranch_scc1 {tgt}")
            if width == 2:
                a("s_mov_b64 exec, vcc")
        a(f"s_mov_b32 s96, {SPIN_MAX}")
        if first:
            L1, L1d = self.lab("Lp1"), self.lab("Lp1d")
            va, so, im = loads[0]
            a(f"""
            s_mov_b64 exec, 1
            {L1}:
            buffer_load_dwordx2 {vr(vt,2)}, v{va}, {sWS}, {so} offen offset:{im} sc1
            s_waitcnt vmcnt(0)
            v_cmp_eq_u64 vcc, {sTag}, {vr(vt,2)}
            s_cmp_lg_u64 vcc, 0
            s_cbranch_scc1 {L1d}
            s_sleep {first}
            s_sub_u32 s96, s96, 1
            s_cmp_gt_u32 s96, 1
            s_cbranch_scc1 {L1}
            {L1d}:
            s_mov_b64 exec, -1
            """)
        if 'pipe' not in EXP and 'gpipe' not in EXP:
            a(f"{L}:")
            issue(0)
            n0, n = n, 0
            a("s_waitcnt vmcnt(0)")
            for i in range(n0):
                r = vr(vt + width * i + width - 2, 2)
                a(f"v_cmp_ne_u64 vcc, {sTag}, {r}" if i == 0 else f"v_cmp_ne_u64 s[94:95], {sTag}, {r}\ns_or_b64 vcc, vcc, s[94:95]")
            a(f"s_cmp_eq_u64 vcc, 0\ns_cbranch_scc1 {Ld0}\n{'s_sleep ' + os.environ['GNAP'] if os.environ.get('GNAP') else ''}\ns_sub_u32 s96, s96, 1\ns_cmp_lg_u32 s96, 0\ns_cbranch_scc1 {L}")
            self.timeout_mark(code, vt)
            return Ld0, Ld1
        issue(0)
        a(f"{L}:")
        issue(1)
        check(0, Ld0 if width > 2 else Ld)
        issue(0)
        check(1, Ld1 if width > 2 else Ld)
        a(f"""
        s_sub_u32 s96, s96, 1
        s_cmp_lg_u32 s96, 0
        s_cbranch_scc1 {L}
        s_waitcnt vmcnt(0)
        """)
        self.timeout_mark(code, vt)
        if width > 2:
            return Ld0, Ld1
        a(f"{Ld}:\ns_mov_b64 exec, -1")

    def timeout_mark(self, code, vt):
        self.a(f"""
        v_mov_b32 v{vt}, {code}
        v_mov_b32 v{vt+1}, 0
        global_store_dword v{vt+1}, v{vt}, s[{PTR['dbg']}:{PTR['dbg']+1}]
        s_waitcnt vmcnt(0)
        """)

    def finish_if(self, name):
        if self.stop == name:
            self.a("s_branch L_end")

    def prologue(self):
        a = self.a
        a(f"""
        s_cmp_ge_u32 s2, 256
        s_cbranch_scc1 L_exit
        s_load_dwordx16 s[32:47], s[0:1], 0
        s_load_dwordx8 s[48:55], s[0:1], 64
        s_getpc_b64 s[16:17]
        L_pc_here:
        s_and_b32 s17, s17, 0xffff
        s_mov_b32 s18, CODE_AFTER
        s_mov_b32 s19, 0x20000
        s_lshr_b32 s3, s2, 3
        s_lshl_b32 s3, s3, 10
        v_lshlrev_b32 v1, 7, v0
        v_cmp_gt_u32 vcc, 8, v0
        v_bfrev_b32 v2, -2
        v_cndmask_b32 v1, v2, v1, vcc
        buffer_load_dword v254, v1, {sC}, s3 offen
        v_lshrrev_b32 v1, 6, v0
        v_and_b32 v2, 63, v0
        s_and_b32 {sX}, s2, 7
        v_readfirstlane_b32 {sW}, v1
        s_lshr_b32 {sJ}, s2, 3
        s_mov_b32 {sLayer}, 0
        s_add_u32 {sT}, {sW}, {sJ}
        s_and_b32 {sT4}, {sT}, 3
        s_and_b32 {sT}, {sT}, 7
        s_waitcnt lgkmcnt(0)
        """)
        self.srd(sWS, "ws", W_SIZE)
        a("v_mov_b32 v248, 0")
        if self.ts:
            a("v_mov_b32 v255, 0")

    def div9(self, vidx, vrow, vj):
        self.a(f"""
        v_mul_hi_u32 v{vrow}, v{vidx}, s64
        v_mul_u32_u24 v{vj}, 9, v{vrow}
        v_sub_u32 v{vj}, v{vidx}, v{vj}
        """)

    def prep(self):
        a = self.a
        HR = 128
        self.stamp(0)
        a(f"s_load_dwordx2 {sTag}, s[54:55], {W_NONCE}")
        self.srd(sA, "k", NB)
        self.srd(sB, "v", NB)
        a(f"""
        s_mov_b32 s64, 0x1c71c71d
        """)
        if 'tmap' in EXP:
            a(f"s_and_b32 s84, {sJ}, 7\ns_lshr_b32 s85, {sJ}, 3\ns_lshl_b32 s60, {sX}, 2\ns_add_u32 s85, s85, s60")
        else:
            a(f"s_mov_b32 s84, {sX}\ns_mov_b32 s85, {sJ}")
        a(f"""
        s_mul_i32 s60, s85, {64*1152}
        s_mul_i32 s61, s84, 144
        s_add_u32 s60, s60, s61
        s_sub_u32 s61, s60, {4*1152}
        """)
        self.div9(0, 3, 4)
        a(f"""
        v_mul_u32_u24 v3, 1152, v3
        v_lshl_add_u32 v5, v4, 4, v3
        v_add_u32 v6, s61, v5
        s_lshl_b32 s62, {sW}, 10
        s_add_u32 m0, s62, {L_PK}
        v_add_u32 v7, 512, v0
        buffer_load_dwordx4 v6, {sA}, 0 offen lds
        s_add_u32 m0, s62, {L_PV}
        s_cmp_ge_u32 {sW}, 3
        buffer_load_dwordx4 v5, {sB}, s60 offen lds
        s_cbranch_scc1 L_prep_d3
        s_cmp_eq_u32 {sW}, 2
        s_cbranch_scc1 L_prep_d2
        """)
        self.div9(7, 3, 4)
        a(f"""
        v_mul_u32_u24 v3, 1152, v3
        v_lshl_add_u32 v5, v4, 4, v3
        v_add_u32 v6, s61, v5
        s_add_u32 m0, s62, {L_PK+8192}
        s_nop 0
        buffer_load_dwordx4 v6, {sA}, 0 offen lds
        s_branch L_prep_d3
        L_prep_d2:
        v_add_u32 v7, 512, v2
        """)
        self.div9(7, 3, 4)
        a(f"""
        v_mul_u32_u24 v3, 1152, v3
        v_lshl_add_u32 v5, v4, 4, v3
        s_mov_b32 m0, {L_PV+8192}
        s_nop 0
        buffer_load_dwordx4 v5, {sB}, s60 offen lds
        L_prep_d3:
        s_cmp_ge_u32 {sW}, 5
        s_cbranch_scc1 L_prep_other
        """)
        self.sk_load()
        if 'hearly' in EXP:
            a(f"s_cmp_lg_u32 {sW}, 4\ns_cbranch_scc1 L_prep_k0\ns_cmp_ge_u32 {sJ}, 18\ns_cbranch_scc1 L_prep_k0")
            self.h_issue(HR)
            a("s_waitcnt vmcnt(8)\ns_branch L_prep_k1\nL_prep_k0:\ns_waitcnt vmcnt(0)\nL_prep_k1:")
        else:
            a("s_waitcnt vmcnt(0)")
        a(f"""
        v_bfe_u32 v5, v2, 2, 2
        v_lshl_add_u32 v5, v4, 3, v5      ; 8G + j
        v_mul_u32_u24 v5, 144, v5
        v_and_b32 v6, 3, v2
        v_lshl_add_u32 v5, v6, 3, v5
        s_lshl_b32 s62, {sW}, 5
        s_add_u32 s62, s62, {L_PK}
        v_add_u32 v5, s62, v5
        s_waitcnt lgkmcnt(0)
        """)
        self.stamp(19)
        a("s_barrier")
        self.stamp(16)
        KR, VR_, KF, AC, WT = 12, 24, 32, 56, 72
        for o in range(2):
            for i in range(3):
                a(f"ds_read_b64_tr_b16 {vr(KR+6*o+2*i,2)}, v5 offset:{4608*o+576*i}")
            for i in range(2):
                a(f"ds_read_b64_tr_b16 {vr(VR_+4*o+2*i,2)}, v5 offset:{L_PV-L_PK+4608*o+576*i}")
        a(f"""
        s_mov_b32 s65, 0xffff0000
        v_lshlrev_b32 v{WT}, 16, v10
        v_and_b32 v{WT+1}, s65, v10
        v_lshlrev_b32 v{WT+2}, 16, v11
        v_and_b32 v{WT+3}, s65, v11
        v_lshlrev_b32 v6, 12, v3
        v_lshl_add_u32 v6, v4, 4, v6
        v_mov_b32 v7, 0x7fffffff
        s_mul_i32 s62, {sW}, 16
        v_add_u32 v8, s62, v3
        v_cmp_gt_u32 vcc, 72, v8
        s_lshl_b32 s62, s61, 12
        s_lshl_b32 s63, s85, 7
        s_add_u32 s62, s62, s63
        s_add_u32 s62, s62, {W_U}
        v_cndmask_b32 v6, v7, v6, vcc
        """)
        for o in range(2):
            a(f"s_waitcnt lgkmcnt({7 if o == 0 else 2})")
            kf = KF + 12 * o
            for d in range(6):
                if d:
                    a(f"v_lshlrev_b32 v{kf+2*d}, 16, v{KR+6*o+d}")
                a(f"v_and_b32 v{kf+2*d+1}, s65, v{KR+6*o+d}")
            ac = AC + 8 * o
            for t in range(8):
                a(f"v_mul_f32 v{ac+t}, v{WT}, v{kf+4+t}")
            for i in range(1, 4):
                for t in range(8):
                    a(f"v_fmac_f32 v{ac+t}, v{WT+i}, v{kf+4+t-i}")
            a(f"s_waitcnt lgkmcnt({5 if o == 0 else 0})")
            for d in range(4):
                a(f"v_lshlrev_b32 v{kf+2*d}, 16, v{VR_+4*o+d}")
                a(f"v_and_b32 v{kf+2*d+1}, s65, v{VR_+4*o+d}")
            for t in range(8):
                a(f"v_mul_f32 v{ac+t}, v{ac+t}, v{kf+t}")
            for d in range(4):
                a(f"v_cvt_pk_bf16_f32 v{76+4*o+d}, v{ac+7-2*d}, v{ac+6-2*d}")
            a(f"buffer_store_dwordx4 {vr(76+4*o,4)}, v6, {sWS}, s62 offen offset:{64*o} sc1")
        self.stamp(17)
        a(f"""
        s_add_u32 s28, s28, 1
        s_addc_u32 s29, s29, 0
        s_lshl_b32 s60, s84, 5
        s_add_u32 s60, s60, s85
        s_lshl_b32 s60, s60, 6
        s_add_u32 s60, s60, {W_F1}
        v_mov_b32 v10, s28
        v_mov_b32 v11, s29
        v_mov_b32 v12, 0
        s_mov_b32 s81, 256
        s_cmp_lg_u32 {sW}, 0
        s_waitcnt vmcnt(0)
        s_barrier
        s_cbranch_scc1 L_prep_nf
        s_mov_b64 exec, 1
        buffer_store_dwordx2 v[10:11], v12, {sWS}, s60 offen sc1
        s_mov_b64 exec, -1
        L_prep_nf:
        s_cmp_lt_u32 {sW}, 4
        s_cbranch_scc1 L_prep_done
        s_branch L_prep_second
        """)

        a("L_prep_other:")
        a(".reset_waits")
        a(f"""
        s_mul_i32 s70, {sX}, 14
        s_add_u32 s70, s70, {sJ}
        s_sub_u32 s70, s70, 18            ; unit
        s_cmp_ge_u32 {sJ}, 18
        s_cbranch_scc1 L_prep_r
        """)
        a(f"""
        s_lshl_b32 s81, {sX}, 4
        s_add_u32 s81, s81, {sJ}
        s_cmp_lt_u32 {sJ}, 16
        s_cselect_b32 s81, s81, 256
        s_cmp_eq_u32 {sW}, 5
        s_cselect_b32 s81, s81, 256
        """)
        if 'hearly' in EXP:
            self.h_issue(HR)
            if 'x0late' in EXP:
                a("s_waitcnt vmcnt(8) lgkmcnt(0)\ns_branch L_prep_w1")
            else:
                a("s_cmp_lt_u32 s81, 128\ns_cbranch_scc1 L_prep_hx\ns_waitcnt vmcnt(8) lgkmcnt(0)\ns_branch L_prep_w1\nL_prep_hx:")
                self.x0_issue()
                a("s_waitcnt vmcnt(26) lgkmcnt(0)\ns_branch L_prep_w1")
        else:
            a("s_branch L_prep_w0")
        a(f"""
        L_prep_r:
        s_cmp_ge_u32 s70, 72
        s_cbranch_scc1 L_prep_w0
        s_cmp_lt_u32 {sW}, 6
        s_cbranch_scc1 L_prep_w0
        """)
        if 'rawlate' not in EXP:
            self.dma_wraw("q")
            a(f"s_waitcnt vmcnt(13) lgkmcnt(0)\ns_branch L_prep_w1")
        a(f"""
        L_prep_w0:
        s_waitcnt vmcnt(0) lgkmcnt(0)
        L_prep_w1:
        s_barrier                        ; B0
        s_add_u32 s28, s28, 1
        s_addc_u32 s29, s29, 0
        s_barrier                        ; B1
        L_prep_second:
        s_sub_u32 s67, {sW}, 4
        s_cmp_ge_u32 {sJ}, 18
        s_cbranch_scc1 L_prep_done
        """)
        if 'hearly' not in EXP:
            self.h_issue(HR)
        if 'x0late' in EXP:
            a("s_waitcnt vmcnt(0)\ns_cmp_ge_u32 s81, 128\ns_cbranch_scc1 L_prep_b1")
            self.x0_issue()
            a("L_prep_b1:\ns_mov_b32 s61, s67")
            self.build_h(HR)
            a("s_cmp_ge_u32 s81, 128\ns_cbranch_scc1 L_prep_b2")
            self.x0_stats()
            self.x0_store(wait=False)
            a("L_prep_b2:\ns_waitcnt lgkmcnt(0)\ns_barrier")
        else:
            a("s_waitcnt vmcnt(0)\ns_cmp_ge_u32 s81, 128\ns_cbranch_scc1 L_prep_b2")
            self.x0_stats()
            self.x0_store(wait=False)
            a("L_prep_b2:\ns_mov_b32 s61, s67")
            self.build_h(HR)
        a("s_cmp_ge_u32 s81, 128\ns_cbranch_scc1 L_prep_b3\ns_waitcnt vmcnt(0)")
        self.flag_store("s82", 10)
        a("L_prep_b3:" if 'x0late' in EXP else "L_prep_b3:\ns_waitcnt lgkmcnt(0)\ns_barrier")
        a("L_prep_done:")
        a(".reset_waits")
        self.stamp(1)

    def h_issue(self, HR):
        a = self.a
        self.srd(sD_, "h", NB)
        a(f"""
        s_mul_i32 s63, {sX}, 18
        s_add_u32 s63, s63, {sJ}
        v_lshlrev_b32 v9, 4, v2
        s_lshl_b32 s63, s63, 2
        s_add_u32 s63, s63, {sW}
        s_sub_u32 s63, s63, 4
        s_lshl_b32 s63, s63, 12
        """)
        for i in range(4):
            b = HR + 8 * i
            a(f"buffer_load_dwordx4 {vr(b,4)}, v9, {sD_}, s63 offen offset:{1024*i}")
            a(f"buffer_load_dwordx4 {vr(b+4,4)}, v9, {sD_}, s63 offen offset:{1024*i+8}")

    def x0_issue(self):
        a = self.a
        self.srd(sC, "q", NB)
        a(f"""
        s_mul_i32 s61, s81, {16*1152}
        v_lshrrev_b32 v24, 3, v2
        v_and_b32 v25, 7, v2
        v_mul_u32_u24 v26, 2304, v24
        v_lshl_add_u32 v26, v25, 4, v26
        """)
        for i in range(9):
            a(f"buffer_load_dwordx4 {vr(168+8*i,4)}, v26, {sC}, s61 offen offset:{128*i}")
            a(f"buffer_load_dwordx4 {vr(172+8*i,4)}, v26, {sC}, s61 offen offset:{128*i+1152}")

    def x0_stats(self):
        a = self.a
        a("""
        v_mov_b32 v28, 0
        v_mov_b32 v29, 0
        v_mov_b32 v30, 0
        v_mov_b32 v31, 0
        v_mov_b32 v27, 0x3f803f80
        s_waitcnt vmcnt(0)
        """)
        for i in range(9):
            b = 168 + 8 * i
            for j in range(4):
                for h in range(2):
                    a(f"v_dot2c_f32_bf16 v{28+2*h}, v{b+4*h+j}, v27")
                    a(f"v_dot2c_f32_bf16 v{29+2*h}, v{b+4*h+j}, v{b+4*h+j}")
            a(f"v_swap_b32 v{b+2}, v{b+4}\nv_swap_b32 v{b+3}, v{b+5}")
        for m in ("quad_perm:[1,0,3,2]", "quad_perm:[2,3,0,1]", "row_half_mirror"):
            for j in range(4):
                a(f"v_add_f32_dpp v{28+j}, v{28+j}, v{28+j} {m} row_mask:0xf bank_mask:0xf bound_ctrl:0")
        self.stats(28, 29, 32, 33, 27)
        self.stats(30, 31, 34, 35, 27)

    def x0_store(self, wait=True):
        a = self.a
        a(f"""
        s_lshl_b32 s82, s81, 6
        s_add_u32 s82, s82, {W_F2}
        s_lshl_b32 s63, s81, 7
        s_add_u32 s63, s63, {W_ST0}
        v_lshlrev_b32 v24, 4, v24
        v_lshl_add_u32 v26, v25, 9, v24
        v_cmp_eq_u32 vcc, 0, v25
        s_lshr_b32 s60, s81, 1
        s_mul_i32 s60, s60, 36864
        s_and_b32 s61, s81, 1
        s_lshl_b32 s61, s61, 7
        s_add_u32 s60, s60, s61
        s_add_u32 s60, s60, {W_X0}
        s_mov_b64 exec, vcc
        buffer_store_dwordx4 v[32:35], v24, {sWS}, s63 offen sc1
        s_mov_b64 exec, -1
        """)
        for i in range(9):
            b = 168 + 8 * i
            a(f"buffer_store_dwordx4 {vr(b,4)}, v26, {sWS}, s60 offen sc1")
            a(f"buffer_store_dwordx4 {vr(b+4,4)}, v26, {sWS}, s60 offen offset:256 sc1")
            if i < 8:
                a("s_add_u32 s60, s60, 4096")
        if wait:
            a("s_waitcnt vmcnt(0)")
            self.flag_store("s82", 10)

    def sk_load(self):
        self.srd(sC, "sk", D * 8)
        self.a(f"""
        v_and_b32 v3, 15, v2
        v_lshrrev_b32 v4, 4, v2           ; G
        s_mul_i32 s61, s84, 72
        s_lshl_b32 s62, {sW}, 4
        s_add_u32 s61, s61, s62
        v_add_u32 v5, s61, v3
        v_lshlrev_b32 v5, 3, v5
        buffer_load_dwordx2 v[10:11], v5, {sC}, 0 offen
        """)

    def arrive(self, cnt, last, base, index, vm=0):
        L = self.lab()
        self.a(f"""
        v_mov_b32 v8, {cnt}
        v_mov_b32 v9, 1
        s_waitcnt vmcnt({vm})
        s_mov_b64 exec, 1
        ds_add_rtn_u32 v9, v8, v9
        s_mov_b64 exec, -1
        {index}
        s_lshl_b32 s60, s60, 6
        s_add_u32 s60, s60, {base}
        s_waitcnt lgkmcnt(0)
        v_readfirstlane_b32 s61, v9
        s_cmp_lg_u32 s61, {last}
        s_cbranch_scc1 {L}
        """)
        self.flag_store("s60", 10)
        self.a(f"{L}:")

    def build_h(self, HR):
        a = self.a
        T = 84
        a(f"""
        s_mul_i32 s63, s61, {4*HC_B}
        s_add_u32 s63, s63, {L_HC+32}
        v_lshl_add_u32 v7, v2, 4, s63
        """)
        for i in range(4):
            A, C = HR + 8 * i, HR + 8 * i + 4
            t = T + 12 * (i & 1)
            d = [A, A + 1, A + 2, A + 3, C + 2, C + 3]
            if i == 0:
                a(f"v_readlane_b32 s60, v{HR}, 0\nv_readlane_b32 s62, v{HR+1}, 0")
            a(f"ds_write_b128 v7, {vr(A,4)} offset:{1024*i}")
            for j in range(4):
                a(f"v_alignbyte_b32 v{t+j}, v{d[j+1]}, v{d[j]}, 2")
            a(f"ds_write_b128 v7, {vr(t,4)} offset:{HC_B+1024*i}")
            for j in range(4):
                a(f"v_mov_b32 v{t+4+j}, v{d[j+1]}")
            a(f"ds_write_b128 v7, {vr(t+4,4)} offset:{2*HC_B+1024*i}")
            for j in range(4):
                a(f"v_alignbyte_b32 v{t+8+j}, v{d[j+2]}, v{d[j+1]}, 2")
            a(f"ds_write_b128 v7, {vr(t+8,4)} offset:{3*HC_B+1024*i}")
        a(f"""
        v_mov_b32 v16, s60
        v_mov_b32 v17, s62
        v_mov_b32 v18, 0
        v_mov_b32 v19, 0
        v_mov_b32 v20, 0
        v_mov_b32 v21, 0
        v_lshlrev_b32 v8, 4, v2
        v_sub_u32 v8, 64, v8
        v_cmp_eq_u32 vcc, 0, v2
        v_lshlrev_b64 v[22:23], v8, v[16:17]
        s_sub_u32 s63, s63, 32
        v_mul_u32_u24 v7, {HC_B}, v2
        v_add_u32 v7, s63, v7
        v_cndmask_b32 v22, v22, v18, vcc
        v_cndmask_b32 v23, v23, v18, vcc
        s_mul_i32 s63, s61, {U_B}
        s_add_u32 s63, s63, {L_U}
        v_lshl_add_u32 v8, v2, 3, s63
        ds_write_b64 v8, v[18:19]
        s_mov_b64 exec, 15
        ds_write_b128 v7, v[18:21]
        ds_write_b128 v7, v[20:23] offset:16
        s_mov_b64 exec, -1
        """)

    def stats(self, vs, vq, vrs, vmr, vt, n=576):
        self.a(f"""
        v_mul_f32 v{vs}, {f32hex(1.0/n)}, v{vs}
        v_mul_f32 v{vq}, {f32hex(1.0/n)}, v{vq}
        v_fma_f32 v{vt}, -v{vs}, v{vs}, v{vq}
        v_max_f32 v{vt}, 0, v{vt}
        v_add_f32 v{vt}, {f32hex(1e-5)}, v{vt}
        v_rsq_f32 v{vrs}, v{vt}
        s_nop 0
        v_mul_f32 v{vmr}, v{vs}, v{vrs}
        v_sub_f32 v{vmr}, 0, v{vmr}
        """)

    def dma_wraw(self, kind):
        a = self.a
        L1, L2 = self.lab(), self.lab()
        a(f"""
        s_mul_i32 s70, {sX}, 14
        s_add_u32 s70, s70, {sJ}
        s_sub_u32 s70, s70, 18
        s_sub_u32 s62, {sW}, 6
        """)
        if kind == "q":
            self.wraw_q(L1)
        elif kind == "q4":
            self.wraw_q(L1, 4)
        else:
            self.wraw_o(L2)

    def wraw_q(self, L1, shift=0):
        a = self.a
        a(f"""
        s_lshr_b32 s71, s70, 1
        s_and_b32 s72, s70, 1
        s_mul_i32 s60, s71, {16*3456}
        s_mul_i32 s61, s72, 576
        s_add_u32 s60, s60, s61
        s_add_u32 s60, s60, {shift}
        """)
        self.srd(sB, "wqkv", D * 3 * D * 2)
        a(f"{L1}:\nv_lshl_add_u32 v4, s62, 6, v2\nv_lshrrev_b32 v7, 2, v4")
        self.div9(7, 5, 6)
        a(f"""
        v_mul_u32_u24 v5, {1152-576}, v5
        v_lshl_add_u32 v8, v4, 4, v5
        s_lshl_b32 s63, s62, 10
        s_add_u32 m0, s63, {27648 if shift else 0}
        s_add_u32 s62, s62, 2
        buffer_load_dwordx4 v8, {sB}, s60 offen lds
        s_cmp_lt_u32 s62, 27
        s_cbranch_scc1 {L1}
        """)

    def wraw_o(self, L2):
        a = self.a
        a(f"""
        s_sub_u32 s71, s70, 72           ; S
        s_mul_i32 s60, s71, {36*1152}
        s_sub_u32 s61, s71, 16
        s_mul_i32 s61, s61, {288*1152}
        s_add_u32 s61, s61, {16*1152}
        s_cmp_lt_u32 s71, 16
        s_cselect_b32 s60, s60, s61
        s_cselect_b64 s[74:75], -1, 0
        """)
        self.srd(sB, "wo", D * D * 2)
        a(f"{L2}:\nv_lshl_add_u32 v4, s62, 6, v2\nv_lshrrev_b32 v9, 3, v4")
        self.div9(9, 5, 6)
        a(f"""
        v_mul_u32_u24 v6, 72, v5
        v_sub_u32 v6, v4, v6
        v_lshrrev_b32 v7, 4, v5
        v_mul_u32_u24 v7, 18, v7
        v_bfe_u32 v8, v5, 3, 1
        v_lshl_add_u32 v7, v8, 2, v7
        v_bfe_u32 v8, v5, 2, 1
        v_lshl_add_u32 v7, v8, 3, v7
        v_and_b32 v8, 3, v5
        v_add_u32 v7, v7, v8
        v_lshrrev_b32 v8, 1, v5
        v_mul_u32_u24 v8, 18, v8
        v_and_b32 v9, 1, v5
        v_add_u32 v8, v8, v9
        v_cndmask_b32 v7, v8, v7, s[74:75]
        v_mul_u32_u24 v7, 1152, v7
        v_lshl_add_u32 v8, v6, 4, v7
        s_lshl_b32 m0, s62, 10
        s_add_u32 s62, s62, 2
        buffer_load_dwordx4 v8, {sB}, s60 offen lds
        s_cmp_lt_u32 s62, 36
        s_cbranch_scc1 {L2}
        """)

    def relayout(self):
        a = self.a
        a("L_relayout:")
        a(".reset_waits")
        a(f"""
        L_rel_nx:
        s_mul_i32 s70, {sX}, 14
        s_add_u32 s70, s70, {sJ}
        s_sub_u32 s70, s70, 18
        s_cmp_lt_u32 {sW}, 6
        s_cbranch_scc1 L_rel_nx1
        s_cmp_lt_u32 s70, 72
        s_cbranch_scc1 L_rel_nq
        s_cmp_ge_u32 s70, 90
        s_cbranch_scc1 L_rel_nx1
        """)
        self.dma_wraw("o")
        a("s_branch L_rel_nx1\nL_rel_nq:")
        if 'rawlate' in EXP:
            self.dma_wraw("q")
        self.dma_wraw("q4")
        a(f"""
        L_rel_nx1:
        s_waitcnt vmcnt(0)
        s_barrier
        """)
        self.stamp(20)
        a(f"""
        v_lshrrev_b32 v3, 4, v2          ; G
        v_bfe_u32 v4, v2, 2, 2           ; j
        v_and_b32 v5, 3, v2              ; m
        v_lshrrev_b32 v6, 5, v2          ; half
        v_and_b32 v7, 31, v2             ; col
        s_cmp_ge_u32 s70, 90
        s_cbranch_scc1 L_rel_nf
        s_cmp_ge_u32 s70, 72
        s_cbranch_scc1 L_rel_o
        s_lshr_b32 s71, s70, 1           ; k-step
        s_and_b32 s72, s70, 1
        s_mul_i32 s73, s71, 1792
        s_mul_i32 s74, s72, {16*WQ_B}
        s_add_u32 s73, s73, s74
        s_add_u32 s73, s73, {W_WQ}
        v_lshl_add_u32 v8, v6, 3, v4
        v_mul_u32_u24 v8, 1728, v8
        v_and_b32 v9, 1, v3              ; G&1
        s_lshr_b32 s75, {sW}, 1
        s_and_b32 s76, {sW}, 1           ; tile
        s_mul_i32 s77, s75, 36
        s_and_b32 s79, s75, 1
        s_mul_i32 s79, s79, {27648-4}
        s_add_u32 s77, s77, s79
        s_mul_i32 s78, s75, {WQ_B}
        s_add_u32 s73, s73, s78
        s_cmp_lg_u32 s76, 0
        s_cbranch_scc1 L_rel_t1
        v_mul_u32_u24 v10, 576, v9
        v_lshl_add_u32 v10, v5, 3, v10
        v_add3_u32 v8, v8, v10, s77
        v_lshlrev_b32 v11, 4, v2
        v_lshlrev_b32 v14, 2, v7
        s_branch L_rel_go
        L_rel_t1:
        ; G&1==0: 96+8m ; else m: 0->128 1->32 2->80 3->128
        v_lshlrev_b32 v10, 3, v5
        v_add_u32 v10, 1152, v10
        v_mov_b32 v12, {1152+32}
        v_cmp_eq_u32 vcc, 1, v5
        s_nop 1
        v_cndmask_b32 v12, v12, 32, vcc
        v_mov_b32 v13, {576+32}
        v_cmp_eq_u32 vcc, 2, v5
        s_nop 1
        v_cndmask_b32 v12, v12, v13, vcc
        v_cmp_eq_u32 vcc, 1, v9
        s_nop 1
        v_cndmask_b32 v10, v10, v12, vcc
        v_add3_u32 v8, v8, v10, s77
        v_subrev_u32 v12, 2, v7
        v_cmp_gt_u32 vcc, 22, v7
        s_nop 1
        v_cndmask_b32 v12, v12, v7, vcc
        v_lshlrev_b32 v14, 2, v12
        v_lshlrev_b32 v12, 4, v12
        v_mul_u32_u24 v13, 384, v6
        v_add_u32 v11, v12, v13
        v_add_u32 v11, 1024, v11
        v_and_b32 v13, 30, v7
        v_cmp_eq_u32 s[62:63], 24, v13
        s_nop 1
        s_or_b64 vcc, vcc, s[62:63]
        v_mov_b32 v13, 0x7fffffff
        s_nop 0
        v_cndmask_b32 v11, v13, v11, vcc
        v_cndmask_b32 v14, v13, v14, vcc
        L_rel_go:
        """)
        for n in range(4):
            a(f"ds_read_b64_tr_b16 {vr(68+4*n,2)}, v8 offset:{144*n}")
            a(f"ds_read_b64_tr_b16 {vr(70+4*n,2)}, v8 offset:{144*n+4*1728}")
        a(f"""
        s_lshl_b32 s74, s72, 4
        s_add_u32 s74, s74, s75
        s_mul_i32 s74, s74, 36
        s_add_u32 s74, s74, s71
        s_lshl_b32 s74, s74, 8
        s_lshl_b32 s77, s76, 7
        s_add_u32 s74, s74, s77
        s_add_u32 s74, s74, {W_CSP}
        v_mov_b32 v15, 0x3f803f80
        """)
        for n in range(4):
            a(f"v_mov_b32 v{84+n}, 0")
        for n in range(4):
            a(f"s_waitcnt lgkmcnt({6-2*n})")
            a(f"buffer_store_dwordx4 {vr(68+4*n,4)}, v11, {sWS}, s73 offen sc1")
            a(f"s_add_u32 s73, s73, {4*WQ_B}")
            for j in range(4):
                a(f"v_dot2c_f32_bf16 v{84+n}, v{68+4*n+j}, v15")
        for n in range(4):
            a(f"v_mov_b32 v{88+n}, v{84+n}")
        for n in range(4):
            a(f"v_permlane32_swap_b32 v{84+n}, v{88+n}")
        for n in range(4):
            a(f"v_add_f32 v{84+n}, v{84+n}, v{88+n}")
        a(f"""
        s_mov_b32 s62, 0
        s_mov_b32 s63, -1
        v_mul_u32_u24 v13, {4*36*256}, v6
        v_add_u32 v14, v14, v13
        v_cndmask_b32 v84, v84, v85, s[62:63]
        v_cndmask_b32 v86, v86, v87, s[62:63]
        buffer_store_dword v84, v14, {sWS}, s74 offen sc1
        s_add_u32 s74, s74, {8*36*256}
        buffer_store_dword v86, v14, {sWS}, s74 offen sc1
        """)
        a("s_branch L_rel_fin")
        a(f"""
        L_rel_o:
        .reset_waits
        s_sub_u32 s71, s70, 72
        s_mul_i32 s73, {sW}, {WO_B}
        s_mul_i32 s74, s71, 4608
        s_add_u32 s73, s73, s74
        s_add_u32 s73, s73, {W_WO}
        v_lshl_add_u32 v10, v3, 3, v4
        v_mul_u32_u24 v10, 1152, v10
        v_lshl_add_u32 v10, v5, 3, v10
        s_mul_i32 s74, {sW}, 144
        v_add_u32 v10, s74, v10
        v_lshlrev_b32 v12, 4, v2
        v_and_b32 v13, 15, v2
        v_lshlrev_b32 v14, 4, v13
        v_lshl_add_u32 v14, v3, 7, v14
        v_mov_b32 v15, 0x7fffffff
        v_cmp_gt_u32 vcc, 8, v13
        s_add_u32 s74, s73, 4096
        s_nop 0
        v_cndmask_b32 v14, v15, v14, vcc
        """)
        for ft in range(5):
            a(f"ds_read_b64_tr_b16 {vr(68+4*ft,2)}, v10 offset:{32*ft}")
            a(f"ds_read_b64_tr_b16 {vr(70+4*ft,2)}, v10 offset:{32*ft+4608}")
        for ft in range(5):
            a(f"s_waitcnt lgkmcnt({8-2*ft})")
            if ft < 4:
                a(f"buffer_store_dwordx4 {vr(68+4*ft,4)}, v12, {sWS}, s73 offen offset:{1024*ft} sc1")
            else:
                a(f"buffer_store_dwordx4 {vr(68+4*ft,4)}, v14, {sWS}, s74 offen sc1")
        a(f"""
        L_rel_fin:
        s_waitcnt vmcnt(0)
        s_barrier
        s_cmp_lg_u32 {sW}, 0
        s_cbranch_scc1 L_rel_nf
        s_lshl_b32 s60, s70, 6
        s_add_u32 s60, s60, {W_F3}
        """)
        self.flag_store("s60", 10)
        a("L_rel_nf:")
        a(f"s_cmp_lt_u32 {sW}, 4\ns_cbranch_scc1 L_rel_nw")
        self.wq_flags()
        self.poll([(5, "s62", 0)], 6, 3, first=4)
        self.stamp(29)
        self.wq_fetch()
        a(f"s_cmp_lg_u32 {sW}, 7\ns_cbranch_scc1 L_rel_nw")
        self.cs_issue()
        a("s_waitcnt vmcnt(0)")
        self.cs_finish()
        a("L_rel_nw:")
        a("s_waitcnt vmcnt(0)\ns_barrier\ns_branch L_qkv_pre")

    def wq_flags(self):
        self.a(f"""
        s_lshr_b32 s60, {sJ}, 4
        v_min_u32 v5, 35, v2
        v_lshl_add_u32 v5, v5, 1, s60
        v_lshlrev_b32 v5, 6, v5
        s_mov_b32 s62, {W_F3}
        """)

    def cs_issue(self):
        a = self.a
        a(f"""
        s_mul_i32 s60, {sJ}, {36*256}
        s_add_u32 s60, s60, {W_CSP}
        v_lshlrev_b32 v4, 4, v2
        """)
        for i in range(9):
            a(f"buffer_load_dwordx4 {vr(168+4*i,4)}, v4, {sWS}, s60 offen sc1")
            if i < 8:
                a("s_add_u32 s60, s60, 1024")

    def cs_finish(self):
        a = self.a
        for i in range(1, 9):
            for j in range(4):
                a(f"v_add_f32 v{168+j}, v{168+j}, v{168+4*i+j}")
        for op in ("v_permlane16_swap_b32", "v_permlane32_swap_b32"):
            for j in range(4):
                a(f"v_mov_b32 v{172+j}, v{168+j}")
            for j in range(4):
                a(f"{op} v{168+j}, v{172+j}")
            for j in range(4):
                a(f"v_add_f32 v{168+j}, v{168+j}, v{172+j}")
        a(f"""
        v_and_b32 v4, 15, v2
        v_lshlrev_b32 v4, 4, v4
        v_add_u32 v4, {L_CS}, v4
        ds_write_b128 v4, v[168:171]
        s_waitcnt lgkmcnt(0)
        """)

    def wq_fetch(self, first=0, last=63):
        L = self.lab()
        self.a(f"""
        s_mul_i32 s60, {sJ}, {WQ_B}
        s_add_u32 s60, s60, {W_WQ}
        s_sub_u32 s62, {sW}, 4
        s_add_u32 s62, s62, {first}
        v_lshlrev_b32 v4, 4, v2
        {L}:
        s_lshl_b32 s63, s62, 10
        s_add_u32 m0, s63, {L_WQ}
        s_add_u32 s63, s63, s60
        s_add_u32 s62, s62, 4
        buffer_load_dwordx4 v4, {sWS}, s63 offen sc1 lds
        s_cmp_lt_u32 s62, {last}
        s_cbranch_scc1 {L}
        """)

    def conv(self):
        a = self.a
        a(f"s_cmp_ge_u32 {sJ}, 18\ns_cbranch_scc1 L_relayout")
        a(f"""
        s_mul_i32 s66, {sX}, 18
        s_add_u32 s66, s66, {sJ}          ; quad
        s_cmp_ge_u32 {sW}, 4
        s_cbranch_scc1 L_conv_help
        """)
        self.srd(sA, "dd", D * 2)
        a(f"""
        s_lshl_b32 s61, s66, 2
        s_add_u32 s61, s61, {sW}           ; channel
        s_lshl_b32 s62, s61, 1
        v_mov_b32 v4, s62
        buffer_load_ushort v5, v4, {sA}, 0 offen
        s_mul_i32 s62, {sW}, {U_B}
        s_add_u32 s62, s62, {L_U+512}
        s_cmp_lg_u32 {sW}, 0
        s_cbranch_scc1 L_conv_nu
        v_and_b32 v4, 31, v2
        v_lshlrev_b32 v4, 6, v4
        s_lshl_b32 s60, {sX}, 11
        s_add_u32 s60, s60, {W_F1}
        """)
        self.poll2([(4, "s60", 0)], 176, 1)
        a(f"""
        s_lshl_b32 s61, s61, 12
        s_add_u32 s61, s61, {W_U}
        v_lshlrev_b32 v4, 4, v2
        """)
        for c in range(4):
            for i in range(4):
                a(f"s_mov_b32 m0, {L_U+512+U_B*c+1024*i}\ns_add_u32 s63, s61, {4096*c+1024*i}")
                a(f"buffer_load_dwordx4 v4, {sWS}, s63 offen sc1 lds")
        a("L_conv_nu:")
        self.stamp(2)
        vBA, vAA, AD = 6, 7, 8
        ACC, A0, B0 = 16, 48, 112
        a(f"""
        v_and_b32 v12, 15, v2              ; nn / r
        v_lshrrev_b32 v13, 5, v2           ; g>>1
        v_bfe_u32 v14, v2, 4, 1            ; g&1
        s_sub_u32 s62, s62, {448}          ; u base + 64
        v_sub_u32 v15, v12, v13
        v_lshlrev_b32 v15, 5, v15
        v_lshl_add_u32 v15, v14, 4, v15
        v_add_u32 v{vBA}, s62, v15
        v_add_u32 v15, 1, v12
        v_and_b32 v3, 3, v15               ; sigma
        v_lshl_add_u32 v15, v13, 4, v12
        v_lshlrev_b32 v1, 3, v14
        v_sub_u32 v15, v15, v1
        v_sub_u32 v15, v15, v3
        v_add_u32 v15, 9, v15
        v_lshlrev_b32 v15, 1, v15
        v_mul_u32_u24 v3, {HC_B}, v3
        s_mul_i32 s63, {sW}, {4*HC_B}
        v_add3_u32 v{vAA}, v15, v3, s63
        v_add_u32 v1, 7, v1
        v_sub_u32 v1, v1, v12              ; j0
        v_lshl_add_u32 v1, v13, 6, v1
        v_and_b32 v3, 1, v1
        v_lshlrev_b32 v3, 4, v3
        v_lshrrev_b32 v1, 1, v1
        s_waitcnt vmcnt(16)
        s_cmp_eq_u32 {sW}, 0
        s_cbranch_scc1 L_conv_d
        s_waitcnt vmcnt(0)
        L_conv_d:
        v_lshlrev_b32 v5, v3, v5
        """)
        for i in range(4):
            a(f"v_cmp_eq_u32 vcc, {i}, v1\ns_nop 1\nv_cndmask_b32 v{AD+i}, 0, v5, vcc")

        def rdA(rho, q):
            b = A0 + 32 * (rho & 1) + 4 * q
            off = L_HC + 64 * (rho + 8 * q)
            return [f"ds_read_b64 {vr(b,2)}, v{vAA} offset:{off}", f"ds_read_b64 {vr(b+2,2)}, v{vAA} offset:{off+8}"]

        def rdB(rho, j):
            b = B0 + 32 * (rho & 1) + 4 * j
            return [f"ds_read_b128 {vr(b,4)}, v{vBA} offset:{64*(8*j-rho+7)}"]

        def reads(rho):
            r = rdA(rho, 0)
            for j in range(8):
                r += rdB(rho, j)
            for q in range(1, 8):
                r += rdA(rho, q)
            return r
        a("s_waitcnt vmcnt(0)\ns_barrier")
        for q in range(8):
            for l in rdA(0, q):
                a(l)
        for j in range(8):
            a(rdB(0, j)[0])
        for rho in range(8):
            a("s_waitcnt lgkmcnt(0)")
            nxt = reads(rho + 1) if rho < 7 else []
            ab, bb = A0 + 32 * (rho & 1), B0 + 32 * (rho & 1)
            ms = []
            if rho == 0:
                for n in range(8):
                    ms.append(f"v_mfma_f32_16x16x32_bf16 {vr(ACC+4*n,4)}, {vr(AD,4)}, {vr(bb+4*n,4)}, 0")
            for q in range(8):
                for n in range(q, 8):
                    ms.append(f"v_mfma_f32_16x16x32_bf16 {vr(ACC+4*n,4)}, {vr(ab+4*q,4)}, {vr(bb+4*(n-q),4)}, {vr(ACC+4*n,4)}")
            for m in ms:
                a(m)
                if nxt:
                    a(nxt.pop(0))
        self.stamp(3)
        a(f"""
        v_lshlrev_b32 v12, 5, v12
        v_lshrrev_b32 v13, 4, v2
        v_lshl_add_u32 v12, v13, 3, v12
        s_mul_i32 s63, {sW}, {4*HC_B+32}
        v_add_u32 v12, s63, v12
        """)
        for n in range(8):
            a(f"v_cvt_pk_bf16_f32 v{A0+2*n}, v{ACC+4*n}, v{ACC+4*n+1}")
            a(f"v_cvt_pk_bf16_f32 v{A0+2*n+1}, v{ACC+4*n+2}, v{ACC+4*n+3}")
            a(f"ds_write_b64 v12, {vr(A0+2*n,2)} offset:{L_HC+512*n}")
        a("s_waitcnt lgkmcnt(0)\ns_barrier")
        a("s_branch L_qkv_pre")

        a("L_conv_help:")
        a(".reset_waits")
        X0, ST, Y, T = 16, 32, 232, 64
        self.wq_flags()
        a(f"""
        v_and_b32 v4, 31, v2
        v_lshlrev_b32 v4, 6, v4
        s_lshl_b32 s63, s67, 11
        s_add_u32 s63, s63, {W_F2}
        v_lshlrev_b32 v3, 3, v2
        s_lshl_b32 s60, s67, 12
        s_add_u32 s60, s60, {W_ST0}
        v_and_b32 v14, 31, v2
        v_lshrrev_b32 v15, 5, v2
        v_mul_u32_u24 v15, 36864, v15
        v_lshl_add_u32 v14, v14, 3, v15
        s_mul_i32 s76, s67, {16*36864}
        s_lshl_b32 s61, s66, 8
        s_add_u32 s76, s76, s61
        s_add_u32 s61, s76, {W_X0}
        """)
        self.poll([(4, "s63", 0)], 6, 2, first=4)
        self.stamp(18)
        for i in range(8):
            a(f"buffer_load_dwordx2 {vr(ST+2*i,2)}, v3, {sWS}, s60 offen offset:{512*i} sc1")
            a(f"buffer_load_dwordx2 {vr(X0+2*i,2)}, v14, {sWS}, s61 offen sc1")
            if i < 7:
                a(f"s_add_u32 s61, s61, {2*36864}")
        a("v_mov_b32 v13, v5\ns_waitcnt vmcnt(0)")
        a(f"""
        v_bfe_u32 v4, v2, 2, 2
        v_mul_u32_u24 v4, {4*HC_B+32}, v4
        v_lshrrev_b32 v5, 4, v2
        v_lshl_add_u32 v4, v5, 5, v4
        v_and_b32 v5, 3, v2
        v_lshl_add_u32 v4, v5, 3, v4
        s_lshl_b32 s60, s67, 10
        v_add_u32 v4, s60, v4
        s_mov_b32 s64, 0xffff0000
        s_add_u32 s61, s76, {W_Y}
        s_add_u32 s60, s76, {W_X1}
        """)
        a(".reset_waits")
        for i in range(8):
            t = T + 8 * i
            for d in range(2):
                a(f"v_lshlrev_b32 v{t+2*d}, 16, v{X0+2*i+d}")
                a(f"v_and_b32 v{t+2*d+1}, s64, v{X0+2*i+d}")
            for c in range(4):
                a(f"v_fma_f32 v{t+4+c}, v{t+c}, v{ST+2*i}, v{ST+2*i+1}")
        PRE = int(os.environ.get("PRE", 0))
        a(f"buffer_load_dwordx2 v[128:129], v13, {sWS}, s62 offen sc1\ns_mov_b32 s77, 0")
        if PRE:
            L = self.lab()
            a(f"s_waitcnt vmcnt(0)\nv_cmp_ne_u64 vcc, {sTag}, v[128:129]\ns_cmp_lg_u64 vcc, 0\ns_cbranch_scc1 {L}")
            a("s_mov_b32 s78, s60\nv_mov_b32 v12, v4")
            self.wq_fetch(last=PRE)
            a(f"s_mov_b32 s60, s78\nv_mov_b32 v4, v12\ns_mov_b32 s77, {PRE}\n{L}:")
        a("s_barrier")
        for i in range(8):
            a(f"ds_read_b64_tr_b16 {vr(Y+2*i,2)}, v4 offset:{L_HC+128*i}")
        for i in range(8):
            t = T + 8 * i
            a(f"s_waitcnt lgkmcnt({7-i})")
            for d in range(2):
                a(f"v_lshlrev_b32 v8, 16, v{Y+2*i+d}")
                a(f"v_and_b32 v9, s64, v{Y+2*i+d}")
                a(f"v_fmac_f32 v{t+2*d}, v{t+4+2*d}, v8")
                a(f"v_fmac_f32 v{t+2*d+1}, v{t+5+2*d}, v9")
            a(f"v_cvt_pk_bf16_f32 v{X0+2*i}, v{t}, v{t+1}")
            a(f"v_cvt_pk_bf16_f32 v{X0+2*i+1}, v{t+2}, v{t+3}")
            a(f"buffer_store_dwordx2 {vr(X0+2*i,2)}, v14, {sWS}, s60 offen sc1")
            a(f"s_add_u32 s60, s60, {2*36864}")
        a(f"""
        s_lshl_b32 s60, s66, 2
        s_add_u32 s60, s60, s67
        s_lshl_b32 s60, s60, 6
        s_add_u32 s60, s60, {W_F4}
        s_waitcnt vmcnt(0)
        """)
        self.flag_store("s60", 10)
        a(f"""
        v_mov_b32 v248, v14
        s_mov_b32 s79, s61
        s_add_u32 s80, s60, {W_F10 - W_F4}
        """)
        L = self.lab()
        a(f"v_cmp_ne_u64 vcc, {sTag}, v[128:129]\ns_cmp_eq_u64 vcc, 0\ns_cbranch_scc1 {L}")
        self.poll([(13, "s62", 0)], 128, 3)
        a(f"{L}:")
        self.wq_fetch(first="s77", last=WQ1)
        a(f"s_cmp_eq_u32 {sW}, 7\ns_cbranch_scc1 L_help_c0\ns_waitcnt vmcnt(0)\ns_branch L_qkv_pre\nL_help_c0:")
        self.cs_issue()
        a("s_waitcnt vmcnt(0)")
        self.cs_finish()
        a("s_branch L_qkv_pre")

    def colsum(self):
        a = self.a
        a("L_qkv_pre:")
        a(".reset_waits")
        self.stamp(4)
        self.qkv_setup()

    def qkv_setup(self):
        self.a(f"""
        v_lshlrev_b32 v4, 4, v2
        v_add_u32 v4, {L_WQ}, v4           ; W tile 0
        v_and_b32 v6, 31, v2
        v_min_u32 v5, 23, v6
        v_lshlrev_b32 v5, 4, v5
        v_lshrrev_b32 v7, 5, v2            ; hh
        v_mul_u32_u24 v53, 384, v7
        v_add_u32 v5, v5, v53
        v_add_u32 v5, {L_WQ+1024}, v5      ; W tile 1
        v_and_b32 v53, 15, v2
        v_lshlrev_b32 v53, 1, v53
        v_bfe_u32 v54, v2, 4, 1
        v_add_u32 v53, v53, v54
        v_lshlrev_b32 v53, 4, v53
        v_and_b32 v58, 19, v6
        v_bfe_u32 v54, v6, 2, 1
        v_lshl_add_u32 v58, v54, 3, v58
        v_bfe_u32 v54, v6, 3, 1
        v_lshl_add_u32 v58, v54, 2, v58    ; sigma(n)
        v_lshlrev_b32 v54, 4, v58
        v_lshl_add_u32 v54, v7, 9, v54
        s_lshl_b32 s61, {sT}, 10
        v_add_u32 v54, s61, v54
        v_min_u32 v56, 19, v6
        v_cmp_eq_u32 vcc, 4, v56
        v_cmp_eq_u32 s[62:63], 19, v56
        s_mul_i32 s61, {sT}, 1280
        s_add_u32 s61, s61, {KV_V}
        v_cndmask_b32 v56, v56, 19, vcc
        v_cndmask_b32 v56, v56, 4, s[62:63]
        v_lshlrev_b32 v56, 4, v56
        v_mul_u32_u24 v55, 320, v7
        v_add_u32 v56, v56, v55
        v_add_u32 v55, s61, v56
        s_lshl_b32 s62, {sT}, 7
        s_add_u32 s63, s62, {L_QR}
        s_add_u32 s62, s62, {KV_R}
        v_mov_b32 v59, s62
        v_mov_b32 v60, s63
        v_cmp_gt_u32 vcc, 22, v6
        v_and_b32 v57, 1, v6
        v_lshlrev_b32 v57, 1, v57
        v_lshl_add_u32 v57, v7, 5, v57
        v_cndmask_b32 v61, v59, v60, vcc
        v_add_u32 v57, v57, v61
        v_lshl_add_u32 v58, v58, 2, v60
        v_lshl_add_u32 v59, v6, 2, v59
        s_lshl_b32 s60, {sW}, 8
        s_add_u32 s60, s60, {L_ST}
        v_lshl_add_u32 v60, v6, 2, s60
        v_mov_b32 v61, s60
        v_and_b32 v62, 30, v6
        v_cmp_eq_u32 vcc, 20, v62
        v_add_u32 v62, 128, v61
        s_nop 0
        v_cndmask_b32 v61, v61, v62, vcc
        v_cmp_eq_u32 vcc, 18, v6
        v_lshl_add_u32 v61, v7, 4, v61
        v_mov_b32 v62, 0x3f803f80
        v_cndmask_b32 v62, 0, v62, vcc
        s_lshl_b32 s69, {sLayer}, 5
        s_add_u32 s69, s69, {sJ}
        s_lshl_b32 s69, s69, 3             ; (layer*32+head)*8
        s_add_u32 s89, s69, {sX}
        s_mul_i32 s89, s89, {KV_B}
        s_add_u32 s89, s89, {W_KV}
        """)

    def qkv(self):
        a = self.a
        L = self.lab()
        a(f"s_cmp_lg_u32 {sW}, 0\ns_cbranch_scc1 {L}")
        a(f"""
        v_lshlrev_b32 v8, 8, v2
        v_add_u32 v9, {64*256}, v8
        v_add_u32 v10, {128*256}, v8
        v_min_u32 v10, {143*256}, v10
        s_lshr_b32 s60, {sX}, 1
        s_lshl_b32 s60, s60, 6
        s_add_u32 s60, s60, {W_F4}
        """)
        if 'relay' in EXP:
            L2 = self.lab()
            a(f"s_lshl_b32 s61, {sX}, 8\ns_add_u32 s61, s61, {W_F11}\ns_cmp_eq_u32 {sJ}, 31\ns_cbranch_scc1 {L2}\nv_mov_b32 v8, 0\ns_mov_b64 exec, 1")
            self.poll([(8, "s61", 0)], 220, 12, nap=int(os.environ.get("RNAP", 1)))
            a(f"s_branch {L}\n{L2}:")
        self.poll2([(8, "s60", 0), (9, "s60", 0), (10, "s60", 0)], 220, 4, first=2)
        if 'relay' in EXP:
            self.flag_store("s61", 8)
        a(f"{L}:")
        a(f"""
        s_mov_b32 s68, {W_X1}
        s_cmp_eq_u32 {sW}, 0
        s_cselect_b32 s3, 3, 0
        s_add_u32 s88, {sW}, {WQ1-4}
        s_lshl_b32 s88, s88, 10            ; first remaining piece of the wqkv slice (waves 4-7)
        s_mul_i32 s87, {sJ}, {WQ_B}
        s_add_u32 s87, s87, s88
        s_add_u32 s87, s87, {W_WQ}
        s_cmp_lt_u32 {sJ}, 18
        s_cselect_b32 s87, s87, 0
        s_cmp_ge_u32 {sW}, 4
        s_cselect_b32 s87, s87, 0
        """)
        a("L_qkv:")
        a(".reset_waits")
        XF, D0, D1, WF, RS = 64, 16, 32, 208, 96
        a(f"""
        s_lshl_b32 s75, {sLayer}, 15
        s_lshl_b32 s61, {sX}, 12
        s_add_u32 s75, s75, s61
        s_add_u32 s75, s75, {W_G9}
        s_mul_i32 s60, {sX}, {8*36864}
        s_add_u32 s60, s60, s68
        s_cmp_lg_u32 s3, 3
        s_cbranch_scc1 L_qkv_ns
        v_lshrrev_b32 v10, 2, v2
        v_and_b32 v11, 3, v2
        v_lshlrev_b32 v10, 8, v10
        v_lshl_add_u32 v10, v11, 4, v10
        s_lshr_b32 s61, {sJ}, 2
        s_mul_i32 s61, s61, 36864
        s_and_b32 s62, {sJ}, 3
        s_lshl_b32 s62, s62, 6
        s_add_u32 s61, s61, s62
        s_add_u32 s61, s61, s60
        """)
        for i in range(9):
            a(f"buffer_load_dwordx4 {vr(16+4*i,4)}, v10, {sWS}, s61 offen sc1")
            if i < 8:
                a("s_add_u32 s61, s61, 4096")
        a("L_qkv_ns:")
        a(f"""
        v_lshlrev_b32 v8, 4, v2
        s_mul_i32 s61, {sT}, 36864
        s_add_u32 s60, s60, s61
        s_barrier
        """)
        self.stamp(5)
        WIN = int(os.environ.get("WIN", 8))

        def ldx(s):
            a(f"buffer_load_dwordx4 {vr(XF+4*s,4)}, v8, {sWS}, s60 offen offset:{1024*(s&3)} sc1")
            if s & 3 == 3 and s < 35:
                a("s_add_u32 s60, s60, 4096")
        for s in range(WIN):
            ldx(s)
        a(f"s_cmp_lg_u32 s3, 3\ns_cbranch_scc1 L_qkv_ns2")
        a("v_mov_b32 v12, 0\nv_mov_b32 v13, 0\nv_mov_b32 v14, 0\nv_mov_b32 v15, 0\nv_mov_b32 v52, 0x3f803f80")
        for i in range(9):
            a(f"s_waitcnt vmcnt({8+WIN-i})")
            for j in range(4):
                r = 16 + 4 * i + j
                a(f"v_dot2c_f32_bf16 v{12+(j&2)}, v{r}, v52")
                a(f"v_dot2c_f32_bf16 v{13+(j&2)}, v{r}, v{r}")
        for m in ("row_ror:4", "row_ror:8"):
            for j in range(4):
                a(f"v_add_f32_dpp v{12+j}, v{12+j}, v{12+j} {m} row_mask:0xf bank_mask:0xf bound_ctrl:0")
        for op in ("v_permlane16_swap_b32", "v_permlane32_swap_b32"):
            for j in range(4):
                a(f"v_mov_b32 v{16+j}, v{12+j}")
            for j in range(4):
                a(f"{op} v{12+j}, v{16+j}")
            for j in range(4):
                a(f"v_add_f32 v{12+j}, v{12+j}, v{16+j}")
        self.stats(12, 13, 17, 22, 23)
        self.stats(14, 15, 21, 22, 23)
        a(f"""
        v_sub_f32 v16, 0, v12
        v_sub_f32 v20, 0, v14
        v_mov_b32 v18, s28
        v_mov_b32 v19, s29
        v_mov_b32 v22, s28
        v_mov_b32 v23, s29
        v_lshlrev_b32 v11, 5, v11
        s_lshl_b32 s61, {sJ}, 7
        s_add_u32 s61, s61, s75
        s_mov_b64 exec, 15
        buffer_store_dwordx4 v[16:19], v11, {sWS}, s61 offen sc1
        buffer_store_dwordx4 v[20:23], v11, {sWS}, s61 offen offset:16 sc1
        s_mov_b64 exec, -1
        L_qkv_ns2:
        """)

        def rdW(s):
            b = WF + 8 * (s % 3)
            a(f"ds_read_b128 {vr(b,4)}, v4 offset:{1792*s}")
            a(f"ds_read_b128 {vr(b+4,4)}, v5 offset:{1792*s}")
        a(f"""
        v_lshlrev_b32 v9, 2, v6
        v_add_u32 v10, {L_CS}, v9
        ds_read_b32 v250, v10
        ds_read_b32 v252, v10 offset:128
        s_lshl_b32 s61, {sT}, 9
        s_add_u32 s75, s75, s61
        s_mov_b32 s64, 0xffff0000
        s_waitcnt lgkmcnt(0)
        """)
        for r in (250, 252):
            a(f"""
            v_and_b32 v9, s64, v{r}
            v_sub_f32 v10, v{r}, v9
            v_cvt_pk_bf16_f32 v{r}, v9, v9
            v_cvt_pk_bf16_f32 v{r+1}, v10, 0
            """)
        rdW(0)
        rdW(1)
        def swap(s):
            x = XF + 4 * s
            a(f"s_waitcnt vmcnt({min(35 - s, WIN - 1)})")
            a(f"v_permlane16_swap_b32 v{x}, v{x+2}")
            a(f"v_permlane16_swap_b32 v{x+1}, v{x+3}")
        swap(0)
        for s in range(36):
            x, b = XF + 4 * s, WF + 8 * (s % 3)
            if s % 9 == 0 and 'noprio' not in EXP:
                a(f"s_setprio {3 - s // 9}")
            npc = (64 - WQ1) // 4
            if 2 * s < npc and WQ1 < 63:
                L = self.lab()
                a(f"s_cmp_eq_u32 s87, 0\ns_cbranch_scc1 {L}")
                for j in range(2 * s, min(2 * s + 2, npc)):
                    if j == npc - 1:
                        a(f"s_cmp_eq_u32 {sW}, 7\ns_cbranch_scc1 {L}")
                    a(f"s_add_u32 m0, s88, {L_WQ + 4096*j}\ns_add_u32 s86, s87, {4096*j}")
                    a(f"buffer_load_dwordx4 v8, {sWS}, s86 offen sc1 lds")
                a(f"{L}:")
            if s == WQ1 * 1024 // 1792 - 2 and WQ1 < 63:
                L = self.lab()
                a(f"s_cmp_lg_u32 {sLayer}, 0\ns_cbranch_scc1 {L}\ns_barrier\n{L}:")
            if s + WIN < 36:
                ldx(s + WIN)
            if s + 1 < 36:
                swap(s + 1)
            a(f"s_waitcnt lgkmcnt({2 if s + 1 < 36 else 0})")
            if 'nomfma' not in EXP or s == 0:
                a(f"v_mfma_f32_32x32x16_bf16 {vr(D0,16)}, {vr(b,4)}, {vr(x,4)}, {vr(D0,16) if s else 0}")
                a(f"v_mfma_f32_32x32x16_bf16 {vr(D1,16)}, {vr(x,4)}, {vr(b+4,4)}, {vr(D1,16) if s else 0}")
            if s + 2 < 36:
                rdW(s + 2)
            if s == 20:
                a(f"buffer_load_dwordx4 v[10:13], v53, {sWS}, s75 offen sc1")
            if s == 31:
                Lp, Ld = self.lab("Ls"), self.lab("Lsd")
                a(f"""
                s_mov_b32 s96, {SPIN_MAX}
                {Lp}:
                v_cmp_eq_u64 vcc, {sTag}, v[12:13]
                s_cmp_eq_u64 vcc, exec
                s_cbranch_scc1 {Ld}
                buffer_load_dwordx4 v[10:13], v53, {sWS}, s75 offen sc1
                s_sub_u32 s96, s96, 1
                s_cmp_lg_u32 s96, 0
                s_waitcnt vmcnt(0)
                s_cbranch_scc1 {Lp}
                """)
                self.timeout_mark(9, 12)
                a(f"""
                {Ld}:
                v_mul_f32 v12, {f32hex(C_SCALE)}, v11
                ds_write_b32 v60, v11
                ds_write_b32 v60, v12 offset:128
                """)
                for g in range(4):
                    a(f"ds_read_b128 {vr(RS+4*g,4)}, v61 offset:{32*g}")
                a("""
                s_mov_b32 s62, -1
                s_mov_b32 s63, 0
                v_cndmask_b32 v10, 0, v10, s[62:63]
                v_and_b32 v13, s64, v10
                v_sub_f32 v14, v10, v13
                v_cvt_pk_bf16_f32 v14, v13, v14
                v_cvt_pk_bf16_f32 v15, v13, 0
                """)
        self.stamp(6)
        KF, VF = 112, 120
        R = self.R
        a(f"""
        s_mov_b32 s62, 0xfffff
        s_mov_b32 s63, 0xfffff
        v_mfma_f32_32x32x8bf16_1k {vr(D1,16)}, v[14:15], v[252:253], {vr(D1,16)}
        v_mfma_f32_32x32x8bf16_1k {vr(D0,16)}, v[250:251], v[14:15], {vr(D0,16)}
        s_mov_b32 s66, 0xf00000
        s_mov_b32 s67, 0xf00000
        """)
        for i in range(16):
            a(f"v_mov_b32 v{R.O+i}, 0")
        a("s_waitcnt lgkmcnt(0)")
        for i in range(16):
            a(f"v_mul_f32 v{D1+i}, v{RS+i}, v{D1+i}")
        for i in range(8):
            a(f"v_cvt_pk_bf16_f32 v{VF+i}, v{D1+2*i}, v{D1+2*i+1}")
        a("s_mov_b64 exec, s[66:67]")
        assert L_OWN == 0
        for i in range(8):
            g, r = i >> 1, 2 * (i & 1)
            off = 64 * (g >> 1) + 16 * (g & 1) + 4 * r
            a(f"ds_write_b16 v57, v{VF+i} offset:{off}")
            a(f"ds_write_b16_d16_hi v57, v{VF+i} offset:{off+4}")
        a("s_mov_b64 exec, -1")
        a(f"ds_read_b32 v63, v59\nds_read_b32 v{R.Qr}, v58\ns_mov_b32 s66, 0xc0000\ns_mov_b32 s67, 0xc0000")
        for i in range(8):
            a(f"v_cndmask_b32 v{VF+i}, v{VF+i}, v62, s[66:67]")
        a(f"""
        s_mov_b64 exec, s[62:63]
        buffer_store_dwordx4 {vr(VF,4)}, v55, {sWS}, s89 offen sc1
        buffer_store_dwordx4 {vr(VF+4,4)}, v55, {sWS}, s89 offen offset:640 sc1
        s_mov_b64 exec, -1
        """)
        for i in range(8, 16):
            a(f"v_mul_f32 v{D0+i}, v11, v{D0+i}")
        for i in range(4):
            a(f"v_cvt_pk_bf16_f32 v{KF+i}, v{D0+8+2*i}, v{D0+9+2*i}")
        a(f"""
        buffer_store_dwordx4 {vr(KF,4)}, v54, {sWS}, s89 offen sc1
        s_waitcnt lgkmcnt(0)
        s_mov_b32 exec_hi, 0
        buffer_store_dword v63, v59, {sWS}, s89 offen sc1
        s_mov_b64 exec, s[62:63]
        ds_write_b128 v55, {vr(VF,4)} offset:{L_OWN}
        ds_write_b128 v55, {vr(VF+4,4)} offset:{L_OWN+640}
        s_mov_b64 exec, -1
        ds_write_b128 v54, {vr(KF,4)} offset:{L_OWN}
        """)
        for i in range(8):
            a(f"v_mul_f32 v{D0+i}, v12, v{D0+i}")
        for i in range(4):
            a(f"v_cvt_pk_bf16_f32 v{R.Q+i}, v{D0+2*i}, v{D0+1+2*i}")
        a(f"v_mov_b32 v{R.aV}, v56\ns_waitcnt lgkmcnt(0)")
        self.stamp(7)

    class Regs:
        S = [128, 160]
        O = 192
        Q = 208
        Qr = 212
        K = [8, 16]
        Kr = [24, 26]
        V = [28, 44]
        idx, aK, aR, aV = 214, 215, 216, 217

    def attention(self):
        a, R = self.a, self.R
        slot = lambda blk: L_OWN if blk == 0 else L_RING + ((blk - 2) % 3) * KV_B
        aK0, aR0, aV0 = 218, 219, 220

        def rd(kind, u, i=0):
            blk, dt = u >> 2, u & 3
            own = blk == 0
            base = slot(blk) - (0 if own else L_RING)
            buf = u & 1
            if kind == "R":
                return f"ds_read_b32 v{R.Kr[buf]}, v{aR0 if own else R.aR} offset:{base + KV_R + 256*dt}"
            if kind == "K":
                return f"ds_read_b128 {vr(R.K[buf]+4*i,4)}, v{aK0 if own else R.aK} offset:{base + 2048*dt + 1024*i}"
            return f"ds_read_b128 {vr(R.V[buf]+4*i,4)}, v{aV0 if own else R.aV} offset:{base + KV_V + 2560*dt + 640*i}"

        def m4(sb, kb):
            a(f"v_mfma_f32_32x32x4bf16_1k {vr(R.S[sb],32)}, {vr(R.Kr[kb],2)}, {vr(R.Qr,2)}, 0")

        def mf(sb, kb, hi):
            d = vr(R.S[sb] + 16 * hi, 16)
            a(f"v_mfma_f32_32x32x16_bf16 {d}, {vr(R.K[kb]+4*hi,4)}, {vr(R.Q,4)}, {d}")

        def sm(sb, vb, g):
            a(f"v_smfmac_f32_32x32x32_bf16 {vr(R.O,16)}, {vr(R.V[vb]+4*g,4)}, {vr(R.S[sb]+8*g,8)}, v{R.idx}")

        def call_try():
            a("s_call_b64 s[76:77], L_try")

        def try_body():
            Ln, Lr = self.lab(), self.lab()
            a(f"""
            L_try:
            .reset_waits
            s_waitcnt vmcnt(0)
            v_cmp_eq_u64 vcc, {sTag}, v[6:7]
            {Ln}:
            s_lshl_b32 s60, s62, 3
            s_lshr_b32 s60, vcc_lo, s60
            s_and_b32 s60, s60, 0xff
            s_cmp_lg_u32 s60, 0xff
            s_cbranch_scc1 {Lr}
            s_add_u32 s60, {sX}, s62
            s_add_u32 s60, s60, 1
            s_and_b32 s60, s60, 7
            s_add_u32 s60, s60, s69
            s_mul_i32 s60, s60, {KV_B}
            s_add_u32 s60, s60, {W_KV}
            s_mul_i32 s63, s62, {slot(1) - slot(2)}
            s_sub_u32 s63, {slot(1)}, s63
            """)
            for i in range(19):
                a(f"s_add_u32 m0, s63, {1024*i}")
                a(f"s_add_u32 s86, s60, {1024*i}")
                a(f"buffer_load_dwordx4 v{aK0}, {sWS}, s86 offen sc1 lds")
            a(f"""
            s_add_u32 s62, s62, 1
            s_cmp_lt_u32 s62, 2
            s_cbranch_scc1 {Ln}
            s_setpc_b64 s[76:77]
            {Lr}:
            s_mov_b64 exec, 0xffff
            buffer_load_dwordx2 v[6:7], v4, {sWS}, s61 offen sc1
            s_mov_b64 exec, -1
            s_setpc_b64 s[76:77]
            """)
        self.try_body = try_body

        def try_until(n):
            L, Ld = self.lab(), self.lab()
            a(f"""
            s_mov_b32 s96, {SPIN_MAX}
            {L}:
            s_cmp_ge_u32 s62, {n}
            s_cbranch_scc1 {Ld}
            """)
            call_try()
            a(f"""
            s_sub_u32 s96, s96, 1
            s_cmp_lg_u32 s96, 0
            s_cbranch_scc1 {L}
            """)
            self.timeout_mark(5, 228)
            a(f"{Ld}:")

        def on_wave(w, fn):
            if 'nofetch' in EXP:
                return
            L = self.lab()
            a(f"s_cmp_lg_u32 {sW}, {w}\ns_cbranch_scc1 {L}\ns_setprio 3")
            fn()
            a(f"{L}:")

        a(f"""
        v_lshlrev_b32 v{aK0}, 4, v2
        v_lshlrev_b32 v{aR0}, 2, v2
        v_mov_b32 v{aV0}, v{R.aV}
        v_add_u32 v{R.aK}, {L_RING}, v{aK0}
        v_add_u32 v{R.aR}, {L_RING}, v{aR0}
        v_add_u32 v{R.aV}, {L_RING}, v{aV0}
        v_mov_b32 v{R.idx}, 0xdddddddd
        v_mov_b32 v{R.Qr+1}, 0
        v_mov_b32 v{R.Kr[0]+1}, 0
        v_mov_b32 v{R.Kr[1]+1}, 0
        s_add_u32 s70, s69, {sX}
        s_lshl_b32 s70, s70, 3
        s_add_u32 s70, s70, {sW}
        s_lshl_b32 s70, s70, 6
        s_add_u32 s70, s70, {W_F5}
        """)
        a(f"""
        s_lshl_b32 s83, {sW}, 10
        s_and_b32 s84, {sJ}, 7
        s_mul_i32 s84, s84, {WO_B}
        s_add_u32 s84, s84, {W_WO}
        s_add_u32 s84, s84, s83
        v_mov_b32 v222, s28
        v_mov_b32 v223, s29
        v_mov_b32 v224, 0
        """)
        a("s_barrier")

        def publish():
            a(f"""
            s_waitcnt vmcnt(0)
            s_mov_b64 exec, 1
            buffer_store_dwordx2 v[222:223], v224, {sWS}, s70 offen sc1
            s_mov_b64 exec, -1
            """)

        def seg_start(u):
            for l in (rd("R", u), rd("K", u, 0), rd("K", u, 1), rd("V", u, 0), rd("V", u, 1), rd("R", u + 1), rd("K", u + 1, 0),
                      rd("V", u, 2), rd("K", u + 1, 1), rd("V", u, 3)):
                a(l)

        def seg_qk():
            a("s_waitcnt lgkmcnt(7)")
            m4(0, 0)
            a("s_nop 15\ns_nop 1")
            mf(0, 0, 0)
            mf(0, 0, 1)
            a("s_nop 10")

        def piece(src, lds, off, maxw=8):
            if 'nofetch' in EXP:
                return
            L = self.lab()
            if maxw < 8:
                a(f"s_cmp_ge_u32 {sW}, {maxw}\ns_cbranch_scc1 {L}")
            a(f"s_add_u32 m0, s83, {lds + off}\ns_add_u32 s86, {src}, {off}")
            a(f"buffer_load_dwordx4 v{aK0}, {sWS}, s86 offen sc1 lds")
            if maxw < 8:
                a(f"{L}:")

        def poll_all():
            a(f"""
            s_lshl_b32 s61, s69, 9
            s_add_u32 s61, s61, {W_F5}
            v_lshlrev_b32 v4, 6, v2
            v_min_u32 v5, 17, v2
            v_lshlrev_b32 v5, 6, v5
            s_mov_b32 s60, {W_F3 + 72*64}
            """)
            self.poll([(4, "s61", 0), (5, "s60", 0)], 60, 5)

        seg_start(0)
        L = self.lab()
        a(f"s_cmp_lt_u32 {sW}, 4\ns_cbranch_scc1 {L}")
        publish()
        a(f"s_cmp_lg_u32 {sLayer}, 0\ns_cbranch_scc1 {L}\ns_cmp_ge_u32 {sJ}, 18\ns_cbranch_scc1 {L}")
        for i in range(8):
            a(f"buffer_store_dwordx2 {vr(232+2*i,2)}, v248, {sWS}, s79 offen sc1")
            a(f"s_add_u32 s79, s79, {2*36864}")
        a(f"{L}:")
        seg_qk()
        self.stamp(8)
        for u in range(32):
            P = u & 1
            N = P ^ 1
            end = 4 if u < 4 else 32
            first = u in (0, 4)
            last = u == end - 1
            e = lambda i, j: [a(f"v_exp_f32 v{R.S[P]+k}, v{R.S[P]+k}") for k in range(i, j)]
            k2 = u + 2 < end
            v1 = u + 1 < end
            blk, dt = u >> 2, u & 3
            hook = {}
            if u == PUB_AT:
                L = self.lab()
                a(f"s_cmp_ge_u32 {sW}, 4\ns_cbranch_scc1 {L}")
                publish()
                a(f"{L}:")
            if u == LOOK_AT:
                L = self.lab()
                a(f"""
                s_cmp_lg_u32 {sW}, 0
                s_cbranch_scc1 {L}
                s_mov_b32 s62, 0
                s_lshl_b32 s61, s69, 9
                s_add_u32 s61, s61, {W_F5}
                s_add_u32 s60, {sX}, 1
                s_lshl_b32 s60, s60, 3
                v_add_u32 v4, s60, v2
                v_and_b32 v4, 63, v4
                v_lshlrev_b32 v4, 6, v4
                s_mov_b64 exec, 0xffff
                buffer_load_dwordx2 v[6:7], v4, {sWS}, s61 offen sc1
                s_mov_b64 exec, -1
                {L}:
                """)
            if u in TRY_AT:
                L = self.lab()
                a(f"s_cmp_lg_u32 {sW}, 0\ns_cbranch_scc1 {L}\ns_cmp_ge_u32 s62, 2\ns_cbranch_scc1 {L}")
                call_try()
                a(f"{L}:")
            if u == 4:
                L0, L1 = self.lab(), self.lab()
                a(f"s_cmp_lg_u32 {sW}, 0\ns_cbranch_scc1 {L1}")
                try_until(1)
                a(f"{L1}:")
                self.out_setup()
                L1 = self.lab()
                a(f"""
                s_cmp_lg_u32 {sW}, 0
                s_cbranch_scc1 {L0}
                s_cmp_lg_u32 s62, 2
                s_cbranch_scc1 {L0}
                s_waitcnt vmcnt(19)
                s_branch {L1}
                {L0}:
                s_waitcnt vmcnt(0)
                {L1}:
                s_barrier
                """)
                self.stamp(14)
                seg_start(4)
                L0, L1 = self.lab(), self.lab()
                a(f"s_cmp_lg_u32 {sW}, 0\ns_cbranch_scc1 {L0}\ns_setprio 3")
                try_until(2)
                a(f"{L0}:")
                L = self.lab()
                a(f"""
                s_cmp_lt_u32 {sW}, 4
                s_cbranch_scc1 {L}
                s_cmp_lg_u32 {sLayer}, 0
                s_cbranch_scc1 {L}
                s_cmp_ge_u32 {sJ}, 18
                s_cbranch_scc1 {L}
                s_mov_b64 exec, 1
                buffer_store_dwordx2 v[222:223], v224, {sWS}, s80 offen sc1
                s_mov_b64 exec, -1
                {L}:
                """)
                on_wave(6, poll_all)
                seg_qk()
            if 1 <= blk < 7 and dt == 2 and 'nobar' not in EXP:
                a("s_waitcnt vmcnt(0)\ns_barrier")
                if blk == 3:
                    L = self.lab()
                    a(f"s_cmp_ge_u32 {sW}, 4\ns_cbranch_scc1 {L}\nv_cmp_ne_u64 vcc, {sTag}, v[74:75]\ns_cmp_eq_u64 vcc, 0\ns_cbranch_scc1 {L}")
                    self.poll([(72, "s78", 0)], 74, 10)
                    a(f"{L}:")
                if blk + 2 < 8:
                    a(f"s_add_u32 s85, {sX}, {blk+2}\ns_and_b32 s85, s85, 7")
                    a(f"""
                    s_add_u32 s85, s85, s69
                    s_mul_i32 s85, s85, {KV_B}
                    s_add_u32 s85, s85, {W_KV}
                    s_add_u32 s85, s85, s83
                    """)
            if 1 <= blk < 7 and dt >= 2:
                src, lds, o = ("s85", slot(blk + 2), 0) if blk < 6 else ("s84", L_WO, 36 * 1024)
                if dt == 2:
                    hook[0] = lambda: piece(src, lds, o)
                    hook[1] = lambda: piece(src, lds, o + 8192)
                else:
                    hook[0] = lambda: piece(src, lds, o + 16384, 3)
                    if blk < 6:
                        hook[1] = lambda: piece("s84", L_WO, 8192 * (blk - 1), 8 if blk < 5 else 4)
            if u == 12:
                def yflag():
                    L = self.lab()
                    a(f"s_cmp_ge_u32 {sW}, 4\ns_cbranch_scc1 {L}\nbuffer_load_dwordx2 v[74:75], v72, {sWS}, s78 offen sc1\n{L}:")
                hook[0] = yflag
            if u == 16:
                def resid():
                    L = self.lab()
                    a(f"s_cmp_ge_u32 {sW}, 4\ns_cbranch_scc1 {L}\ns_add_u32 s60, s67, s68\ns_add_u32 s61, s67, {W_Y}")
                    for ft in range(5):
                        va = 64 if ft == 4 else 63
                        a(f"buffer_load_dwordx2 {vr(76+2*ft,2)}, v{va}, {sWS}, s60 offen sc1")
                        a(f"buffer_load_dwordx2 {vr(86+2*ft,2)}, v{va}, {sWS}, s61 offen sc1")
                        if ft < 4:
                            a("s_add_u32 s60, s60, 1024\ns_add_u32 s61, s61, 1024")
                    a(f"{L}:")
                hook[0] = resid
            H = lambda k: hook.get(k, lambda: None)()
            if 'noprio' not in EXP and u >= 4:
                a(f"s_setprio {3 - ((u + 2) & 3)}")
            e(0, 2)
            if not first:
                sm(N, N, 3)
            if k2:
                a(rd("R", u + 2))
            e(2, 5)
            a(f"s_waitcnt lgkmcnt({2 if last else 3 + (1 if k2 else 0)})")
            if not last:
                m4(N, N)
            if v1:
                a(rd("V", u + 1, 0))
            H(0)
            e(5, 13)
            sm(P, P, 0)
            if v1:
                a(rd("V", u + 1, 1))
            e(13, 18)
            sm(P, P, 1)
            if k2:
                a(rd("K", u + 2, 0))
            e(18, 22)
            if not last:
                mf(N, N, 0)
            if v1:
                a(rd("V", u + 1, 2))
            H(1)
            e(22, 26)
            a(f"s_waitcnt lgkmcnt({(2 if k2 else 0) + (3 if v1 else 0)})")
            sm(P, P, 2)
            if k2:
                a(rd("K", u + 2, 1))
            e(26, 29)
            if not last:
                mf(N, N, 1)
            if v1:
                a(rd("V", u + 1, 3))
            e(29, 32)
            if last:
                a("s_nop 1")
                sm(P, P, 3)
        self.stamp(9)
        a("s_setprio 0")
        O = R.O
        a(f"""
        s_add_u32 s60, s71, {sJ}
        s_lshl_b32 s60, s60, 6
        s_add_u32 s70, s60, {W_F6}
        s_lshl_b32 s61, s71, 6
        s_add_u32 s83, s61, {W_F6}
        s_mov_b32 s72, 0
        L_att_norm:
        s_nop 5
        v_mov_b32 v10, v{O+10}
        v_mov_b32 v11, v{O+10}
        v_add_f32 v12, abs(v{O}), abs(v{O+1})
        v_add_f32 v13, abs(v{O+2}), abs(v{O+3})
        v_permlane32_swap_b32 v10, v11
        v_add_f32 v12, v12, abs(v{O+4})
        v_add_f32 v13, v13, abs(v{O+5})
        v_add_f32 v12, v12, abs(v{O+6})
        v_add_f32 v13, v13, abs(v{O+7})
        v_add_f32 v12, v12, abs(v{O+8})
        v_add_f32 v13, v13, abs(v{O+9})
        v_add_f32 v12, v12, v13
        v_rcp_f32 v11, v10
        v_cmp_le_f32 vcc, {f32hex(2.0**-100)}, v10
        v_cmp_ge_f32 s[94:95], {"s73"}, v10
        v_cmp_ge_f32 s[100:101], {"s74"}, v12
        s_nop 0
        s_and_b64 vcc, vcc, s[94:95]
        s_and_b64 vcc, vcc, s[100:101]
        s_cmp_eq_u64 vcc, exec
        s_cbranch_scc1 L_att_ok
        s_cmp_eq_u32 s72, 0
        s_cbranch_scc1 L_att_fallback
        L_att_ok:
        """)
        for i in range(10):
            a(f"v_mul_f32 v{O+i}, v11, v{O+i}")
        for i in range(5):
            a(f"v_cvt_pk_bf16_f32 v{12+i}, v{O+2*i}, v{O+2*i+1}")
        a(f"""
        buffer_store_dwordx4 v[12:15], v225, {sWS}, s81 offen sc1
        s_mov_b32 exec_hi, 0
        buffer_store_dword v16, v226, {sWS}, s82 offen sc1
        s_mov_b64 exec, -1
        s_cmp_lg_u32 {sW}, 0
        s_waitcnt vmcnt(0)
        s_barrier
        """)
        self.warm_o = f"""
        buffer_load_dwordx4 v[8:11], v225, {sWS}, s81 offen sc1
        buffer_load_dword v12, v226, {sWS}, s82 offen sc1
        """ if 'warmo' in EXP else ""

    def out_setup(self):
        a = self.a
        L = self.lab()
        a(f"""
        v_lshrrev_b32 v61, 5, v2
        v_and_b32 v60, 15, v2
        v_lshlrev_b32 v226, 1, v60
        v_bfe_u32 v225, v2, 4, 1
        v_add_u32 v226, v226, v225         ; tau(n)
        s_lshl_b32 s60, {sT}, 5
        v_add_u32 v226, s60, v226
        v_lshlrev_b32 v225, 4, v226
        v_lshl_add_u32 v225, v61, 12, v225
        v_lshlrev_b32 v226, 2, v226
        s_lshl_b32 s60, {sLayer}, 3
        s_add_u32 s60, s60, {sX}
        s_lshl_b32 s71, s60, 5             ; (layer*8+X)*32
        s_add_u32 s60, s71, {sJ}
        s_lshl_b32 s81, s60, 13
        s_add_u32 s81, s81, {W_OM}
        s_lshl_b32 s82, s60, 10
        s_add_u32 s82, s82, {W_OR}
        s_cmp_ge_u32 {sW}, 4
        s_cbranch_scc1 {L}
        v_lshrrev_b32 v61, 4, v2
        s_lshr_b32 s64, {sJ}, 3            ; sub
        s_and_b32 s65, {sJ}, 7             ; slice
        s_lshl_b32 s66, s64, 6
        s_lshl_b32 s67, {sT4}, 4
        s_add_u32 s66, s66, s67
        v_add_u32 v62, s66, v60
        v_lshlrev_b32 v63, 8, v61
        v_lshl_add_u32 v63, v60, 3, v63    ; g*256 + tok*8
        v_mov_b32 v65, 0x7fffffff
        v_cmp_gt_u32 vcc, 2, v61
        s_mul_i32 s60, s65, {18*256}
        s_lshl_b32 s63, {sX}, 3
        s_lshr_b32 s67, s66, 5
        s_add_u32 s63, s63, s67
        s_mul_i32 s63, s63, 36864
        s_add_u32 s60, s60, s63
        s_and_b32 s63, s66, 16
        s_lshl_b32 s63, s63, 3
        s_add_u32 s67, s60, s63
        v_cndmask_b32 v64, v65, v63, vcc
        v_lshrrev_b32 v65, 1, v61
        v_lshlrev_b32 v65, 13, v65
        v_and_b32 v66, 1, v61
        v_lshl_add_u32 v65, v66, 12, v65
        v_lshl_add_u32 v65, v62, 4, v65    ; o main
        v_lshlrev_b32 v66, 12, v61
        v_lshl_add_u32 v66, v62, 2, v66    ; o rem
        v_lshlrev_b32 v67, 4, v2           ; W ft<4
        v_and_b32 v68, 7, v2
        v_lshlrev_b32 v68, 4, v68
        v_lshl_add_u32 v68, v61, 7, v68
        v_add_u32 v68, 4096, v68           ; W ft==4
        v_add_u32 v69, {9*4608}, v67
        v_add_u32 v70, {9*4608}, v68
        v_and_b32 v71, 31, v2
        v_lshlrev_b32 v71, 6, v71          ; flags
        v_min_u32 v72, 17, v2
        v_lshlrev_b32 v72, 8, v72          ; y flags
        s_mul_i32 s78, s65, {18*256}
        s_lshr_b32 s63, {sX}, 1
        s_lshl_b32 s63, s63, 6
        s_add_u32 s78, s78, s63
        s_add_u32 s78, s78, {W_F10}
        {L}:
        """)

    def next_layer(self):
        self.a(f"s_mov_b32 {sLayer}, 1\ns_mov_b32 s68, {W_X3}\ns_mov_b32 s87, 0")
        self.qkv_setup()

    def fetch_wo(self, first, n, va, step=1):
        Ll = self.lab()
        self.a(f"""
        s_and_b32 s60, {sJ}, 7
        s_mul_i32 s60, s60, {WO_B}
        s_add_u32 s60, s60, {W_WO + 1024*first}
        s_add_u32 s61, s60, {1024*n}
        s_mov_b32 m0, {L_WO + 1024*first}
        """)
        if step > 1:
            self.a("s_lshl_b32 s62, s62, 10\ns_add_u32 s60, s60, s62\ns_add_u32 m0, m0, s62\ns_nop 0")
        else:
            self.a("s_nop 0")
        self.a(f"""
        {Ll}:
        buffer_load_dwordx4 v{va}, {sWS}, s60 offen sc1 lds
        s_add_u32 m0, m0, {1024*step}
        s_add_u32 s60, s60, {1024*step}
        s_cmp_lt_u32 s60, s61
        s_cbranch_scc1 {Ll}
        """)

    def fallback(self):
        a, R = self.a, self.R
        S0 = R.S[0]
        a("L_att_fallback:")
        a(".reset_waits")
        a(f"""
        s_mov_b32 s72, 1
        s_mul_i32 s75, s69, {KV_B}
        s_add_u32 s75, s75, {W_KV}
        v_mov_b32 v221, 0xff7fffff
        s_waitcnt vmcnt(0)
        """)
        for p in range(2):
            Lb = self.lab("Lfb")
            a(f"s_mov_b32 s76, 0\n{Lb}:")
            a(f"""
            s_lshr_b32 s77, s76, 2
            s_and_b32 s78, s76, 3
            s_mul_i32 s77, s77, {KV_B}
            s_add_u32 s77, s77, s75
            s_lshl_b32 s79, s78, 11
            s_add_u32 s79, s79, s77
            buffer_load_dwordx4 {vr(R.K[0]+8,4)}, v218, {sWS}, s79 offen sc1
            buffer_load_dwordx4 {vr(R.K[0]+12,4)}, v218, {sWS}, s79 offen offset:1024 sc1
            s_lshl_b32 s79, s78, 8
            s_add_u32 s79, s79, s77
            s_add_u32 s79, s79, {KV_R}
            buffer_load_dword v{R.Kr[0]}, v219, {sWS}, s79 offen sc1
            """)
            if p:
                a(f"s_mul_i32 s79, s78, 2560\ns_add_u32 s79, s79, s77\ns_add_u32 s79, s79, {KV_V}")
                for i in range(4):
                    a(f"buffer_load_dwordx4 {vr(R.V[0]+4*i,4)}, v220, {sWS}, s79 offen offset:{640*i} sc1")
            a(f"""
            s_waitcnt vmcnt(0)
            v_mfma_f32_32x32x4bf16_1k {vr(S0,32)}, {vr(R.Kr[0],2)}, {vr(R.Qr,2)}, 0
            s_nop 15
            s_nop 3
            v_mfma_f32_32x32x16_bf16 {vr(S0,16)}, {vr(R.K[0]+8,4)}, {vr(R.Q,4)}, {vr(S0,16)}
            v_mfma_f32_32x32x16_bf16 {vr(S0+16,16)}, {vr(R.K[0]+12,4)}, {vr(R.Q,4)}, {vr(S0+16,16)}
            s_nop 15
            """)
            if p == 0:
                for i in range(16):
                    a(f"v_max3_f32 v221, v221, v{S0+2*i}, v{S0+2*i+1}")
            else:
                for i in range(32):
                    a(f"v_sub_f32 v{S0+i}, v{S0+i}, v221")
                for i in range(32):
                    a(f"v_exp_f32 v{S0+i}, v{S0+i}")
                a("s_nop 1")
                for g in range(4):
                    a(f"v_smfmac_f32_32x32x32_bf16 {vr(R.O,16)}, {vr(R.V[0]+4*g,4)}, {vr(S0+8*g,8)}, v{R.idx}")
            a(f"s_add_u32 s76, s76, 1\ns_cmp_lt_u32 s76, 32\ns_cbranch_scc1 {Lb}")
            if p == 0:
                a("v_mov_b32 v227, v221\ns_nop 1\nv_permlane32_swap_b32 v221, v227\ns_nop 1\nv_max_f32 v221, v221, v227")
                for i in range(16):
                    a(f"v_mov_b32 v{R.O+i}, 0")
        a("s_nop 15\ns_branch L_att_norm")

    def outproj(self):
        a = self.a
        OF, ACC, XR, YR = 128, 16, 76, 86
        WF = [36, 200, 220]
        a(f"""
        s_cbranch_scc1 L_op_nf
        s_mov_b64 exec, 1
        buffer_store_dwordx2 v[222:223], v224, {sWS}, s70 offen sc1
        s_mov_b64 exec, -1
        """)
        self.stamp(10)
        a(f"""
        L_op_nf:
        {self.warm_o}
        s_cmp_ge_u32 {sW}, 4
        s_cbranch_scc1 L_op_help
        s_mov_b32 s63, 0xffff0000
        """)
        XF = 96
        YF = [116 + i for i in range(12)] + [240 + i for i in range(8)]
        for i in range(10):
            a(f"v_lshlrev_b32 v{XF+2*i}, 16, v{XR+i}")
            a(f"v_and_b32 v{XF+2*i+1}, s63, v{XR+i}")
            a(f"v_lshlrev_b32 v{YF[2*i]}, 16, v{YR+i}")
            a(f"v_and_b32 v{YF[2*i+1]}, s63, v{YR+i}")
        L = self.lab()
        a(f"s_cmp_lg_u32 {sW}, 0\ns_cbranch_scc1 {L}")
        self.poll2([(71, "s83", 0)], 56, 6)
        a(f"""
        {L}:
        s_barrier
        s_lshl_b32 s60, s71, 13
        s_add_u32 s60, s60, {W_OM}
        s_lshl_b32 s61, s71, 10
        s_add_u32 s61, s61, {W_OR}
        """)
        self.stamp(11)
        for s in range(16):
            a(f"buffer_load_dwordx4 {vr(OF+4*s,4)}, v65, {sWS}, s60 offen sc1")
            if s < 15:
                a("s_add_u32 s60, s60, 0x4000")
        for s in range(2):
            for i in range(4):
                a(f"buffer_load_dword v{OF+64+4*s+i}, v66, {sWS}, s61 offen offset:{1024*i} sc1")
            if s == 0:
                a("s_add_u32 s61, s61, 0x4000")

        def rdW(s):
            hi = s >= 9
            out = []
            for ft in range(5):
                va = (69 if hi else 67) if ft < 4 else (70 if hi else 68)
                off = L_WO + 4608 * (s - 9 * hi) + (1024 * ft if ft < 4 else 0)
                out.append(f"ds_read_b128 {vr(WF[s%3]+4*ft,4)}, v{va} offset:{off}")
            return out
        for l in rdW(0) + rdW(1):
            a(l)
        for s in range(18):
            nxt = rdW(s + 2) if s < 16 else []
            a(f"s_waitcnt vmcnt({23-s if s < 16 else (4 if s == 16 else 0)}) lgkmcnt({5 if s < 17 else 0})")
            for ft in range(5):
                d = vr(ACC + 4 * ft, 4)
                a(f"v_mfma_f32_16x16x32_bf16 {d}, {vr(WF[s%3]+4*ft,4)}, {vr(OF+4*s,4)}, {d if s else vr(XF+4*ft,4)}")
                if nxt:
                    a(nxt[ft])
        self.stamp(12)
        XF = ACC
        a(f"""
        s_lshl_b32 s60, {sX}, 2
        s_add_u32 s60, s60, s64
        s_lshl_b32 s60, s60, 13
        s_add_u32 s60, s60, {W_G7}
        s_lshl_b32 s61, {sT4}, 8
        s_add_u32 s60, s60, s61
        s_lshl_b32 s61, s65, 10
        s_add_u32 s61, s61, s60
        v_lshlrev_b32 v4, 4, v60
        v_cmp_gt_u32 vcc, 2, v61
        v_mov_b32 v10, s28
        v_mov_b32 v11, s29
        s_cmp_lg_u32 {sLayer}, 0
        s_cbranch_scc1 L_op_final
        """)
        a(f"v_pk_add_f32 v[12:13], {vr(XF,2)}, {vr(XF+2,2)}\nv_pk_mul_f32 v[14:15], {vr(XF,2)}, {vr(XF,2)}")
        a(f"v_pk_fma_f32 v[14:15], {vr(XF+2,2)}, {vr(XF+2,2)}, v[14:15]")
        for i in range(2, 10):
            if i == 8:
                for j in range(16, 20):
                    a(f"v_cndmask_b32 v{XF+j}, 0, v{XF+j}, vcc")
            a(f"v_pk_add_f32 v[12:13], v[12:13], {vr(XF+2*i,2)}")
            a(f"v_pk_fma_f32 v[14:15], {vr(XF+2*i,2)}, {vr(XF+2*i,2)}, v[14:15]")
        a("v_add_f32 v8, v12, v13\nv_add_f32 v9, v14, v15")

        def xsum():
            for op in ("v_permlane16_swap_b32", "v_permlane32_swap_b32"):
                a(f"""
                v_mov_b32 v12, v8
                v_mov_b32 v13, v9
                s_nop 1
                {op} v8, v12
                {op} v9, v13
                s_nop 0
                v_add_f32 v8, v8, v12
                v_add_f32 v9, v9, v13
                """)
        xsum()
        a(f"""
        s_mov_b64 exec, 0xffff
        buffer_store_dwordx4 v[8:11], v4, {sWS}, s61 offen sc1
        s_mov_b64 exec, -1
        v_lshl_add_u32 v4, v61, 10, v4
        s_add_u32 s61, s60, 4096
        """)
        a("s_waitcnt vmcnt(0)")
        if os.environ.get("GDELAY"):
            a(f"s_sleep {os.environ['GDELAY']}")
        Ld0, Ld1 = self.poll2([(4, "s60", 0), (4, "s61", 0)], 136, 7, width=4)
        a(f"""
        {Ld0}:
        v_add_f32 v8, v136, v140
        v_add_f32 v9, v137, v141
        """)
        xsum()
        self.stats(8, 9, 12, 14, 10)
        a("v_mov_b32 v13, v12\nv_mov_b32 v15, v14")
        a(f"s_add_u32 s60, s67, {W_X3}")
        for ft in range(5):
            for p in range(2):
                x, y, t = XF + 4 * ft + 2 * p, YF[4 * ft + 2 * p], 96 + 4 * ft + 2 * p
                a(f"v_pk_fma_f32 {vr(t,2)}, {vr(x,2)}, v[12:13], v[14:15]")
                a(f"v_pk_fma_f32 {vr(x,2)}, {vr(t,2)}, {vr(y,2)}, {vr(x,2)}")
            a(f"v_cvt_pk_bf16_f32 v{76+2*ft}, v{XF+4*ft}, v{XF+4*ft+1}")
            a(f"v_cvt_pk_bf16_f32 v{77+2*ft}, v{XF+4*ft+2}, v{XF+4*ft+3}")
            a(f"buffer_store_dwordx2 {vr(76+2*ft,2)}, v{64 if ft == 4 else 63}, {sWS}, s60 offen sc1")
            if ft < 4:
                a("s_add_u32 s60, s60, 1024")
        self.next_layer()
        L = self.lab()
        a(f"""
        s_lshl_b32 s60, {sX}, 11
        s_add_u32 s60, s60, {W_F8}
        s_lshl_b32 s61, {sJ}, 6
        s_add_u32 s61, s61, s60
        v_lshlrev_b32 v8, 6, v6
        v_mov_b32 v10, s28
        v_mov_b32 v11, s29
        v_mov_b32 v12, 0
        v_mov_b32 v13, {L_CNT}
        v_mov_b32 v14, 1
        s_add_u32 s62, s67, {W_X3}
        s_add_u32 s63, s62, 4096
        s_waitcnt vmcnt(0)
        s_mov_b64 exec, 1
        ds_add_rtn_u32 v14, v13, v14
        s_waitcnt lgkmcnt(0)
        v_readfirstlane_b32 s3, v14
        s_mov_b64 exec, -1
        s_cmp_lg_u32 s3, 3
        s_cbranch_scc1 {L}w
        s_mov_b64 exec, 1
        buffer_store_dwordx2 v[10:11], v12, {sWS}, s61 offen sc1
        s_mov_b64 exec, -1
        {L}w:
        """)
        if 'warmx' in EXP:
            for ft in range(4):
                a(f"buffer_load_dwordx2 v[240:241], v63, {sWS}, s62 offen offset:{1024*ft} sc1")
            a(f"buffer_load_dwordx2 v[240:241], v64, {sWS}, s63 offen sc1")
        a(f"s_cbranch_scc1 {L}")
        self.poll2([(8, "s60", 0)], 220, 8)
        a(f"{L}:")
        a("s_branch L_next_layer")

        a("L_op_help:")
        a(".reset_waits")
        a(f"s_sub_u32 s62, {sW}, 4\ns_mov_b32 s3, 0\nv_mov_b32 v4, {L_CNT}\nv_mov_b32 v5, 0\nds_write_b32 v4, v5")
        self.fetch_wo(55, 26, 218, step=4)
        a("s_waitcnt vmcnt(0) lgkmcnt(0)\ns_barrier")
        a(f"s_cmp_lg_u32 {sLayer}, 0\ns_cbranch_scc1 L_end")
        self.next_layer()
        a("L_next_layer:")
        if self.stop == "gate2":
            a("s_branch L_end")
        a("s_branch L_qkv")

        a("L_op_final:")
        a(".reset_waits")
        self.srd(sA, "out", NB)
        a(f"""
        s_lshl_b32 s60, {sX}, 8
        v_add_u32 v8, s60, v62
        v_mul_u32_u24 v8, 1152, v8
        v_lshl_add_u32 v8, v61, 3, v8
        v_mov_b32 v11, 0x7fffffff
        v_cmp_gt_u32 vcc, 2, v61
        s_mul_i32 s60, s65, 144
        s_nop 0
        v_cndmask_b32 v9, v11, v8, vcc
        """)
        for ft in range(5):
            a(f"v_cvt_pk_bf16_f32 v{76+2*ft}, v{XF+4*ft}, v{XF+4*ft+1}")
            a(f"v_cvt_pk_bf16_f32 v{77+2*ft}, v{XF+4*ft+2}, v{XF+4*ft+3}")
            a(f"buffer_store_dwordx2 {vr(76+2*ft,2)}, v{9 if ft == 4 else 8}, {sA}, s60 offen offset:{32*ft} {os.environ.get('OUTF', '')}")
        a(f"""
        s_or_b32 s60, s2, {sW}
        s_cmp_lg_u32 s60, 0
        s_cbranch_scc1 L_end
        s_mov_b32 s60, {W_NONCE}
        """)
        self.flag_store("s60", 10)

    def build(self):
        a = self.a
        self.R = G.Regs
        self.prologue()
        self.prep()
        self.finish_if("prep")
        self.conv()
        self.relayout()
        self.colsum()
        self.finish_if("conv")
        a(f"s_mov_b32 s73, {f32hex(2.0**120)}\ns_mov_b32 s74, {f32hex(2.0**120)}")
        self.qkv()
        if self.stop == "qkv":
            a("s_waitcnt vmcnt(0)\ns_branch L_end")
        self.attention()
        self.finish_if("attn")
        self.outproj()
        a("L_end:")
        if self.ts:
            self.stamp(15)
            a(f"""
            s_lshl_b32 s60, s2, 3
            s_add_u32 s60, s60, {sW}
            s_lshl_b32 s60, s60, 8
            s_add_u32 s60, s60, {W_TS}
            v_lshlrev_b32 v4, 2, v2
            buffer_store_dword v255, v4, {sWS}, s60 offen
            """)
            if 'dbgts' in EXP:
                wg = int(os.environ.get("DBGWG", 0))
                a(f"""
                s_cmp_lg_u32 s2, {wg}
                s_cbranch_scc1 L_nodbg
                s_cmp_lg_u32 {sW}, 0
                s_cbranch_scc1 L_nodbg
                v_readlane_b32 s60, v255, 0
                s_nop 3
                v_subrev_u32 v5, s60, v255
                """)
                for n, i in enumerate((16, 1, 2, 3, 4, 5, 7, 8, 9, 11, 13, 21, 24, 25, 27, 31)):
                    a(f"v_readlane_b32 s61, v5, {i}\ns_nop 3\nv_writelane_b32 v6, s61, {n}")
                a(f"s_mov_b64 exec, 0xffff\nglobal_store_dword v4, v6, s[{PTR['dbg']}:{PTR['dbg']+1}]\nL_nodbg:")
        a("s_waitcnt vmcnt(0)")
        a("L_exit:")
        a("s_endpgm")
        self.fallback()
        self.try_body()
        a("L_code_end:")
        lines, added = fix_hazards(a.lines, verbose=True, tag="k")
        errs = check_waits(lines, "k")
        for e in errs:
            print(e)
        lines = [l for l in lines if not l.startswith(".reset_waits")]
        a.lines = lines
        body = a.text().replace("CODE_AFTER", "(L_code_end-L_pc_here)")
        ref = open(f"cdna_kernels/{NAME}.s.ref").read()
        head = ref[:ref.index("; Override launch")]
        txt = head + f"""; @launch grid=(256,1,1) block=(512,1,1) lds={LDS_BYTES}
.amdgcn_target "amdgcn-amd-amdhsa--gfx950"
.text
.globl {NAME}_kernel
.p2align 12
.type {NAME}_kernel,@function
{NAME}_kernel:
""" + body + f""".section .rodata,"a"
.p2align 6
.amdhsa_kernel {NAME}_kernel
  .amdhsa_next_free_vgpr 256
  .amdhsa_next_free_sgpr 102
  .amdhsa_accum_offset 256
  .amdhsa_group_segment_fixed_size 0
  .amdhsa_kernarg_size 96
  .amdhsa_user_sgpr_count 2
  .amdhsa_user_sgpr_kernarg_segment_ptr 1
  .amdhsa_system_sgpr_workgroup_id_x 1
.end_amdhsa_kernel
"""
        return txt, errs


if __name__ == "__main__":
    out = sys.argv[1]
    stop = None
    ts = False
    for x in sys.argv[2:]:
        if x == "ts":
            ts = True
        elif x == "ts2":
            ts = 2
        else:
            stop = x
    txt, errs = G(stop, ts).build()
    open(out, "w").write(txt)
    print("written", out, len(txt), "bytes;", len(errs), "wait errors")
```

```python
import sys
from asmlib import Asm, fix_hazards, check_waits

NAME = "interleave_layers__ssm_conv_h3__softmax_full_mha__prompt"
S, D = 2048, 576
NB = S * D * 2

W_NONCE = 0
W_F1 = 0x1000
W_F3 = 0x5000
W_F2 = 0x6C000
W_F4 = 0x8000
W_F5 = 0x12000
W_F6 = 0x52000
W_F8 = 0x5A000
W_G7 = 0x70000
W_ST0 = 0xB0000
W_CSP = 0x1C0000
W_F10 = 0x110000
W_G9 = 0x100000
W_TS = 0x140000
W_U = 0x210000
W_WQ = 0x500000
W_WO = 0x700000
W_X1 = 0x800000
W_X0 = 0x2000000
W_Y = 0xB00000
W_X3 = 0xE00000
W_KV = 0x1100000
W_OM = 0x1B00000
W_OR = 0x1F00000
W_SIZE = 0x2400000
WQ_B, WO_B, KV_B = 64512, 82944, 19456
KV_V, KV_R = 8192, 18432

L_HC, HC_B = 0, 4160
L_U, U_B = 66560, 4608
L_WO = 0
L_OWN = 0
L_RING = 37632
L_CS = 96000
L_ST = 96256
L_REM = 96256
L_QR = 98304
L_WQ = 99328
L_PK = L_WQ
L_PV = L_WQ + 10240
L_CNT = 98304
L_PX = L_PV + 9216
LDS_BYTES = 163840

sWS = "s[4:7]"
sA, sB, sC, sD_ = "s[8:11]", "s[12:15]", "s[16:19]", "s[20:23]"
sX, sJ, sW, sLayer = "s24", "s25", "s26", "s27"
sT, sT4 = "s30", "s31"
sTag = "s[28:29]"
sP = 32
PTR = dict(q=32, k=34, v=36, sk=38, h=40, dd=42, bx=44, wqkv=46, wo=48, out=50, dbg=52, ws=54)
SPIN_MAX = 400000
LOOK_AT = int(__import__('os').environ.get('LOOK', 2))
POLLS = {1: '1,0,0', 4: '0,2,0', 6: '1,1,2', 8: '1,1,2'}
PUB_AT = int(__import__('os').environ.get('PUB', 1))
TRY_AT = [int(x) for x in __import__('os').environ.get('TRY', '3').split(',')]
WQ1 = int(__import__('os').environ.get('WQ1', 63))

C_SCALE = 18 ** -0.5 * 1.4426950408889634


def f32hex(x):
    import struct
    return "0x%08x" % struct.unpack("<I", struct.pack("<f", x))[0]


def vr(a, n):
    return f"v[{a}:{a+n-1}]" if n > 1 else f"v{a}"


import os
EXP = os.environ.get('EXP', '').split(',') + ['hearly', 'f2first', 'fixorder'] + ([] if os.environ.get('NOTMAP') else ['tmap'])


class G:
    def __init__(self, stop=None, ts=False):
        self.a = Asm()
        self.stop = stop
        self.ts = ts
        self.nlab = 0

    def lab(self, p="L"):
        self.nlab += 1
        return f"{p}_{self.nlab}"

    def srd(self, s, ptr, nbytes):
        b = int(s[2:s.index(":")])
        p = PTR[ptr]
        self.a(f"s_mov_b32 s{b}, s{p}\ns_mov_b32 s{b+1}, s{p+1}\ns_mov_b32 s{b+2}, {nbytes}\ns_mov_b32 s{b+3}, 0x20000")

    def stamp(self, i):
        if not self.ts or (self.ts == 2 and i not in (0, 5, 15)):
            return
        self.a(f"s_memrealtime s[98:99]\ns_memtime s[92:93]\ns_lshl_b32 s97, {sLayer}, 4\ns_add_u32 m0, s97, {i}\ns_waitcnt lgkmcnt(0)\nv_writelane_b32 v255, s98, m0\ns_add_u32 m0, m0, 32\ns_nop 0\nv_writelane_b32 v255, s92, m0")

    def flag_store(self, soff, vtmp):
        self.a(f"""
        v_mov_b32 v{vtmp}, s28
        v_mov_b32 v{vtmp+1}, s29
        v_mov_b32 v{vtmp+2}, 0
        s_mov_b64 exec, 1
        buffer_store_dwordx2 {vr(vtmp,2)}, v{vtmp+2}, {sWS}, {soff} offen sc1
        s_mov_b64 exec, -1
        """)

    def poll(self, loads, vt, code, first=0, nap=1):
        a = self.a
        L, Ld = self.lab("Lpoll"), self.lab("Lpolld")
        a(f"s_mov_b32 s96, {SPIN_MAX}")
        if first:
            L1, L1d = self.lab("Lp1"), self.lab("Lp1d")
            va, so, im = loads[0]
            a(f"""
            s_mov_b64 exec, 1
            {L1}:
            buffer_load_dwordx2 {vr(vt,2)}, v{va}, {sWS}, {so} offen offset:{im} sc1
            s_waitcnt vmcnt(0)
            v_cmp_eq_u64 vcc, {sTag}, {vr(vt,2)}
            s_cmp_lg_u64 vcc, 0
            s_cbranch_scc1 {L1d}
            s_sleep {first}
            s_sub_u32 s96, s96, 1
            s_cmp_gt_u32 s96, 1
            s_cbranch_scc1 {L1}
            {L1d}:
            s_mov_b64 exec, -1
            """)
        a(f"{L}:")
        for i, (va, so, im) in enumerate(loads):
            a(f"buffer_load_dwordx2 {vr(vt+2*i,2)}, v{va}, {sWS}, {so} offen offset:{im} sc1")
        a("s_waitcnt vmcnt(0)")
        for i in range(len(loads)):
            if i == 0:
                a(f"v_cmp_ne_u64 vcc, {sTag}, {vr(vt,2)}")
            else:
                a(f"v_cmp_ne_u64 s[94:95], {sTag}, {vr(vt+2*i,2)}\ns_or_b64 vcc, vcc, s[94:95]")
        a(f"""
        s_cmp_eq_u64 vcc, 0
        s_cbranch_scc1 {Ld}
        s_mov_b64 exec, vcc
        """)
        if nap:
            a(f"s_sleep {nap}")
        a(f"""
        s_sub_u32 s96, s96, 1
        s_cmp_lg_u32 s96, 0
        s_cbranch_scc1 {L}
        """)
        self.timeout_mark(code, vt)
        a(f"{Ld}:\ns_mov_b64 exec, -1")

    def poll2(self, loads, vt, code, width=2, first=0):
        a = self.a
        n = len(loads)
        if width == 2:
            ack, first, nap = map(int, os.environ.get(f"P{code}", POLLS[code]).split(","))
            if ack:
                a("s_waitcnt vmcnt(0)")
            return self.poll(loads, vt, code, first=first, nap=nap)
        L, Ld0, Ld1, Ld = self.lab("Lq"), self.lab("Lq0"), self.lab("Lq1"), self.lab("Lqd")
        op = "buffer_load_dwordx2" if width == 2 else "buffer_load_dwordx4"

        def issue(k):
            for i, (va, so, im) in enumerate(loads):
                a(f"{op} {vr(vt+width*(n*k+i),width)}, v{va}, {sWS}, {so} offen offset:{im} sc1")

        def check(k, tgt):
            a(f"s_waitcnt vmcnt({n})")
            for i in range(n):
                r = vr(vt + width * (n * k + i) + width - 2, 2)
                if i == 0:
                    a(f"v_cmp_ne_u64 vcc, {sTag}, {r}")
                else:
                    a(f"v_cmp_ne_u64 s[94:95], {sTag}, {r}\ns_or_b64 vcc, vcc, s[94:95]")
            a(f"s_cmp_eq_u64 vcc, 0\ns_cbranch_scc1 {tgt}")
            if width == 2:
                a("s_mov_b64 exec, vcc")
        a(f"s_mov_b32 s96, {SPIN_MAX}")
        if first:
            L1, L1d = self.lab("Lp1"), self.lab("Lp1d")
            va, so, im = loads[0]
            a(f"""
            s_mov_b64 exec, 1
            {L1}:
            buffer_load_dwordx2 {vr(vt,2)}, v{va}, {sWS}, {so} offen offset:{im} sc1
            s_waitcnt vmcnt(0)
            v_cmp_eq_u64 vcc, {sTag}, {vr(vt,2)}
            s_cmp_lg_u64 vcc, 0
            s_cbranch_scc1 {L1d}
            s_sleep {first}
            s_sub_u32 s96, s96, 1
            s_cmp_gt_u32 s96, 1
            s_cbranch_scc1 {L1}
            {L1d}:
            s_mov_b64 exec, -1
            """)
        if 'pipe' not in EXP and 'gpipe' not in EXP:
            a(f"{L}:")
            issue(0)
            n0, n = n, 0
            a("s_waitcnt vmcnt(0)")
            for i in range(n0):
                r = vr(vt + width * i + width - 2, 2)
                a(f"v_cmp_ne_u64 vcc, {sTag}, {r}" if i == 0 else f"v_cmp_ne_u64 s[94:95], {sTag}, {r}\ns_or_b64 vcc, vcc, s[94:95]")
            a(f"s_cmp_eq_u64 vcc, 0\ns_cbranch_scc1 {Ld0}\n{'s_sleep ' + os.environ['GNAP'] if os.environ.get('GNAP') else ''}\ns_sub_u32 s96, s96, 1\ns_cmp_lg_u32 s96, 0\ns_cbranch_scc1 {L}")
            self.timeout_mark(code, vt)
            return Ld0, Ld1
        issue(0)
        a(f"{L}:")
        issue(1)
        check(0, Ld0 if width > 2 else Ld)
        issue(0)
        check(1, Ld1 if width > 2 else Ld)
        a(f"""
        s_sub_u32 s96, s96, 1
        s_cmp_lg_u32 s96, 0
        s_cbranch_scc1 {L}
        s_waitcnt vmcnt(0)
        """)
        self.timeout_mark(code, vt)
        if width > 2:
            return Ld0, Ld1
        a(f"{Ld}:\ns_mov_b64 exec, -1")

    def timeout_mark(self, code, vt):
        self.a(f"""
        v_mov_b32 v{vt}, {code}
        v_mov_b32 v{vt+1}, 0
        global_store_dword v{vt+1}, v{vt}, s[{PTR['dbg']}:{PTR['dbg']+1}]
        s_waitcnt vmcnt(0)
        """)

    def finish_if(self, name):
        if self.stop == name:
            self.a("s_branch L_end")

    def prologue(self):
        a = self.a
        a(f"""
        s_cmp_ge_u32 s2, 256
        s_cbranch_scc1 L_exit
        s_load_dwordx16 s[32:47], s[0:1], 0
        s_load_dwordx8 s[48:55], s[0:1], 64
        s_getpc_b64 s[16:17]
        L_pc_here:
        s_and_b32 s17, s17, 0xffff
        s_mov_b32 s18, CODE_AFTER
        s_mov_b32 s19, 0x20000
        s_lshr_b32 s3, s2, 3
        s_lshl_b32 s3, s3, 10
        v_lshlrev_b32 v1, 7, v0
        v_cmp_gt_u32 vcc, 8, v0
        v_bfrev_b32 v2, -2
        v_cndmask_b32 v1, v2, v1, vcc
        buffer_load_dword v254, v1, {sC}, s3 offen
        v_lshrrev_b32 v1, 6, v0
        v_and_b32 v2, 63, v0
        s_and_b32 {sX}, s2, 7
        v_readfirstlane_b32 {sW}, v1
        s_lshr_b32 {sJ}, s2, 3
        s_mov_b32 {sLayer}, 0
        s_add_u32 {sT}, {sW}, {sJ}
        s_and_b32 {sT4}, {sT}, 3
        s_and_b32 {sT}, {sT}, 7
        s_waitcnt lgkmcnt(0)
        """)
        self.srd(sWS, "ws", W_SIZE)
        a("v_mov_b32 v248, 0")
        if self.ts:
            a("v_mov_b32 v255, 0")

    def div9(self, vidx, vrow, vj):
        self.a(f"""
        v_mul_hi_u32 v{vrow}, v{vidx}, s64
        v_mul_u32_u24 v{vj}, 9, v{vrow}
        v_sub_u32 v{vj}, v{vidx}, v{vj}
        """)

    def prep(self):
        a = self.a
        HR = 128
        self.stamp(0)
        a(f"s_load_dwordx2 {sTag}, s[54:55], {W_NONCE}")
        self.srd(sA, "k", NB)
        self.srd(sB, "v", NB)
        a(f"""
        s_mov_b32 s64, 0x1c71c71d
        """)
        if 'tmap' in EXP:
            a(f"s_and_b32 s84, {sJ}, 7\ns_lshr_b32 s85, {sJ}, 3\ns_lshl_b32 s60, {sX}, 2\ns_add_u32 s85, s85, s60")
        else:
            a(f"s_mov_b32 s84, {sX}\ns_mov_b32 s85, {sJ}")
        a(f"""
        s_mul_i32 s60, s85, {64*1152}
        s_mul_i32 s61, s84, 144
        s_add_u32 s60, s60, s61
        s_sub_u32 s61, s60, {4*1152}
        """)
        self.div9(0, 3, 4)
        a(f"""
        v_mul_u32_u24 v3, 1152, v3
        v_lshl_add_u32 v5, v4, 4, v3
        v_add_u32 v6, s61, v5
        s_lshl_b32 s62, {sW}, 10
        s_add_u32 m0, s62, {L_PK}
        v_add_u32 v7, 512, v0
        buffer_load_dwordx4 v6, {sA}, 0 offen lds
        s_add_u32 m0, s62, {L_PV}
        s_cmp_ge_u32 {sW}, 3
        buffer_load_dwordx4 v5, {sB}, s60 offen lds
        s_cbranch_scc1 L_prep_d3
        s_cmp_eq_u32 {sW}, 2
        s_cbranch_scc1 L_prep_d2
        """)
        self.div9(7, 3, 4)
        a(f"""
        v_mul_u32_u24 v3, 1152, v3
        v_lshl_add_u32 v5, v4, 4, v3
        v_add_u32 v6, s61, v5
        s_add_u32 m0, s62, {L_PK+8192}
        s_nop 0
        buffer_load_dwordx4 v6, {sA}, 0 offen lds
        s_branch L_prep_d3
        L_prep_d2:
        v_add_u32 v7, 512, v2
        """)
        self.div9(7, 3, 4)
        a(f"""
        v_mul_u32_u24 v3, 1152, v3
        v_lshl_add_u32 v5, v4, 4, v3
        s_mov_b32 m0, {L_PV+8192}
        s_nop 0
        buffer_load_dwordx4 v5, {sB}, s60 offen lds
        L_prep_d3:
        s_cmp_ge_u32 {sW}, 5
        s_cbranch_scc1 L_prep_other
        """)
        self.sk_load()
        if 'hearly' in EXP:
            a(f"s_cmp_lg_u32 {sW}, 4\ns_cbranch_scc1 L_prep_k0\ns_cmp_ge_u32 {sJ}, 18\ns_cbranch_scc1 L_prep_k0")
            self.h_issue(HR)
            a("s_waitcnt vmcnt(8)\ns_branch L_prep_k1\nL_prep_k0:\ns_waitcnt vmcnt(0)\nL_prep_k1:")
        else:
            a("s_waitcnt vmcnt(0)")
        a(f"""
        v_bfe_u32 v5, v2, 2, 2
        v_lshl_add_u32 v5, v4, 3, v5      ; 8G + j
        v_mul_u32_u24 v5, 144, v5
        v_and_b32 v6, 3, v2
        v_lshl_add_u32 v5, v6, 3, v5
        s_lshl_b32 s62, {sW}, 5
        s_add_u32 s62, s62, {L_PK}
        v_add_u32 v5, s62, v5
        s_waitcnt lgkmcnt(0)
        """)
        self.stamp(19)
        a("s_barrier")
        self.stamp(16)
        KR, VR_, KF, AC, WT = 12, 24, 32, 56, 72
        for o in range(2):
            for i in range(3):
                a(f"ds_read_b64_tr_b16 {vr(KR+6*o+2*i,2)}, v5 offset:{4608*o+576*i}")
            for i in range(2):
                a(f"ds_read_b64_tr_b16 {vr(VR_+4*o+2*i,2)}, v5 offset:{L_PV-L_PK+4608*o+576*i}")
        a(f"""
        s_mov_b32 s65, 0xffff0000
        v_lshlrev_b32 v{WT}, 16, v10
        v_and_b32 v{WT+1}, s65, v10
        v_lshlrev_b32 v{WT+2}, 16, v11
        v_and_b32 v{WT+3}, s65, v11
        v_lshlrev_b32 v6, 12, v3
        v_lshl_add_u32 v6, v4, 4, v6
        v_mov_b32 v7, 0x7fffffff
        s_mul_i32 s62, {sW}, 16
        v_add_u32 v8, s62, v3
        v_cmp_gt_u32 vcc, 72, v8
        s_lshl_b32 s62, s61, 12
        s_lshl_b32 s63, s85, 7
        s_add_u32 s62, s62, s63
        s_add_u32 s62, s62, {W_U}
        v_cndmask_b32 v6, v7, v6, vcc
        """)
        for o in range(2):
            a(f"s_waitcnt lgkmcnt({7 if o == 0 else 2})")
            kf = KF + 12 * o
            for d in range(6):
                if d:
                    a(f"v_lshlrev_b32 v{kf+2*d}, 16, v{KR+6*o+d}")
                a(f"v_and_b32 v{kf+2*d+1}, s65, v{KR+6*o+d}")
            ac = AC + 8 * o
            for t in range(8):
                a(f"v_mul_f32 v{ac+t}, v{WT}, v{kf+4+t}")
            for i in range(1, 4):
                for t in range(8):
                    a(f"v_fmac_f32 v{ac+t}, v{WT+i}, v{kf+4+t-i}")
            a(f"s_waitcnt lgkmcnt({5 if o == 0 else 0})")
            for d in range(4):
                a(f"v_lshlrev_b32 v{kf+2*d}, 16, v{VR_+4*o+d}")
                a(f"v_and_b32 v{kf+2*d+1}, s65, v{VR_+4*o+d}")
            for t in range(8):
                a(f"v_mul_f32 v{ac+t}, v{ac+t}, v{kf+t}")
            for d in range(4):
                a(f"v_cvt_pk_bf16_f32 v{76+4*o+d}, v{ac+7-2*d}, v{ac+6-2*d}")
            a(f"buffer_store_dwordx4 {vr(76+4*o,4)}, v6, {sWS}, s62 offen offset:{64*o} sc1")
        self.stamp(17)
        a(f"""
        s_add_u32 s28, s28, 1
        s_addc_u32 s29, s29, 0
        s_lshl_b32 s60, s84, 5
        s_add_u32 s60, s60, s85
        s_lshl_b32 s60, s60, 6
        s_add_u32 s60, s60, {W_F1}
        v_mov_b32 v10, s28
        v_mov_b32 v11, s29
        v_mov_b32 v12, 0
        s_mov_b32 s81, 256
        s_cmp_lg_u32 {sW}, 0
        s_waitcnt vmcnt(0)
        s_barrier
        s_cbranch_scc1 L_prep_nf
        s_mov_b64 exec, 1
        buffer_store_dwordx2 v[10:11], v12, {sWS}, s60 offen sc1
        s_mov_b64 exec, -1
        L_prep_nf:
        s_cmp_lt_u32 {sW}, 4
        s_cbranch_scc1 L_prep_done
        s_branch L_prep_second
        """)

        a("L_prep_other:")
        a(".reset_waits")
        a(f"""
        s_mul_i32 s70, {sX}, 14
        s_add_u32 s70, s70, {sJ}
        s_sub_u32 s70, s70, 18            ; unit
        s_cmp_ge_u32 {sJ}, 18
        s_cbranch_scc1 L_prep_r
        """)
        a(f"""
        s_lshl_b32 s81, {sX}, 4
        s_add_u32 s81, s81, {sJ}
        s_cmp_lt_u32 {sJ}, 16
        s_cselect_b32 s81, s81, 256
        s_cmp_eq_u32 {sW}, 5
        s_cselect_b32 s81, s81, 256
        """)
        if 'hearly' in EXP:
            self.h_issue(HR)
            if 'x0late' in EXP:
                a("s_waitcnt vmcnt(8) lgkmcnt(0)\ns_branch L_prep_w1")
            else:
                a("s_cmp_lt_u32 s81, 128\ns_cbranch_scc1 L_prep_hx\ns_waitcnt vmcnt(8) lgkmcnt(0)\ns_branch L_prep_w1\nL_prep_hx:")
                self.x0_issue()
                a("s_waitcnt vmcnt(26) lgkmcnt(0)\ns_branch L_prep_w1")
        else:
            a("s_branch L_prep_w0")
        a(f"""
        L_prep_r:
        s_cmp_ge_u32 s70, 72
        s_cbranch_scc1 L_prep_w0
        s_cmp_lt_u32 {sW}, 6
        s_cbranch_scc1 L_prep_w0
        """)
        if 'rawlate' not in EXP:
            self.dma_wraw("q")
            a(f"s_waitcnt vmcnt(13) lgkmcnt(0)\ns_branch L_prep_w1")
        a(f"""
        L_prep_w0:
        s_waitcnt vmcnt(0) lgkmcnt(0)
        L_prep_w1:
        s_barrier                        ; B0
        s_add_u32 s28, s28, 1
        s_addc_u32 s29, s29, 0
        s_barrier                        ; B1
        L_prep_second:
        s_sub_u32 s67, {sW}, 4
        s_cmp_ge_u32 {sJ}, 18
        s_cbranch_scc1 L_prep_done
        """)
        if 'hearly' not in EXP:
            self.h_issue(HR)
        if 'x0late' in EXP:
            a("s_waitcnt vmcnt(0)\ns_cmp_ge_u32 s81, 128\ns_cbranch_scc1 L_prep_b1")
            self.x0_issue()
            a("L_prep_b1:\ns_mov_b32 s61, s67")
            self.build_h(HR)
            a("s_cmp_ge_u32 s81, 128\ns_cbranch_scc1 L_prep_b2")
            self.x0_stats()
            self.x0_store(wait=False)
            a("L_prep_b2:\ns_waitcnt lgkmcnt(0)\ns_barrier")
        else:
            a("s_waitcnt vmcnt(0)\ns_cmp_ge_u32 s81, 128\ns_cbranch_scc1 L_prep_b2")
            self.x0_stats()
            self.x0_store(wait=False)
            a("L_prep_b2:\ns_mov_b32 s61, s67")
            self.build_h(HR)
        a("s_cmp_ge_u32 s81, 128\ns_cbranch_scc1 L_prep_b3\ns_waitcnt vmcnt(0)")
        self.flag_store("s82", 10)
        a("L_prep_b3:" if 'x0late' in EXP else "L_prep_b3:\ns_waitcnt lgkmcnt(0)\ns_barrier")
        a("L_prep_done:")
        a(".reset_waits")
        self.stamp(1)

    def h_issue(self, HR):
        a = self.a
        self.srd(sD_, "h", NB)
        a(f"""
        s_mul_i32 s63, {sX}, 18
        s_add_u32 s63, s63, {sJ}
        v_lshlrev_b32 v9, 4, v2
        s_lshl_b32 s63, s63, 2
        s_add_u32 s63, s63, {sW}
        s_sub_u32 s63, s63, 4
        s_lshl_b32 s63, s63, 12
        """)
        for i in range(4):
            b = HR + 8 * i
            a(f"buffer_load_dwordx4 {vr(b,4)}, v9, {sD_}, s63 offen offset:{1024*i}")
            a(f"buffer_load_dwordx4 {vr(b+4,4)}, v9, {sD_}, s63 offen offset:{1024*i+8}")

    def x0_issue(self):
        a = self.a
        self.srd(sC, "q", NB)
        a(f"""
        s_mul_i32 s61, s81, {16*1152}
        v_lshrrev_b32 v24, 3, v2
        v_and_b32 v25, 7, v2
        v_mul_u32_u24 v26, 2304, v24
        v_lshl_add_u32 v26, v25, 4, v26
        """)
        for i in range(9):
            a(f"buffer_load_dwordx4 {vr(168+8*i,4)}, v26, {sC}, s61 offen offset:{128*i}")
            a(f"buffer_load_dwordx4 {vr(172+8*i,4)}, v26, {sC}, s61 offen offset:{128*i+1152}")

    def x0_stats(self):
        a = self.a
        a("""
        v_mov_b32 v28, 0
        v_mov_b32 v29, 0
        v_mov_b32 v30, 0
        v_mov_b32 v31, 0
        v_mov_b32 v27, 0x3f803f80
        s_waitcnt vmcnt(0)
        """)
        for i in range(9):
            b = 168 + 8 * i
            for j in range(4):
                for h in range(2):
                    a(f"v_dot2c_f32_bf16 v{28+2*h}, v{b+4*h+j}, v27")
                    a(f"v_dot2c_f32_bf16 v{29+2*h}, v{b+4*h+j}, v{b+4*h+j}")
            a(f"v_swap_b32 v{b+2}, v{b+4}\nv_swap_b32 v{b+3}, v{b+5}")
        for m in ("quad_perm:[1,0,3,2]", "quad_perm:[2,3,0,1]", "row_half_mirror"):
            for j in range(4):
                a(f"v_add_f32_dpp v{28+j}, v{28+j}, v{28+j} {m} row_mask:0xf bank_mask:0xf bound_ctrl:0")
        self.stats(28, 29, 32, 33, 27)
        self.stats(30, 31, 34, 35, 27)

    def x0_store(self, wait=True):
        a = self.a
        a(f"""
        s_lshl_b32 s82, s81, 6
        s_add_u32 s82, s82, {W_F2}
        s_lshl_b32 s63, s81, 7
        s_add_u32 s63, s63, {W_ST0}
        v_lshlrev_b32 v24, 4, v24
        v_lshl_add_u32 v26, v25, 9, v24
        v_cmp_eq_u32 vcc, 0, v25
        s_lshr_b32 s60, s81, 1
        s_mul_i32 s60, s60, 36864
        s_and_b32 s61, s81, 1
        s_lshl_b32 s61, s61, 7
        s_add_u32 s60, s60, s61
        s_add_u32 s60, s60, {W_X0}
        s_mov_b64 exec, vcc
        buffer_store_dwordx4 v[32:35], v24, {sWS}, s63 offen sc1
        s_mov_b64 exec, -1
        """)
        for i in range(9):
            b = 168 + 8 * i
            a(f"buffer_store_dwordx4 {vr(b,4)}, v26, {sWS}, s60 offen sc1")
            a(f"buffer_store_dwordx4 {vr(b+4,4)}, v26, {sWS}, s60 offen offset:256 sc1")
            if i < 8:
                a("s_add_u32 s60, s60, 4096")
        if wait:
            a("s_waitcnt vmcnt(0)")
            self.flag_store("s82", 10)

    def sk_load(self):
        self.srd(sC, "sk", D * 8)
        self.a(f"""
        v_and_b32 v3, 15, v2
        v_lshrrev_b32 v4, 4, v2           ; G
        s_mul_i32 s61, s84, 72
        s_lshl_b32 s62, {sW}, 4
        s_add_u32 s61, s61, s62
        v_add_u32 v5, s61, v3
        v_lshlrev_b32 v5, 3, v5
        buffer_load_dwordx2 v[10:11], v5, {sC}, 0 offen
        """)

    def arrive(self, cnt, last, base, index, vm=0):
        L = self.lab()
        self.a(f"""
        v_mov_b32 v8, {cnt}
        v_mov_b32 v9, 1
        s_waitcnt vmcnt({vm})
        s_mov_b64 exec, 1
        ds_add_rtn_u32 v9, v8, v9
        s_mov_b64 exec, -1
        {index}
        s_lshl_b32 s60, s60, 6
        s_add_u32 s60, s60, {base}
        s_waitcnt lgkmcnt(0)
        v_readfirstlane_b32 s61, v9
        s_cmp_lg_u32 s61, {last}
        s_cbranch_scc1 {L}
        """)
        self.flag_store("s60", 10)
        self.a(f"{L}:")

    def build_h(self, HR):
        a = self.a
        T = 84
        a(f"""
        s_mul_i32 s63, s61, {4*HC_B}
        s_add_u32 s63, s63, {L_HC+32}
        v_lshl_add_u32 v7, v2, 4, s63
        """)
        for i in range(4):
            A, C = HR + 8 * i, HR + 8 * i + 4
            t = T + 12 * (i & 1)
            d = [A, A + 1, A + 2, A + 3, C + 2, C + 3]
            if i == 0:
                a(f"v_readlane_b32 s60, v{HR}, 0\nv_readlane_b32 s62, v{HR+1}, 0")
            a(f"ds_write_b128 v7, {vr(A,4)} offset:{1024*i}")
            for j in range(4):
                a(f"v_alignbyte_b32 v{t+j}, v{d[j+1]}, v{d[j]}, 2")
            a(f"ds_write_b128 v7, {vr(t,4)} offset:{HC_B+1024*i}")
            for j in range(4):
                a(f"v_mov_b32 v{t+4+j}, v{d[j+1]}")
            a(f"ds_write_b128 v7, {vr(t+4,4)} offset:{2*HC_B+1024*i}")
            for j in range(4):
                a(f"v_alignbyte_b32 v{t+8+j}, v{d[j+2]}, v{d[j+1]}, 2")
            a(f"ds_write_b128 v7, {vr(t+8,4)} offset:{3*HC_B+1024*i}")
        a(f"""
        v_mov_b32 v16, s60
        v_mov_b32 v17, s62
        v_mov_b32 v18, 0
        v_mov_b32 v19, 0
        v_mov_b32 v20, 0
        v_mov_b32 v21, 0
        v_lshlrev_b32 v8, 4, v2
        v_sub_u32 v8, 64, v8
        v_cmp_eq_u32 vcc, 0, v2
        v_lshlrev_b64 v[22:23], v8, v[16:17]
        s_sub_u32 s63, s63, 32
        v_mul_u32_u24 v7, {HC_B}, v2
        v_add_u32 v7, s63, v7
        v_cndmask_b32 v22, v22, v18, vcc
        v_cndmask_b32 v23, v23, v18, vcc
        s_mul_i32 s63, s61, {U_B}
        s_add_u32 s63, s63, {L_U}
        v_lshl_add_u32 v8, v2, 3, s63
        ds_write_b64 v8, v[18:19]
        s_mov_b64 exec, 15
        ds_write_b128 v7, v[18:21]
        ds_write_b128 v7, v[20:23] offset:16
        s_mov_b64 exec, -1
        """)

    def stats(self, vs, vq, vrs, vmr, vt, n=576):
        self.a(f"""
        v_mul_f32 v{vs}, {f32hex(1.0/n)}, v{vs}
        v_mul_f32 v{vq}, {f32hex(1.0/n)}, v{vq}
        v_fma_f32 v{vt}, -v{vs}, v{vs}, v{vq}
        v_max_f32 v{vt}, 0, v{vt}
        v_add_f32 v{vt}, {f32hex(1e-5)}, v{vt}
        v_rsq_f32 v{vrs}, v{vt}
        s_nop 0
        v_mul_f32 v{vmr}, v{vs}, v{vrs}
        v_sub_f32 v{vmr}, 0, v{vmr}
        """)

    def dma_wraw(self, kind):
        a = self.a
        L1, L2 = self.lab(), self.lab()
        a(f"""
        s_mul_i32 s70, {sX}, 14
        s_add_u32 s70, s70, {sJ}
        s_sub_u32 s70, s70, 18
        s_sub_u32 s62, {sW}, 6
        """)
        if kind == "q":
            self.wraw_q(L1)
        elif kind == "q4":
            self.wraw_q(L1, 4)
        else:
            self.wraw_o(L2)

    def wraw_q(self, L1, shift=0):
        a = self.a
        a(f"""
        s_lshr_b32 s71, s70, 1
        s_and_b32 s72, s70, 1
        s_mul_i32 s60, s71, {16*3456}
        s_mul_i32 s61, s72, 576
        s_add_u32 s60, s60, s61
        s_add_u32 s60, s60, {shift}
        """)
        self.srd(sB, "wqkv", D * 3 * D * 2)
        a(f"{L1}:\nv_lshl_add_u32 v4, s62, 6, v2\nv_lshrrev_b32 v7, 2, v4")
        self.div9(7, 5, 6)
        a(f"""
        v_mul_u32_u24 v5, {1152-576}, v5
        v_lshl_add_u32 v8, v4, 4, v5
        s_lshl_b32 s63, s62, 10
        s_add_u32 m0, s63, {27648 if shift else 0}
        s_add_u32 s62, s62, 2
        buffer_load_dwordx4 v8, {sB}, s60 offen lds
        s_cmp_lt_u32 s62, 27
        s_cbranch_scc1 {L1}
        """)

    def wraw_o(self, L2):
        a = self.a
        a(f"""
        s_sub_u32 s71, s70, 72           ; S
        s_mul_i32 s60, s71, {36*1152}
        s_sub_u32 s61, s71, 16
        s_mul_i32 s61, s61, {288*1152}
        s_add_u32 s61, s61, {16*1152}
        s_cmp_lt_u32 s71, 16
        s_cselect_b32 s60, s60, s61
        s_cselect_b64 s[74:75], -1, 0
        """)
        self.srd(sB, "wo", D * D * 2)
        a(f"{L2}:\nv_lshl_add_u32 v4, s62, 6, v2\nv_lshrrev_b32 v9, 3, v4")
        self.div9(9, 5, 6)
        a(f"""
        v_mul_u32_u24 v6, 72, v5
        v_sub_u32 v6, v4, v6
        v_lshrrev_b32 v7, 4, v5
        v_mul_u32_u24 v7, 18, v7
        v_bfe_u32 v8, v5, 3, 1
        v_lshl_add_u32 v7, v8, 2, v7
        v_bfe_u32 v8, v5, 2, 1
        v_lshl_add_u32 v7, v8, 3, v7
        v_and_b32 v8, 3, v5
        v_add_u32 v7, v7, v8
        v_lshrrev_b32 v8, 1, v5
        v_mul_u32_u24 v8, 18, v8
        v_and_b32 v9, 1, v5
        v_add_u32 v8, v8, v9
        v_cndmask_b32 v7, v8, v7, s[74:75]
        v_mul_u32_u24 v7, 1152, v7
        v_lshl_add_u32 v8, v6, 4, v7
        s_lshl_b32 m0, s62, 10
        s_add_u32 s62, s62, 2
        buffer_load_dwordx4 v8, {sB}, s60 offen lds
        s_cmp_lt_u32 s62, 36
        s_cbranch_scc1 {L2}
        """)

    def relayout(self):
        a = self.a
        a("L_relayout:")
        a(".reset_waits")
        a(f"""
        L_rel_nx:
        s_mul_i32 s70, {sX}, 14
        s_add_u32 s70, s70, {sJ}
        s_sub_u32 s70, s70, 18
        s_cmp_lt_u32 {sW}, 6
        s_cbranch_scc1 L_rel_nx1
        s_cmp_lt_u32 s70, 72
        s_cbranch_scc1 L_rel_nq
        s_cmp_ge_u32 s70, 90
        s_cbranch_scc1 L_rel_nx1
        """)
        self.dma_wraw("o")
        a("s_branch L_rel_nx1\nL_rel_nq:")
        if 'rawlate' in EXP:
            self.dma_wraw("q")
        self.dma_wraw("q4")
        a(f"""
        L_rel_nx1:
        s_waitcnt vmcnt(0)
        s_barrier
        """)
        self.stamp(20)
        a(f"""
        v_lshrrev_b32 v3, 4, v2          ; G
        v_bfe_u32 v4, v2, 2, 2           ; j
        v_and_b32 v5, 3, v2              ; m
        v_lshrrev_b32 v6, 5, v2          ; half
        v_and_b32 v7, 31, v2             ; col
        s_cmp_ge_u32 s70, 90
        s_cbranch_scc1 L_rel_nf
        s_cmp_ge_u32 s70, 72
        s_cbranch_scc1 L_rel_o
        s_lshr_b32 s71, s70, 1           ; k-step
        s_and_b32 s72, s70, 1
        s_mul_i32 s73, s71, 1792
        s_mul_i32 s74, s72, {16*WQ_B}
        s_add_u32 s73, s73, s74
        s_add_u32 s73, s73, {W_WQ}
        v_lshl_add_u32 v8, v6, 3, v4
        v_mul_u32_u24 v8, 1728, v8
        v_and_b32 v9, 1, v3              ; G&1
        s_lshr_b32 s75, {sW}, 1
        s_and_b32 s76, {sW}, 1           ; tile
        s_mul_i32 s77, s75, 36
        s_and_b32 s79, s75, 1
        s_mul_i32 s79, s79, {27648-4}
        s_add_u32 s77, s77, s79
        s_mul_i32 s78, s75, {WQ_B}
        s_add_u32 s73, s73, s78
        s_cmp_lg_u32 s76, 0
        s_cbranch_scc1 L_rel_t1
        v_mul_u32_u24 v10, 576, v9
        v_lshl_add_u32 v10, v5, 3, v10
        v_add3_u32 v8, v8, v10, s77
        v_lshlrev_b32 v11, 4, v2
        v_lshlrev_b32 v14, 2, v7
        s_branch L_rel_go
        L_rel_t1:
        ; G&1==0: 96+8m ; else m: 0->128 1->32 2->80 3->128
        v_lshlrev_b32 v10, 3, v5
        v_add_u32 v10, 1152, v10
        v_mov_b32 v12, {1152+32}
        v_cmp_eq_u32 vcc, 1, v5
        s_nop 1
        v_cndmask_b32 v12, v12, 32, vcc
        v_mov_b32 v13, {576+32}
        v_cmp_eq_u32 vcc, 2, v5
        s_nop 1
        v_cndmask_b32 v12, v12, v13, vcc
        v_cmp_eq_u32 vcc, 1, v9
        s_nop 1
        v_cndmask_b32 v10, v10, v12, vcc
        v_add3_u32 v8, v8, v10, s77
        v_subrev_u32 v12, 2, v7
        v_cmp_gt_u32 vcc, 22, v7
        s_nop 1
        v_cndmask_b32 v12, v12, v7, vcc
        v_lshlrev_b32 v14, 2, v12
        v_lshlrev_b32 v12, 4, v12
        v_mul_u32_u24 v13, 384, v6
        v_add_u32 v11, v12, v13
        v_add_u32 v11, 1024, v11
        v_and_b32 v13, 30, v7
        v_cmp_eq_u32 s[62:63], 24, v13
        s_nop 1
        s_or_b64 vcc, vcc, s[62:63]
        v_mov_b32 v13, 0x7fffffff
        s_nop 0
        v_cndmask_b32 v11, v13, v11, vcc
        v_cndmask_b32 v14, v13, v14, vcc
        L_rel_go:
        """)
        for n in range(4):
            a(f"ds_read_b64_tr_b16 {vr(68+4*n,2)}, v8 offset:{144*n}")
            a(f"ds_read_b64_tr_b16 {vr(70+4*n,2)}, v8 offset:{144*n+4*1728}")
        a(f"""
        s_lshl_b32 s74, s72, 4
        s_add_u32 s74, s74, s75
        s_mul_i32 s74, s74, 36
        s_add_u32 s74, s74, s71
        s_lshl_b32 s74, s74, 8
        s_lshl_b32 s77, s76, 7
        s_add_u32 s74, s74, s77
        s_add_u32 s74, s74, {W_CSP}
        v_mov_b32 v15, 0x3f803f80
        """)
        for n in range(4):
            a(f"v_mov_b32 v{84+n}, 0")
        for n in range(4):
            a(f"s_waitcnt lgkmcnt({6-2*n})")
            a(f"buffer_store_dwordx4 {vr(68+4*n,4)}, v11, {sWS}, s73 offen sc1")
            a(f"s_add_u32 s73, s73, {4*WQ_B}")
            for j in range(4):
                a(f"v_dot2c_f32_bf16 v{84+n}, v{68+4*n+j}, v15")
        for n in range(4):
            a(f"v_mov_b32 v{88+n}, v{84+n}")
        for n in range(4):
            a(f"v_permlane32_swap_b32 v{84+n}, v{88+n}")
        for n in range(4):
            a(f"v_add_f32 v{84+n}, v{84+n}, v{88+n}")
        a(f"""
        s_mov_b32 s62, 0
        s_mov_b32 s63, -1
        v_mul_u32_u24 v13, {4*36*256}, v6
        v_add_u32 v14, v14, v13
        v_cndmask_b32 v84, v84, v85, s[62:63]
        v_cndmask_b32 v86, v86, v87, s[62:63]
        buffer_store_dword v84, v14, {sWS}, s74 offen sc1
        s_add_u32 s74, s74, {8*36*256}
        buffer_store_dword v86, v14, {sWS}, s74 offen sc1
        """)
        a("s_branch L_rel_fin")
        a(f"""
        L_rel_o:
        .reset_waits
        s_sub_u32 s71, s70, 72
        s_mul_i32 s73, {sW}, {WO_B}
        s_mul_i32 s74, s71, 4608
        s_add_u32 s73, s73, s74
        s_add_u32 s73, s73, {W_WO}
        v_lshl_add_u32 v10, v3, 3, v4
        v_mul_u32_u24 v10, 1152, v10
        v_lshl_add_u32 v10, v5, 3, v10
        s_mul_i32 s74, {sW}, 144
        v_add_u32 v10, s74, v10
        v_lshlrev_b32 v12, 4, v2
        v_and_b32 v13, 15, v2
        v_lshlrev_b32 v14, 4, v13
        v_lshl_add_u32 v14, v3, 7, v14
        v_mov_b32 v15, 0x7fffffff
        v_cmp_gt_u32 vcc, 8, v13
        s_add_u32 s74, s73, 4096
        s_nop 0
        v_cndmask_b32 v14, v15, v14, vcc
        """)
        for ft in range(5):
            a(f"ds_read_b64_tr_b16 {vr(68+4*ft,2)}, v10 offset:{32*ft}")
            a(f"ds_read_b64_tr_b16 {vr(70+4*ft,2)}, v10 offset:{32*ft+4608}")
        for ft in range(5):
            a(f"s_waitcnt lgkmcnt({8-2*ft})")
            if ft < 4:
                a(f"buffer_store_dwordx4 {vr(68+4*ft,4)}, v12, {sWS}, s73 offen offset:{1024*ft} sc1")
            else:
                a(f"buffer_store_dwordx4 {vr(68+4*ft,4)}, v14, {sWS}, s74 offen sc1")
        a(f"""
        L_rel_fin:
        s_waitcnt vmcnt(0)
        s_barrier
        s_cmp_lg_u32 {sW}, 0
        s_cbranch_scc1 L_rel_nf
        s_lshl_b32 s60, s70, 6
        s_add_u32 s60, s60, {W_F3}
        """)
        self.flag_store("s60", 10)
        a("L_rel_nf:")
        a(f"s_cmp_lt_u32 {sW}, 4\ns_cbranch_scc1 L_rel_nw")
        self.wq_flags()
        self.poll([(5, "s62", 0)], 6, 3, first=4)
        self.stamp(29)
        self.wq_fetch()
        a(f"s_cmp_lg_u32 {sW}, 7\ns_cbranch_scc1 L_rel_nw")
        self.cs_issue()
        a("s_waitcnt vmcnt(0)")
        self.cs_finish()
        a("L_rel_nw:")
        a("s_waitcnt vmcnt(0)\ns_barrier\ns_branch L_qkv_pre")

    def wq_flags(self):
        self.a(f"""
        s_lshr_b32 s60, {sJ}, 4
        v_min_u32 v5, 35, v2
        v_lshl_add_u32 v5, v5, 1, s60
        v_lshlrev_b32 v5, 6, v5
        s_mov_b32 s62, {W_F3}
        """)

    def cs_issue(self):
        a = self.a
        a(f"""
        s_mul_i32 s60, {sJ}, {36*256}
        s_add_u32 s60, s60, {W_CSP}
        v_lshlrev_b32 v4, 4, v2
        """)
        for i in range(9):
            a(f"buffer_load_dwordx4 {vr(168+4*i,4)}, v4, {sWS}, s60 offen sc1")
            if i < 8:
                a("s_add_u32 s60, s60, 1024")

    def cs_finish(self):
        a = self.a
        for i in range(1, 9):
            for j in range(4):
                a(f"v_add_f32 v{168+j}, v{168+j}, v{168+4*i+j}")
        for op in ("v_permlane16_swap_b32", "v_permlane32_swap_b32"):
            for j in range(4):
                a(f"v_mov_b32 v{172+j}, v{168+j}")
            for j in range(4):
                a(f"{op} v{168+j}, v{172+j}")
            for j in range(4):
                a(f"v_add_f32 v{168+j}, v{168+j}, v{172+j}")
        a(f"""
        v_and_b32 v4, 15, v2
        v_lshlrev_b32 v4, 4, v4
        v_add_u32 v4, {L_CS}, v4
        ds_write_b128 v4, v[168:171]
        s_waitcnt lgkmcnt(0)
        """)

    def wq_fetch(self, first=0, last=63):
        L = self.lab()
        self.a(f"""
        s_mul_i32 s60, {sJ}, {WQ_B}
        s_add_u32 s60, s60, {W_WQ}
        s_sub_u32 s62, {sW}, 4
        s_add_u32 s62, s62, {first}
        v_lshlrev_b32 v4, 4, v2
        {L}:
        s_lshl_b32 s63, s62, 10
        s_add_u32 m0, s63, {L_WQ}
        s_add_u32 s63, s63, s60
        s_add_u32 s62, s62, 4
        buffer_load_dwordx4 v4, {sWS}, s63 offen sc1 lds
        s_cmp_lt_u32 s62, {last}
        s_cbranch_scc1 {L}
        """)

    def conv(self):
        a = self.a
        a(f"s_cmp_ge_u32 {sJ}, 18\ns_cbranch_scc1 L_relayout")
        a(f"""
        s_mul_i32 s66, {sX}, 18
        s_add_u32 s66, s66, {sJ}          ; quad
        s_cmp_ge_u32 {sW}, 4
        s_cbranch_scc1 L_conv_help
        """)
        self.srd(sA, "dd", D * 2)
        a(f"""
        s_lshl_b32 s61, s66, 2
        s_add_u32 s61, s61, {sW}           ; channel
        s_lshl_b32 s62, s61, 1
        v_mov_b32 v4, s62
        buffer_load_ushort v5, v4, {sA}, 0 offen
        s_mul_i32 s62, {sW}, {U_B}
        s_add_u32 s62, s62, {L_U+512}
        s_cmp_lg_u32 {sW}, 0
        s_cbranch_scc1 L_conv_nu
        v_and_b32 v4, 31, v2
        v_lshlrev_b32 v4, 6, v4
        s_lshl_b32 s60, {sX}, 11
        s_add_u32 s60, s60, {W_F1}
        """)
        self.poll2([(4, "s60", 0)], 176, 1)
        a(f"""
        s_lshl_b32 s61, s61, 12
        s_add_u32 s61, s61, {W_U}
        v_lshlrev_b32 v4, 4, v2
        """)
        for c in range(4):
            for i in range(4):
                a(f"s_mov_b32 m0, {L_U+512+U_B*c+1024*i}\ns_add_u32 s63, s61, {4096*c+1024*i}")
                a(f"buffer_load_dwordx4 v4, {sWS}, s63 offen sc1 lds")
        a("L_conv_nu:")
        self.stamp(2)
        vBA, vAA, AD = 6, 7, 8
        ACC, A0, B0 = 16, 48, 112
        a(f"""
        v_and_b32 v12, 15, v2              ; nn / r
        v_lshrrev_b32 v13, 5, v2           ; g>>1
        v_bfe_u32 v14, v2, 4, 1            ; g&1
        s_sub_u32 s62, s62, {448}          ; u base + 64
        v_sub_u32 v15, v12, v13
        v_lshlrev_b32 v15, 5, v15
        v_lshl_add_u32 v15, v14, 4, v15
        v_add_u32 v{vBA}, s62, v15
        v_add_u32 v15, 1, v12
        v_and_b32 v3, 3, v15               ; sigma
        v_lshl_add_u32 v15, v13, 4, v12
        v_lshlrev_b32 v1, 3, v14
        v_sub_u32 v15, v15, v1
        v_sub_u32 v15, v15, v3
        v_add_u32 v15, 9, v15
        v_lshlrev_b32 v15, 1, v15
        v_mul_u32_u24 v3, {HC_B}, v3
        s_mul_i32 s63, {sW}, {4*HC_B}
        v_add3_u32 v{vAA}, v15, v3, s63
        v_add_u32 v1, 7, v1
        v_sub_u32 v1, v1, v12              ; j0
        v_lshl_add_u32 v1, v13, 6, v1
        v_and_b32 v3, 1, v1
        v_lshlrev_b32 v3, 4, v3
        v_lshrrev_b32 v1, 1, v1
        s_waitcnt vmcnt(16)
        s_cmp_eq_u32 {sW}, 0
        s_cbranch_scc1 L_conv_d
        s_waitcnt vmcnt(0)
        L_conv_d:
        v_lshlrev_b32 v5, v3, v5
        """)
        for i in range(4):
            a(f"v_cmp_eq_u32 vcc, {i}, v1\ns_nop 1\nv_cndmask_b32 v{AD+i}, 0, v5, vcc")

        def rdA(rho, q):
            b = A0 + 32 * (rho & 1) + 4 * q
            off = L_HC + 64 * (rho + 8 * q)
            return [f"ds_read_b64 {vr(b,2)}, v{vAA} offset:{off}", f"ds_read_b64 {vr(b+2,2)}, v{vAA} offset:{off+8}"]

        def rdB(rho, j):
            b = B0 + 32 * (rho & 1) + 4 * j
            return [f"ds_read_b128 {vr(b,4)}, v{vBA} offset:{64*(8*j-rho+7)}"]

        def reads(rho):
            r = rdA(rho, 0)
            for j in range(8):
                r += rdB(rho, j)
            for q in range(1, 8):
                r += rdA(rho, q)
            return r
        a("s_waitcnt vmcnt(0)\ns_barrier")
        for q in range(8):
            for l in rdA(0, q):
                a(l)
        for j in range(8):
            a(rdB(0, j)[0])
        for rho in range(8):
            a("s_waitcnt lgkmcnt(0)")
            nxt = reads(rho + 1) if rho < 7 else []
            ab, bb = A0 + 32 * (rho & 1), B0 + 32 * (rho & 1)
            ms = []
            if rho == 0:
                for n in range(8):
                    ms.append(f"v_mfma_f32_16x16x32_bf16 {vr(ACC+4*n,4)}, {vr(AD,4)}, {vr(bb+4*n,4)}, 0")
            for q in range(8):
                for n in range(q, 8):
                    ms.append(f"v_mfma_f32_16x16x32_bf16 {vr(ACC+4*n,4)}, {vr(ab+4*q,4)}, {vr(bb+4*(n-q),4)}, {vr(ACC+4*n,4)}")
            for m in ms:
                a(m)
                if nxt:
                    a(nxt.pop(0))
        self.stamp(3)
        a(f"""
        v_lshlrev_b32 v12, 5, v12
        v_lshrrev_b32 v13, 4, v2
        v_lshl_add_u32 v12, v13, 3, v12
        s_mul_i32 s63, {sW}, {4*HC_B+32}
        v_add_u32 v12, s63, v12
        """)
        for n in range(8):
            a(f"v_cvt_pk_bf16_f32 v{A0+2*n}, v{ACC+4*n}, v{ACC+4*n+1}")
            a(f"v_cvt_pk_bf16_f32 v{A0+2*n+1}, v{ACC+4*n+2}, v{ACC+4*n+3}")
            a(f"ds_write_b64 v12, {vr(A0+2*n,2)} offset:{L_HC+512*n}")
        a("s_waitcnt lgkmcnt(0)\ns_barrier")
        a("s_branch L_qkv_pre")

        a("L_conv_help:")
        a(".reset_waits")
        X0, ST, Y, T = 16, 32, 232, 64
        self.wq_flags()
        a(f"""
        v_and_b32 v4, 31, v2
        v_lshlrev_b32 v4, 6, v4
        s_lshl_b32 s63, s67, 11
        s_add_u32 s63, s63, {W_F2}
        v_lshlrev_b32 v3, 3, v2
        s_lshl_b32 s60, s67, 12
        s_add_u32 s60, s60, {W_ST0}
        v_and_b32 v14, 31, v2
        v_lshrrev_b32 v15, 5, v2
        v_mul_u32_u24 v15, 36864, v15
        v_lshl_add_u32 v14, v14, 3, v15
        s_mul_i32 s76, s67, {16*36864}
        s_lshl_b32 s61, s66, 8
        s_add_u32 s76, s76, s61
        s_add_u32 s61, s76, {W_X0}
        """)
        self.poll([(4, "s63", 0)], 6, 2, first=4)
        self.stamp(18)
        for i in range(8):
            a(f"buffer_load_dwordx2 {vr(ST+2*i,2)}, v3, {sWS}, s60 offen offset:{512*i} sc1")
            a(f"buffer_load_dwordx2 {vr(X0+2*i,2)}, v14, {sWS}, s61 offen sc1")
            if i < 7:
                a(f"s_add_u32 s61, s61, {2*36864}")
        a("v_mov_b32 v13, v5\ns_waitcnt vmcnt(0)")
        a(f"""
        v_bfe_u32 v4, v2, 2, 2
        v_mul_u32_u24 v4, {4*HC_B+32}, v4
        v_lshrrev_b32 v5, 4, v2
        v_lshl_add_u32 v4, v5, 5, v4
        v_and_b32 v5, 3, v2
        v_lshl_add_u32 v4, v5, 3, v4
        s_lshl_b32 s60, s67, 10
        v_add_u32 v4, s60, v4
        s_mov_b32 s64, 0xffff0000
        s_add_u32 s61, s76, {W_Y}
        s_add_u32 s60, s76, {W_X1}
        """)
        a(".reset_waits")
        for i in range(8):
            t = T + 8 * i
            for d in range(2):
                a(f"v_lshlrev_b32 v{t+2*d}, 16, v{X0+2*i+d}")
                a(f"v_and_b32 v{t+2*d+1}, s64, v{X0+2*i+d}")
            for c in range(4):
                a(f"v_fma_f32 v{t+4+c}, v{t+c}, v{ST+2*i}, v{ST+2*i+1}")
        PRE = int(os.environ.get("PRE", 0))
        a(f"buffer_load_dwordx2 v[128:129], v13, {sWS}, s62 offen sc1\ns_mov_b32 s77, 0")
        if PRE:
            L = self.lab()
            a(f"s_waitcnt vmcnt(0)\nv_cmp_ne_u64 vcc, {sTag}, v[128:129]\ns_cmp_lg_u64 vcc, 0\ns_cbranch_scc1 {L}")
            a("s_mov_b32 s78, s60\nv_mov_b32 v12, v4")
            self.wq_fetch(last=PRE)
            a(f"s_mov_b32 s60, s78\nv_mov_b32 v4, v12\ns_mov_b32 s77, {PRE}\n{L}:")
        a("s_barrier")
        for i in range(8):
            a(f"ds_read_b64_tr_b16 {vr(Y+2*i,2)}, v4 offset:{L_HC+128*i}")
        for i in range(8):
            t = T + 8 * i
            a(f"s_waitcnt lgkmcnt({7-i})")
            for d in range(2):
                a(f"v_lshlrev_b32 v8, 16, v{Y+2*i+d}")
                a(f"v_and_b32 v9, s64, v{Y+2*i+d}")
                a(f"v_fmac_f32 v{t+2*d}, v{t+4+2*d}, v8")
                a(f"v_fmac_f32 v{t+2*d+1}, v{t+5+2*d}, v9")
            a(f"v_cvt_pk_bf16_f32 v{X0+2*i}, v{t}, v{t+1}")
            a(f"v_cvt_pk_bf16_f32 v{X0+2*i+1}, v{t+2}, v{t+3}")
            a(f"buffer_store_dwordx2 {vr(X0+2*i,2)}, v14, {sWS}, s60 offen sc1")
            a(f"s_add_u32 s60, s60, {2*36864}")
        a(f"""
        s_lshl_b32 s60, s66, 2
        s_add_u32 s60, s60, s67
        s_lshl_b32 s60, s60, 6
        s_add_u32 s60, s60, {W_F4}
        s_waitcnt vmcnt(0)
        """)
        self.flag_store("s60", 10)
        a(f"""
        v_mov_b32 v248, v14
        s_mov_b32 s79, s61
        s_add_u32 s80, s60, {W_F10 - W_F4}
        """)
        L = self.lab()
        a(f"v_cmp_ne_u64 vcc, {sTag}, v[128:129]\ns_cmp_eq_u64 vcc, 0\ns_cbranch_scc1 {L}")
        self.poll([(13, "s62", 0)], 128, 3)
        a(f"{L}:")
        self.wq_fetch(first="s77", last=WQ1)
        a(f"s_cmp_eq_u32 {sW}, 7\ns_cbranch_scc1 L_help_c0\ns_waitcnt vmcnt(0)\ns_branch L_qkv_pre\nL_help_c0:")
        self.cs_issue()
        a("s_waitcnt vmcnt(0)")
        self.cs_finish()
        a("s_branch L_qkv_pre")

    def colsum(self):
        a = self.a
        a("L_qkv_pre:")
        a(".reset_waits")
        self.stamp(4)
        self.qkv_setup()

    def qkv_setup(self):
        self.a(f"""
        v_lshlrev_b32 v4, 4, v2
        v_add_u32 v4, {L_WQ}, v4           ; W tile 0
        v_and_b32 v6, 31, v2
        v_min_u32 v5, 23, v6
        v_lshlrev_b32 v5, 4, v5
        v_lshrrev_b32 v7, 5, v2            ; hh
        v_mul_u32_u24 v53, 384, v7
        v_add_u32 v5, v5, v53
        v_add_u32 v5, {L_WQ+1024}, v5      ; W tile 1
        v_and_b32 v53, 15, v2
        v_lshlrev_b32 v53, 1, v53
        v_bfe_u32 v54, v2, 4, 1
        v_add_u32 v53, v53, v54
        v_lshlrev_b32 v53, 4, v53
        v_and_b32 v58, 19, v6
        v_bfe_u32 v54, v6, 2, 1
        v_lshl_add_u32 v58, v54, 3, v58
        v_bfe_u32 v54, v6, 3, 1
        v_lshl_add_u32 v58, v54, 2, v58    ; sigma(n)
        v_lshlrev_b32 v54, 4, v58
        v_lshl_add_u32 v54, v7, 9, v54
        s_lshl_b32 s61, {sT}, 10
        v_add_u32 v54, s61, v54
        v_min_u32 v56, 19, v6
        v_cmp_eq_u32 vcc, 4, v56
        v_cmp_eq_u32 s[62:63], 19, v56
        s_mul_i32 s61, {sT}, 1280
        s_add_u32 s61, s61, {KV_V}
        v_cndmask_b32 v56, v56, 19, vcc
        v_cndmask_b32 v56, v56, 4, s[62:63]
        v_lshlrev_b32 v56, 4, v56
        v_mul_u32_u24 v55, 320, v7
        v_add_u32 v56, v56, v55
        v_add_u32 v55, s61, v56
        s_lshl_b32 s62, {sT}, 7
        s_add_u32 s63, s62, {L_QR}
        s_add_u32 s62, s62, {KV_R}
        v_mov_b32 v59, s62
        v_mov_b32 v60, s63
        v_cmp_gt_u32 vcc, 22, v6
        v_and_b32 v57, 1, v6
        v_lshlrev_b32 v57, 1, v57
        v_lshl_add_u32 v57, v7, 5, v57
        v_cndmask_b32 v61, v59, v60, vcc
        v_add_u32 v57, v57, v61
        v_lshl_add_u32 v58, v58, 2, v60
        v_lshl_add_u32 v59, v6, 2, v59
        s_lshl_b32 s60, {sW}, 8
        s_add_u32 s60, s60, {L_ST}
        v_lshl_add_u32 v60, v6, 2, s60
        v_mov_b32 v61, s60
        v_and_b32 v62, 30, v6
        v_cmp_eq_u32 vcc, 20, v62
        v_add_u32 v62, 128, v61
        s_nop 0
        v_cndmask_b32 v61, v61, v62, vcc
        v_cmp_eq_u32 vcc, 18, v6
        v_lshl_add_u32 v61, v7, 4, v61
        v_mov_b32 v62, 0x3f803f80
        v_cndmask_b32 v62, 0, v62, vcc
        s_lshl_b32 s69, {sLayer}, 5
        s_add_u32 s69, s69, {sJ}
        s_lshl_b32 s69, s69, 3             ; (layer*32+head)*8
        s_add_u32 s89, s69, {sX}
        s_mul_i32 s89, s89, {KV_B}
        s_add_u32 s89, s89, {W_KV}
        """)

    def qkv(self):
        a = self.a
        L = self.lab()
        a(f"s_cmp_lg_u32 {sW}, 0\ns_cbranch_scc1 {L}")
        a(f"""
        v_lshlrev_b32 v8, 8, v2
        v_add_u32 v9, {64*256}, v8
        v_add_u32 v10, {128*256}, v8
        v_min_u32 v10, {143*256}, v10
        s_lshr_b32 s60, {sX}, 1
        s_lshl_b32 s60, s60, 6
        s_add_u32 s60, s60, {W_F4}
        """)
        self.poll2([(8, "s60", 0), (9, "s60", 0), (10, "s60", 0)], 220, 4, first=2)
        a(f"{L}:")
        a(f"""
        s_mov_b32 s68, {W_X1}
        s_cmp_eq_u32 {sW}, 0
        s_cselect_b32 s3, 3, 0
        s_add_u32 s88, {sW}, {WQ1-4}
        s_lshl_b32 s88, s88, 10            ; first remaining piece of the wqkv slice (waves 4-7)
        s_mul_i32 s87, {sJ}, {WQ_B}
        s_add_u32 s87, s87, s88
        s_add_u32 s87, s87, {W_WQ}
        s_cmp_lt_u32 {sJ}, 18
        s_cselect_b32 s87, s87, 0
        s_cmp_ge_u32 {sW}, 4
        s_cselect_b32 s87, s87, 0
        """)
        a("L_qkv:")
        a(".reset_waits")
        XF, D0, D1, WF, RS = 64, 16, 32, 208, 96
        a(f"""
        s_lshl_b32 s75, {sLayer}, 15
        s_lshl_b32 s61, {sX}, 12
        s_add_u32 s75, s75, s61
        s_add_u32 s75, s75, {W_G9}
        s_mul_i32 s60, {sX}, {8*36864}
        s_add_u32 s60, s60, s68
        s_cmp_lg_u32 s3, 3
        s_cbranch_scc1 L_qkv_ns
        v_lshrrev_b32 v10, 2, v2
        v_and_b32 v11, 3, v2
        v_lshlrev_b32 v10, 8, v10
        v_lshl_add_u32 v10, v11, 4, v10
        s_lshr_b32 s61, {sJ}, 2
        s_mul_i32 s61, s61, 36864
        s_and_b32 s62, {sJ}, 3
        s_lshl_b32 s62, s62, 6
        s_add_u32 s61, s61, s62
        s_add_u32 s61, s61, s60
        """)
        for i in range(9):
            a(f"buffer_load_dwordx4 {vr(16+4*i,4)}, v10, {sWS}, s61 offen sc1")
            if i < 8:
                a("s_add_u32 s61, s61, 4096")
        a("L_qkv_ns:")
        a(f"""
        v_lshlrev_b32 v8, 4, v2
        s_mul_i32 s61, {sT}, 36864
        s_add_u32 s60, s60, s61
        s_barrier
        """)
        self.stamp(5)
        WIN = int(os.environ.get("WIN", 8))

        def ldx(s):
            a(f"buffer_load_dwordx4 {vr(XF+4*s,4)}, v8, {sWS}, s60 offen offset:{1024*(s&3)} sc1")
            if s & 3 == 3 and s < 35:
                a("s_add_u32 s60, s60, 4096")
        for s in range(WIN):
            ldx(s)
        a(f"s_cmp_lg_u32 s3, 3\ns_cbranch_scc1 L_qkv_ns2")
        a("v_mov_b32 v12, 0\nv_mov_b32 v13, 0\nv_mov_b32 v14, 0\nv_mov_b32 v15, 0\nv_mov_b32 v52, 0x3f803f80")
        for i in range(9):
            a(f"s_waitcnt vmcnt({8+WIN-i})")
            for j in range(4):
                r = 16 + 4 * i + j
                a(f"v_dot2c_f32_bf16 v{12+(j&2)}, v{r}, v52")
                a(f"v_dot2c_f32_bf16 v{13+(j&2)}, v{r}, v{r}")
        for m in ("row_ror:4", "row_ror:8"):
            for j in range(4):
                a(f"v_add_f32_dpp v{12+j}, v{12+j}, v{12+j} {m} row_mask:0xf bank_mask:0xf bound_ctrl:0")
        for op in ("v_permlane16_swap_b32", "v_permlane32_swap_b32"):
            for j in range(4):
                a(f"v_mov_b32 v{16+j}, v{12+j}")
            for j in range(4):
                a(f"{op} v{12+j}, v{16+j}")
            for j in range(4):
                a(f"v_add_f32 v{12+j}, v{12+j}, v{16+j}")
        self.stats(12, 13, 17, 22, 23)
        self.stats(14, 15, 21, 22, 23)
        a(f"""
        v_sub_f32 v16, 0, v12
        v_sub_f32 v20, 0, v14
        v_mov_b32 v18, s28
        v_mov_b32 v19, s29
        v_mov_b32 v22, s28
        v_mov_b32 v23, s29
        v_lshlrev_b32 v11, 5, v11
        s_lshl_b32 s61, {sJ}, 7
        s_add_u32 s61, s61, s75
        s_mov_b64 exec, 15
        buffer_store_dwordx4 v[16:19], v11, {sWS}, s61 offen sc1
        buffer_store_dwordx4 v[20:23], v11, {sWS}, s61 offen offset:16 sc1
        s_mov_b64 exec, -1
        L_qkv_ns2:
        """)

        def rdW(s):
            b = WF + 8 * (s % 3)
            a(f"ds_read_b128 {vr(b,4)}, v4 offset:{1792*s}")
            a(f"ds_read_b128 {vr(b+4,4)}, v5 offset:{1792*s}")
        a(f"""
        v_lshlrev_b32 v9, 2, v6
        v_add_u32 v10, {L_CS}, v9
        ds_read_b32 v250, v10
        ds_read_b32 v252, v10 offset:128
        s_lshl_b32 s61, {sT}, 9
        s_add_u32 s75, s75, s61
        s_mov_b32 s64, 0xffff0000
        s_waitcnt lgkmcnt(0)
        """)
        for r in (250, 252):
            a(f"""
            v_and_b32 v9, s64, v{r}
            v_sub_f32 v10, v{r}, v9
            v_cvt_pk_bf16_f32 v{r}, v9, v9
            v_cvt_pk_bf16_f32 v{r+1}, v10, 0
            """)
        rdW(0)
        rdW(1)
        def swap(s):
            x = XF + 4 * s
            a(f"s_waitcnt vmcnt({min(35 - s, WIN - 1)})")
            a(f"v_permlane16_swap_b32 v{x}, v{x+2}")
            a(f"v_permlane16_swap_b32 v{x+1}, v{x+3}")
        swap(0)
        for s in range(36):
            x, b = XF + 4 * s, WF + 8 * (s % 3)
            if s % 9 == 0 and 'noprio' not in EXP:
                a(f"s_setprio {3 - s // 9}")
            npc = (64 - WQ1) // 4
            if 2 * s < npc and WQ1 < 63:
                L = self.lab()
                a(f"s_cmp_eq_u32 s87, 0\ns_cbranch_scc1 {L}")
                for j in range(2 * s, min(2 * s + 2, npc)):
                    if j == npc - 1:
                        a(f"s_cmp_eq_u32 {sW}, 7\ns_cbranch_scc1 {L}")
                    a(f"s_add_u32 m0, s88, {L_WQ + 4096*j}\ns_add_u32 s86, s87, {4096*j}")
                    a(f"buffer_load_dwordx4 v8, {sWS}, s86 offen sc1 lds")
                a(f"{L}:")
            if s == WQ1 * 1024 // 1792 - 2 and WQ1 < 63:
                L = self.lab()
                a(f"s_cmp_lg_u32 {sLayer}, 0\ns_cbranch_scc1 {L}\ns_barrier\n{L}:")
            if s + WIN < 36:
                ldx(s + WIN)
            if s + 1 < 36:
                swap(s + 1)
            a(f"s_waitcnt lgkmcnt({2 if s + 1 < 36 else 0})")
            if 'nomfma' not in EXP or s == 0:
                a(f"v_mfma_f32_32x32x16_bf16 {vr(D0,16)}, {vr(b,4)}, {vr(x,4)}, {vr(D0,16) if s else 0}")
                a(f"v_mfma_f32_32x32x16_bf16 {vr(D1,16)}, {vr(x,4)}, {vr(b+4,4)}, {vr(D1,16) if s else 0}")
            if s + 2 < 36:
                rdW(s + 2)
            if s == 20:
                a(f"buffer_load_dwordx4 v[10:13], v53, {sWS}, s75 offen sc1")
            if s == 31:
                Lp, Ld = self.lab("Ls"), self.lab("Lsd")
                a(f"""
                s_mov_b32 s96, {SPIN_MAX}
                {Lp}:
                v_cmp_eq_u64 vcc, {sTag}, v[12:13]
                s_cmp_eq_u64 vcc, exec
                s_cbranch_scc1 {Ld}
                buffer_load_dwordx4 v[10:13], v53, {sWS}, s75 offen sc1
                s_sub_u32 s96, s96, 1
                s_cmp_lg_u32 s96, 0
                s_waitcnt vmcnt(0)
                s_cbranch_scc1 {Lp}
                """)
                self.timeout_mark(9, 12)
                a(f"""
                {Ld}:
                v_mul_f32 v12, {f32hex(C_SCALE)}, v11
                ds_write_b32 v60, v11
                ds_write_b32 v60, v12 offset:128
                """)
                for g in range(4):
                    a(f"ds_read_b128 {vr(RS+4*g,4)}, v61 offset:{32*g}")
                a("""
                s_mov_b32 s62, -1
                s_mov_b32 s63, 0
                v_cndmask_b32 v10, 0, v10, s[62:63]
                v_and_b32 v13, s64, v10
                v_sub_f32 v14, v10, v13
                v_cvt_pk_bf16_f32 v14, v13, v14
                v_cvt_pk_bf16_f32 v15, v13, 0
                """)
        self.stamp(6)
        KF, VF = 112, 120
        R = self.R
        a(f"""
        s_mov_b32 s62, 0xfffff
        s_mov_b32 s63, 0xfffff
        v_mfma_f32_32x32x8bf16_1k {vr(D1,16)}, v[14:15], v[252:253], {vr(D1,16)}
        v_mfma_f32_32x32x8bf16_1k {vr(D0,16)}, v[250:251], v[14:15], {vr(D0,16)}
        s_mov_b32 s66, 0xf00000
        s_mov_b32 s67, 0xf00000
        """)
        for i in range(16):
            a(f"v_mov_b32 v{R.O+i}, 0")
        a("s_waitcnt lgkmcnt(0)")
        for i in range(16):
            a(f"v_mul_f32 v{D1+i}, v{RS+i}, v{D1+i}")
        for i in range(8):
            a(f"v_cvt_pk_bf16_f32 v{VF+i}, v{D1+2*i}, v{D1+2*i+1}")
        a("s_mov_b64 exec, s[66:67]")
        assert L_OWN == 0
        for i in range(8):
            g, r = i >> 1, 2 * (i & 1)
            off = 64 * (g >> 1) + 16 * (g & 1) + 4 * r
            a(f"ds_write_b16 v57, v{VF+i} offset:{off}")
            a(f"ds_write_b16_d16_hi v57, v{VF+i} offset:{off+4}")
        a("s_mov_b64 exec, -1")
        a(f"ds_read_b32 v63, v59\nds_read_b32 v{R.Qr}, v58\ns_mov_b32 s66, 0xc0000\ns_mov_b32 s67, 0xc0000")
        for i in range(8):
            a(f"v_cndmask_b32 v{VF+i}, v{VF+i}, v62, s[66:67]")
        a(f"""
        s_mov_b64 exec, s[62:63]
        buffer_store_dwordx4 {vr(VF,4)}, v55, {sWS}, s89 offen sc1
        buffer_store_dwordx4 {vr(VF+4,4)}, v55, {sWS}, s89 offen offset:640 sc1
        s_mov_b64 exec, -1
        """)
        for i in range(8, 16):
            a(f"v_mul_f32 v{D0+i}, v11, v{D0+i}")
        for i in range(4):
            a(f"v_cvt_pk_bf16_f32 v{KF+i}, v{D0+8+2*i}, v{D0+9+2*i}")
        a(f"""
        buffer_store_dwordx4 {vr(KF,4)}, v54, {sWS}, s89 offen sc1
        s_waitcnt lgkmcnt(0)
        s_mov_b32 exec_hi, 0
        buffer_store_dword v63, v59, {sWS}, s89 offen sc1
        s_mov_b64 exec, s[62:63]
        ds_write_b128 v55, {vr(VF,4)} offset:{L_OWN}
        ds_write_b128 v55, {vr(VF+4,4)} offset:{L_OWN+640}
        s_mov_b64 exec, -1
        ds_write_b128 v54, {vr(KF,4)} offset:{L_OWN}
        """)
        for i in range(8):
            a(f"v_mul_f32 v{D0+i}, v12, v{D0+i}")
        for i in range(4):
            a(f"v_cvt_pk_bf16_f32 v{R.Q+i}, v{D0+2*i}, v{D0+1+2*i}")
        a(f"v_mov_b32 v{R.aV}, v56\ns_waitcnt lgkmcnt(0)")
        self.stamp(7)

    class Regs:
        S = [128, 160]
        O = 192
        Q = 208
        Qr = 212
        K = [8, 16]
        Kr = [24, 26]
        V = [28, 44]
        idx, aK, aR, aV = 214, 215, 216, 217

    def attention(self):
        a, R = self.a, self.R
        slot = lambda blk: L_OWN if blk == 0 else L_RING + ((blk - 2) % 3) * KV_B
        aK0, aR0, aV0 = 218, 219, 220

        def rd(kind, u, i=0):
            blk, dt = u >> 2, u & 3
            own = blk == 0
            base = slot(blk) - (0 if own else L_RING)
            buf = u & 1
            if kind == "R":
                return f"ds_read_b32 v{R.Kr[buf]}, v{aR0 if own else R.aR} offset:{base + KV_R + 256*dt}"
            if kind == "K":
                return f"ds_read_b128 {vr(R.K[buf]+4*i,4)}, v{aK0 if own else R.aK} offset:{base + 2048*dt + 1024*i}"
            return f"ds_read_b128 {vr(R.V[buf]+4*i,4)}, v{aV0 if own else R.aV} offset:{base + KV_V + 2560*dt + 640*i}"

        def m4(sb, kb):
            a(f"v_mfma_f32_32x32x4bf16_1k {vr(R.S[sb],32)}, {vr(R.Kr[kb],2)}, {vr(R.Qr,2)}, 0")

        def mf(sb, kb, hi):
            d = vr(R.S[sb] + 16 * hi, 16)
            a(f"v_mfma_f32_32x32x16_bf16 {d}, {vr(R.K[kb]+4*hi,4)}, {vr(R.Q,4)}, {d}")

        def sm(sb, vb, g):
            a(f"v_smfmac_f32_32x32x32_bf16 {vr(R.O,16)}, {vr(R.V[vb]+4*g,4)}, {vr(R.S[sb]+8*g,8)}, v{R.idx}")

        def call_try():
            a("s_call_b64 s[76:77], L_try")

        def try_body():
            Ln, Lr = self.lab(), self.lab()
            a(f"""
            L_try:
            .reset_waits
            s_waitcnt vmcnt(0)
            v_cmp_eq_u64 vcc, {sTag}, v[6:7]
            {Ln}:
            s_lshl_b32 s60, s62, 3
            s_lshr_b32 s60, vcc_lo, s60
            s_and_b32 s60, s60, 0xff
            s_cmp_lg_u32 s60, 0xff
            s_cbranch_scc1 {Lr}
            s_add_u32 s60, {sX}, s62
            s_add_u32 s60, s60, 1
            s_and_b32 s60, s60, 7
            s_add_u32 s60, s60, s69
            s_mul_i32 s60, s60, {KV_B}
            s_add_u32 s60, s60, {W_KV}
            s_mul_i32 s63, s62, {slot(1) - slot(2)}
            s_sub_u32 s63, {slot(1)}, s63
            """)
            for i in range(19):
                a(f"s_add_u32 m0, s63, {1024*i}")
                a(f"s_add_u32 s86, s60, {1024*i}")
                a(f"buffer_load_dwordx4 v{aK0}, {sWS}, s86 offen sc1 lds")
            a(f"""
            s_add_u32 s62, s62, 1
            s_cmp_lt_u32 s62, 2
            s_cbranch_scc1 {Ln}
            s_setpc_b64 s[76:77]
            {Lr}:
            s_mov_b64 exec, 0xffff
            buffer_load_dwordx2 v[6:7], v4, {sWS}, s61 offen sc1
            s_mov_b64 exec, -1
            s_setpc_b64 s[76:77]
            """)
        self.try_body = try_body

        def try_until(n):
            L, Ld = self.lab(), self.lab()
            a(f"""
            s_mov_b32 s96, {SPIN_MAX}
            {L}:
            s_cmp_ge_u32 s62, {n}
            s_cbranch_scc1 {Ld}
            """)
            call_try()
            a(f"""
            s_sub_u32 s96, s96, 1
            s_cmp_lg_u32 s96, 0
            s_cbranch_scc1 {L}
            """)
            self.timeout_mark(5, 228)
            a(f"{Ld}:")

        def on_wave(w, fn):
            if 'nofetch' in EXP:
                return
            L = self.lab()
            a(f"s_cmp_lg_u32 {sW}, {w}\ns_cbranch_scc1 {L}\ns_setprio 3")
            fn()
            a(f"{L}:")

        a(f"""
        v_lshlrev_b32 v{aK0}, 4, v2
        v_lshlrev_b32 v{aR0}, 2, v2
        v_mov_b32 v{aV0}, v{R.aV}
        v_add_u32 v{R.aK}, {L_RING}, v{aK0}
        v_add_u32 v{R.aR}, {L_RING}, v{aR0}
        v_add_u32 v{R.aV}, {L_RING}, v{aV0}
        v_mov_b32 v{R.idx}, 0xdddddddd
        v_mov_b32 v{R.Qr+1}, 0
        v_mov_b32 v{R.Kr[0]+1}, 0
        v_mov_b32 v{R.Kr[1]+1}, 0
        s_add_u32 s70, s69, {sX}
        s_lshl_b32 s70, s70, 3
        s_add_u32 s70, s70, {sW}
        s_lshl_b32 s70, s70, 6
        s_add_u32 s70, s70, {W_F5}
        """)
        a(f"""
        s_lshl_b32 s83, {sW}, 10
        s_and_b32 s84, {sJ}, 7
        s_mul_i32 s84, s84, {WO_B}
        s_add_u32 s84, s84, {W_WO}
        s_add_u32 s84, s84, s83
        v_mov_b32 v222, s28
        v_mov_b32 v223, s29
        v_mov_b32 v224, 0
        """)
        a("s_barrier")

        def publish():
            a(f"""
            s_waitcnt vmcnt(0)
            s_mov_b64 exec, 1
            buffer_store_dwordx2 v[222:223], v224, {sWS}, s70 offen sc1
            s_mov_b64 exec, -1
            """)

        def seg_start(u):
            for l in (rd("R", u), rd("K", u, 0), rd("K", u, 1), rd("V", u, 0), rd("V", u, 1), rd("R", u + 1), rd("K", u + 1, 0),
                      rd("V", u, 2), rd("K", u + 1, 1), rd("V", u, 3)):
                a(l)

        def seg_qk():
            a("s_waitcnt lgkmcnt(7)")
            m4(0, 0)
            a("s_nop 15\ns_nop 1")
            mf(0, 0, 0)
            mf(0, 0, 1)
            a("s_nop 10")

        def piece(src, lds, off, maxw=8):
            if 'nofetch' in EXP:
                return
            L = self.lab()
            if maxw < 8:
                a(f"s_cmp_ge_u32 {sW}, {maxw}\ns_cbranch_scc1 {L}")
            a(f"s_add_u32 m0, s83, {lds + off}\ns_add_u32 s86, {src}, {off}")
            a(f"buffer_load_dwordx4 v{aK0}, {sWS}, s86 offen sc1 lds")
            if maxw < 8:
                a(f"{L}:")

        def poll_all():
            a(f"""
            s_lshl_b32 s61, s69, 9
            s_add_u32 s61, s61, {W_F5}
            v_lshlrev_b32 v4, 6, v2
            v_min_u32 v5, 17, v2
            v_lshlrev_b32 v5, 6, v5
            s_mov_b32 s60, {W_F3 + 72*64}
            """)
            self.poll([(4, "s61", 0), (5, "s60", 0)], 60, 5)

        seg_start(0)
        L = self.lab()
        a(f"s_cmp_lt_u32 {sW}, 4\ns_cbranch_scc1 {L}")
        publish()
        a(f"s_cmp_lg_u32 {sLayer}, 0\ns_cbranch_scc1 {L}\ns_cmp_ge_u32 {sJ}, 18\ns_cbranch_scc1 {L}")
        for i in range(8):
            a(f"buffer_store_dwordx2 {vr(232+2*i,2)}, v248, {sWS}, s79 offen sc1")
            a(f"s_add_u32 s79, s79, {2*36864}")
        a(f"{L}:")
        seg_qk()
        self.stamp(8)
        for u in range(32):
            P = u & 1
            N = P ^ 1
            end = 4 if u < 4 else 32
            first = u in (0, 4)
            last = u == end - 1
            e = lambda i, j: [a(f"v_exp_f32 v{R.S[P]+k}, v{R.S[P]+k}") for k in range(i, j)]
            k2 = u + 2 < end
            v1 = u + 1 < end
            blk, dt = u >> 2, u & 3
            hook = {}
            if u == PUB_AT:
                L = self.lab()
                a(f"s_cmp_ge_u32 {sW}, 4\ns_cbranch_scc1 {L}")
                publish()
                a(f"{L}:")
            if u == LOOK_AT:
                L = self.lab()
                a(f"""
                s_cmp_lg_u32 {sW}, 0
                s_cbranch_scc1 {L}
                s_mov_b32 s62, 0
                s_lshl_b32 s61, s69, 9
                s_add_u32 s61, s61, {W_F5}
                s_add_u32 s60, {sX}, 1
                s_lshl_b32 s60, s60, 3
                v_add_u32 v4, s60, v2
                v_and_b32 v4, 63, v4
                v_lshlrev_b32 v4, 6, v4
                s_mov_b64 exec, 0xffff
                buffer_load_dwordx2 v[6:7], v4, {sWS}, s61 offen sc1
                s_mov_b64 exec, -1
                {L}:
                """)
            if u in TRY_AT:
                L = self.lab()
                a(f"s_cmp_lg_u32 {sW}, 0\ns_cbranch_scc1 {L}\ns_cmp_ge_u32 s62, 2\ns_cbranch_scc1 {L}")
                call_try()
                a(f"{L}:")
            if u == 4:
                L0, L1 = self.lab(), self.lab()
                a(f"s_cmp_lg_u32 {sW}, 0\ns_cbranch_scc1 {L1}")
                try_until(1)
                a(f"{L1}:")
                self.out_setup()
                L1 = self.lab()
                a(f"""
                s_cmp_lg_u32 {sW}, 0
                s_cbranch_scc1 {L0}
                s_cmp_lg_u32 s62, 2
                s_cbranch_scc1 {L0}
                s_waitcnt vmcnt(19)
                s_branch {L1}
                {L0}:
                s_waitcnt vmcnt(0)
                {L1}:
                s_barrier
                """)
                self.stamp(14)
                seg_start(4)
                L0, L1 = self.lab(), self.lab()
                a(f"s_cmp_lg_u32 {sW}, 0\ns_cbranch_scc1 {L0}\ns_setprio 3")
                try_until(2)
                a(f"{L0}:")
                L = self.lab()
                a(f"""
                s_cmp_lt_u32 {sW}, 4
                s_cbranch_scc1 {L}
                s_cmp_lg_u32 {sLayer}, 0
                s_cbranch_scc1 {L}
                s_cmp_ge_u32 {sJ}, 18
                s_cbranch_scc1 {L}
                s_mov_b64 exec, 1
                buffer_store_dwordx2 v[222:223], v224, {sWS}, s80 offen sc1
                s_mov_b64 exec, -1
                {L}:
                """)
                on_wave(6, poll_all)
                seg_qk()
            if 1 <= blk < 7 and dt == 2 and 'nobar' not in EXP:
                a("s_waitcnt vmcnt(0)\ns_barrier")
                if blk == 3:
                    L = self.lab()
                    a(f"s_cmp_ge_u32 {sW}, 4\ns_cbranch_scc1 {L}\nv_cmp_ne_u64 vcc, {sTag}, v[74:75]\ns_cmp_eq_u64 vcc, 0\ns_cbranch_scc1 {L}")
                    self.poll([(72, "s78", 0)], 74, 10)
                    a(f"{L}:")
                if blk + 2 < 8:
                    a(f"s_add_u32 s85, {sX}, {blk+2}\ns_and_b32 s85, s85, 7")
                    a(f"""
                    s_add_u32 s85, s85, s69
                    s_mul_i32 s85, s85, {KV_B}
                    s_add_u32 s85, s85, {W_KV}
                    s_add_u32 s85, s85, s83
                    """)
            if 1 <= blk < 7 and dt >= 2:
                src, lds, o = ("s85", slot(blk + 2), 0) if blk < 6 else ("s84", L_WO, 36 * 1024)
                if dt == 2:
                    hook[0] = lambda: piece(src, lds, o)
                    hook[1] = lambda: piece(src, lds, o + 8192)
                else:
                    hook[0] = lambda: piece(src, lds, o + 16384, 3)
                    if blk < 6:
                        hook[1] = lambda: piece("s84", L_WO, 8192 * (blk - 1), 8 if blk < 5 else 4)
            if u == 12:
                def yflag():
                    L = self.lab()
                    a(f"s_cmp_ge_u32 {sW}, 4\ns_cbranch_scc1 {L}\nbuffer_load_dwordx2 v[74:75], v72, {sWS}, s78 offen sc1\n{L}:")
                hook[0] = yflag
            if u == 16:
                def resid():
                    L = self.lab()
                    a(f"s_cmp_ge_u32 {sW}, 4\ns_cbranch_scc1 {L}\ns_add_u32 s60, s67, s68\ns_add_u32 s61, s67, {W_Y}")
                    for ft in range(5):
                        va = 64 if ft == 4 else 63
                        a(f"buffer_load_dwordx2 {vr(76+2*ft,2)}, v{va}, {sWS}, s60 offen sc1")
                        a(f"buffer_load_dwordx2 {vr(86+2*ft,2)}, v{va}, {sWS}, s61 offen sc1")
                        if ft < 4:
                            a("s_add_u32 s60, s60, 1024\ns_add_u32 s61, s61, 1024")
                    a(f"{L}:")
                hook[0] = resid
            H = lambda k: hook.get(k, lambda: None)()
            if 'noprio' not in EXP and u >= 4:
                a(f"s_setprio {3 - ((u + 2) & 3)}")
            e(0, 2)
            if not first:
                sm(N, N, 3)
            if k2:
                a(rd("R", u + 2))
            e(2, 5)
            a(f"s_waitcnt lgkmcnt({2 if last else 3 + (1 if k2 else 0)})")
            if not last:
                m4(N, N)
            if v1:
                a(rd("V", u + 1, 0))
            H(0)
            e(5, 13)
            sm(P, P, 0)
            if v1:
                a(rd("V", u + 1, 1))
            e(13, 18)
            sm(P, P, 1)
            if k2:
                a(rd("K", u + 2, 0))
            e(18, 22)
            if not last:
                mf(N, N, 0)
            if v1:
                a(rd("V", u + 1, 2))
            H(1)
            e(22, 26)
            a(f"s_waitcnt lgkmcnt({(2 if k2 else 0) + (3 if v1 else 0)})")
            sm(P, P, 2)
            if k2:
                a(rd("K", u + 2, 1))
            e(26, 29)
            if not last:
                mf(N, N, 1)
            if v1:
                a(rd("V", u + 1, 3))
            e(29, 32)
            if last:
                a("s_nop 1")
                sm(P, P, 3)
        self.stamp(9)
        a("s_setprio 0")
        O = R.O
        a(f"""
        s_add_u32 s60, s71, {sJ}
        s_lshl_b32 s60, s60, 6
        s_add_u32 s70, s60, {W_F6}
        s_lshl_b32 s61, s71, 6
        s_add_u32 s83, s61, {W_F6}
        s_mov_b32 s72, 0
        L_att_norm:
        s_nop 5
        v_mov_b32 v10, v{O+10}
        v_mov_b32 v11, v{O+10}
        v_add_f32 v12, abs(v{O}), abs(v{O+1})
        v_add_f32 v13, abs(v{O+2}), abs(v{O+3})
        v_permlane32_swap_b32 v10, v11
        v_add_f32 v12, v12, abs(v{O+4})
        v_add_f32 v13, v13, abs(v{O+5})
        v_add_f32 v12, v12, abs(v{O+6})
        v_add_f32 v13, v13, abs(v{O+7})
        v_add_f32 v12, v12, abs(v{O+8})
        v_add_f32 v13, v13, abs(v{O+9})
        v_add_f32 v12, v12, v13
        v_rcp_f32 v11, v10
        v_cmp_le_f32 vcc, {f32hex(2.0**-100)}, v10
        v_cmp_ge_f32 s[94:95], {"s73"}, v10
        v_cmp_ge_f32 s[100:101], {"s74"}, v12
        s_nop 0
        s_and_b64 vcc, vcc, s[94:95]
        s_and_b64 vcc, vcc, s[100:101]
        s_cmp_eq_u64 vcc, exec
        s_cbranch_scc1 L_att_ok
        s_cmp_eq_u32 s72, 0
        s_cbranch_scc1 L_att_fallback
        L_att_ok:
        """)
        for i in range(10):
            a(f"v_mul_f32 v{O+i}, v11, v{O+i}")
        for i in range(5):
            a(f"v_cvt_pk_bf16_f32 v{12+i}, v{O+2*i}, v{O+2*i+1}")
        a(f"""
        buffer_store_dwordx4 v[12:15], v225, {sWS}, s81 offen sc1
        s_mov_b32 exec_hi, 0
        buffer_store_dword v16, v226, {sWS}, s82 offen sc1
        s_mov_b64 exec, -1
        s_cmp_lg_u32 {sW}, 0
        s_waitcnt vmcnt(0)
        s_barrier
        """)

    def out_setup(self):
        a = self.a
        L = self.lab()
        a(f"""
        v_lshrrev_b32 v61, 5, v2
        v_and_b32 v60, 15, v2
        v_lshlrev_b32 v226, 1, v60
        v_bfe_u32 v225, v2, 4, 1
        v_add_u32 v226, v226, v225         ; tau(n)
        s_lshl_b32 s60, {sT}, 5
        v_add_u32 v226, s60, v226
        v_lshlrev_b32 v225, 4, v226
        v_lshl_add_u32 v225, v61, 12, v225
        v_lshlrev_b32 v226, 2, v226
        s_lshl_b32 s60, {sLayer}, 3
        s_add_u32 s60, s60, {sX}
        s_lshl_b32 s71, s60, 5             ; (layer*8+X)*32
        s_add_u32 s60, s71, {sJ}
        s_lshl_b32 s81, s60, 13
        s_add_u32 s81, s81, {W_OM}
        s_lshl_b32 s82, s60, 10
        s_add_u32 s82, s82, {W_OR}
        s_cmp_ge_u32 {sW}, 4
        s_cbranch_scc1 {L}
        v_lshrrev_b32 v61, 4, v2
        s_lshr_b32 s64, {sJ}, 3            ; sub
        s_and_b32 s65, {sJ}, 7             ; slice
        s_lshl_b32 s66, s64, 6
        s_lshl_b32 s67, {sT4}, 4
        s_add_u32 s66, s66, s67
        v_add_u32 v62, s66, v60
        v_lshlrev_b32 v63, 8, v61
        v_lshl_add_u32 v63, v60, 3, v63    ; g*256 + tok*8
        v_mov_b32 v65, 0x7fffffff
        v_cmp_gt_u32 vcc, 2, v61
        s_mul_i32 s60, s65, {18*256}
        s_lshl_b32 s63, {sX}, 3
        s_lshr_b32 s67, s66, 5
        s_add_u32 s63, s63, s67
        s_mul_i32 s63, s63, 36864
        s_add_u32 s60, s60, s63
        s_and_b32 s63, s66, 16
        s_lshl_b32 s63, s63, 3
        s_add_u32 s67, s60, s63
        v_cndmask_b32 v64, v65, v63, vcc
        v_lshrrev_b32 v65, 1, v61
        v_lshlrev_b32 v65, 13, v65
        v_and_b32 v66, 1, v61
        v_lshl_add_u32 v65, v66, 12, v65
        v_lshl_add_u32 v65, v62, 4, v65    ; o main
        v_lshlrev_b32 v66, 12, v61
        v_lshl_add_u32 v66, v62, 2, v66    ; o rem
        v_lshlrev_b32 v67, 4, v2           ; W ft<4
        v_and_b32 v68, 7, v2
        v_lshlrev_b32 v68, 4, v68
        v_lshl_add_u32 v68, v61, 7, v68
        v_add_u32 v68, 4096, v68           ; W ft==4
        v_add_u32 v69, {9*4608}, v67
        v_add_u32 v70, {9*4608}, v68
        v_and_b32 v71, 31, v2
        v_lshlrev_b32 v71, 6, v71          ; flags
        v_min_u32 v72, 17, v2
        v_lshlrev_b32 v72, 8, v72          ; y flags
        s_mul_i32 s78, s65, {18*256}
        s_lshr_b32 s63, {sX}, 1
        s_lshl_b32 s63, s63, 6
        s_add_u32 s78, s78, s63
        s_add_u32 s78, s78, {W_F10}
        {L}:
        """)

    def next_layer(self):
        self.a(f"s_mov_b32 {sLayer}, 1\ns_mov_b32 s68, {W_X3}\ns_mov_b32 s87, 0")
        self.qkv_setup()

    def fetch_wo(self, first, n, va, step=1):
        Ll = self.lab()
        self.a(f"""
        s_and_b32 s60, {sJ}, 7
        s_mul_i32 s60, s60, {WO_B}
        s_add_u32 s60, s60, {W_WO + 1024*first}
        s_add_u32 s61, s60, {1024*n}
        s_mov_b32 m0, {L_WO + 1024*first}
        """)
        if step > 1:
            self.a("s_lshl_b32 s62, s62, 10\ns_add_u32 s60, s60, s62\ns_add_u32 m0, m0, s62\ns_nop 0")
        else:
            self.a("s_nop 0")
        self.a(f"""
        {Ll}:
        buffer_load_dwordx4 v{va}, {sWS}, s60 offen sc1 lds
        s_add_u32 m0, m0, {1024*step}
        s_add_u32 s60, s60, {1024*step}
        s_cmp_lt_u32 s60, s61
        s_cbranch_scc1 {Ll}
        """)

    def fallback(self):
        a, R = self.a, self.R
        S0 = R.S[0]
        a("L_att_fallback:")
        a(".reset_waits")
        a(f"""
        s_mov_b32 s72, 1
        s_mul_i32 s75, s69, {KV_B}
        s_add_u32 s75, s75, {W_KV}
        v_mov_b32 v221, 0xff7fffff
        s_waitcnt vmcnt(0)
        """)
        for p in range(2):
            Lb = self.lab("Lfb")
            a(f"s_mov_b32 s76, 0\n{Lb}:")
            a(f"""
            s_lshr_b32 s77, s76, 2
            s_and_b32 s78, s76, 3
            s_mul_i32 s77, s77, {KV_B}
            s_add_u32 s77, s77, s75
            s_lshl_b32 s79, s78, 11
            s_add_u32 s79, s79, s77
            buffer_load_dwordx4 {vr(R.K[0]+8,4)}, v218, {sWS}, s79 offen sc1
            buffer_load_dwordx4 {vr(R.K[0]+12,4)}, v218, {sWS}, s79 offen offset:1024 sc1
            s_lshl_b32 s79, s78, 8
            s_add_u32 s79, s79, s77
            s_add_u32 s79, s79, {KV_R}
            buffer_load_dword v{R.Kr[0]}, v219, {sWS}, s79 offen sc1
            """)
            if p:
                a(f"s_mul_i32 s79, s78, 2560\ns_add_u32 s79, s79, s77\ns_add_u32 s79, s79, {KV_V}")
                for i in range(4):
                    a(f"buffer_load_dwordx4 {vr(R.V[0]+4*i,4)}, v220, {sWS}, s79 offen offset:{640*i} sc1")
            a(f"""
            s_waitcnt vmcnt(0)
            v_mfma_f32_32x32x4bf16_1k {vr(S0,32)}, {vr(R.Kr[0],2)}, {vr(R.Qr,2)}, 0
            s_nop 15
            s_nop 3
            v_mfma_f32_32x32x16_bf16 {vr(S0,16)}, {vr(R.K[0]+8,4)}, {vr(R.Q,4)}, {vr(S0,16)}
            v_mfma_f32_32x32x16_bf16 {vr(S0+16,16)}, {vr(R.K[0]+12,4)}, {vr(R.Q,4)}, {vr(S0+16,16)}
            s_nop 15
            """)
            if p == 0:
                for i in range(16):
                    a(f"v_max3_f32 v221, v221, v{S0+2*i}, v{S0+2*i+1}")
            else:
                for i in range(32):
                    a(f"v_sub_f32 v{S0+i}, v{S0+i}, v221")
                for i in range(32):
                    a(f"v_exp_f32 v{S0+i}, v{S0+i}")
                a("s_nop 1")
                for g in range(4):
                    a(f"v_smfmac_f32_32x32x32_bf16 {vr(R.O,16)}, {vr(R.V[0]+4*g,4)}, {vr(S0+8*g,8)}, v{R.idx}")
            a(f"s_add_u32 s76, s76, 1\ns_cmp_lt_u32 s76, 32\ns_cbranch_scc1 {Lb}")
            if p == 0:
                a("v_mov_b32 v227, v221\ns_nop 1\nv_permlane32_swap_b32 v221, v227\ns_nop 1\nv_max_f32 v221, v221, v227")
                for i in range(16):
                    a(f"v_mov_b32 v{R.O+i}, 0")
        a("s_nop 15\ns_branch L_att_norm")

    def outproj(self):
        a = self.a
        OF, ACC, XR, YR = 128, 16, 76, 86
        WF = [36, 200, 220]
        a(f"""
        s_cbranch_scc1 L_op_nf
        s_mov_b64 exec, 1
        buffer_store_dwordx2 v[222:223], v224, {sWS}, s70 offen sc1
        s_mov_b64 exec, -1
        """)
        self.stamp(10)
        a(f"""
        L_op_nf:
        s_cmp_ge_u32 {sW}, 4
        s_cbranch_scc1 L_op_help
        s_mov_b32 s63, 0xffff0000
        """)
        XF = 96
        YF = [116 + i for i in range(12)] + [240 + i for i in range(8)]
        for i in range(10):
            a(f"v_lshlrev_b32 v{XF+2*i}, 16, v{XR+i}")
            a(f"v_and_b32 v{XF+2*i+1}, s63, v{XR+i}")
            a(f"v_lshlrev_b32 v{YF[2*i]}, 16, v{YR+i}")
            a(f"v_and_b32 v{YF[2*i+1]}, s63, v{YR+i}")
        L = self.lab()
        a(f"s_cmp_lg_u32 {sW}, 0\ns_cbranch_scc1 {L}")
        self.poll2([(71, "s83", 0)], 56, 6)
        a(f"""
        {L}:
        s_barrier
        s_lshl_b32 s60, s71, 13
        s_add_u32 s60, s60, {W_OM}
        s_lshl_b32 s61, s71, 10
        s_add_u32 s61, s61, {W_OR}
        """)
        self.stamp(11)
        for s in range(16):
            a(f"buffer_load_dwordx4 {vr(OF+4*s,4)}, v65, {sWS}, s60 offen sc1")
            if s < 15:
                a("s_add_u32 s60, s60, 0x4000")
        for s in range(2):
            for i in range(4):
                a(f"buffer_load_dword v{OF+64+4*s+i}, v66, {sWS}, s61 offen offset:{1024*i} sc1")
            if s == 0:
                a("s_add_u32 s61, s61, 0x4000")

        def rdW(s):
            hi = s >= 9
            out = []
            for ft in range(5):
                va = (69 if hi else 67) if ft < 4 else (70 if hi else 68)
                off = L_WO + 4608 * (s - 9 * hi) + (1024 * ft if ft < 4 else 0)
                out.append(f"ds_read_b128 {vr(WF[s%3]+4*ft,4)}, v{va} offset:{off}")
            return out
        for l in rdW(0) + rdW(1):
            a(l)
        for s in range(18):
            nxt = rdW(s + 2) if s < 16 else []
            a(f"s_waitcnt vmcnt({23-s if s < 16 else (4 if s == 16 else 0)}) lgkmcnt({5 if s < 17 else 0})")
            for ft in range(5):
                d = vr(ACC + 4 * ft, 4)
                a(f"v_mfma_f32_16x16x32_bf16 {d}, {vr(WF[s%3]+4*ft,4)}, {vr(OF+4*s,4)}, {d if s else vr(XF+4*ft,4)}")
                if nxt:
                    a(nxt[ft])
        self.stamp(12)
        XF = ACC
        a(f"""
        s_lshl_b32 s60, {sX}, 2
        s_add_u32 s60, s60, s64
        s_lshl_b32 s60, s60, 13
        s_add_u32 s60, s60, {W_G7}
        s_lshl_b32 s61, {sT4}, 8
        s_add_u32 s60, s60, s61
        s_lshl_b32 s61, s65, 10
        s_add_u32 s61, s61, s60
        v_lshlrev_b32 v4, 4, v60
        v_cmp_gt_u32 vcc, 2, v61
        v_mov_b32 v10, s28
        v_mov_b32 v11, s29
        s_cmp_lg_u32 {sLayer}, 0
        s_cbranch_scc1 L_op_final
        """)
        a(f"v_pk_add_f32 v[12:13], {vr(XF,2)}, {vr(XF+2,2)}\nv_pk_mul_f32 v[14:15], {vr(XF,2)}, {vr(XF,2)}")
        a(f"v_pk_fma_f32 v[14:15], {vr(XF+2,2)}, {vr(XF+2,2)}, v[14:15]")
        for i in range(2, 10):
            if i == 8:
                for j in range(16, 20):
                    a(f"v_cndmask_b32 v{XF+j}, 0, v{XF+j}, vcc")
            a(f"v_pk_add_f32 v[12:13], v[12:13], {vr(XF+2*i,2)}")
            a(f"v_pk_fma_f32 v[14:15], {vr(XF+2*i,2)}, {vr(XF+2*i,2)}, v[14:15]")
        a("v_add_f32 v8, v12, v13\nv_add_f32 v9, v14, v15")

        def xsum():
            for op in ("v_permlane16_swap_b32", "v_permlane32_swap_b32"):
                a(f"""
                v_mov_b32 v12, v8
                v_mov_b32 v13, v9
                s_nop 1
                {op} v8, v12
                {op} v9, v13
                s_nop 0
                v_add_f32 v8, v8, v12
                v_add_f32 v9, v9, v13
                """)
        xsum()
        a(f"""
        s_mov_b64 exec, 0xffff
        buffer_store_dwordx4 v[8:11], v4, {sWS}, s61 offen sc1
        s_mov_b64 exec, -1
        v_lshl_add_u32 v4, v61, 10, v4
        s_add_u32 s61, s60, 4096
        """)
        a("s_waitcnt vmcnt(0)")
        if os.environ.get("GDELAY"):
            a(f"s_sleep {os.environ['GDELAY']}")
        Ld0, Ld1 = self.poll2([(4, "s60", 0), (4, "s61", 0)], 136, 7, width=4)
        a(f"""
        {Ld0}:
        v_add_f32 v8, v136, v140
        v_add_f32 v9, v137, v141
        """)
        xsum()
        self.stats(8, 9, 12, 14, 10)
        a("v_mov_b32 v13, v12\nv_mov_b32 v15, v14")
        a(f"s_add_u32 s60, s67, {W_X3}")
        for ft in range(5):
            for p in range(2):
                x, y, t = XF + 4 * ft + 2 * p, YF[4 * ft + 2 * p], 96 + 4 * ft + 2 * p
                a(f"v_pk_fma_f32 {vr(t,2)}, {vr(x,2)}, v[12:13], v[14:15]")
                a(f"v_pk_fma_f32 {vr(x,2)}, {vr(t,2)}, {vr(y,2)}, {vr(x,2)}")
            a(f"v_cvt_pk_bf16_f32 v{76+2*ft}, v{XF+4*ft}, v{XF+4*ft+1}")
            a(f"v_cvt_pk_bf16_f32 v{77+2*ft}, v{XF+4*ft+2}, v{XF+4*ft+3}")
            a(f"buffer_store_dwordx2 {vr(76+2*ft,2)}, v{64 if ft == 4 else 63}, {sWS}, s60 offen sc1")
            if ft < 4:
                a("s_add_u32 s60, s60, 1024")
        self.next_layer()
        L = self.lab()
        a(f"""
        s_lshl_b32 s60, {sX}, 11
        s_add_u32 s60, s60, {W_F8}
        s_lshl_b32 s61, {sJ}, 6
        s_add_u32 s61, s61, s60
        v_lshlrev_b32 v8, 6, v6
        v_mov_b32 v10, s28
        v_mov_b32 v11, s29
        v_mov_b32 v12, 0
        v_mov_b32 v13, {L_CNT}
        v_mov_b32 v14, 1
        s_waitcnt vmcnt(0)
        s_mov_b64 exec, 1
        ds_add_rtn_u32 v14, v13, v14
        s_waitcnt lgkmcnt(0)
        v_readfirstlane_b32 s3, v14
        s_mov_b64 exec, -1
        s_cmp_lg_u32 s3, 3
        s_cbranch_scc1 {L}
        s_mov_b64 exec, 1
        buffer_store_dwordx2 v[10:11], v12, {sWS}, s61 offen sc1
        s_mov_b64 exec, -1
        """)
        self.poll2([(8, "s60", 0)], 220, 8)
        a(f"{L}:")
        a("s_branch L_next_layer")

        a("L_op_help:")
        a(".reset_waits")
        a(f"s_sub_u32 s62, {sW}, 4\ns_mov_b32 s3, 0\nv_mov_b32 v4, {L_CNT}\nv_mov_b32 v5, 0\nds_write_b32 v4, v5")
        self.fetch_wo(55, 26, 218, step=4)
        a("s_waitcnt vmcnt(0) lgkmcnt(0)\ns_barrier")
        a(f"s_cmp_lg_u32 {sLayer}, 0\ns_cbranch_scc1 L_end")
        self.next_layer()
        a("L_next_layer:")
        if self.stop == "gate2":
            a("s_branch L_end")
        a("s_branch L_qkv")

        a("L_op_final:")
        a(".reset_waits")
        self.srd(sA, "out", NB)
        a(f"""
        s_lshl_b32 s60, {sX}, 8
        v_add_u32 v8, s60, v62
        v_mul_u32_u24 v8, 1152, v8
        v_lshl_add_u32 v8, v61, 3, v8
        v_mov_b32 v11, 0x7fffffff
        v_cmp_gt_u32 vcc, 2, v61
        s_mul_i32 s60, s65, 144
        s_nop 0
        v_cndmask_b32 v9, v11, v8, vcc
        """)
        for ft in range(5):
            a(f"v_cvt_pk_bf16_f32 v{76+2*ft}, v{XF+4*ft}, v{XF+4*ft+1}")
            a(f"v_cvt_pk_bf16_f32 v{77+2*ft}, v{XF+4*ft+2}, v{XF+4*ft+3}")
            a(f"buffer_store_dwordx2 {vr(76+2*ft,2)}, v{9 if ft == 4 else 8}, {sA}, s60 offen offset:{32*ft} {os.environ.get('OUTF', '')}")
        a(f"""
        s_or_b32 s60, s2, {sW}
        s_cmp_lg_u32 s60, 0
        s_cbranch_scc1 L_end
        s_mov_b32 s60, {W_NONCE}
        """)
        self.flag_store("s60", 10)

    def build(self):
        a = self.a
        self.R = G.Regs
        self.prologue()
        self.prep()
        self.finish_if("prep")
        self.conv()
        self.relayout()
        self.colsum()
        self.finish_if("conv")
        a(f"s_mov_b32 s73, {f32hex(2.0**120)}\ns_mov_b32 s74, {f32hex(2.0**120)}")
        self.qkv()
        if self.stop == "qkv":
            a("s_waitcnt vmcnt(0)\ns_branch L_end")
        self.attention()
        self.finish_if("attn")
        self.outproj()
        a("L_end:")
        if self.ts:
            self.stamp(15)
            a(f"""
            s_lshl_b32 s60, s2, 3
            s_add_u32 s60, s60, {sW}
            s_lshl_b32 s60, s60, 8
            s_add_u32 s60, s60, {W_TS}
            v_lshlrev_b32 v4, 2, v2
            buffer_store_dword v255, v4, {sWS}, s60 offen
            """)
            if 'dbgts' in EXP:
                wg = int(os.environ.get("DBGWG", 0))
                a(f"""
                s_cmp_lg_u32 s2, {wg}
                s_cbranch_scc1 L_nodbg
                s_cmp_lg_u32 {sW}, 0
                s_cbranch_scc1 L_nodbg
                v_readlane_b32 s60, v255, 0
                s_nop 3
                v_subrev_u32 v5, s60, v255
                """)
                for n, i in enumerate((16, 1, 2, 3, 4, 5, 7, 8, 9, 11, 13, 21, 24, 25, 27, 31)):
                    a(f"v_readlane_b32 s61, v5, {i}\ns_nop 3\nv_writelane_b32 v6, s61, {n}")
                a(f"s_mov_b64 exec, 0xffff\nglobal_store_dword v4, v6, s[{PTR['dbg']}:{PTR['dbg']+1}]\nL_nodbg:")
        a("s_waitcnt vmcnt(0)")
        a("L_exit:")
        a("s_endpgm")
        self.fallback()
        self.try_body()
        a("L_code_end:")
        lines, added = fix_hazards(a.lines, verbose=True, tag="k")
        errs = check_waits(lines, "k")
        for e in errs:
            print(e)
        lines = [l for l in lines if not l.startswith(".reset_waits")]
        a.lines = lines
        body = a.text().replace("CODE_AFTER", "(L_code_end-L_pc_here)")
        ref = open(f"cdna_kernels/{NAME}.s.ref").read()
        head = ref[:ref.index("; Override launch")]
        txt = head + f"""; @launch grid=(256,1,1) block=(512,1,1) lds={LDS_BYTES}
.amdgcn_target "amdgcn-amd-amdhsa--gfx950"
.text
.globl {NAME}_kernel
.p2align 12
.type {NAME}_kernel,@function
{NAME}_kernel:
""" + body + f""".section .rodata,"a"
.p2align 6
.amdhsa_kernel {NAME}_kernel
  .amdhsa_next_free_vgpr 256
  .amdhsa_next_free_sgpr 102
  .amdhsa_accum_offset 256
  .amdhsa_group_segment_fixed_size 0
  .amdhsa_kernarg_size 96
  .amdhsa_user_sgpr_count 2
  .amdhsa_user_sgpr_kernarg_segment_ptr 1
  .amdhsa_system_sgpr_workgroup_id_x 1
.end_amdhsa_kernel
"""
        return txt, errs


if __name__ == "__main__":
    out = sys.argv[1]
    stop = None
    ts = False
    for x in sys.argv[2:]:
        if x == "ts":
            ts = True
        elif x == "ts2":
            ts = 2
        else:
            stop = x
    txt, errs = G(stop, ts).build()
    open(out, "w").write(txt)
    print("written", out, len(txt), "bytes;", len(errs), "wait errors")
```

```python
import sys
from asmlib import Asm, fix_hazards, check_waits

NAME = "interleave_layers__ssm_conv_h3__softmax_full_mha__prompt"
S, D = 2048, 576
NB = S * D * 2

W_NONCE = 0
W_F1 = 0x1000
W_F3 = 0x5000
W_F2 = 0x6C000
W_F4 = 0x8000
W_F5 = 0x12000
W_F6 = 0x52000
W_F8 = 0x5A000
W_G7 = 0x70000
W_ST0 = 0xB0000
W_CSP = 0x1C0000
W_F11 = 0x120000
W_F10 = 0x110000
W_G9 = 0x100000
W_TS = 0x140000
W_U = 0x210000
W_WQ = 0x500000
W_WO = 0x700000
W_X1 = 0x800000
W_X0 = 0x2000000
W_Y = 0xB00000
W_X3 = 0xE00000
W_KV = 0x1100000
W_OM = 0x1B00000
W_OR = 0x1F00000
W_SIZE = 0x2400000
WQ_B, WO_B, KV_B = 64512, 82944, 19456
KV_V, KV_R = 8192, 18432

L_HC, HC_B = 0, 4160
L_U, U_B = 66560, 4608
L_WO = 0
L_OWN = 0
L_RING = 37632
L_CS = 96000
L_ST = 96256
L_REM = 96256
L_QR = 98304
L_WQ = 99328
L_PK = L_WQ
L_PV = L_WQ + 10240
L_CNT = 98304
L_PX = L_PV + 9216
LDS_BYTES = 163840

sWS = "s[4:7]"
sA, sB, sC, sD_ = "s[8:11]", "s[12:15]", "s[16:19]", "s[20:23]"
sX, sJ, sW, sLayer = "s24", "s25", "s26", "s27"
sT, sT4 = "s30", "s31"
sTag = "s[28:29]"
sP = 32
PTR = dict(q=32, k=34, v=36, sk=38, h=40, dd=42, bx=44, wqkv=46, wo=48, out=50, dbg=52, ws=54)
SPIN_MAX = 400000
LOOK_AT = int(__import__('os').environ.get('LOOK', 2))
POLLS = {1: '1,0,0', 4: '0,2,0', 6: '1,2,4', 8: '1,2,4'}
PUB_AT = int(__import__('os').environ.get('PUB', 1))
TRY_AT = [int(x) for x in __import__('os').environ.get('TRY', '3').split(',')]
WQ1 = int(__import__('os').environ.get('WQ1', 63))

C_SCALE = 18 ** -0.5 * 1.4426950408889634


def f32hex(x):
    import struct
    return "0x%08x" % struct.unpack("<I", struct.pack("<f", x))[0]


def XQ(ft):
    return (63, 2048 * (ft >> 1) + 256 * (ft & 1)) if ft < 4 else (64, 0)


def vr(a, n):
    return f"v[{a}:{a+n-1}]" if n > 1 else f"v{a}"


import os
EXP = os.environ.get('EXP', '').split(',') + ['hearly', 'f2first', 'fixorder', 'warmx'] + ([] if os.environ.get('NOTMAP') else ['tmap'])


DOC = """;
;   layer  : qkv = LN(x) @ wqkv for (head J, tokens 256X..) with LN applied after the product
;   softmax: p = exp2(s) is first tried without a shift.  The row sum and the outputs are then range-checked
;            (sum in [2^-100, 2^120], outputs finite); any wave that fails the check recomputes its rows with
;
"""


class G:
    def __init__(self, stop=None, ts=False):
        self.a = Asm()
        self.stop = stop
        self.ts = ts
        self.nlab = 0

    def lab(self, p="L"):
        self.nlab += 1
        return f"{p}_{self.nlab}"

    def srd(self, s, ptr, nbytes):
        b = int(s[2:s.index(":")])
        p = PTR[ptr]
        self.a(f"s_mov_b32 s{b}, s{p}\ns_mov_b32 s{b+1}, s{p+1}\ns_mov_b32 s{b+2}, {nbytes}\ns_mov_b32 s{b+3}, 0x20000")

    def stamp(self, i):
        if not self.ts or (self.ts == 2 and i not in (0, 5, 15)):
            return
        self.a(f"s_memrealtime s[98:99]\ns_memtime s[92:93]\ns_lshl_b32 s97, {sLayer}, 4\ns_add_u32 m0, s97, {i}\ns_waitcnt lgkmcnt(0)\nv_writelane_b32 v255, s98, m0\ns_add_u32 m0, m0, 32\ns_nop 0\nv_writelane_b32 v255, s92, m0")

    def flag_store(self, soff, vtmp):
        self.a(f"""
        v_mov_b32 v{vtmp}, s28
        v_mov_b32 v{vtmp+1}, s29
        v_mov_b32 v{vtmp+2}, 0
        s_mov_b64 exec, 1
        buffer_store_dwordx2 {vr(vtmp,2)}, v{vtmp+2}, {sWS}, {soff} offen sc1
        s_mov_b64 exec, -1
        """)

    def poll(self, loads, vt, code, first=0, nap=1):
        a = self.a
        L, Ld = self.lab("Lpoll"), self.lab("Lpolld")
        a(f"s_mov_b32 s96, {SPIN_MAX}")
        if first:
            L1, L1d = self.lab("Lp1"), self.lab("Lp1d")
            va, so, im = loads[0]
            a(f"""
            s_mov_b64 exec, 1
            {L1}:
            buffer_load_dwordx2 {vr(vt,2)}, v{va}, {sWS}, {so} offen offset:{im} sc1
            s_waitcnt vmcnt(0)
            v_cmp_eq_u64 vcc, {sTag}, {vr(vt,2)}
            s_cmp_lg_u64 vcc, 0
            s_cbranch_scc1 {L1d}
            s_sleep {first}
            s_sub_u32 s96, s96, 1
            s_cmp_gt_u32 s96, 1
            s_cbranch_scc1 {L1}
            {L1d}:
            s_mov_b64 exec, -1
            """)
        a(f"{L}:")
        for i, (va, so, im) in enumerate(loads):
            a(f"buffer_load_dwordx2 {vr(vt+2*i,2)}, v{va}, {sWS}, {so} offen offset:{im} sc1")
        a("s_waitcnt vmcnt(0)")
        for i in range(len(loads)):
            if i == 0:
                a(f"v_cmp_ne_u64 vcc, {sTag}, {vr(vt,2)}")
            else:
                a(f"v_cmp_ne_u64 s[94:95], {sTag}, {vr(vt+2*i,2)}\ns_or_b64 vcc, vcc, s[94:95]")
        a(f"""
        s_cmp_eq_u64 vcc, 0
        s_cbranch_scc1 {Ld}
        s_mov_b64 exec, vcc
        """)
        if nap:
            a(f"s_sleep {nap}")
        a(f"""
        s_sub_u32 s96, s96, 1
        s_cmp_lg_u32 s96, 0
        s_cbranch_scc1 {L}
        """)
        self.timeout_mark(code, vt)
        a(f"{Ld}:\ns_mov_b64 exec, -1")

    def poll2(self, loads, vt, code, width=2, first=0):
        a = self.a
        n = len(loads)
        if width == 2:
            ack, first, nap = map(int, os.environ.get(f"P{code}", POLLS[code]).split(","))
            if ack:
                a("s_waitcnt vmcnt(0)")
            return self.poll(loads, vt, code, first=first, nap=nap)
        L, Ld0, Ld1, Ld = self.lab("Lq"), self.lab("Lq0"), self.lab("Lq1"), self.lab("Lqd")
        op = "buffer_load_dwordx2" if width == 2 else "buffer_load_dwordx4"

        def issue(k):
            for i, (va, so, im) in enumerate(loads):
                a(f"{op} {vr(vt+width*(n*k+i),width)}, v{va}, {sWS}, {so} offen offset:{im} sc1")

        def check(k, tgt):
            a(f"s_waitcnt vmcnt({n})")
            for i in range(n):
                r = vr(vt + width * (n * k + i) + width - 2, 2)
                if i == 0:
                    a(f"v_cmp_ne_u64 vcc, {sTag}, {r}")
                else:
                    a(f"v_cmp_ne_u64 s[94:95], {sTag}, {r}\ns_or_b64 vcc, vcc, s[94:95]")
            a(f"s_cmp_eq_u64 vcc, 0\ns_cbranch_scc1 {tgt}")
            if width == 2:
                a("s_mov_b64 exec, vcc")
        a(f"s_mov_b32 s96, {SPIN_MAX}")
        if first:
            L1, L1d = self.lab("Lp1"), self.lab("Lp1d")
            va, so, im = loads[0]
            a(f"""
            s_mov_b64 exec, 1
            {L1}:
            buffer_load_dwordx2 {vr(vt,2)}, v{va}, {sWS}, {so} offen offset:{im} sc1
            s_waitcnt vmcnt(0)
            v_cmp_eq_u64 vcc, {sTag}, {vr(vt,2)}
            s_cmp_lg_u64 vcc, 0
            s_cbranch_scc1 {L1d}
            s_sleep {first}
            s_sub_u32 s96, s96, 1
            s_cmp_gt_u32 s96, 1
            s_cbranch_scc1 {L1}
            {L1d}:
            s_mov_b64 exec, -1
            """)
        if 'pipe' not in EXP and 'gpipe' not in EXP:
            a(f"{L}:")
            issue(0)
            n0, n = n, 0
            a("s_waitcnt vmcnt(0)")
            for i in range(n0):
                r = vr(vt + width * i + width - 2, 2)
                a(f"v_cmp_ne_u64 vcc, {sTag}, {r}" if i == 0 else f"v_cmp_ne_u64 s[94:95], {sTag}, {r}\ns_or_b64 vcc, vcc, s[94:95]")
            a(f"s_cmp_eq_u64 vcc, 0\ns_cbranch_scc1 {Ld0}\n{'s_sleep ' + os.environ['GNAP'] if os.environ.get('GNAP') else ''}\ns_sub_u32 s96, s96, 1\ns_cmp_lg_u32 s96, 0\ns_cbranch_scc1 {L}")
            self.timeout_mark(code, vt)
            return Ld0, Ld1
        issue(0)
        a(f"{L}:")
        issue(1)
        check(0, Ld0 if width > 2 else Ld)
        issue(0)
        check(1, Ld1 if width > 2 else Ld)
        a(f"""
        s_sub_u32 s96, s96, 1
        s_cmp_lg_u32 s96, 0
        s_cbranch_scc1 {L}
        s_waitcnt vmcnt(0)
        """)
        self.timeout_mark(code, vt)
        if width > 2:
            return Ld0, Ld1
        a(f"{Ld}:\ns_mov_b64 exec, -1")

    def timeout_mark(self, code, vt):
        self.a(f"""
        v_mov_b32 v{vt}, {code}
        v_mov_b32 v{vt+1}, 0
        global_store_dword v{vt+1}, v{vt}, s[{PTR['dbg']}:{PTR['dbg']+1}]
        s_waitcnt vmcnt(0)
        """)

    def finish_if(self, name):
        if self.stop == name:
            self.a("s_branch L_end")

    def prologue(self):
        a = self.a
        a(f"""
        s_cmp_ge_u32 s2, 256
        s_cbranch_scc1 L_exit
        s_load_dwordx16 s[32:47], s[0:1], 0
        s_load_dwordx8 s[48:55], s[0:1], 64
        s_getpc_b64 s[16:17]
        L_pc_here:
        s_and_b32 s17, s17, 0xffff
        s_mov_b32 s18, CODE_AFTER
        s_mov_b32 s19, 0x20000
        s_lshr_b32 s3, s2, 3
        s_mul_i32 s3, s3, 1280
        v_lshlrev_b32 v1, 6, v0
        v_cmp_gt_u32 vcc, 20, v0
        v_bfrev_b32 v2, -2
        v_cndmask_b32 v1, v2, v1, vcc
        buffer_load_dword v254, v1, {sC}, s3 offen
        v_lshrrev_b32 v1, 6, v0
        v_and_b32 v2, 63, v0
        s_and_b32 {sX}, s2, 7
        v_readfirstlane_b32 {sW}, v1
        s_lshr_b32 {sJ}, s2, 3
        s_mov_b32 {sLayer}, 0
        s_add_u32 {sT}, {sW}, {sJ}
        s_and_b32 {sT4}, {sT}, 3
        s_and_b32 {sT}, {sT}, 7
        s_waitcnt lgkmcnt(0)
        """)
        self.srd(sWS, "ws", W_SIZE)
        a("v_mov_b32 v248, 0")
        if self.ts:
            a("v_mov_b32 v255, 0")

    def div9(self, vidx, vrow, vj):
        self.a(f"""
        v_mul_hi_u32 v{vrow}, v{vidx}, s64
        v_mul_u32_u24 v{vj}, 9, v{vrow}
        v_sub_u32 v{vj}, v{vidx}, v{vj}
        """)

    def prep(self):
        a = self.a
        HR = 128
        self.stamp(0)
        a(f"s_load_dwordx2 {sTag}, s[54:55], {W_NONCE}")
        self.srd(sA, "k", NB)
        self.srd(sB, "v", NB)
        a(f"""
        s_mov_b32 s64, 0x1c71c71d
        """)
        if 'tmap' in EXP:
            a(f"s_and_b32 s84, {sJ}, 7\ns_lshr_b32 s85, {sJ}, 3\ns_lshl_b32 s60, {sX}, 2\ns_add_u32 s85, s85, s60")
        else:
            a(f"s_mov_b32 s84, {sX}\ns_mov_b32 s85, {sJ}")
        a(f"""
        s_mul_i32 s60, s85, {64*1152}
        s_mul_i32 s61, s84, 144
        s_add_u32 s60, s60, s61
        s_sub_u32 s61, s60, {4*1152}
        """)
        self.div9(0, 3, 4)
        a(f"""
        v_mul_u32_u24 v3, 1152, v3
        v_lshl_add_u32 v5, v4, 4, v3
        v_add_u32 v6, s61, v5
        s_lshl_b32 s62, {sW}, 10
        s_add_u32 m0, s62, {L_PK}
        v_add_u32 v7, 512, v0
        buffer_load_dwordx4 v6, {sA}, 0 offen lds
        s_add_u32 m0, s62, {L_PV}
        s_cmp_ge_u32 {sW}, 3
        buffer_load_dwordx4 v5, {sB}, s60 offen lds
        s_cbranch_scc1 L_prep_d3
        s_cmp_eq_u32 {sW}, 2
        s_cbranch_scc1 L_prep_d2
        """)
        self.div9(7, 3, 4)
        a(f"""
        v_mul_u32_u24 v3, 1152, v3
        v_lshl_add_u32 v5, v4, 4, v3
        v_add_u32 v6, s61, v5
        s_add_u32 m0, s62, {L_PK+8192}
        s_nop 0
        buffer_load_dwordx4 v6, {sA}, 0 offen lds
        s_branch L_prep_d3
        L_prep_d2:
        v_add_u32 v7, 512, v2
        """)
        self.div9(7, 3, 4)
        a(f"""
        v_mul_u32_u24 v3, 1152, v3
        v_lshl_add_u32 v5, v4, 4, v3
        s_mov_b32 m0, {L_PV+8192}
        s_nop 0
        buffer_load_dwordx4 v5, {sB}, s60 offen lds
        L_prep_d3:
        s_cmp_ge_u32 {sW}, 5
        s_cbranch_scc1 L_prep_other
        """)
        self.sk_load()
        if 'hearly' in EXP:
            a(f"s_cmp_lg_u32 {sW}, 4\ns_cbranch_scc1 L_prep_k0\ns_cmp_ge_u32 {sJ}, 18\ns_cbranch_scc1 L_prep_k0")
            self.h_issue(HR)
            a("s_waitcnt vmcnt(8)\ns_branch L_prep_k1\nL_prep_k0:\ns_waitcnt vmcnt(0)\nL_prep_k1:")
        else:
            a("s_waitcnt vmcnt(0)")
        a(f"""
        v_bfe_u32 v5, v2, 2, 2
        v_lshl_add_u32 v5, v4, 3, v5      ; 8G + j
        v_mul_u32_u24 v5, 144, v5
        v_and_b32 v6, 3, v2
        v_lshl_add_u32 v5, v6, 3, v5
        s_lshl_b32 s62, {sW}, 5
        s_add_u32 s62, s62, {L_PK}
        v_add_u32 v5, s62, v5
        s_waitcnt lgkmcnt(0)
        """)
        self.stamp(19)
        a("s_barrier")
        self.stamp(16)
        KR, VR_, KF, AC, WT = 12, 24, 32, 56, 72
        for o in range(2):
            for i in range(3):
                a(f"ds_read_b64_tr_b16 {vr(KR+6*o+2*i,2)}, v5 offset:{4608*o+576*i}")
            for i in range(2):
                a(f"ds_read_b64_tr_b16 {vr(VR_+4*o+2*i,2)}, v5 offset:{L_PV-L_PK+4608*o+576*i}")
        a(f"""
        s_mov_b32 s65, 0xffff0000
        v_lshlrev_b32 v{WT}, 16, v10
        v_and_b32 v{WT+1}, s65, v10
        v_lshlrev_b32 v{WT+2}, 16, v11
        v_and_b32 v{WT+3}, s65, v11
        v_lshlrev_b32 v6, 12, v3
        v_lshl_add_u32 v6, v4, 4, v6
        v_mov_b32 v7, 0x7fffffff
        s_mul_i32 s62, {sW}, 16
        v_add_u32 v8, s62, v3
        v_cmp_gt_u32 vcc, 72, v8
        s_lshl_b32 s62, s61, 12
        s_lshl_b32 s63, s85, 7
        s_add_u32 s62, s62, s63
        s_add_u32 s62, s62, {W_U}
        v_cndmask_b32 v6, v7, v6, vcc
        """)
        for o in range(2):
            a(f"s_waitcnt lgkmcnt({7 if o == 0 else 2})")
            kf = KF + 12 * o
            for d in range(6):
                if d:
                    a(f"v_lshlrev_b32 v{kf+2*d}, 16, v{KR+6*o+d}")
                a(f"v_and_b32 v{kf+2*d+1}, s65, v{KR+6*o+d}")
            ac = AC + 8 * o
            for t in range(8):
                a(f"v_mul_f32 v{ac+t}, v{WT}, v{kf+4+t}")
            for i in range(1, 4):
                for t in range(8):
                    a(f"v_fmac_f32 v{ac+t}, v{WT+i}, v{kf+4+t-i}")
            a(f"s_waitcnt lgkmcnt({5 if o == 0 else 0})")
            for d in range(4):
                a(f"v_lshlrev_b32 v{kf+2*d}, 16, v{VR_+4*o+d}")
                a(f"v_and_b32 v{kf+2*d+1}, s65, v{VR_+4*o+d}")
            for t in range(8):
                a(f"v_mul_f32 v{ac+t}, v{ac+t}, v{kf+t}")
            for d in range(4):
                a(f"v_cvt_pk_bf16_f32 v{76+4*o+d}, v{ac+7-2*d}, v{ac+6-2*d}")
            a(f"buffer_store_dwordx4 {vr(76+4*o,4)}, v6, {sWS}, s62 offen offset:{64*o} sc1")
        self.stamp(17)
        a(f"""
        s_add_u32 s28, s28, 1
        s_addc_u32 s29, s29, 0
        s_lshl_b32 s60, s84, 5
        s_add_u32 s60, s60, s85
        s_lshl_b32 s60, s60, 6
        s_add_u32 s60, s60, {W_F1}
        v_mov_b32 v10, s28
        v_mov_b32 v11, s29
        v_mov_b32 v12, 0
        s_mov_b32 s81, 256
        s_cmp_lg_u32 {sW}, 0
        s_waitcnt vmcnt(0)
        s_barrier
        s_cbranch_scc1 L_prep_nf
        s_mov_b64 exec, 1
        buffer_store_dwordx2 v[10:11], v12, {sWS}, s60 offen sc1
        s_mov_b64 exec, -1
        L_prep_nf:
        s_cmp_lt_u32 {sW}, 4
        s_cbranch_scc1 L_prep_done
        s_branch L_prep_second
        """)

        a("L_prep_other:")
        a(".reset_waits")
        a(f"""
        s_mul_i32 s70, {sX}, 14
        s_add_u32 s70, s70, {sJ}
        s_sub_u32 s70, s70, 18            ; unit
        s_cmp_ge_u32 {sJ}, 18
        s_cbranch_scc1 L_prep_r
        """)
        a(f"""
        s_lshl_b32 s81, {sX}, 4
        s_add_u32 s81, s81, {sJ}
        s_cmp_lt_u32 {sJ}, 16
        s_cselect_b32 s81, s81, 256
        s_cmp_eq_u32 {sW}, 5
        s_cselect_b32 s81, s81, 256
        """)
        if 'hearly' in EXP:
            self.h_issue(HR)
            if 'x0late' in EXP:
                a("s_waitcnt vmcnt(8) lgkmcnt(0)\ns_branch L_prep_w1")
            else:
                a("s_cmp_lt_u32 s81, 128\ns_cbranch_scc1 L_prep_hx\ns_waitcnt vmcnt(8) lgkmcnt(0)\ns_branch L_prep_w1\nL_prep_hx:")
                self.x0_issue()
                a("s_waitcnt vmcnt(26) lgkmcnt(0)\ns_branch L_prep_w1")
        else:
            a("s_branch L_prep_w0")
        a(f"""
        L_prep_r:
        s_cmp_ge_u32 s70, 72
        s_cbranch_scc1 L_prep_w0
        s_cmp_lt_u32 {sW}, 6
        s_cbranch_scc1 L_prep_w0
        """)
        if 'rawlate' not in EXP:
            self.dma_wraw("q")
            a(f"s_waitcnt vmcnt(13) lgkmcnt(0)\ns_branch L_prep_w1")
        a(f"""
        L_prep_w0:
        s_waitcnt vmcnt(0) lgkmcnt(0)
        L_prep_w1:
        s_barrier                        ; B0
        s_add_u32 s28, s28, 1
        s_addc_u32 s29, s29, 0
        s_barrier                        ; B1
        L_prep_second:
        s_sub_u32 s67, {sW}, 4
        s_cmp_ge_u32 {sJ}, 18
        s_cbranch_scc1 L_prep_done
        """)
        if 'hearly' not in EXP:
            self.h_issue(HR)
        if 'x0late' in EXP:
            a("s_waitcnt vmcnt(0)\ns_cmp_ge_u32 s81, 128\ns_cbranch_scc1 L_prep_b1")
            self.x0_issue()
            a("L_prep_b1:\ns_mov_b32 s61, s67")
            self.build_h(HR)
            a("s_cmp_ge_u32 s81, 128\ns_cbranch_scc1 L_prep_b2")
            self.x0_stats()
            self.x0_store(wait=False)
            a("L_prep_b2:\ns_waitcnt lgkmcnt(0)\ns_barrier")
        else:
            a("s_waitcnt vmcnt(0)\ns_cmp_ge_u32 s81, 128\ns_cbranch_scc1 L_prep_b2")
            self.x0_stats()
            self.x0_store(wait=False)
            a("L_prep_b2:\ns_mov_b32 s61, s67")
            self.build_h(HR)
        a("s_cmp_ge_u32 s81, 128\ns_cbranch_scc1 L_prep_b3\ns_waitcnt vmcnt(0)")
        self.flag_store("s82", 10)
        a("L_prep_b3:" if 'x0late' in EXP else "L_prep_b3:\ns_waitcnt lgkmcnt(0)\ns_barrier")
        a("L_prep_done:")
        a(".reset_waits")
        self.stamp(1)

    def h_issue(self, HR):
        a = self.a
        self.srd(sD_, "h", NB)
        a(f"""
        s_mul_i32 s63, {sX}, 18
        s_add_u32 s63, s63, {sJ}
        v_lshlrev_b32 v9, 4, v2
        s_lshl_b32 s63, s63, 2
        s_add_u32 s63, s63, {sW}
        s_sub_u32 s63, s63, 4
        s_lshl_b32 s63, s63, 12
        """)
        for i in range(4):
            b = HR + 8 * i
            a(f"buffer_load_dwordx4 {vr(b,4)}, v9, {sD_}, s63 offen offset:{1024*i}")
            a(f"buffer_load_dwordx4 {vr(b+4,4)}, v9, {sD_}, s63 offen offset:{1024*i+8}")

    def x0_issue(self):
        a = self.a
        self.srd(sC, "q", NB)
        a(f"""
        s_mul_i32 s61, s81, {16*1152}
        v_lshrrev_b32 v24, 3, v2
        v_and_b32 v25, 7, v2
        v_mul_u32_u24 v26, 2304, v24
        v_lshl_add_u32 v26, v25, 4, v26
        """)
        for i in range(9):
            a(f"buffer_load_dwordx4 {vr(168+8*i,4)}, v26, {sC}, s61 offen offset:{128*i}")
            a(f"buffer_load_dwordx4 {vr(172+8*i,4)}, v26, {sC}, s61 offen offset:{128*i+1152}")

    def x0_stats(self):
        a = self.a
        a("""
        v_mov_b32 v28, 0
        v_mov_b32 v29, 0
        v_mov_b32 v30, 0
        v_mov_b32 v31, 0
        v_mov_b32 v27, 0x3f803f80
        s_waitcnt vmcnt(0)
        """)
        for i in range(9):
            b = 168 + 8 * i
            for j in range(4):
                for h in range(2):
                    a(f"v_dot2c_f32_bf16 v{28+2*h}, v{b+4*h+j}, v27")
                    a(f"v_dot2c_f32_bf16 v{29+2*h}, v{b+4*h+j}, v{b+4*h+j}")
            a(f"v_swap_b32 v{b+2}, v{b+4}\nv_swap_b32 v{b+3}, v{b+5}")
        for m in ("quad_perm:[1,0,3,2]", "quad_perm:[2,3,0,1]", "row_half_mirror"):
            for j in range(4):
                a(f"v_add_f32_dpp v{28+j}, v{28+j}, v{28+j} {m} row_mask:0xf bank_mask:0xf bound_ctrl:0")
        self.stats(28, 29, 32, 33, 27)
        self.stats(30, 31, 34, 35, 27)

    def x0_store(self, wait=True):
        a = self.a
        a(f"""
        s_lshl_b32 s82, s81, 6
        s_add_u32 s82, s82, {W_F2}
        s_lshl_b32 s63, s81, 7
        s_add_u32 s63, s63, {W_ST0}
        v_lshlrev_b32 v24, 4, v24
        v_lshl_add_u32 v26, v25, 9, v24
        v_cmp_eq_u32 vcc, 0, v25
        s_lshr_b32 s60, s81, 1
        s_mul_i32 s60, s60, 36864
        s_and_b32 s61, s81, 1
        s_lshl_b32 s61, s61, 7
        s_add_u32 s60, s60, s61
        s_add_u32 s60, s60, {W_X0}
        s_mov_b64 exec, vcc
        buffer_store_dwordx4 v[32:35], v24, {sWS}, s63 offen sc1
        s_mov_b64 exec, -1
        """)
        for i in range(9):
            b = 168 + 8 * i
            a(f"buffer_store_dwordx4 {vr(b,4)}, v26, {sWS}, s60 offen sc1")
            a(f"buffer_store_dwordx4 {vr(b+4,4)}, v26, {sWS}, s60 offen offset:256 sc1")
            if i < 8:
                a("s_add_u32 s60, s60, 4096")
        if wait:
            a("s_waitcnt vmcnt(0)")
            self.flag_store("s82", 10)

    def sk_load(self):
        self.srd(sC, "sk", D * 8)
        self.a(f"""
        v_and_b32 v3, 15, v2
        v_lshrrev_b32 v4, 4, v2           ; G
        s_mul_i32 s61, s84, 72
        s_lshl_b32 s62, {sW}, 4
        s_add_u32 s61, s61, s62
        v_add_u32 v5, s61, v3
        v_lshlrev_b32 v5, 3, v5
        buffer_load_dwordx2 v[10:11], v5, {sC}, 0 offen
        """)

    def arrive(self, cnt, last, base, index, vm=0):
        L = self.lab()
        self.a(f"""
        v_mov_b32 v8, {cnt}
        v_mov_b32 v9, 1
        s_waitcnt vmcnt({vm})
        s_mov_b64 exec, 1
        ds_add_rtn_u32 v9, v8, v9
        s_mov_b64 exec, -1
        {index}
        s_lshl_b32 s60, s60, 6
        s_add_u32 s60, s60, {base}
        s_waitcnt lgkmcnt(0)
        v_readfirstlane_b32 s61, v9
        s_cmp_lg_u32 s61, {last}
        s_cbranch_scc1 {L}
        """)
        self.flag_store("s60", 10)
        self.a(f"{L}:")

    def build_h(self, HR):
        a = self.a
        T = 84
        a(f"""
        s_mul_i32 s63, s61, {4*HC_B}
        s_add_u32 s63, s63, {L_HC+32}
        v_lshl_add_u32 v7, v2, 4, s63
        """)
        for i in range(4):
            A, C = HR + 8 * i, HR + 8 * i + 4
            t = T + 12 * (i & 1)
            d = [A, A + 1, A + 2, A + 3, C + 2, C + 3]
            if i == 0:
                a(f"v_readlane_b32 s60, v{HR}, 0\nv_readlane_b32 s62, v{HR+1}, 0")
            a(f"ds_write_b128 v7, {vr(A,4)} offset:{1024*i}")
            for j in range(4):
                a(f"v_alignbyte_b32 v{t+j}, v{d[j+1]}, v{d[j]}, 2")
            a(f"ds_write_b128 v7, {vr(t,4)} offset:{HC_B+1024*i}")
            for j in range(4):
                a(f"v_mov_b32 v{t+4+j}, v{d[j+1]}")
            a(f"ds_write_b128 v7, {vr(t+4,4)} offset:{2*HC_B+1024*i}")
            for j in range(4):
                a(f"v_alignbyte_b32 v{t+8+j}, v{d[j+2]}, v{d[j+1]}, 2")
            a(f"ds_write_b128 v7, {vr(t+8,4)} offset:{3*HC_B+1024*i}")
        a(f"""
        v_mov_b32 v16, s60
        v_mov_b32 v17, s62
        v_mov_b32 v18, 0
        v_mov_b32 v19, 0
        v_mov_b32 v20, 0
        v_mov_b32 v21, 0
        v_lshlrev_b32 v8, 4, v2
        v_sub_u32 v8, 64, v8
        v_cmp_eq_u32 vcc, 0, v2
        v_lshlrev_b64 v[22:23], v8, v[16:17]
        s_sub_u32 s63, s63, 32
        v_mul_u32_u24 v7, {HC_B}, v2
        v_add_u32 v7, s63, v7
        v_cndmask_b32 v22, v22, v18, vcc
        v_cndmask_b32 v23, v23, v18, vcc
        s_mul_i32 s63, s61, {U_B}
        s_add_u32 s63, s63, {L_U}
        v_lshl_add_u32 v8, v2, 3, s63
        ds_write_b64 v8, v[18:19]
        s_mov_b64 exec, 15
        ds_write_b128 v7, v[18:21]
        ds_write_b128 v7, v[20:23] offset:16
        s_mov_b64 exec, -1
        """)

    def stats(self, vs, vq, vrs, vmr, vt, n=576):
        self.a(f"""
        v_mul_f32 v{vs}, {f32hex(1.0/n)}, v{vs}
        v_mul_f32 v{vq}, {f32hex(1.0/n)}, v{vq}
        v_fma_f32 v{vt}, -v{vs}, v{vs}, v{vq}
        v_max_f32 v{vt}, 0, v{vt}
        v_add_f32 v{vt}, {f32hex(1e-5)}, v{vt}
        v_rsq_f32 v{vrs}, v{vt}
        s_nop 0
        v_mul_f32 v{vmr}, v{vs}, v{vrs}
        v_sub_f32 v{vmr}, 0, v{vmr}
        """)

    def dma_wraw(self, kind):
        a = self.a
        L1, L2 = self.lab(), self.lab()
        a(f"""
        s_mul_i32 s70, {sX}, 14
        s_add_u32 s70, s70, {sJ}
        s_sub_u32 s70, s70, 18
        s_sub_u32 s62, {sW}, 6
        """)
        if kind == "q":
            self.wraw_q(L1)
        elif kind == "q4":
            self.wraw_q(L1, 4)
        else:
            self.wraw_o(L2)

    def wraw_q(self, L1, shift=0):
        a = self.a
        a(f"""
        s_lshr_b32 s71, s70, 1
        s_and_b32 s72, s70, 1
        s_mul_i32 s60, s71, {16*3456}
        s_mul_i32 s61, s72, 576
        s_add_u32 s60, s60, s61
        s_add_u32 s60, s60, {shift}
        """)
        self.srd(sB, "wqkv", D * 3 * D * 2)
        a(f"{L1}:\nv_lshl_add_u32 v4, s62, 6, v2\nv_lshrrev_b32 v7, 2, v4")
        self.div9(7, 5, 6)
        a(f"""
        v_mul_u32_u24 v5, {1152-576}, v5
        v_lshl_add_u32 v8, v4, 4, v5
        s_lshl_b32 s63, s62, 10
        s_add_u32 m0, s63, {27648 if shift else 0}
        s_add_u32 s62, s62, 2
        buffer_load_dwordx4 v8, {sB}, s60 offen lds
        s_cmp_lt_u32 s62, 27
        s_cbranch_scc1 {L1}
        """)

    def wraw_o(self, L2):
        a = self.a
        a(f"""
        s_sub_u32 s71, s70, 72           ; S
        s_mul_i32 s60, s71, {36*1152}
        s_sub_u32 s61, s71, 16
        s_mul_i32 s61, s61, {288*1152}
        s_add_u32 s61, s61, {16*1152}
        s_cmp_lt_u32 s71, 16
        s_cselect_b32 s60, s60, s61
        s_cselect_b64 s[74:75], -1, 0
        """)
        self.srd(sB, "wo", D * D * 2)
        a(f"{L2}:\nv_lshl_add_u32 v4, s62, 6, v2\nv_lshrrev_b32 v9, 3, v4")
        self.div9(9, 5, 6)
        a(f"""
        v_mul_u32_u24 v6, 72, v5
        v_sub_u32 v6, v4, v6
        v_lshrrev_b32 v7, 4, v5
        v_mul_u32_u24 v7, 18, v7
        v_bfe_u32 v8, v5, 3, 1
        v_lshl_add_u32 v7, v8, 2, v7
        v_bfe_u32 v8, v5, 2, 1
        v_lshl_add_u32 v7, v8, 3, v7
        v_and_b32 v8, 3, v5
        v_add_u32 v7, v7, v8
        v_lshrrev_b32 v8, 1, v5
        v_mul_u32_u24 v8, 18, v8
        v_and_b32 v9, 1, v5
        v_add_u32 v8, v8, v9
        v_cndmask_b32 v7, v8, v7, s[74:75]
        v_mul_u32_u24 v7, 1152, v7
        v_lshl_add_u32 v8, v6, 4, v7
        s_lshl_b32 m0, s62, 10
        s_add_u32 s62, s62, 2
        buffer_load_dwordx4 v8, {sB}, s60 offen lds
        s_cmp_lt_u32 s62, 36
        s_cbranch_scc1 {L2}
        """)

    def relayout(self):
        a = self.a
        a("L_relayout:")
        a(".reset_waits")
        a(f"""
        L_rel_nx:
        s_mul_i32 s70, {sX}, 14
        s_add_u32 s70, s70, {sJ}
        s_sub_u32 s70, s70, 18
        s_cmp_lt_u32 {sW}, 6
        s_cbranch_scc1 L_rel_nx1
        s_cmp_lt_u32 s70, 72
        s_cbranch_scc1 L_rel_nq
        s_cmp_ge_u32 s70, 90
        s_cbranch_scc1 L_rel_nx1
        """)
        self.dma_wraw("o")
        a("s_branch L_rel_nx1\nL_rel_nq:")
        if 'rawlate' in EXP:
            self.dma_wraw("q")
        self.dma_wraw("q4")
        a(f"""
        L_rel_nx1:
        s_waitcnt vmcnt(0)
        s_barrier
        """)
        self.stamp(20)
        a(f"""
        v_lshrrev_b32 v3, 4, v2          ; G
        v_bfe_u32 v4, v2, 2, 2           ; j
        v_and_b32 v5, 3, v2              ; m
        v_lshrrev_b32 v6, 5, v2          ; half
        v_and_b32 v7, 31, v2             ; col
        s_cmp_ge_u32 s70, 90
        s_cbranch_scc1 L_rel_nf
        s_cmp_ge_u32 s70, 72
        s_cbranch_scc1 L_rel_o
        s_lshr_b32 s71, s70, 1           ; k-step
        s_and_b32 s72, s70, 1
        s_mul_i32 s73, s71, 1792
        s_mul_i32 s74, s72, {16*WQ_B}
        s_add_u32 s73, s73, s74
        s_add_u32 s73, s73, {W_WQ}
        v_lshl_add_u32 v8, v6, 3, v4
        v_mul_u32_u24 v8, 1728, v8
        v_and_b32 v9, 1, v3              ; G&1
        s_lshr_b32 s75, {sW}, 1
        s_and_b32 s76, {sW}, 1           ; tile
        s_mul_i32 s77, s75, 36
        s_and_b32 s79, s75, 1
        s_mul_i32 s79, s79, {27648-4}
        s_add_u32 s77, s77, s79
        s_mul_i32 s78, s75, {WQ_B}
        s_add_u32 s73, s73, s78
        s_cmp_lg_u32 s76, 0
        s_cbranch_scc1 L_rel_t1
        v_mul_u32_u24 v10, 576, v9
        v_lshl_add_u32 v10, v5, 3, v10
        v_add3_u32 v8, v8, v10, s77
        v_lshlrev_b32 v11, 4, v2
        v_lshlrev_b32 v14, 2, v7
        s_branch L_rel_go
        L_rel_t1:
        ; G&1==0: 96+8m ; else m: 0->128 1->32 2->80 3->128
        v_lshlrev_b32 v10, 3, v5
        v_add_u32 v10, 1152, v10
        v_mov_b32 v12, {1152+32}
        v_cmp_eq_u32 vcc, 1, v5
        s_nop 1
        v_cndmask_b32 v12, v12, 32, vcc
        v_mov_b32 v13, {576+32}
        v_cmp_eq_u32 vcc, 2, v5
        s_nop 1
        v_cndmask_b32 v12, v12, v13, vcc
        v_cmp_eq_u32 vcc, 1, v9
        s_nop 1
        v_cndmask_b32 v10, v10, v12, vcc
        v_add3_u32 v8, v8, v10, s77
        v_subrev_u32 v12, 2, v7
        v_cmp_gt_u32 vcc, 22, v7
        s_nop 1
        v_cndmask_b32 v12, v12, v7, vcc
        v_lshlrev_b32 v14, 2, v12
        v_lshlrev_b32 v12, 4, v12
        v_mul_u32_u24 v13, 384, v6
        v_add_u32 v11, v12, v13
        v_add_u32 v11, 1024, v11
        v_and_b32 v13, 30, v7
        v_cmp_eq_u32 s[62:63], 24, v13
        s_nop 1
        s_or_b64 vcc, vcc, s[62:63]
        v_mov_b32 v13, 0x7fffffff
        s_nop 0
        v_cndmask_b32 v11, v13, v11, vcc
        v_cndmask_b32 v14, v13, v14, vcc
        L_rel_go:
        """)
        for n in range(4):
            a(f"ds_read_b64_tr_b16 {vr(68+4*n,2)}, v8 offset:{144*n}")
            a(f"ds_read_b64_tr_b16 {vr(70+4*n,2)}, v8 offset:{144*n+4*1728}")
        a(f"""
        s_lshl_b32 s74, s72, 4
        s_add_u32 s74, s74, s75
        s_mul_i32 s74, s74, 36
        s_add_u32 s74, s74, s71
        s_lshl_b32 s74, s74, 8
        s_lshl_b32 s77, s76, 7
        s_add_u32 s74, s74, s77
        s_add_u32 s74, s74, {W_CSP}
        v_mov_b32 v15, 0x3f803f80
        """)
        for n in range(4):
            a(f"v_mov_b32 v{84+n}, 0")
        for n in range(4):
            a(f"s_waitcnt lgkmcnt({6-2*n})")
            a(f"buffer_store_dwordx4 {vr(68+4*n,4)}, v11, {sWS}, s73 offen sc1")
            a(f"s_add_u32 s73, s73, {4*WQ_B}")
            for j in range(4):
                a(f"v_dot2c_f32_bf16 v{84+n}, v{68+4*n+j}, v15")
        for n in range(4):
            a(f"v_mov_b32 v{88+n}, v{84+n}")
        for n in range(4):
            a(f"v_permlane32_swap_b32 v{84+n}, v{88+n}")
        for n in range(4):
            a(f"v_add_f32 v{84+n}, v{84+n}, v{88+n}")
        a(f"""
        s_mov_b32 s62, 0
        s_mov_b32 s63, -1
        v_mul_u32_u24 v13, {4*36*256}, v6
        v_add_u32 v14, v14, v13
        v_cndmask_b32 v84, v84, v85, s[62:63]
        v_cndmask_b32 v86, v86, v87, s[62:63]
        buffer_store_dword v84, v14, {sWS}, s74 offen sc1
        s_add_u32 s74, s74, {8*36*256}
        buffer_store_dword v86, v14, {sWS}, s74 offen sc1
        """)
        a("s_branch L_rel_fin")
        a(f"""
        L_rel_o:
        .reset_waits
        s_sub_u32 s71, s70, 72
        s_mul_i32 s73, {sW}, {WO_B}
        s_mul_i32 s74, s71, 4608
        s_add_u32 s73, s73, s74
        s_add_u32 s73, s73, {W_WO}
        v_lshl_add_u32 v10, v3, 3, v4
        v_mul_u32_u24 v10, 1152, v10
        s_mul_i32 s74, {sW}, 144
        v_add_u32 v10, s74, v10
        v_lshl_add_u32 v11, v5, 3, v10
        v_lshl_add_u32 v10, v5, 4, v10
        v_lshlrev_b32 v12, 4, v2
        v_and_b32 v13, 15, v2
        v_lshlrev_b32 v14, 4, v13
        v_lshl_add_u32 v14, v3, 7, v14
        v_mov_b32 v15, 0x7fffffff
        v_cmp_gt_u32 vcc, 8, v13
        s_add_u32 s74, s73, 4096
        s_nop 0
        v_cndmask_b32 v14, v15, v14, vcc
        """)
        for ft in range(5):
            va, off = (10, 64 * (ft >> 1) + 8 * (ft & 1)) if ft < 4 else (11, 128)
            a(f"ds_read_b64_tr_b16 {vr(68+4*ft,2)}, v{va} offset:{off}")
            a(f"ds_read_b64_tr_b16 {vr(70+4*ft,2)}, v{va} offset:{off+4608}")
        for ft in range(5):
            a(f"s_waitcnt lgkmcnt({8-2*ft})")
            if ft < 4:
                a(f"buffer_store_dwordx4 {vr(68+4*ft,4)}, v12, {sWS}, s73 offen offset:{1024*ft} sc1")
            else:
                a(f"buffer_store_dwordx4 {vr(68+4*ft,4)}, v14, {sWS}, s74 offen sc1")
        a(f"""
        L_rel_fin:
        s_waitcnt vmcnt(0)
        s_barrier
        s_cmp_lg_u32 {sW}, 0
        s_cbranch_scc1 L_rel_nf
        s_lshl_b32 s60, s70, 6
        s_add_u32 s60, s60, {W_F3}
        """)
        self.flag_store("s60", 10)
        a("L_rel_nf:")
        a(f"s_cmp_lt_u32 {sW}, 4\ns_cbranch_scc1 L_rel_nw")
        self.wq_flags()
        self.poll([(5, "s62", 0)], 6, 3, first=4)
        self.stamp(29)
        self.wq_fetch()
        a(f"s_cmp_lg_u32 {sW}, 7\ns_cbranch_scc1 L_rel_nw")
        self.cs_issue()
        a("s_waitcnt vmcnt(0)")
        self.cs_finish()
        a("L_rel_nw:")
        a("s_waitcnt vmcnt(0)\ns_barrier\ns_branch L_qkv_pre")

    def wq_flags(self):
        self.a(f"""
        s_lshr_b32 s60, {sJ}, 4
        v_min_u32 v5, 35, v2
        v_lshl_add_u32 v5, v5, 1, s60
        v_lshlrev_b32 v5, 6, v5
        s_mov_b32 s62, {W_F3}
        """)

    def cs_issue(self):
        a = self.a
        a(f"""
        s_mul_i32 s60, {sJ}, {36*256}
        s_add_u32 s60, s60, {W_CSP}
        v_lshlrev_b32 v4, 4, v2
        """)
        for i in range(9):
            a(f"buffer_load_dwordx4 {vr(168+4*i,4)}, v4, {sWS}, s60 offen sc1")
            if i < 8:
                a("s_add_u32 s60, s60, 1024")

    def cs_finish(self):
        a = self.a
        for i in range(1, 9):
            for j in range(4):
                a(f"v_add_f32 v{168+j}, v{168+j}, v{168+4*i+j}")
        for op in ("v_permlane16_swap_b32", "v_permlane32_swap_b32"):
            for j in range(4):
                a(f"v_mov_b32 v{172+j}, v{168+j}")
            for j in range(4):
                a(f"{op} v{168+j}, v{172+j}")
            for j in range(4):
                a(f"v_add_f32 v{168+j}, v{168+j}, v{172+j}")
        a(f"""
        v_and_b32 v4, 15, v2
        v_lshlrev_b32 v4, 4, v4
        v_add_u32 v4, {L_CS}, v4
        ds_write_b128 v4, v[168:171]
        s_waitcnt lgkmcnt(0)
        """)

    def wq_fetch(self, first=0, last=63):
        L = self.lab()
        self.a(f"""
        s_mul_i32 s60, {sJ}, {WQ_B}
        s_add_u32 s60, s60, {W_WQ}
        s_sub_u32 s62, {sW}, 4
        s_add_u32 s62, s62, {first}
        v_lshlrev_b32 v4, 4, v2
        {L}:
        s_lshl_b32 s63, s62, 10
        s_add_u32 m0, s63, {L_WQ}
        s_add_u32 s63, s63, s60
        s_add_u32 s62, s62, 4
        buffer_load_dwordx4 v4, {sWS}, s63 offen sc1 {'nt' if 'wqnt' in EXP else ''} lds
        s_cmp_lt_u32 s62, {last}
        s_cbranch_scc1 {L}
        """)

    def conv(self):
        a = self.a
        a(f"s_cmp_ge_u32 {sJ}, 18\ns_cbranch_scc1 L_relayout")
        a(f"""
        s_mul_i32 s66, {sX}, 18
        s_add_u32 s66, s66, {sJ}          ; quad
        s_cmp_ge_u32 {sW}, 4
        s_cbranch_scc1 L_conv_help
        """)
        self.srd(sA, "dd", D * 2)
        a(f"""
        s_lshl_b32 s61, s66, 2
        s_add_u32 s61, s61, {sW}           ; channel
        s_lshl_b32 s62, s61, 1
        v_mov_b32 v4, s62
        buffer_load_ushort v5, v4, {sA}, 0 offen
        s_mul_i32 s62, {sW}, {U_B}
        s_add_u32 s62, s62, {L_U+512}
        s_cmp_lg_u32 {sW}, 0
        s_cbranch_scc1 L_conv_nu
        v_and_b32 v4, 31, v2
        v_lshlrev_b32 v4, 6, v4
        s_lshl_b32 s60, {sX}, 11
        s_add_u32 s60, s60, {W_F1}
        """)
        self.poll2([(4, "s60", 0)], 176, 1)
        a(f"""
        s_lshl_b32 s61, s61, 12
        s_add_u32 s61, s61, {W_U}
        v_lshlrev_b32 v4, 4, v2
        """)
        for c in range(4):
            for i in range(4):
                a(f"s_mov_b32 m0, {L_U+512+U_B*c+1024*i}\ns_add_u32 s63, s61, {4096*c+1024*i}")
                a(f"buffer_load_dwordx4 v4, {sWS}, s63 offen sc1 lds")
        a("L_conv_nu:")
        self.stamp(2)
        vBA, vAA, AD = 6, 7, 8
        ACC, A0, B0 = 16, 48, 112
        a(f"""
        v_and_b32 v12, 15, v2              ; nn / r
        v_lshrrev_b32 v13, 5, v2           ; g>>1
        v_bfe_u32 v14, v2, 4, 1            ; g&1
        s_sub_u32 s62, s62, {448}          ; u base + 64
        v_sub_u32 v15, v12, v13
        v_lshlrev_b32 v15, 5, v15
        v_lshl_add_u32 v15, v14, 4, v15
        v_add_u32 v{vBA}, s62, v15
        v_add_u32 v15, 1, v12
        v_and_b32 v3, 3, v15               ; sigma
        v_lshl_add_u32 v15, v13, 4, v12
        v_lshlrev_b32 v1, 3, v14
        v_sub_u32 v15, v15, v1
        v_sub_u32 v15, v15, v3
        v_add_u32 v15, 9, v15
        v_lshlrev_b32 v15, 1, v15
        v_mul_u32_u24 v3, {HC_B}, v3
        s_mul_i32 s63, {sW}, {4*HC_B}
        v_add3_u32 v{vAA}, v15, v3, s63
        v_add_u32 v1, 7, v1
        v_sub_u32 v1, v1, v12              ; j0
        v_lshl_add_u32 v1, v13, 6, v1
        v_and_b32 v3, 1, v1
        v_lshlrev_b32 v3, 4, v3
        v_lshrrev_b32 v1, 1, v1
        s_waitcnt vmcnt(16)
        s_cmp_eq_u32 {sW}, 0
        s_cbranch_scc1 L_conv_d
        s_waitcnt vmcnt(0)
        L_conv_d:
        v_lshlrev_b32 v5, v3, v5
        """)
        for i in range(4):
            a(f"v_cmp_eq_u32 vcc, {i}, v1\ns_nop 1\nv_cndmask_b32 v{AD+i}, 0, v5, vcc")

        def rdA(rho, q):
            b = A0 + 32 * (rho & 1) + 4 * q
            off = L_HC + 64 * (rho + 8 * q)
            return [f"ds_read_b64 {vr(b,2)}, v{vAA} offset:{off}", f"ds_read_b64 {vr(b+2,2)}, v{vAA} offset:{off+8}"]

        def rdB(rho, j):
            b = B0 + 32 * (rho & 1) + 4 * j
            return [f"ds_read_b128 {vr(b,4)}, v{vBA} offset:{64*(8*j-rho+7)}"]

        def reads(rho):
            r = rdA(rho, 0)
            for j in range(8):
                r += rdB(rho, j)
            for q in range(1, 8):
                r += rdA(rho, q)
            return r
        a("s_waitcnt vmcnt(0)\ns_barrier")
        for q in range(8):
            for l in rdA(0, q):
                a(l)
        for j in range(8):
            a(rdB(0, j)[0])
        for rho in range(8):
            a("s_waitcnt lgkmcnt(0)")
            nxt = reads(rho + 1) if rho < 7 else []
            ab, bb = A0 + 32 * (rho & 1), B0 + 32 * (rho & 1)
            ms = []
            if rho == 0:
                for n in range(8):
                    ms.append(f"v_mfma_f32_16x16x32_bf16 {vr(ACC+4*n,4)}, {vr(AD,4)}, {vr(bb+4*n,4)}, 0")
            for q in range(8):
                for n in range(q, 8):
                    ms.append(f"v_mfma_f32_16x16x32_bf16 {vr(ACC+4*n,4)}, {vr(ab+4*q,4)}, {vr(bb+4*(n-q),4)}, {vr(ACC+4*n,4)}")
            for m in ms:
                a(m)
                if nxt:
                    a(nxt.pop(0))
        self.stamp(3)
        a(f"""
        v_lshlrev_b32 v12, 5, v12
        v_lshrrev_b32 v13, 4, v2
        v_lshl_add_u32 v12, v13, 3, v12
        s_mul_i32 s63, {sW}, {4*HC_B+32}
        v_add_u32 v12, s63, v12
        """)
        for n in range(8):
            a(f"v_cvt_pk_bf16_f32 v{A0+2*n}, v{ACC+4*n}, v{ACC+4*n+1}")
            a(f"v_cvt_pk_bf16_f32 v{A0+2*n+1}, v{ACC+4*n+2}, v{ACC+4*n+3}")
            a(f"ds_write_b64 v12, {vr(A0+2*n,2)} offset:{L_HC+512*n}")
        a("s_waitcnt lgkmcnt(0)\ns_barrier")
        a("s_branch L_qkv_pre")

        a("L_conv_help:")
        a(".reset_waits")
        X0, ST, Y, T = 16, 32, 232, 64
        self.wq_flags()
        a(f"""
        v_and_b32 v4, 31, v2
        v_lshlrev_b32 v4, 6, v4
        s_lshl_b32 s63, s67, 11
        s_add_u32 s63, s63, {W_F2}
        v_lshlrev_b32 v3, 3, v2
        s_lshl_b32 s60, s67, 12
        s_add_u32 s60, s60, {W_ST0}
        v_and_b32 v14, 31, v2
        v_lshrrev_b32 v15, 5, v2
        v_mul_u32_u24 v15, 36864, v15
        v_lshl_add_u32 v14, v14, 3, v15
        s_mul_i32 s76, s67, {16*36864}
        s_lshl_b32 s61, s66, 8
        s_add_u32 s76, s76, s61
        s_add_u32 s61, s76, {W_X0}
        """)
        self.poll([(4, "s63", 0)], 6, 2, first=4)
        self.stamp(18)
        for i in range(8):
            a(f"buffer_load_dwordx2 {vr(ST+2*i,2)}, v3, {sWS}, s60 offen offset:{512*i} sc1")
            a(f"buffer_load_dwordx2 {vr(X0+2*i,2)}, v14, {sWS}, s61 offen sc1")
            if i < 7:
                a(f"s_add_u32 s61, s61, {2*36864}")
        a("v_mov_b32 v13, v5\ns_waitcnt vmcnt(0)")
        a(f"""
        v_bfe_u32 v4, v2, 2, 2
        v_mul_u32_u24 v4, {4*HC_B+32}, v4
        v_lshrrev_b32 v5, 4, v2
        v_lshl_add_u32 v4, v5, 5, v4
        v_and_b32 v5, 3, v2
        v_lshl_add_u32 v4, v5, 3, v4
        s_lshl_b32 s60, s67, 10
        v_add_u32 v4, s60, v4
        s_mov_b32 s64, 0xffff0000
        s_add_u32 s61, s76, {W_Y}
        s_add_u32 s60, s76, {W_X1}
        """)
        a(".reset_waits")
        for i in range(8):
            t = T + 8 * i
            for d in range(2):
                a(f"v_lshlrev_b32 v{t+2*d}, 16, v{X0+2*i+d}")
                a(f"v_and_b32 v{t+2*d+1}, s64, v{X0+2*i+d}")
            for c in range(4):
                a(f"v_fma_f32 v{t+4+c}, v{t+c}, v{ST+2*i}, v{ST+2*i+1}")
        PRE = int(os.environ.get("PRE", 0))
        a(f"buffer_load_dwordx2 v[128:129], v13, {sWS}, s62 offen sc1\ns_mov_b32 s77, 0")
        if PRE:
            L = self.lab()
            a(f"s_waitcnt vmcnt(0)\nv_cmp_ne_u64 vcc, {sTag}, v[128:129]\ns_cmp_lg_u64 vcc, 0\ns_cbranch_scc1 {L}")
            a("s_mov_b32 s78, s60\nv_mov_b32 v12, v4")
            self.wq_fetch(last=PRE)
            a(f"s_mov_b32 s60, s78\nv_mov_b32 v4, v12\ns_mov_b32 s77, {PRE}\n{L}:")
        a("s_barrier")
        for i in range(8):
            a(f"ds_read_b64_tr_b16 {vr(Y+2*i,2)}, v4 offset:{L_HC+128*i}")
        for i in range(8):
            t = T + 8 * i
            a(f"s_waitcnt lgkmcnt({7-i})")
            for d in range(2):
                a(f"v_lshlrev_b32 v8, 16, v{Y+2*i+d}")
                a(f"v_and_b32 v9, s64, v{Y+2*i+d}")
                a(f"v_fmac_f32 v{t+2*d}, v{t+4+2*d}, v8")
                a(f"v_fmac_f32 v{t+2*d+1}, v{t+5+2*d}, v9")
            a(f"v_cvt_pk_bf16_f32 v{X0+2*i}, v{t}, v{t+1}")
            a(f"v_cvt_pk_bf16_f32 v{X0+2*i+1}, v{t+2}, v{t+3}")
            a(f"buffer_store_dwordx2 {vr(X0+2*i,2)}, v14, {sWS}, s60 offen sc1")
            a(f"s_add_u32 s60, s60, {2*36864}")
        a(f"""
        s_lshl_b32 s60, s66, 2
        s_add_u32 s60, s60, s67
        s_lshl_b32 s60, s60, 6
        s_add_u32 s60, s60, {W_F4}
        s_waitcnt vmcnt(0)
        """)
        self.flag_store("s60", 10)
        a(f"""
        v_mov_b32 v248, v14
        s_mov_b32 s79, s61
        s_add_u32 s80, s60, {W_F10 - W_F4}
        """)
        L = self.lab()
        a(f"v_cmp_ne_u64 vcc, {sTag}, v[128:129]\ns_cmp_eq_u64 vcc, 0\ns_cbranch_scc1 {L}")
        self.poll([(13, "s62", 0)], 128, 3)
        a(f"{L}:")
        self.wq_fetch(first="s77", last=WQ1)
        a(f"s_cmp_eq_u32 {sW}, 7\ns_cbranch_scc1 L_help_c0\ns_waitcnt vmcnt(0)\ns_branch L_qkv_pre\nL_help_c0:")
        self.cs_issue()
        a("s_waitcnt vmcnt(0)")
        self.cs_finish()
        a("s_branch L_qkv_pre")

    def colsum(self):
        a = self.a
        a("L_qkv_pre:")
        a(".reset_waits")
        self.stamp(4)
        self.qkv_setup()

    def qkv_setup(self):
        self.a(f"""
        v_lshlrev_b32 v4, 4, v2
        v_add_u32 v4, {L_WQ}, v4           ; W tile 0
        v_and_b32 v6, 31, v2
        v_min_u32 v5, 23, v6
        v_lshlrev_b32 v5, 4, v5
        v_lshrrev_b32 v7, 5, v2            ; hh
        v_mul_u32_u24 v53, 384, v7
        v_add_u32 v5, v5, v53
        v_add_u32 v5, {L_WQ+1024}, v5      ; W tile 1
        v_and_b32 v53, 15, v2
        v_lshlrev_b32 v53, 1, v53
        v_bfe_u32 v54, v2, 4, 1
        v_add_u32 v53, v53, v54
        v_lshlrev_b32 v53, 4, v53
        v_and_b32 v58, 19, v6
        v_bfe_u32 v54, v6, 2, 1
        v_lshl_add_u32 v58, v54, 3, v58
        v_bfe_u32 v54, v6, 3, 1
        v_lshl_add_u32 v58, v54, 2, v58    ; sigma(n)
        v_lshlrev_b32 v54, 4, v58
        v_lshl_add_u32 v54, v7, 9, v54
        s_lshl_b32 s61, {sT}, 10
        v_add_u32 v54, s61, v54
        v_min_u32 v56, 19, v6
        v_cmp_eq_u32 vcc, 4, v56
        v_cmp_eq_u32 s[62:63], 19, v56
        s_mul_i32 s61, {sT}, 1280
        s_add_u32 s61, s61, {KV_V}
        v_cndmask_b32 v56, v56, 19, vcc
        v_cndmask_b32 v56, v56, 4, s[62:63]
        v_lshlrev_b32 v56, 4, v56
        v_mul_u32_u24 v55, 320, v7
        v_add_u32 v56, v56, v55
        v_add_u32 v55, s61, v56
        s_lshl_b32 s62, {sT}, 7
        s_add_u32 s63, s62, {L_QR}
        s_add_u32 s62, s62, {KV_R}
        v_mov_b32 v59, s62
        v_mov_b32 v60, s63
        v_cmp_gt_u32 vcc, 22, v6
        v_and_b32 v57, 1, v6
        v_lshlrev_b32 v57, 1, v57
        v_lshl_add_u32 v57, v7, 5, v57
        v_cndmask_b32 v61, v59, v60, vcc
        v_add_u32 v57, v57, v61
        v_lshl_add_u32 v58, v58, 2, v60
        v_lshl_add_u32 v59, v6, 2, v59
        s_lshl_b32 s60, {sW}, 8
        s_add_u32 s60, s60, {L_ST}
        v_lshl_add_u32 v60, v6, 2, s60
        v_mov_b32 v61, s60
        v_and_b32 v62, 30, v6
        v_cmp_eq_u32 vcc, 20, v62
        v_add_u32 v62, 128, v61
        s_nop 0
        v_cndmask_b32 v61, v61, v62, vcc
        v_cmp_eq_u32 vcc, 18, v6
        v_lshl_add_u32 v61, v7, 4, v61
        v_mov_b32 v62, 0x3f803f80
        v_cndmask_b32 v62, 0, v62, vcc
        s_lshl_b32 s69, {sLayer}, 5
        s_add_u32 s69, s69, {sJ}
        s_lshl_b32 s69, s69, 3             ; (layer*32+head)*8
        s_add_u32 s89, s69, {sX}
        s_mul_i32 s89, s89, {KV_B}
        s_add_u32 s89, s89, {W_KV}
        """)

    def qkv(self):
        a = self.a
        L = self.lab()
        a(f"s_cmp_lg_u32 {sW}, 0\ns_cbranch_scc1 {L}")
        a(f"""
        v_lshlrev_b32 v8, 8, v2
        v_add_u32 v9, {64*256}, v8
        v_add_u32 v10, {128*256}, v8
        v_min_u32 v10, {143*256}, v10
        s_lshr_b32 s60, {sX}, 1
        s_lshl_b32 s60, s60, 6
        s_add_u32 s60, s60, {W_F4}
        """)
        if 'relay' in EXP:
            L2 = self.lab()
            a(f"s_lshl_b32 s61, {sX}, 8\ns_add_u32 s61, s61, {W_F11}\ns_cmp_eq_u32 {sJ}, 31\ns_cbranch_scc1 {L2}\nv_mov_b32 v8, 0\ns_mov_b64 exec, 1")
            self.poll([(8, "s61", 0)], 220, 12, nap=int(os.environ.get("RNAP", 1)))
            a(f"s_branch {L}\n{L2}:")
        self.poll2([(8, "s60", 0), (9, "s60", 0), (10, "s60", 0)], 220, 4, first=2)
        if 'relay' in EXP:
            self.flag_store("s61", 8)
        a(f"{L}:")
        a(f"""
        s_mov_b32 s68, {W_X1}
        s_cmp_eq_u32 {sW}, 0
        s_cselect_b32 s3, 3, 0
        s_add_u32 s88, {sW}, {WQ1-4}
        s_lshl_b32 s88, s88, 10            ; first remaining piece of the wqkv slice (waves 4-7)
        s_mul_i32 s87, {sJ}, {WQ_B}
        s_add_u32 s87, s87, s88
        s_add_u32 s87, s87, {W_WQ}
        s_cmp_lt_u32 {sJ}, 18
        s_cselect_b32 s87, s87, 0
        s_cmp_ge_u32 {sW}, 4
        s_cselect_b32 s87, s87, 0
        """)
        a("L_qkv:")
        a(".reset_waits")
        XF, D0, D1, WF, RS = 64, 16, 32, 208, 96
        a(f"""
        s_lshl_b32 s75, {sLayer}, 15
        s_lshl_b32 s61, {sX}, 12
        s_add_u32 s75, s75, s61
        s_add_u32 s75, s75, {W_G9}
        s_mul_i32 s60, {sX}, {8*36864}
        s_add_u32 s60, s60, s68
        s_cmp_lg_u32 s3, 3
        s_cbranch_scc1 L_qkv_ns
        v_lshrrev_b32 v10, 2, v2
        v_and_b32 v11, 3, v2
        v_lshlrev_b32 v10, 8, v10
        v_lshl_add_u32 v10, v11, 4, v10
        s_lshr_b32 s61, {sJ}, 2
        s_mul_i32 s61, s61, 36864
        s_and_b32 s62, {sJ}, 3
        s_lshl_b32 s62, s62, 6
        s_add_u32 s61, s61, s62
        s_add_u32 s61, s61, s60
        """)
        for i in range(9):
            a(f"buffer_load_dwordx4 {vr(16+4*i,4)}, v10, {sWS}, s61 offen sc1")
            if i < 8:
                a("s_add_u32 s61, s61, 4096")
        a("L_qkv_ns:")
        a(f"""
        v_lshlrev_b32 v8, 4, v2
        s_mul_i32 s61, {sT}, 36864
        s_add_u32 s60, s60, s61
        s_barrier
        """)
        self.stamp(5)
        WIN = int(os.environ.get("WIN", 8))

        def ldx(s):
            a(f"buffer_load_dwordx4 {vr(XF+4*s,4)}, v8, {sWS}, s60 offen offset:{1024*(s&3)} sc1")
            if s & 3 == 3 and s < 35:
                a("s_add_u32 s60, s60, 4096")
        for s in range(WIN):
            ldx(s)
        a(f"s_cmp_lg_u32 s3, 3\ns_cbranch_scc1 L_qkv_ns2")
        a("v_mov_b32 v12, 0\nv_mov_b32 v13, 0\nv_mov_b32 v14, 0\nv_mov_b32 v15, 0\nv_mov_b32 v52, 0x3f803f80")
        for i in range(9):
            a(f"s_waitcnt vmcnt({8+WIN-i})")
            for j in range(4):
                r = 16 + 4 * i + j
                a(f"v_dot2c_f32_bf16 v{12+(j&2)}, v{r}, v52")
                a(f"v_dot2c_f32_bf16 v{13+(j&2)}, v{r}, v{r}")
        for m in ("row_ror:4", "row_ror:8"):
            for j in range(4):
                a(f"v_add_f32_dpp v{12+j}, v{12+j}, v{12+j} {m} row_mask:0xf bank_mask:0xf bound_ctrl:0")
        for op in ("v_permlane16_swap_b32", "v_permlane32_swap_b32"):
            for j in range(4):
                a(f"v_mov_b32 v{16+j}, v{12+j}")
            for j in range(4):
                a(f"{op} v{12+j}, v{16+j}")
            for j in range(4):
                a(f"v_add_f32 v{12+j}, v{12+j}, v{16+j}")
        self.stats(12, 13, 17, 22, 23)
        self.stats(14, 15, 21, 22, 23)
        a(f"""
        v_sub_f32 v16, 0, v12
        v_sub_f32 v20, 0, v14
        v_mov_b32 v18, s28
        v_mov_b32 v19, s29
        v_mov_b32 v22, s28
        v_mov_b32 v23, s29
        v_lshlrev_b32 v11, 5, v11
        s_lshl_b32 s61, {sJ}, 7
        s_add_u32 s61, s61, s75
        s_mov_b64 exec, 15
        buffer_store_dwordx4 v[16:19], v11, {sWS}, s61 offen sc1
        buffer_store_dwordx4 v[20:23], v11, {sWS}, s61 offen offset:16 sc1
        s_mov_b64 exec, -1
        L_qkv_ns2:
        """)

        def rdW(s):
            b = WF + 8 * (s % 3)
            a(f"ds_read_b128 {vr(b,4)}, v4 offset:{1792*s}")
            a(f"ds_read_b128 {vr(b+4,4)}, v5 offset:{1792*s}")
        a(f"""
        v_lshlrev_b32 v9, 2, v6
        v_add_u32 v10, {L_CS}, v9
        ds_read_b32 v250, v10
        ds_read_b32 v252, v10 offset:128
        s_lshl_b32 s61, {sT}, 9
        s_add_u32 s75, s75, s61
        s_mov_b32 s64, 0xffff0000
        s_waitcnt lgkmcnt(0)
        """)
        for r in (250, 252):
            a(f"""
            v_and_b32 v9, s64, v{r}
            v_sub_f32 v10, v{r}, v9
            v_cvt_pk_bf16_f32 v{r}, v9, v9
            v_cvt_pk_bf16_f32 v{r+1}, v10, 0
            """)
        rdW(0)
        rdW(1)
        def swap(s):
            x = XF + 4 * s
            a(f"s_waitcnt vmcnt({min(35 - s, WIN - 1)})")
            a(f"v_permlane16_swap_b32 v{x}, v{x+2}")
            a(f"v_permlane16_swap_b32 v{x+1}, v{x+3}")
        swap(0)
        for s in range(36):
            x, b = XF + 4 * s, WF + 8 * (s % 3)
            if s % 9 == 0 and 'noprio' not in EXP:
                a(f"s_setprio {3 - s // 9}")
            npc = (64 - WQ1) // 4
            if 2 * s < npc and WQ1 < 63:
                L = self.lab()
                a(f"s_cmp_eq_u32 s87, 0\ns_cbranch_scc1 {L}")
                for j in range(2 * s, min(2 * s + 2, npc)):
                    if j == npc - 1:
                        a(f"s_cmp_eq_u32 {sW}, 7\ns_cbranch_scc1 {L}")
                    a(f"s_add_u32 m0, s88, {L_WQ + 4096*j}\ns_add_u32 s86, s87, {4096*j}")
                    a(f"buffer_load_dwordx4 v8, {sWS}, s86 offen sc1 lds")
                a(f"{L}:")
            if s == WQ1 * 1024 // 1792 - 2 and WQ1 < 63:
                L = self.lab()
                a(f"s_cmp_lg_u32 {sLayer}, 0\ns_cbranch_scc1 {L}\ns_barrier\n{L}:")
            if s + WIN < 36:
                ldx(s + WIN)
            if s + 1 < 36:
                swap(s + 1)
            a(f"s_waitcnt lgkmcnt({2 if s + 1 < 36 else 0})")
            if 'nomfma' not in EXP or s == 0:
                a(f"v_mfma_f32_32x32x16_bf16 {vr(D0,16)}, {vr(b,4)}, {vr(x,4)}, {vr(D0,16) if s else 0}")
                a(f"v_mfma_f32_32x32x16_bf16 {vr(D1,16)}, {vr(x,4)}, {vr(b+4,4)}, {vr(D1,16) if s else 0}")
            if s + 2 < 36:
                rdW(s + 2)
            if s == 20:
                a(f"buffer_load_dwordx4 v[10:13], v53, {sWS}, s75 offen sc1")
            if s == 31:
                Lp, Ld = self.lab("Ls"), self.lab("Lsd")
                a(f"""
                s_mov_b32 s96, {SPIN_MAX}
                {Lp}:
                v_cmp_eq_u64 vcc, {sTag}, v[12:13]
                s_cmp_eq_u64 vcc, exec
                s_cbranch_scc1 {Ld}
                buffer_load_dwordx4 v[10:13], v53, {sWS}, s75 offen sc1
                s_sub_u32 s96, s96, 1
                s_cmp_lg_u32 s96, 0
                s_waitcnt vmcnt(0)
                s_cbranch_scc1 {Lp}
                """)
                self.timeout_mark(9, 12)
                a(f"""
                {Ld}:
                v_mul_f32 v12, {f32hex(C_SCALE)}, v11
                ds_write_b32 v60, v11
                ds_write_b32 v60, v12 offset:128
                """)
                for g in range(4):
                    a(f"ds_read_b128 {vr(RS+4*g,4)}, v61 offset:{32*g}")
                a("""
                s_mov_b32 s62, -1
                s_mov_b32 s63, 0
                v_cndmask_b32 v10, 0, v10, s[62:63]
                v_and_b32 v13, s64, v10
                v_sub_f32 v14, v10, v13
                v_cvt_pk_bf16_f32 v14, v13, v14
                v_cvt_pk_bf16_f32 v15, v13, 0
                """)
        self.stamp(6)
        KF, VF = 112, 120
        R = self.R
        a(f"""
        s_mov_b32 s62, 0xfffff
        s_mov_b32 s63, 0xfffff
        v_mfma_f32_32x32x8bf16_1k {vr(D1,16)}, v[14:15], v[252:253], {vr(D1,16)}
        v_mfma_f32_32x32x8bf16_1k {vr(D0,16)}, v[250:251], v[14:15], {vr(D0,16)}
        s_mov_b32 s66, 0xf00000
        s_mov_b32 s67, 0xf00000
        """)
        for i in range(16):
            a(f"v_mov_b32 v{R.O+i}, 0")
        a("s_waitcnt lgkmcnt(0)")
        for i in range(16):
            a(f"v_mul_f32 v{D1+i}, v{RS+i}, v{D1+i}")
        for i in range(8):
            a(f"v_cvt_pk_bf16_f32 v{VF+i}, v{D1+2*i}, v{D1+2*i+1}")
        a("s_mov_b64 exec, s[66:67]")
        assert L_OWN == 0
        for i in range(8):
            g, r = i >> 1, 2 * (i & 1)
            off = 64 * (g >> 1) + 16 * (g & 1) + 4 * r
            a(f"ds_write_b16 v57, v{VF+i} offset:{off}")
            a(f"ds_write_b16_d16_hi v57, v{VF+i} offset:{off+4}")
        a("s_mov_b64 exec, -1")
        a(f"ds_read_b32 v63, v59\nds_read_b32 v{R.Qr}, v58\ns_mov_b32 s66, 0xc0000\ns_mov_b32 s67, 0xc0000")
        for i in range(8):
            a(f"v_cndmask_b32 v{VF+i}, v{VF+i}, v62, s[66:67]")
        a(f"""
        s_mov_b64 exec, s[62:63]
        buffer_store_dwordx4 {vr(VF,4)}, v55, {sWS}, s89 offen sc1
        buffer_store_dwordx4 {vr(VF+4,4)}, v55, {sWS}, s89 offen offset:640 sc1
        s_mov_b64 exec, -1
        """)
        for i in range(8, 16):
            a(f"v_mul_f32 v{D0+i}, v11, v{D0+i}")
        for i in range(4):
            a(f"v_cvt_pk_bf16_f32 v{KF+i}, v{D0+8+2*i}, v{D0+9+2*i}")
        a(f"""
        buffer_store_dwordx4 {vr(KF,4)}, v54, {sWS}, s89 offen sc1
        s_waitcnt lgkmcnt(0)
        s_mov_b32 exec_hi, 0
        buffer_store_dword v63, v59, {sWS}, s89 offen sc1
        s_mov_b64 exec, s[62:63]
        ds_write_b128 v55, {vr(VF,4)} offset:{L_OWN}
        ds_write_b128 v55, {vr(VF+4,4)} offset:{L_OWN+640}
        s_mov_b64 exec, -1
        ds_write_b128 v54, {vr(KF,4)} offset:{L_OWN}
        """)
        for i in range(8):
            a(f"v_mul_f32 v{D0+i}, v12, v{D0+i}")
        for i in range(4):
            a(f"v_cvt_pk_bf16_f32 v{R.Q+i}, v{D0+2*i}, v{D0+1+2*i}")
        a(f"v_mov_b32 v{R.aV}, v56\ns_waitcnt lgkmcnt(0)")
        self.stamp(7)

    class Regs:
        S = [128, 160]
        O = 192
        Q = 208
        Qr = 212
        K = [8, 16]
        Kr = [24, 26]
        V = [28, 44]
        idx, aK, aR, aV = 214, 215, 216, 217

    def attention(self):
        a, R = self.a, self.R
        slot = lambda blk: L_OWN if blk == 0 else L_RING + ((blk - 2) % 3) * KV_B
        aK0, aR0, aV0 = 218, 219, 220

        def rd(kind, u, i=0):
            blk, dt = u >> 2, u & 3
            own = blk == 0
            base = slot(blk) - (0 if own else L_RING)
            buf = u & 1
            if kind == "R":
                return f"ds_read_b32 v{R.Kr[buf]}, v{aR0 if own else R.aR} offset:{base + KV_R + 256*dt}"
            if kind == "K":
                return f"ds_read_b128 {vr(R.K[buf]+4*i,4)}, v{aK0 if own else R.aK} offset:{base + 2048*dt + 1024*i}"
            return f"ds_read_b128 {vr(R.V[buf]+4*i,4)}, v{aV0 if own else R.aV} offset:{base + KV_V + 2560*dt + 640*i}"

        def m4(sb, kb):
            a(f"v_mfma_f32_32x32x4bf16_1k {vr(R.S[sb],32)}, {vr(R.Kr[kb],2)}, {vr(R.Qr,2)}, 0")

        def mf(sb, kb, hi):
            d = vr(R.S[sb] + 16 * hi, 16)
            a(f"v_mfma_f32_32x32x16_bf16 {d}, {vr(R.K[kb]+4*hi,4)}, {vr(R.Q,4)}, {d}")

        def sm(sb, vb, g):
            a(f"v_smfmac_f32_32x32x32_bf16 {vr(R.O,16)}, {vr(R.V[vb]+4*g,4)}, {vr(R.S[sb]+8*g,8)}, v{R.idx}")

        def call_try():
            a("s_call_b64 s[76:77], L_try")

        def try_body():
            Ln, Lr = self.lab(), self.lab()
            a(f"""
            L_try:
            .reset_waits
            s_waitcnt vmcnt(0)
            v_cmp_eq_u64 vcc, {sTag}, v[6:7]
            {Ln}:
            s_lshl_b32 s60, s62, 3
            s_lshr_b32 s60, vcc_lo, s60
            s_and_b32 s60, s60, 0xff
            s_cmp_lg_u32 s60, 0xff
            s_cbranch_scc1 {Lr}
            s_add_u32 s60, {sX}, s62
            s_add_u32 s60, s60, 1
            s_and_b32 s60, s60, 7
            s_add_u32 s60, s60, s69
            s_mul_i32 s60, s60, {KV_B}
            s_add_u32 s60, s60, {W_KV}
            s_mul_i32 s63, s62, {slot(1) - slot(2)}
            s_sub_u32 s63, {slot(1)}, s63
            """)
            for i in range(19):
                a(f"s_add_u32 m0, s63, {1024*i}")
                a(f"s_add_u32 s86, s60, {1024*i}")
                a(f"buffer_load_dwordx4 v{aK0}, {sWS}, s86 offen sc1 lds")
            a(f"""
            s_add_u32 s62, s62, 1
            s_cmp_lt_u32 s62, 2
            s_cbranch_scc1 {Ln}
            s_setpc_b64 s[76:77]
            {Lr}:
            s_mov_b64 exec, 0xffff
            buffer_load_dwordx2 v[6:7], v4, {sWS}, s61 offen sc1
            s_mov_b64 exec, -1
            s_setpc_b64 s[76:77]
            """)
        self.try_body = try_body

        def try_until(n):
            L, Ld = self.lab(), self.lab()
            a(f"""
            s_mov_b32 s96, {SPIN_MAX}
            {L}:
            s_cmp_ge_u32 s62, {n}
            s_cbranch_scc1 {Ld}
            """)
            call_try()
            a(f"""
            s_sub_u32 s96, s96, 1
            s_cmp_lg_u32 s96, 0
            s_cbranch_scc1 {L}
            """)
            self.timeout_mark(5, 228)
            a(f"{Ld}:")

        def on_wave(w, fn):
            if 'nofetch' in EXP:
                return
            L = self.lab()
            a(f"s_cmp_lg_u32 {sW}, {w}\ns_cbranch_scc1 {L}\ns_setprio 3")
            fn()
            a(f"{L}:")

        a(f"""
        v_lshlrev_b32 v{aK0}, 4, v2
        v_lshlrev_b32 v{aR0}, 2, v2
        v_mov_b32 v{aV0}, v{R.aV}
        v_add_u32 v{R.aK}, {L_RING}, v{aK0}
        v_add_u32 v{R.aR}, {L_RING}, v{aR0}
        v_add_u32 v{R.aV}, {L_RING}, v{aV0}
        v_mov_b32 v{R.idx}, 0xdddddddd
        v_mov_b32 v{R.Qr+1}, 0
        v_mov_b32 v{R.Kr[0]+1}, 0
        v_mov_b32 v{R.Kr[1]+1}, 0
        s_add_u32 s70, s69, {sX}
        s_lshl_b32 s70, s70, 3
        s_add_u32 s70, s70, {sW}
        s_lshl_b32 s70, s70, 6
        s_add_u32 s70, s70, {W_F5}
        """)
        a(f"""
        s_lshl_b32 s83, {sW}, 10
        s_and_b32 s84, {sJ}, 7
        s_mul_i32 s84, s84, {WO_B}
        s_add_u32 s84, s84, {W_WO}
        s_add_u32 s84, s84, s83
        v_mov_b32 v222, s28
        v_mov_b32 v223, s29
        v_mov_b32 v224, 0
        """)
        a("s_barrier")

        def publish():
            a(f"""
            s_waitcnt vmcnt(0)
            s_mov_b64 exec, 1
            buffer_store_dwordx2 v[222:223], v224, {sWS}, s70 offen sc1
            s_mov_b64 exec, -1
            """)

        def seg_start(u):
            for l in (rd("R", u), rd("K", u, 0), rd("K", u, 1), rd("V", u, 0), rd("V", u, 1), rd("R", u + 1), rd("K", u + 1, 0),
                      rd("V", u, 2), rd("K", u + 1, 1), rd("V", u, 3)):
                a(l)

        def seg_qk():
            a("s_waitcnt lgkmcnt(7)")
            m4(0, 0)
            a("s_nop 15\ns_nop 1")
            mf(0, 0, 0)
            mf(0, 0, 1)
            a("s_nop 10")

        def piece(src, lds, off, maxw=8):
            if 'nofetch' in EXP:
                return
            L = self.lab()
            if maxw < 8:
                a(f"s_cmp_ge_u32 {sW}, {maxw}\ns_cbranch_scc1 {L}")
            a(f"s_add_u32 m0, s83, {lds + off}\ns_add_u32 s86, {src}, {off}")
            a(f"buffer_load_dwordx4 v{aK0}, {sWS}, s86 offen sc1 {'nt' if 'kvnt' in EXP and src == 's85' else ''} lds")
            if maxw < 8:
                a(f"{L}:")

        def poll_all():
            a(f"""
            s_lshl_b32 s61, s69, 9
            s_add_u32 s61, s61, {W_F5}
            v_lshlrev_b32 v4, 6, v2
            v_min_u32 v5, 17, v2
            v_lshlrev_b32 v5, 6, v5
            s_mov_b32 s60, {W_F3 + 72*64}
            """)
            self.poll([(4, "s61", 0), (5, "s60", 0)], 60, 5)

        seg_start(0)
        L = self.lab()
        a(f"s_cmp_lt_u32 {sW}, 4\ns_cbranch_scc1 {L}")
        publish()
        a(f"s_cmp_lg_u32 {sLayer}, 0\ns_cbranch_scc1 {L}\ns_cmp_ge_u32 {sJ}, 18\ns_cbranch_scc1 {L}")
        for i in range(8):
            a(f"buffer_store_dwordx2 {vr(232+2*i,2)}, v248, {sWS}, s79 offen sc1")
            a(f"s_add_u32 s79, s79, {2*36864}")
        a(f"{L}:")
        seg_qk()
        self.stamp(8)
        for u in range(32):
            P = u & 1
            N = P ^ 1
            end = 4 if u < 4 else 32
            first = u in (0, 4)
            last = u == end - 1
            e = lambda i, j: [a(f"v_exp_f32 v{R.S[P]+k}, v{R.S[P]+k}") for k in range(i, j)]
            k2 = u + 2 < end
            v1 = u + 1 < end
            blk, dt = u >> 2, u & 3
            hook = {}
            if u == PUB_AT:
                L = self.lab()
                a(f"s_cmp_ge_u32 {sW}, 4\ns_cbranch_scc1 {L}")
                publish()
                a(f"{L}:")
            if u == LOOK_AT:
                L = self.lab()
                a(f"""
                s_cmp_lg_u32 {sW}, 0
                s_cbranch_scc1 {L}
                s_mov_b32 s62, 0
                s_lshl_b32 s61, s69, 9
                s_add_u32 s61, s61, {W_F5}
                s_add_u32 s60, {sX}, 1
                s_lshl_b32 s60, s60, 3
                v_add_u32 v4, s60, v2
                v_and_b32 v4, 63, v4
                v_lshlrev_b32 v4, 6, v4
                s_mov_b64 exec, 0xffff
                buffer_load_dwordx2 v[6:7], v4, {sWS}, s61 offen sc1
                s_mov_b64 exec, -1
                {L}:
                """)
            if u in TRY_AT:
                L = self.lab()
                a(f"s_cmp_lg_u32 {sW}, 0\ns_cbranch_scc1 {L}\ns_cmp_ge_u32 s62, 2\ns_cbranch_scc1 {L}")
                call_try()
                a(f"{L}:")
            if u == 4:
                L0, L1 = self.lab(), self.lab()
                a(f"s_cmp_lg_u32 {sW}, 0\ns_cbranch_scc1 {L1}")
                try_until(1)
                a(f"{L1}:")
                self.out_setup()
                L1 = self.lab()
                a(f"""
                s_cmp_lg_u32 {sW}, 0
                s_cbranch_scc1 {L0}
                s_cmp_lg_u32 s62, 2
                s_cbranch_scc1 {L0}
                s_waitcnt vmcnt(19)
                s_branch {L1}
                {L0}:
                s_waitcnt vmcnt(0)
                {L1}:
                s_barrier
                """)
                self.stamp(14)
                seg_start(4)
                L0, L1 = self.lab(), self.lab()
                a(f"s_cmp_lg_u32 {sW}, 0\ns_cbranch_scc1 {L0}\ns_setprio 3")
                try_until(2)
                a(f"{L0}:")
                L = self.lab()
                a(f"""
                s_cmp_lt_u32 {sW}, 4
                s_cbranch_scc1 {L}
                s_cmp_lg_u32 {sLayer}, 0
                s_cbranch_scc1 {L}
                s_cmp_ge_u32 {sJ}, 18
                s_cbranch_scc1 {L}
                s_mov_b64 exec, 1
                buffer_store_dwordx2 v[222:223], v224, {sWS}, s80 offen sc1
                s_mov_b64 exec, -1
                {L}:
                """)
                on_wave(6, poll_all)
                seg_qk()
            if 1 <= blk < 7 and dt == 2 and 'nobar' not in EXP:
                a("s_waitcnt vmcnt(0)\ns_barrier")
                if blk == 3:
                    L = self.lab()
                    a(f"s_cmp_ge_u32 {sW}, 4\ns_cbranch_scc1 {L}\nv_cmp_ne_u64 vcc, {sTag}, v[74:75]\ns_cmp_eq_u64 vcc, 0\ns_cbranch_scc1 {L}")
                    self.poll([(72, "s78", 0)], 74, 10)
                    a(f"{L}:")
                if blk + 2 < 8:
                    a(f"s_add_u32 s85, {sX}, {blk+2}\ns_and_b32 s85, s85, 7")
                    a(f"""
                    s_add_u32 s85, s85, s69
                    s_mul_i32 s85, s85, {KV_B}
                    s_add_u32 s85, s85, {W_KV}
                    s_add_u32 s85, s85, s83
                    """)
            if 1 <= blk < 7 and dt >= 2:
                src, lds, o = ("s85", slot(blk + 2), 0) if blk < 6 else ("s84", L_WO, 36 * 1024)
                if dt == 2:
                    hook[0] = lambda: piece(src, lds, o)
                    hook[1] = lambda: piece(src, lds, o + 8192)
                else:
                    hook[0] = lambda: piece(src, lds, o + 16384, 3)
                    if blk < 6:
                        hook[1] = lambda: piece("s84", L_WO, 8192 * (blk - 1), 8 if blk < 5 else 4)
            if u == 12:
                def yflag():
                    L = self.lab()
                    a(f"s_cmp_ge_u32 {sW}, 4\ns_cbranch_scc1 {L}\nbuffer_load_dwordx2 v[74:75], v72, {sWS}, s78 offen sc1\n{L}:")
                hook[0] = yflag
            if u == 16:
                def resid():
                    L = self.lab()
                    a(f"s_cmp_ge_u32 {sW}, 4\ns_cbranch_scc1 {L}\ns_add_u32 s60, s67, s68\ns_add_u32 s61, s67, {W_Y}")
                    for ft in range(5):
                        va, off = XQ(ft)
                        a(f"buffer_load_dwordx2 {vr(76+2*ft,2)}, v{va}, {sWS}, s60 offen offset:{off} sc1")
                        a(f"buffer_load_dwordx2 {vr(86+2*ft,2)}, v{va}, {sWS}, s61 offen offset:{off} sc1")
                    a(f"{L}:")
                hook[0] = resid
            H = lambda k: hook.get(k, lambda: None)()
            if 'noprio' not in EXP and u >= 4:
                a(f"s_setprio {3 - ((u + 2) & 3) if u < 26 else int(os.environ.get('TAILP', '322110')[u - 26])}")
            e(0, 2)
            if not first:
                sm(N, N, 3)
            if k2:
                a(rd("R", u + 2))
            e(2, 5)
            a(f"s_waitcnt lgkmcnt({2 if last else 3 + (1 if k2 else 0)})")
            if not last:
                m4(N, N)
            if v1:
                a(rd("V", u + 1, 0))
            H(0)
            e(5, 13)
            sm(P, P, 0)
            if v1:
                a(rd("V", u + 1, 1))
            e(13, 18)
            sm(P, P, 1)
            if k2:
                a(rd("K", u + 2, 0))
            e(18, 22)
            if not last:
                mf(N, N, 0)
            if v1:
                a(rd("V", u + 1, 2))
            H(1)
            e(22, 26)
            a(f"s_waitcnt lgkmcnt({(2 if k2 else 0) + (3 if v1 else 0)})")
            sm(P, P, 2)
            if k2:
                a(rd("K", u + 2, 1))
            e(26, 29)
            if not last:
                mf(N, N, 1)
            if v1:
                a(rd("V", u + 1, 3))
            e(29, 32)
            if last:
                a("s_nop 1")
                sm(P, P, 3)
        self.stamp(9)
        a("s_setprio 0")
        O = R.O
        a(f"""
        s_add_u32 s60, s71, {sJ}
        s_lshl_b32 s60, s60, 6
        s_add_u32 s70, s60, {W_F6}
        s_lshl_b32 s61, s71, 6
        s_add_u32 s83, s61, {W_F6}
        s_mov_b32 s72, 0
        L_att_norm:
        s_nop 5
        v_mov_b32 v10, v{O+10}
        v_mov_b32 v11, v{O+10}
        v_add_f32 v12, abs(v{O}), abs(v{O+1})
        v_add_f32 v13, abs(v{O+2}), abs(v{O+3})
        v_permlane32_swap_b32 v10, v11
        v_add_f32 v12, v12, abs(v{O+4})
        v_add_f32 v13, v13, abs(v{O+5})
        v_add_f32 v12, v12, abs(v{O+6})
        v_add_f32 v13, v13, abs(v{O+7})
        v_add_f32 v12, v12, abs(v{O+8})
        v_add_f32 v13, v13, abs(v{O+9})
        v_add_f32 v12, v12, v13
        v_rcp_f32 v11, v10
        v_cmp_le_f32 vcc, {f32hex(2.0**-100)}, v10
        v_cmp_ge_f32 s[94:95], {"s73"}, v10
        v_cmp_ge_f32 s[100:101], {"s74"}, v12
        s_nop 0
        s_and_b64 vcc, vcc, s[94:95]
        s_and_b64 vcc, vcc, s[100:101]
        s_cmp_eq_u64 vcc, exec
        s_cbranch_scc1 L_att_ok
        s_cmp_eq_u32 s72, 0
        s_cbranch_scc1 L_att_fallback
        L_att_ok:
        """)
        for i in range(10):
            a(f"v_mul_f32 v{O+i}, v11, v{O+i}")
        for i in range(5):
            a(f"v_cvt_pk_bf16_f32 v{12+i}, v{O+2*i}, v{O+2*i+1}")
        a(f"""
        buffer_store_dwordx4 v[12:15], v225, {sWS}, s81 offen sc1
        s_mov_b32 exec_hi, 0
        buffer_store_dword v16, v226, {sWS}, s82 offen sc1
        s_mov_b64 exec, -1
        s_cmp_lg_u32 {sW}, 0
        s_waitcnt vmcnt(0)
        s_barrier
        """)
        self.warm_o = f"""
        buffer_load_dwordx4 v[8:11], v225, {sWS}, s81 offen sc1
        buffer_load_dword v12, v226, {sWS}, s82 offen sc1
        """ if 'warmo' in EXP else ""

    def out_setup(self):
        a = self.a
        L = self.lab()
        a(f"""
        v_lshrrev_b32 v61, 5, v2
        v_and_b32 v60, 15, v2
        v_lshlrev_b32 v226, 1, v60
        v_bfe_u32 v225, v2, 4, 1
        v_add_u32 v226, v226, v225         ; tau(n)
        s_lshl_b32 s60, {sT}, 5
        v_add_u32 v226, s60, v226
        v_lshlrev_b32 v225, 4, v226
        v_lshl_add_u32 v225, v61, 12, v225
        v_lshlrev_b32 v226, 2, v226
        s_lshl_b32 s60, {sLayer}, 3
        s_add_u32 s60, s60, {sX}
        s_lshl_b32 s71, s60, 5             ; (layer*8+X)*32
        s_add_u32 s60, s71, {sJ}
        s_lshl_b32 s81, s60, 13
        s_add_u32 s81, s81, {W_OM}
        s_lshl_b32 s82, s60, 10
        s_add_u32 s82, s82, {W_OR}
        s_cmp_ge_u32 {sW}, 4
        s_cbranch_scc1 {L}
        v_lshrrev_b32 v61, 4, v2
        s_lshr_b32 s64, {sJ}, 3            ; sub
        s_and_b32 s65, {sJ}, 7             ; slice
        s_lshl_b32 s66, s64, 6
        s_lshl_b32 s67, {sT4}, 4
        s_add_u32 s66, s66, s67
        v_add_u32 v62, s66, v60
        v_lshlrev_b32 v64, 8, v61
        v_lshl_add_u32 v64, v60, 3, v64    ; g*256 + tok*8
        v_lshl_add_u32 v63, v61, 8, v64    ; g*512 + tok*8
        v_add_u32 v64, 4096, v64
        v_mov_b32 v65, 0x7fffffff
        v_cmp_gt_u32 vcc, 2, v61
        s_mul_i32 s60, s65, {18*256}
        s_lshl_b32 s63, {sX}, 3
        s_lshr_b32 s67, s66, 5
        s_add_u32 s63, s63, s67
        s_mul_i32 s63, s63, 36864
        s_add_u32 s60, s60, s63
        s_and_b32 s63, s66, 16
        s_lshl_b32 s63, s63, 3
        s_add_u32 s67, s60, s63
        v_cndmask_b32 v64, v65, v64, vcc
        v_lshrrev_b32 v65, 1, v61
        v_lshlrev_b32 v65, 13, v65
        v_and_b32 v66, 1, v61
        v_lshl_add_u32 v65, v66, 12, v65
        v_lshl_add_u32 v65, v62, 4, v65    ; o main
        v_lshlrev_b32 v66, 12, v61
        v_lshl_add_u32 v66, v62, 2, v66    ; o rem
        v_lshlrev_b32 v67, 4, v2           ; W ft<4
        v_and_b32 v68, 7, v2
        v_lshlrev_b32 v68, 4, v68
        v_lshl_add_u32 v68, v61, 7, v68
        v_add_u32 v68, 4096, v68           ; W ft==4
        v_add_u32 v69, {9*4608}, v67
        v_add_u32 v70, {9*4608}, v68
        v_and_b32 v71, 31, v2
        v_lshlrev_b32 v71, 6, v71          ; flags
        v_min_u32 v72, 17, v2
        v_lshlrev_b32 v72, 8, v72          ; y flags
        s_mul_i32 s78, s65, {18*256}
        s_lshr_b32 s63, {sX}, 1
        s_lshl_b32 s63, s63, 6
        s_add_u32 s78, s78, s63
        s_add_u32 s78, s78, {W_F10}
        {L}:
        """)

    def next_layer(self):
        self.a(f"s_mov_b32 {sLayer}, 1\ns_mov_b32 s68, {W_X3}\ns_mov_b32 s87, 0")
        self.qkv_setup()

    def fetch_wo(self, first, n, va, step=1):
        Ll = self.lab()
        self.a(f"""
        s_and_b32 s60, {sJ}, 7
        s_mul_i32 s60, s60, {WO_B}
        s_add_u32 s60, s60, {W_WO + 1024*first}
        s_add_u32 s61, s60, {1024*n}
        s_mov_b32 m0, {L_WO + 1024*first}
        """)
        if step > 1:
            self.a("s_lshl_b32 s62, s62, 10\ns_add_u32 s60, s60, s62\ns_add_u32 m0, m0, s62\ns_nop 0")
        else:
            self.a("s_nop 0")
        self.a(f"""
        {Ll}:
        buffer_load_dwordx4 v{va}, {sWS}, s60 offen sc1 lds
        s_add_u32 m0, m0, {1024*step}
        s_add_u32 s60, s60, {1024*step}
        s_cmp_lt_u32 s60, s61
        s_cbranch_scc1 {Ll}
        """)

    def fallback(self):
        a, R = self.a, self.R
        S0 = R.S[0]
        a("L_att_fallback:")
        a(".reset_waits")
        a(f"""
        s_mov_b32 s72, 1
        s_mul_i32 s75, s69, {KV_B}
        s_add_u32 s75, s75, {W_KV}
        v_mov_b32 v221, 0xff7fffff
        s_waitcnt vmcnt(0)
        """)
        for p in range(2):
            Lb = self.lab("Lfb")
            a(f"s_mov_b32 s76, 0\n{Lb}:")
            a(f"""
            s_lshr_b32 s77, s76, 2
            s_and_b32 s78, s76, 3
            s_mul_i32 s77, s77, {KV_B}
            s_add_u32 s77, s77, s75
            s_lshl_b32 s79, s78, 11
            s_add_u32 s79, s79, s77
            buffer_load_dwordx4 {vr(R.K[0]+8,4)}, v218, {sWS}, s79 offen sc1
            buffer_load_dwordx4 {vr(R.K[0]+12,4)}, v218, {sWS}, s79 offen offset:1024 sc1
            s_lshl_b32 s79, s78, 8
            s_add_u32 s79, s79, s77
            s_add_u32 s79, s79, {KV_R}
            buffer_load_dword v{R.Kr[0]}, v219, {sWS}, s79 offen sc1
            """)
            if p:
                a(f"s_mul_i32 s79, s78, 2560\ns_add_u32 s79, s79, s77\ns_add_u32 s79, s79, {KV_V}")
                for i in range(4):
                    a(f"buffer_load_dwordx4 {vr(R.V[0]+4*i,4)}, v220, {sWS}, s79 offen offset:{640*i} sc1")
            a(f"""
            s_waitcnt vmcnt(0)
            v_mfma_f32_32x32x4bf16_1k {vr(S0,32)}, {vr(R.Kr[0],2)}, {vr(R.Qr,2)}, 0
            s_nop 15
            s_nop 3
            v_mfma_f32_32x32x16_bf16 {vr(S0,16)}, {vr(R.K[0]+8,4)}, {vr(R.Q,4)}, {vr(S0,16)}
            v_mfma_f32_32x32x16_bf16 {vr(S0+16,16)}, {vr(R.K[0]+12,4)}, {vr(R.Q,4)}, {vr(S0+16,16)}
            s_nop 15
            """)
            if p == 0:
                for i in range(16):
                    a(f"v_max3_f32 v221, v221, v{S0+2*i}, v{S0+2*i+1}")
            else:
                for i in range(32):
                    a(f"v_sub_f32 v{S0+i}, v{S0+i}, v221")
                for i in range(32):
                    a(f"v_exp_f32 v{S0+i}, v{S0+i}")
                a("s_nop 1")
                for g in range(4):
                    a(f"v_smfmac_f32_32x32x32_bf16 {vr(R.O,16)}, {vr(R.V[0]+4*g,4)}, {vr(S0+8*g,8)}, v{R.idx}")
            a(f"s_add_u32 s76, s76, 1\ns_cmp_lt_u32 s76, 32\ns_cbranch_scc1 {Lb}")
            if p == 0:
                a("v_mov_b32 v227, v221\ns_nop 1\nv_permlane32_swap_b32 v221, v227\ns_nop 1\nv_max_f32 v221, v221, v227")
                for i in range(16):
                    a(f"v_mov_b32 v{R.O+i}, 0")
        a("s_nop 15\ns_branch L_att_norm")

    def outproj(self):
        a = self.a
        OF, ACC, XR, YR = 128, 16, 76, 86
        WF = [36, 200, 220]
        a(f"""
        s_cbranch_scc1 L_op_nf
        s_mov_b64 exec, 1
        buffer_store_dwordx2 v[222:223], v224, {sWS}, s70 offen sc1
        s_mov_b64 exec, -1
        """)
        self.stamp(10)
        a(f"""
        L_op_nf:
        {self.warm_o}
        s_cmp_ge_u32 {sW}, 4
        s_cbranch_scc1 L_op_help
        s_mov_b32 s63, 0xffff0000
        """)
        XF = 96
        YF = [116 + i for i in range(12)] + [240 + i for i in range(8)]
        for i in range(10):
            a(f"v_lshlrev_b32 v{XF+2*i}, 16, v{XR+i}")
            a(f"v_and_b32 v{XF+2*i+1}, s63, v{XR+i}")
            a(f"v_lshlrev_b32 v{YF[2*i]}, 16, v{YR+i}")
            a(f"v_and_b32 v{YF[2*i+1]}, s63, v{YR+i}")
        self.srd(sA, "out", NB)
        a(f"""
        s_lshl_b32 s60, {sX}, 8
        v_add_u32 v72, s60, v62
        v_mul_u32_u24 v72, 1152, v72
        v_lshl_add_u32 v73, v61, 3, v72
        v_lshl_add_u32 v72, v61, 4, v72
        v_mov_b32 v4, 0x7fffffff
        v_cmp_gt_u32 vcc, 2, v61
        s_mul_i32 s78, s65, 144
        s_nop 0
        v_cndmask_b32 v73, v4, v73, vcc
        """)
        L = self.lab()
        a(f"s_cmp_lg_u32 {sW}, 0\ns_cbranch_scc1 {L}")
        self.poll2([(71, "s83", 0)], 56, 6)
        a(f"""
        {L}:
        s_barrier
        s_lshl_b32 s60, s71, 13
        s_add_u32 s60, s60, {W_OM}
        s_lshl_b32 s61, s71, 10
        s_add_u32 s61, s61, {W_OR}
        """)
        self.stamp(11)
        for s in range(16):
            a(f"buffer_load_dwordx4 {vr(OF+4*s,4)}, v65, {sWS}, s60 offen sc1")
            if s < 15:
                a("s_add_u32 s60, s60, 0x4000")
        for s in range(2):
            for i in range(4):
                a(f"buffer_load_dword v{OF+64+4*s+i}, v66, {sWS}, s61 offen offset:{1024*i} sc1")
            if s == 0:
                a("s_add_u32 s61, s61, 0x4000")

        def rdW(s):
            hi = s >= 9
            out = []
            for ft in range(5):
                va = (69 if hi else 67) if ft < 4 else (70 if hi else 68)
                off = L_WO + 4608 * (s - 9 * hi) + (1024 * ft if ft < 4 else 0)
                out.append(f"ds_read_b128 {vr(WF[s%3]+4*ft,4)}, v{va} offset:{off}")
            return out
        for l in rdW(0) + rdW(1):
            a(l)
        for s in range(18):
            nxt = rdW(s + 2) if s < 16 else []
            a(f"s_waitcnt vmcnt({23-s if s < 16 else (4 if s == 16 else 0)}) lgkmcnt({5 if s < 17 else 0})")
            for ft in range(5):
                d = vr(ACC + 4 * ft, 4)
                a(f"v_mfma_f32_16x16x32_bf16 {d}, {vr(WF[s%3]+4*ft,4)}, {vr(OF+4*s,4)}, {d if s else vr(XF+4*ft,4)}")
                if nxt:
                    a(nxt[ft])
        self.stamp(12)
        XF = ACC
        a(f"""
        s_lshl_b32 s60, {sX}, 2
        s_add_u32 s60, s60, s64
        s_lshl_b32 s60, s60, 13
        s_add_u32 s60, s60, {W_G7}
        s_lshl_b32 s61, {sT4}, 8
        s_add_u32 s60, s60, s61
        s_lshl_b32 s61, s65, 10
        s_add_u32 s61, s61, s60
        v_lshlrev_b32 v4, 4, v60
        v_cmp_gt_u32 vcc, 2, v61
        v_mov_b32 v10, s28
        v_mov_b32 v11, s29
        s_cmp_lg_u32 {sLayer}, 0
        s_cbranch_scc1 L_op_final
        """)
        a(f"v_pk_add_f32 v[12:13], {vr(XF,2)}, {vr(XF+2,2)}\nv_pk_mul_f32 v[14:15], {vr(XF,2)}, {vr(XF,2)}")
        a(f"v_pk_fma_f32 v[14:15], {vr(XF+2,2)}, {vr(XF+2,2)}, v[14:15]")
        for i in range(2, 10):
            if i == 8:
                for j in range(16, 20):
                    a(f"v_cndmask_b32 v{XF+j}, 0, v{XF+j}, vcc")
            a(f"v_pk_add_f32 v[12:13], v[12:13], {vr(XF+2*i,2)}")
            a(f"v_pk_fma_f32 v[14:15], {vr(XF+2*i,2)}, {vr(XF+2*i,2)}, v[14:15]")
        a("v_add_f32 v8, v12, v13\nv_add_f32 v9, v14, v15")

        def xsum():
            for op in ("v_permlane16_swap_b32", "v_permlane32_swap_b32"):
                a(f"""
                v_mov_b32 v12, v8
                v_mov_b32 v13, v9
                s_nop 1
                {op} v8, v12
                {op} v9, v13
                s_nop 0
                v_add_f32 v8, v8, v12
                v_add_f32 v9, v9, v13
                """)
        xsum()
        a(f"""
        s_mov_b64 exec, 0xffff
        buffer_store_dwordx4 v[8:11], v4, {sWS}, s61 offen sc1
        s_mov_b64 exec, -1
        v_lshl_add_u32 v4, v61, 10, v4
        s_add_u32 s61, s60, 4096
        """)
        a("s_waitcnt vmcnt(0)")
        if os.environ.get("GDELAY"):
            a(f"s_sleep {os.environ['GDELAY']}")
        Ld0, Ld1 = self.poll2([(4, "s60", 0), (4, "s61", 0)], 136, 7, width=4)
        a(f"""
        {Ld0}:
        v_add_f32 v8, v136, v140
        v_add_f32 v9, v137, v141
        """)
        xsum()
        self.stats(8, 9, 12, 14, 10)
        a("v_mov_b32 v13, v12\nv_mov_b32 v15, v14")
        a(f"s_add_u32 s60, s67, {W_X3}")
        for ft in range(5):
            for p in range(2):
                x, y, t = XF + 4 * ft + 2 * p, YF[4 * ft + 2 * p], 96 + 4 * ft + 2 * p
                a(f"v_pk_fma_f32 {vr(t,2)}, {vr(x,2)}, v[12:13], v[14:15]")
                a(f"v_pk_fma_f32 {vr(x,2)}, {vr(t,2)}, {vr(y,2)}, {vr(x,2)}")
            a(f"v_cvt_pk_bf16_f32 v{76+2*ft}, v{XF+4*ft}, v{XF+4*ft+1}")
            a(f"v_cvt_pk_bf16_f32 v{77+2*ft}, v{XF+4*ft+2}, v{XF+4*ft+3}")
            a(f"buffer_store_dwordx2 {vr(76+2*ft,2)}, v{XQ(ft)[0]}, {sWS}, s60 offen offset:{XQ(ft)[1]} sc1")
        self.next_layer()
        L = self.lab()
        a(f"""
        s_lshl_b32 s60, {sX}, 11
        s_add_u32 s60, s60, {W_F8}
        s_lshl_b32 s61, {sJ}, 6
        s_add_u32 s61, s61, s60
        v_lshlrev_b32 v8, 6, v6
        v_mov_b32 v10, s28
        v_mov_b32 v11, s29
        v_mov_b32 v12, 0
        v_mov_b32 v13, {L_CNT}
        v_mov_b32 v14, 1
        s_add_u32 s62, s67, {W_X3}
        s_waitcnt vmcnt(0)
        s_mov_b64 exec, 1
        ds_add_rtn_u32 v14, v13, v14
        s_waitcnt lgkmcnt(0)
        v_readfirstlane_b32 s3, v14
        s_mov_b64 exec, -1
        s_cmp_lg_u32 s3, 3
        s_cbranch_scc1 {L}w
        s_mov_b64 exec, 1
        buffer_store_dwordx2 v[10:11], v12, {sWS}, s61 offen sc1
        s_mov_b64 exec, -1
        {L}w:
        """)
        if 'warmx' in EXP:
            for ft in range(5):
                a(f"buffer_load_dwordx2 v[240:241], v{XQ(ft)[0]}, {sWS}, s62 offen offset:{XQ(ft)[1]} sc1")
        a(f"s_cbranch_scc1 {L}")
        self.poll2([(8, "s60", 0)], 220, 8)
        a(f"{L}:")
        a("s_branch L_next_layer")

        a("L_op_help:")
        a(".reset_waits")
        a(f"s_sub_u32 s62, {sW}, 4\ns_mov_b32 s3, 0\nv_mov_b32 v4, {L_CNT}\nv_mov_b32 v5, 0\nds_write_b32 v4, v5")
        self.fetch_wo(55, 26, 218, step=4)
        a("s_waitcnt vmcnt(0) lgkmcnt(0)\ns_barrier")
        a(f"s_cmp_lg_u32 {sLayer}, 0\ns_cbranch_scc1 L_end")
        self.next_layer()
        a("L_next_layer:")
        if self.stop == "gate2":
            a("s_branch L_end")
        a("s_branch L_qkv")

        a("L_op_final:")
        a(".reset_waits")
        for ft in range(5):
            a(f"v_cvt_pk_bf16_f32 v{76+2*ft}, v{XF+4*ft}, v{XF+4*ft+1}")
            a(f"v_cvt_pk_bf16_f32 v{77+2*ft}, v{XF+4*ft+2}, v{XF+4*ft+3}")
            if ft in (1, 3):
                a(f"buffer_store_dwordx4 {vr(74+2*ft,4)}, v72, {sA}, s78 offen offset:{32*(ft-1)}")
        a(f"buffer_store_dwordx2 v[84:85], v73, {sA}, s78 offen offset:128")
        a(f"""
        s_or_b32 s60, s2, {sW}
        s_cmp_lg_u32 s60, 0
        s_cbranch_scc1 L_end
        s_mov_b32 s60, {W_NONCE}
        """)
        self.flag_store("s60", 10)

    def build(self):
        a = self.a
        self.R = G.Regs
        self.prologue()
        self.prep()
        self.finish_if("prep")
        self.conv()
        self.relayout()
        self.colsum()
        self.finish_if("conv")
        a(f"s_mov_b32 s73, {f32hex(2.0**120)}\ns_mov_b32 s74, {f32hex(2.0**120)}")
        self.qkv()
        if self.stop == "qkv":
            a("s_waitcnt vmcnt(0)\ns_branch L_end")
        self.attention()
        self.finish_if("attn")
        self.outproj()
        a("L_end:")
        if self.ts:
            self.stamp(15)
            a(f"""
            s_lshl_b32 s60, s2, 3
            s_add_u32 s60, s60, {sW}
            s_lshl_b32 s60, s60, 8
            s_add_u32 s60, s60, {W_TS}
            v_lshlrev_b32 v4, 2, v2
            buffer_store_dword v255, v4, {sWS}, s60 offen
            """)
            if 'dbgts' in EXP:
                wg = int(os.environ.get("DBGWG", 0))
                a(f"""
                s_cmp_lg_u32 s2, {wg}
                s_cbranch_scc1 L_nodbg
                s_cmp_lg_u32 {sW}, 0
                s_cbranch_scc1 L_nodbg
                v_readlane_b32 s60, v255, 0
                s_nop 3
                v_subrev_u32 v5, s60, v255
                """)
                for n, i in enumerate((16, 1, 2, 3, 4, 5, 7, 8, 9, 11, 13, 21, 24, 25, 27, 31)):
                    a(f"v_readlane_b32 s61, v5, {i}\ns_nop 3\nv_writelane_b32 v6, s61, {n}")
                a(f"s_mov_b64 exec, 0xffff\nglobal_store_dword v4, v6, s[{PTR['dbg']}:{PTR['dbg']+1}]\nL_nodbg:")
        a("s_waitcnt vmcnt(0)")
        a("L_exit:")
        a("s_endpgm")
        self.fallback()
        self.try_body()
        a("L_code_end:")
        lines, added = fix_hazards(a.lines, verbose=True, tag="k")
        errs = check_waits(lines, "k")
        for e in errs:
            print(e)
        lines = [l for l in lines if not l.startswith(".reset_waits")]
        a.lines = lines
        body = a.text().replace("CODE_AFTER", "(L_code_end-L_pc_here)")
        ref = open(f"cdna_kernels/{NAME}.s.ref").read()
        head = ref[:ref.index("; Override launch")]
        txt = head + DOC + f"""; @launch grid=(256,1,1) block=(512,1,1) lds={LDS_BYTES}
.amdgcn_target "amdgcn-amd-amdhsa--gfx950"
.text
.p2align 12
.globl {NAME}_kernel
.p2align 8
.type {NAME}_kernel,@function
{NAME}_kernel:
""" + body + f""".section .rodata,"a"
.p2align 6
.amdhsa_kernel {NAME}_kernel
  .amdhsa_next_free_vgpr 256
  .amdhsa_next_free_sgpr 102
  .amdhsa_accum_offset 256
  .amdhsa_group_segment_fixed_size 0
  .amdhsa_kernarg_size 96
  .amdhsa_user_sgpr_count 2
  .amdhsa_user_sgpr_kernarg_segment_ptr 1
  .amdhsa_system_sgpr_workgroup_id_x 1
.end_amdhsa_kernel
"""
        return txt, errs


if __name__ == "__main__":
    out = sys.argv[1]
    stop = None
    ts = False
    for x in sys.argv[2:]:
        if x == "ts":
            ts = True
        elif x == "ts2":
            ts = 2
        else:
            stop = x
    txt, errs = G(stop, ts).build()
    open(out, "w").write(txt)
    print("written", out, len(txt), "bytes;", len(errs), "wait errors")
```

```python
import sys
from asmlib import Asm, fix_hazards, check_waits

NAME = "interleave_layers__ssm_conv_h3__softmax_full_mha__prompt"
S, D = 2048, 576
NB = S * D * 2

W_NONCE = 0
W_F1 = 0x1000
W_F3 = 0x5000
W_F2 = 0x6C000
W_F4 = 0x8000
W_F5 = 0x12000
W_F6 = 0x52000
W_F8 = 0x5A000
W_G7 = 0x70000
W_ST0 = 0xB0000
W_CSP = 0x1C0000
W_F11 = 0x120000
W_F10 = 0x110000
W_G9 = 0x100000
W_TS = 0x140000
W_U = 0x210000
W_WQ = 0x500000
W_WO = 0x700000
W_X1 = 0x800000
W_X0 = 0x2000000
W_Y = 0xB00000
W_X3 = 0xE00000
W_KV = 0x1100000
W_OM = 0x1B00000
W_OR = 0x1F00000
W_SIZE = 0x2400000
WQ_B, WO_B, KV_B = 64512, 82944, 19456
KV_V, KV_R = 8192, 18432

L_HC, HC_B = 0, 4160
L_U, U_B = 66560, 4608
L_WO = 0
L_OWN = 0
L_RING = 37632
L_CS = 96000
L_ST = 96256
L_REM = 96256
L_QR = 98304
L_WQ = 99328
L_PK = L_WQ
L_PV = L_WQ + 10240
L_CNT = 98304
L_PX = L_PV + 9216
LDS_BYTES = 163840

sWS = "s[4:7]"
sA, sB, sC, sD_ = "s[8:11]", "s[12:15]", "s[16:19]", "s[20:23]"
sX, sJ, sW, sLayer = "s24", "s25", "s26", "s27"
sT, sT4 = "s30", "s31"
sTag = "s[28:29]"
sP = 32
PTR = dict(q=32, k=34, v=36, sk=38, h=40, dd=42, bx=44, wqkv=46, wo=48, out=50, dbg=52, ws=54)
SPIN_MAX = 400000
HP = [int(x) for x in __import__('os').environ.get('HP', '13')]
LOOK_AT = int(__import__('os').environ.get('LOOK', 2))
POLLS = {1: '1,0,0', 4: '0,2,0', 6: '1,2,4', 8: '1,2,4'}
PUB_AT = int(__import__('os').environ.get('PUB', 1))
TRY_AT = [int(x) for x in __import__('os').environ.get('TRY', '3').split(',')]
WQ1 = int(__import__('os').environ.get('WQ1', 63))

C_SCALE = 18 ** -0.5 * 1.4426950408889634


def f32hex(x):
    import struct
    return "0x%08x" % struct.unpack("<I", struct.pack("<f", x))[0]


def XQ(ft):
    return (63, 2048 * (ft >> 1) + 256 * (ft & 1)) if ft < 4 else (64, 0)


def vr(a, n):
    return f"v[{a}:{a+n-1}]" if n > 1 else f"v{a}"


import os
EXP = os.environ.get('EXP', '').split(',') + ['hearly', 'f2first', 'fixorder', 'warmx'] + ([] if os.environ.get('NOTMAP') else ['tmap'])


DOC = """;
;   layer  : qkv = LN(x) @ wqkv for (head J, tokens 256X..) with LN applied after the product
;   softmax: p = exp2(s) is first tried without a shift.  The row sum and the outputs are then range-checked
;            (sum in [2^-100, 2^120], outputs finite); any wave that fails the check recomputes its rows with
;
"""


class G:
    def __init__(self, stop=None, ts=False):
        self.a = Asm()
        self.stop = stop
        self.ts = ts
        self.nlab = 0
        self.tail_blocks = []

    def lab(self, p="L"):
        self.nlab += 1
        return f"{p}_{self.nlab}"

    def srd(self, s, ptr, nbytes):
        b = int(s[2:s.index(":")])
        p = PTR[ptr]
        self.a(f"s_mov_b32 s{b}, s{p}\ns_mov_b32 s{b+1}, s{p+1}\ns_mov_b32 s{b+2}, {nbytes}\ns_mov_b32 s{b+3}, 0x20000")

    def stamp(self, i):
        if not self.ts or (self.ts == 2 and i not in (0, 5, 15)):
            return
        self.a(f"s_memrealtime s[98:99]\ns_memtime s[92:93]\ns_lshl_b32 s97, {sLayer}, 4\ns_add_u32 m0, s97, {i}\ns_waitcnt lgkmcnt(0)\nv_writelane_b32 v255, s98, m0\ns_add_u32 m0, m0, 32\ns_nop 0\nv_writelane_b32 v255, s92, m0")

    def flag_store(self, soff, vtmp):
        self.a(f"""
        v_mov_b32 v{vtmp}, s28
        v_mov_b32 v{vtmp+1}, s29
        v_mov_b32 v{vtmp+2}, 0
        s_mov_b64 exec, 1
        buffer_store_dwordx2 {vr(vtmp,2)}, v{vtmp+2}, {sWS}, {soff} offen sc1
        s_mov_b64 exec, -1
        """)

    def poll(self, loads, vt, code, first=0, nap=1):
        a = self.a
        L, Ld = self.lab("Lpoll"), self.lab("Lpolld")
        a(f"s_mov_b32 s96, {SPIN_MAX}")
        if first:
            L1, L1d = self.lab("Lp1"), self.lab("Lp1d")
            va, so, im = loads[0]
            a(f"""
            s_mov_b64 exec, 1
            {L1}:
            buffer_load_dwordx2 {vr(vt,2)}, v{va}, {sWS}, {so} offen offset:{im} sc1
            s_waitcnt vmcnt(0)
            v_cmp_eq_u64 vcc, {sTag}, {vr(vt,2)}
            s_cmp_lg_u64 vcc, 0
            s_cbranch_scc1 {L1d}
            s_sleep {first}
            s_sub_u32 s96, s96, 1
            s_cmp_gt_u32 s96, 1
            s_cbranch_scc1 {L1}
            {L1d}:
            s_mov_b64 exec, -1
            """)
        a(f"{L}:")
        for i, (va, so, im) in enumerate(loads):
            if str(code) in os.environ.get("ATOM", "").split(","):
                a(f"v_mov_b32 v{vt+2*i}, 0\nv_mov_b32 v{vt+2*i+1}, 0")
                a(f"buffer_atomic_or_x2 {vr(vt+2*i,2)}, v{va}, {sWS}, {so} offen offset:{im} sc0 sc1")
            else:
                a(f"buffer_load_dwordx2 {vr(vt+2*i,2)}, v{va}, {sWS}, {so} offen offset:{im} sc1")
        a("s_waitcnt vmcnt(0)")
        for i in range(len(loads)):
            if i == 0:
                a(f"v_cmp_ne_u64 vcc, {sTag}, {vr(vt,2)}")
            else:
                a(f"v_cmp_ne_u64 s[94:95], {sTag}, {vr(vt+2*i,2)}\ns_or_b64 vcc, vcc, s[94:95]")
        a(f"""
        s_cmp_eq_u64 vcc, 0
        s_cbranch_scc1 {Ld}
        s_mov_b64 exec, vcc
        """)
        if nap:
            a(f"s_sleep {nap}")
        a(f"""
        s_sub_u32 s96, s96, 1
        s_cmp_lg_u32 s96, 0
        s_cbranch_scc1 {L}
        """)
        self.timeout_mark(code, vt)
        a(f"{Ld}:\ns_mov_b64 exec, -1")

    def poll2(self, loads, vt, code, width=2, first=0):
        a = self.a
        n = len(loads)
        if width == 2:
            ack, first, nap = map(int, os.environ.get(f"P{code}", POLLS[code]).split(","))
            if ack:
                a("s_waitcnt vmcnt(0)")
            return self.poll(loads, vt, code, first=first, nap=nap)
        L, Ld0, Ld1, Ld = self.lab("Lq"), self.lab("Lq0"), self.lab("Lq1"), self.lab("Lqd")
        op = "buffer_load_dwordx2" if width == 2 else "buffer_load_dwordx4"

        def issue(k):
            for i, (va, so, im) in enumerate(loads):
                a(f"{op} {vr(vt+width*(n*k+i),width)}, v{va}, {sWS}, {so} offen offset:{im} sc1")

        def check(k, tgt):
            a(f"s_waitcnt vmcnt({n})")
            for i in range(n):
                r = vr(vt + width * (n * k + i) + width - 2, 2)
                if i == 0:
                    a(f"v_cmp_ne_u64 vcc, {sTag}, {r}")
                else:
                    a(f"v_cmp_ne_u64 s[94:95], {sTag}, {r}\ns_or_b64 vcc, vcc, s[94:95]")
            a(f"s_cmp_eq_u64 vcc, 0\ns_cbranch_scc1 {tgt}")
            if width == 2:
                a("s_mov_b64 exec, vcc")
        a(f"s_mov_b32 s96, {SPIN_MAX}")
        if first:
            L1, L1d = self.lab("Lp1"), self.lab("Lp1d")
            va, so, im = loads[0]
            a(f"""
            s_mov_b64 exec, 1
            {L1}:
            buffer_load_dwordx2 {vr(vt,2)}, v{va}, {sWS}, {so} offen offset:{im} sc1
            s_waitcnt vmcnt(0)
            v_cmp_eq_u64 vcc, {sTag}, {vr(vt,2)}
            s_cmp_lg_u64 vcc, 0
            s_cbranch_scc1 {L1d}
            s_sleep {first}
            s_sub_u32 s96, s96, 1
            s_cmp_gt_u32 s96, 1
            s_cbranch_scc1 {L1}
            {L1d}:
            s_mov_b64 exec, -1
            """)
        if 'pipe' not in EXP and 'gpipe' not in EXP:
            a(f"{L}:")
            issue(0)
            n0, n = n, 0
            a("s_waitcnt vmcnt(0)")
            for i in range(n0):
                r = vr(vt + width * i + width - 2, 2)
                a(f"v_cmp_ne_u64 vcc, {sTag}, {r}" if i == 0 else f"v_cmp_ne_u64 s[94:95], {sTag}, {r}\ns_or_b64 vcc, vcc, s[94:95]")
            a(f"s_cmp_eq_u64 vcc, 0\ns_cbranch_scc1 {Ld0}\n{'s_sleep ' + os.environ['GNAP'] if os.environ.get('GNAP') else ''}\ns_sub_u32 s96, s96, 1\ns_cmp_lg_u32 s96, 0\ns_cbranch_scc1 {L}")
            self.timeout_mark(code, vt)
            return Ld0, Ld1
        issue(0)
        a(f"{L}:")
        issue(1)
        check(0, Ld0 if width > 2 else Ld)
        issue(0)
        check(1, Ld1 if width > 2 else Ld)
        a(f"""
        s_sub_u32 s96, s96, 1
        s_cmp_lg_u32 s96, 0
        s_cbranch_scc1 {L}
        s_waitcnt vmcnt(0)
        """)
        self.timeout_mark(code, vt)
        if width > 2:
            return Ld0, Ld1
        a(f"{Ld}:\ns_mov_b64 exec, -1")

    def timeout_mark(self, code, vt):
        self.a(f"""
        v_mov_b32 v{vt}, {code}
        v_mov_b32 v{vt+1}, 0
        global_store_dword v{vt+1}, v{vt}, s[{PTR['dbg']}:{PTR['dbg']+1}]
        s_waitcnt vmcnt(0)
        """)

    def finish_if(self, name):
        if self.stop == name:
            self.a("s_branch L_end")

    def prologue(self):
        a = self.a
        a(f"""
        s_cmp_ge_u32 s2, 256
        s_cbranch_scc1 L_exit
        s_load_dwordx16 s[32:47], s[0:1], 0
        s_load_dwordx8 s[48:55], s[0:1], 64
        s_getpc_b64 s[16:17]
        L_pc_here:
        s_and_b32 s17, s17, 0xffff
        s_mov_b32 s18, CODE_AFTER
        s_mov_b32 s19, 0x20000
        s_lshr_b32 s3, s2, 3
        s_mul_i32 s3, s3, 1280
        v_lshlrev_b32 v1, 6, v0
        v_cmp_gt_u32 vcc, 20, v0
        v_bfrev_b32 v2, -2
        v_cndmask_b32 v1, v2, v1, vcc
        buffer_load_dword v254, v1, {sC}, s3 offen
        v_lshrrev_b32 v1, 6, v0
        v_and_b32 v2, 63, v0
        s_and_b32 {sX}, s2, 7
        v_readfirstlane_b32 {sW}, v1
        s_lshr_b32 {sJ}, s2, 3
        s_mov_b32 {sLayer}, 0
        s_add_u32 {sT}, {sW}, {sJ}
        s_and_b32 {sT4}, {sT}, 3
        s_and_b32 {sT}, {sT}, 7
        s_waitcnt lgkmcnt(0)
        """)
        self.srd(sWS, "ws", W_SIZE)
        a("v_mov_b32 v248, 0")
        if self.ts:
            a("v_mov_b32 v255, 0")

    def div9(self, vidx, vrow, vj):
        self.a(f"""
        v_mul_hi_u32 v{vrow}, v{vidx}, s64
        v_mul_u32_u24 v{vj}, 9, v{vrow}
        v_sub_u32 v{vj}, v{vidx}, v{vj}
        """)

    def prep(self):
        a = self.a
        HR = 128
        self.stamp(0)
        a(f"s_load_dwordx2 {sTag}, s[54:55], {W_NONCE}")
        self.srd(sA, "k", NB)
        self.srd(sB, "v", NB)
        a(f"""
        s_mov_b32 s64, 0x1c71c71d
        """)
        if 'tmap' in EXP:
            a(f"s_and_b32 s84, {sJ}, 7\ns_lshr_b32 s85, {sJ}, 3\ns_lshl_b32 s60, {sX}, 2\ns_add_u32 s85, s85, s60")
        else:
            a(f"s_mov_b32 s84, {sX}\ns_mov_b32 s85, {sJ}")
        if 'uhint' in EXP:
            a(f"""
            s_cmp_ge_u32 {sW}, 5
            s_cbranch_scc1 L_prep_np
            v_and_b32 v3, 15, v2
            v_lshrrev_b32 v4, 4, v2
            v_lshlrev_b32 v100, 12, v3
            v_lshl_add_u32 v100, v4, 4, v100
            s_lshl_b32 s62, {sW}, 4
            v_add_u32 v8, s62, v3
            v_cmp_gt_u32 vcc, 72, v8
            v_bfrev_b32 v7, -2
            s_mul_i32 s66, s84, 72
            s_add_u32 s66, s66, s62
            s_lshl_b32 s66, s66, 12
            s_lshl_b32 s63, s85, 7
            s_add_u32 s66, s66, s63
            s_add_u32 s66, s66, {W_U}
            v_cndmask_b32 v100, v7, v100, vcc
            v_mov_b32 v76, -1
            v_mov_b32 v77, -1
            v_mov_b32 v78, -1
            v_mov_b32 v79, -1
            buffer_store_dwordx4 v[76:79], v100, {sWS}, s66 offen sc1
            buffer_store_dwordx4 v[76:79], v100, {sWS}, s66 offen offset:64 sc1
            L_prep_np:
            """)
        a(f"""
        s_mul_i32 s60, s85, {64*1152}
        s_mul_i32 s61, s84, 144
        s_add_u32 s60, s60, s61
        s_sub_u32 s61, s60, {4*1152}
        """)
        self.div9(0, 3, 4)
        a(f"""
        v_mul_u32_u24 v3, 1152, v3
        v_lshl_add_u32 v5, v4, 4, v3
        v_add_u32 v6, s61, v5
        s_lshl_b32 s62, {sW}, 10
        s_add_u32 m0, s62, {L_PK}
        v_add_u32 v7, 512, v0
        buffer_load_dwordx4 v6, {sA}, 0 offen lds
        s_add_u32 m0, s62, {L_PV}
        s_cmp_ge_u32 {sW}, 3
        buffer_load_dwordx4 v5, {sB}, s60 offen lds
        s_cbranch_scc1 L_prep_d3
        s_cmp_eq_u32 {sW}, 2
        s_cbranch_scc1 L_prep_d2
        """)
        self.div9(7, 3, 4)
        a(f"""
        v_mul_u32_u24 v3, 1152, v3
        v_lshl_add_u32 v5, v4, 4, v3
        v_add_u32 v6, s61, v5
        s_add_u32 m0, s62, {L_PK+8192}
        s_nop 0
        buffer_load_dwordx4 v6, {sA}, 0 offen lds
        s_branch L_prep_d3
        L_prep_d2:
        v_add_u32 v7, 512, v2
        """)
        self.div9(7, 3, 4)
        a(f"""
        v_mul_u32_u24 v3, 1152, v3
        v_lshl_add_u32 v5, v4, 4, v3
        s_mov_b32 m0, {L_PV+8192}
        s_nop 0
        buffer_load_dwordx4 v5, {sB}, s60 offen lds
        L_prep_d3:
        s_cmp_ge_u32 {sW}, 5
        s_cbranch_scc1 L_prep_other
        """)
        self.sk_load()
        if 'hearly' in EXP:
            a(f"s_cmp_lg_u32 {sW}, 4\ns_cbranch_scc1 L_prep_k0\ns_cmp_ge_u32 {sJ}, 18\ns_cbranch_scc1 L_prep_k0")
            self.h_issue(HR)
            a("s_waitcnt vmcnt(8)\ns_branch L_prep_k1\nL_prep_k0:\ns_waitcnt vmcnt(0)\nL_prep_k1:")
        else:
            a("s_waitcnt vmcnt(0)")
        a(f"""
        v_bfe_u32 v5, v2, 2, 2
        v_lshl_add_u32 v5, v4, 3, v5      ; 8G + j
        v_mul_u32_u24 v5, 144, v5
        v_and_b32 v6, 3, v2
        v_lshl_add_u32 v5, v6, 3, v5
        s_lshl_b32 s62, {sW}, 5
        s_add_u32 s62, s62, {L_PK}
        v_add_u32 v5, s62, v5
        s_waitcnt lgkmcnt(0)
        """)
        self.stamp(19)
        a("s_barrier")
        self.stamp(16)
        KR, VR_, KF, AC, WT = 12, 24, 32, 56, 72
        for o in range(2):
            for i in range(3):
                a(f"ds_read_b64_tr_b16 {vr(KR+6*o+2*i,2)}, v5 offset:{4608*o+576*i}")
            for i in range(2):
                a(f"ds_read_b64_tr_b16 {vr(VR_+4*o+2*i,2)}, v5 offset:{L_PV-L_PK+4608*o+576*i}")
        a(f"""
        s_mov_b32 s65, 0xffff0000
        v_lshlrev_b32 v{WT}, 16, v10
        v_and_b32 v{WT+1}, s65, v10
        v_lshlrev_b32 v{WT+2}, 16, v11
        v_and_b32 v{WT+3}, s65, v11
        v_lshlrev_b32 v6, 12, v3
        v_lshl_add_u32 v6, v4, 4, v6
        v_mov_b32 v7, 0x7fffffff
        s_mul_i32 s62, {sW}, 16
        v_add_u32 v8, s62, v3
        v_cmp_gt_u32 vcc, 72, v8
        s_lshl_b32 s62, s61, 12
        s_lshl_b32 s63, s85, 7
        s_add_u32 s62, s62, s63
        s_add_u32 s62, s62, {W_U}
        v_cndmask_b32 v6, v7, v6, vcc
        """)
        for o in range(2):
            a(f"s_waitcnt lgkmcnt({7 if o == 0 else 2})")
            kf = KF + 12 * o
            for d in range(6):
                if d:
                    a(f"v_lshlrev_b32 v{kf+2*d}, 16, v{KR+6*o+d}")
                a(f"v_and_b32 v{kf+2*d+1}, s65, v{KR+6*o+d}")
            ac = AC + 8 * o
            for t in range(8):
                a(f"v_mul_f32 v{ac+t}, v{WT}, v{kf+4+t}")
            for i in range(1, 4):
                for t in range(8):
                    a(f"v_fmac_f32 v{ac+t}, v{WT+i}, v{kf+4+t-i}")
            a(f"s_waitcnt lgkmcnt({5 if o == 0 else 0})")
            for d in range(4):
                a(f"v_lshlrev_b32 v{kf+2*d}, 16, v{VR_+4*o+d}")
                a(f"v_and_b32 v{kf+2*d+1}, s65, v{VR_+4*o+d}")
            for t in range(8):
                a(f"v_mul_f32 v{ac+t}, v{ac+t}, v{kf+t}")
            for d in range(4):
                a(f"v_cvt_pk_bf16_f32 v{76+4*o+d}, v{ac+7-2*d}, v{ac+6-2*d}")
            a(f"buffer_store_dwordx4 {vr(76+4*o,4)}, v6, {sWS}, s62 offen offset:{64*o} sc1")
        self.stamp(17)
        a(f"""
        s_add_u32 s28, s28, 1
        s_addc_u32 s29, s29, 0
        s_lshl_b32 s60, s84, 5
        s_add_u32 s60, s60, s85
        s_lshl_b32 s60, s60, 6
        s_add_u32 s60, s60, {W_F1}
        v_mov_b32 v10, s28
        v_mov_b32 v11, s29
        v_mov_b32 v12, 0
        s_mov_b32 s81, 256
        s_cmp_lg_u32 {sW}, 0
        {'' if 'uhint' in EXP else 's_waitcnt vmcnt(0)'}
        s_barrier
        s_cbranch_scc1 L_prep_nf
        s_mov_b64 exec, 1
        buffer_store_dwordx2 v[10:11], v12, {sWS}, s60 offen sc1
        s_mov_b64 exec, -1
        L_prep_nf:
        s_cmp_lt_u32 {sW}, 4
        s_cbranch_scc1 L_prep_done
        s_branch L_prep_second
        """)

        a("L_prep_other:")
        a(".reset_waits")
        a(f"""
        s_mul_i32 s70, {sX}, 14
        s_add_u32 s70, s70, {sJ}
        s_sub_u32 s70, s70, 18            ; unit
        s_cmp_ge_u32 {sJ}, 18
        s_cbranch_scc1 L_prep_r
        """)
        a(f"""
        s_lshl_b32 s81, {sX}, 4
        s_add_u32 s81, s81, {sJ}
        s_cmp_lt_u32 {sJ}, 16
        s_cselect_b32 s81, s81, 256
        s_cmp_eq_u32 {sW}, 5
        s_cselect_b32 s81, s81, 256
        """)
        if 'hearly' in EXP:
            self.h_issue(HR)
            if 'x0late' in EXP:
                a("s_waitcnt vmcnt(8) lgkmcnt(0)\ns_branch L_prep_w1")
            else:
                a("s_cmp_lt_u32 s81, 128\ns_cbranch_scc1 L_prep_hx\ns_waitcnt vmcnt(8) lgkmcnt(0)\ns_branch L_prep_w1\nL_prep_hx:")
                self.x0_issue()
                a("s_waitcnt vmcnt(26) lgkmcnt(0)\ns_branch L_prep_w1")
        else:
            a("s_branch L_prep_w0")
        a(f"""
        L_prep_r:
        s_cmp_ge_u32 s70, 72
        s_cbranch_scc1 L_prep_w0
        s_cmp_lt_u32 {sW}, 6
        s_cbranch_scc1 L_prep_w0
        """)
        if 'rawlate' not in EXP:
            self.dma_wraw("q")
            a(f"s_waitcnt vmcnt(13) lgkmcnt(0)\ns_branch L_prep_w1")
        a(f"""
        L_prep_w0:
        s_waitcnt vmcnt(0) lgkmcnt(0)
        L_prep_w1:
        s_barrier                        ; B0
        s_add_u32 s28, s28, 1
        s_addc_u32 s29, s29, 0
        s_barrier                        ; B1
        L_prep_second:
        s_sub_u32 s67, {sW}, 4
        s_cmp_ge_u32 {sJ}, 18
        s_cbranch_scc1 L_prep_done
        """)
        if 'hearly' not in EXP:
            self.h_issue(HR)
        if 'x0late' in EXP:
            a("s_waitcnt vmcnt(0)\ns_cmp_ge_u32 s81, 128\ns_cbranch_scc1 L_prep_b1")
            self.x0_issue()
            a("L_prep_b1:\ns_mov_b32 s61, s67")
            self.build_h(HR)
            a("s_cmp_ge_u32 s81, 128\ns_cbranch_scc1 L_prep_b2")
            self.x0_stats()
            self.x0_store(wait=False)
            a("L_prep_b2:\ns_waitcnt lgkmcnt(0)\ns_barrier")
        else:
            a("s_waitcnt vmcnt(0)\ns_cmp_ge_u32 s81, 128\ns_cbranch_scc1 L_prep_b2")
            self.x0_stats()
            self.x0_store(wait=False)
            a("L_prep_b2:\ns_mov_b32 s61, s67")
            self.build_h(HR)
        a("s_cmp_ge_u32 s81, 128\ns_cbranch_scc1 L_prep_b3\ns_waitcnt vmcnt(0)")
        self.flag_store("s82", 10)
        a("L_prep_b3:" if 'x0late' in EXP else "L_prep_b3:\ns_waitcnt lgkmcnt(0)\ns_barrier")
        a("L_prep_done:")
        a(".reset_waits")
        self.stamp(1)

    def h_issue(self, HR):
        a = self.a
        self.srd(sD_, "h", NB)
        a(f"""
        s_mul_i32 s63, {sX}, 18
        s_add_u32 s63, s63, {sJ}
        v_lshlrev_b32 v9, 4, v2
        s_lshl_b32 s63, s63, 2
        s_add_u32 s63, s63, {sW}
        s_sub_u32 s63, s63, 4
        s_lshl_b32 s63, s63, 12
        """)
        for i in range(4):
            b = HR + 8 * i
            a(f"buffer_load_dwordx4 {vr(b,4)}, v9, {sD_}, s63 offen offset:{1024*i}")
            a(f"buffer_load_dwordx4 {vr(b+4,4)}, v9, {sD_}, s63 offen offset:{1024*i+8}")

    def x0_issue(self):
        a = self.a
        self.srd(sC, "q", NB)
        a(f"""
        s_mul_i32 s61, s81, {16*1152}
        v_lshrrev_b32 v24, 3, v2
        v_and_b32 v25, 7, v2
        v_mul_u32_u24 v26, 2304, v24
        v_lshl_add_u32 v26, v25, 4, v26
        """)
        for i in range(9):
            a(f"buffer_load_dwordx4 {vr(168+8*i,4)}, v26, {sC}, s61 offen offset:{128*i}")
            a(f"buffer_load_dwordx4 {vr(172+8*i,4)}, v26, {sC}, s61 offen offset:{128*i+1152}")

    def x0_stats(self):
        a = self.a
        a("""
        v_mov_b32 v28, 0
        v_mov_b32 v29, 0
        v_mov_b32 v30, 0
        v_mov_b32 v31, 0
        v_mov_b32 v27, 0x3f803f80
        s_waitcnt vmcnt(0)
        """)
        for i in range(9):
            b = 168 + 8 * i
            for j in range(4):
                for h in range(2):
                    a(f"v_dot2c_f32_bf16 v{28+2*h}, v{b+4*h+j}, v27")
                    a(f"v_dot2c_f32_bf16 v{29+2*h}, v{b+4*h+j}, v{b+4*h+j}")
            a(f"v_swap_b32 v{b+2}, v{b+4}\nv_swap_b32 v{b+3}, v{b+5}")
        for m in ("quad_perm:[1,0,3,2]", "quad_perm:[2,3,0,1]", "row_half_mirror"):
            for j in range(4):
                a(f"v_add_f32_dpp v{28+j}, v{28+j}, v{28+j} {m} row_mask:0xf bank_mask:0xf bound_ctrl:0")
        self.stats(28, 29, 32, 33, 27)
        self.stats(30, 31, 34, 35, 27)

    def x0_store(self, wait=True):
        a = self.a
        a(f"""
        s_lshl_b32 s82, s81, 6
        s_add_u32 s82, s82, {W_F2}
        s_lshl_b32 s63, s81, 7
        s_add_u32 s63, s63, {W_ST0}
        v_lshlrev_b32 v24, 4, v24
        v_lshl_add_u32 v26, v25, 9, v24
        v_cmp_eq_u32 vcc, 0, v25
        s_lshr_b32 s60, s81, 1
        s_mul_i32 s60, s60, 36864
        s_and_b32 s61, s81, 1
        s_lshl_b32 s61, s61, 7
        s_add_u32 s60, s60, s61
        s_add_u32 s60, s60, {W_X0}
        s_mov_b64 exec, vcc
        buffer_store_dwordx4 v[32:35], v24, {sWS}, s63 offen sc1
        s_mov_b64 exec, -1
        """)
        for i in range(9):
            b = 168 + 8 * i
            a(f"buffer_store_dwordx4 {vr(b,4)}, v26, {sWS}, s60 offen sc1")
            a(f"buffer_store_dwordx4 {vr(b+4,4)}, v26, {sWS}, s60 offen offset:256 sc1")
            if i < 8:
                a("s_add_u32 s60, s60, 4096")
        if wait:
            a("s_waitcnt vmcnt(0)")
            self.flag_store("s82", 10)

    def sk_load(self):
        self.srd(sC, "sk", D * 8)
        self.a(f"""
        v_and_b32 v3, 15, v2
        v_lshrrev_b32 v4, 4, v2           ; G
        s_mul_i32 s61, s84, 72
        s_lshl_b32 s62, {sW}, 4
        s_add_u32 s61, s61, s62
        v_add_u32 v5, s61, v3
        v_lshlrev_b32 v5, 3, v5
        buffer_load_dwordx2 v[10:11], v5, {sC}, 0 offen
        """)

    def arrive(self, cnt, last, base, index, vm=0):
        L = self.lab()
        self.a(f"""
        v_mov_b32 v8, {cnt}
        v_mov_b32 v9, 1
        s_waitcnt vmcnt({vm})
        s_mov_b64 exec, 1
        ds_add_rtn_u32 v9, v8, v9
        s_mov_b64 exec, -1
        {index}
        s_lshl_b32 s60, s60, 6
        s_add_u32 s60, s60, {base}
        s_waitcnt lgkmcnt(0)
        v_readfirstlane_b32 s61, v9
        s_cmp_lg_u32 s61, {last}
        s_cbranch_scc1 {L}
        """)
        self.flag_store("s60", 10)
        self.a(f"{L}:")

    def build_h(self, HR):
        a = self.a
        T = 84
        a(f"""
        s_mul_i32 s63, s61, {4*HC_B}
        s_add_u32 s63, s63, {L_HC+32}
        v_lshl_add_u32 v7, v2, 4, s63
        """)
        for i in range(4):
            A, C = HR + 8 * i, HR + 8 * i + 4
            t = T + 12 * (i & 1)
            d = [A, A + 1, A + 2, A + 3, C + 2, C + 3]
            if i == 0:
                a(f"v_readlane_b32 s60, v{HR}, 0\nv_readlane_b32 s62, v{HR+1}, 0")
            a(f"ds_write_b128 v7, {vr(A,4)} offset:{1024*i}")
            for j in range(4):
                a(f"v_alignbyte_b32 v{t+j}, v{d[j+1]}, v{d[j]}, 2")
            a(f"ds_write_b128 v7, {vr(t,4)} offset:{HC_B+1024*i}")
            for j in range(4):
                a(f"v_mov_b32 v{t+4+j}, v{d[j+1]}")
            a(f"ds_write_b128 v7, {vr(t+4,4)} offset:{2*HC_B+1024*i}")
            for j in range(4):
                a(f"v_alignbyte_b32 v{t+8+j}, v{d[j+2]}, v{d[j+1]}, 2")
            a(f"ds_write_b128 v7, {vr(t+8,4)} offset:{3*HC_B+1024*i}")
        a(f"""
        v_mov_b32 v16, s60
        v_mov_b32 v17, s62
        v_mov_b32 v18, 0
        v_mov_b32 v19, 0
        v_mov_b32 v20, 0
        v_mov_b32 v21, 0
        v_lshlrev_b32 v8, 4, v2
        v_sub_u32 v8, 64, v8
        v_cmp_eq_u32 vcc, 0, v2
        v_lshlrev_b64 v[22:23], v8, v[16:17]
        s_sub_u32 s63, s63, 32
        v_mul_u32_u24 v7, {HC_B}, v2
        v_add_u32 v7, s63, v7
        v_cndmask_b32 v22, v22, v18, vcc
        v_cndmask_b32 v23, v23, v18, vcc
        s_mul_i32 s63, s61, {U_B}
        s_add_u32 s63, s63, {L_U}
        v_lshl_add_u32 v8, v2, 3, s63
        ds_write_b64 v8, v[18:19]
        s_mov_b64 exec, 15
        ds_write_b128 v7, v[18:21]
        ds_write_b128 v7, v[20:23] offset:16
        s_mov_b64 exec, -1
        """)

    def stats(self, vs, vq, vrs, vmr, vt, n=576):
        self.a(f"""
        v_mul_f32 v{vs}, {f32hex(1.0/n)}, v{vs}
        v_mul_f32 v{vq}, {f32hex(1.0/n)}, v{vq}
        v_fma_f32 v{vt}, -v{vs}, v{vs}, v{vq}
        v_max_f32 v{vt}, 0, v{vt}
        v_add_f32 v{vt}, {f32hex(1e-5)}, v{vt}
        v_rsq_f32 v{vrs}, v{vt}
        s_nop 0
        v_mul_f32 v{vmr}, v{vs}, v{vrs}
        v_sub_f32 v{vmr}, 0, v{vmr}
        """)

    def dma_wraw(self, kind):
        a = self.a
        L1, L2 = self.lab(), self.lab()
        a(f"""
        s_mul_i32 s70, {sX}, 14
        s_add_u32 s70, s70, {sJ}
        s_sub_u32 s70, s70, 18
        s_sub_u32 s62, {sW}, 6
        """)
        if kind == "q":
            self.wraw_q(L1)
        elif kind == "q4":
            self.wraw_q(L1, 4)
        else:
            self.wraw_o(L2)

    def wraw_q(self, L1, shift=0):
        a = self.a
        a(f"""
        s_lshr_b32 s71, s70, 1
        s_and_b32 s72, s70, 1
        s_mul_i32 s60, s71, {16*3456}
        s_mul_i32 s61, s72, 576
        s_add_u32 s60, s60, s61
        s_add_u32 s60, s60, {shift}
        """)
        self.srd(sB, "wqkv", D * 3 * D * 2)
        a(f"{L1}:\nv_lshl_add_u32 v4, s62, 6, v2\nv_lshrrev_b32 v7, 2, v4")
        self.div9(7, 5, 6)
        a(f"""
        v_mul_u32_u24 v5, {1152-576}, v5
        v_lshl_add_u32 v8, v4, 4, v5
        s_lshl_b32 s63, s62, 10
        s_add_u32 m0, s63, {27648 if shift else 0}
        s_add_u32 s62, s62, 2
        buffer_load_dwordx4 v8, {sB}, s60 offen lds
        s_cmp_lt_u32 s62, 27
        s_cbranch_scc1 {L1}
        """)

    def wraw_o(self, L2):
        a = self.a
        a(f"""
        s_sub_u32 s71, s70, 72           ; S
        s_mul_i32 s60, s71, {36*1152}
        s_sub_u32 s61, s71, 16
        s_mul_i32 s61, s61, {288*1152}
        s_add_u32 s61, s61, {16*1152}
        s_cmp_lt_u32 s71, 16
        s_cselect_b32 s60, s60, s61
        s_cselect_b64 s[74:75], -1, 0
        """)
        self.srd(sB, "wo", D * D * 2)
        a(f"{L2}:\nv_lshl_add_u32 v4, s62, 6, v2\nv_lshrrev_b32 v9, 3, v4")
        self.div9(9, 5, 6)
        a(f"""
        v_mul_u32_u24 v6, 72, v5
        v_sub_u32 v6, v4, v6
        v_lshrrev_b32 v7, 4, v5
        v_mul_u32_u24 v7, 18, v7
        v_bfe_u32 v8, v5, 3, 1
        v_lshl_add_u32 v7, v8, 2, v7
        v_bfe_u32 v8, v5, 2, 1
        v_lshl_add_u32 v7, v8, 3, v7
        v_and_b32 v8, 3, v5
        v_add_u32 v7, v7, v8
        v_lshrrev_b32 v8, 1, v5
        v_mul_u32_u24 v8, 18, v8
        v_and_b32 v9, 1, v5
        v_add_u32 v8, v8, v9
        v_cndmask_b32 v7, v8, v7, s[74:75]
        v_mul_u32_u24 v7, 1152, v7
        v_lshl_add_u32 v8, v6, 4, v7
        s_lshl_b32 m0, s62, 10
        s_add_u32 s62, s62, 2
        buffer_load_dwordx4 v8, {sB}, s60 offen lds
        s_cmp_lt_u32 s62, 36
        s_cbranch_scc1 {L2}
        """)

    def relayout(self):
        a = self.a
        a("L_relayout:")
        a(".reset_waits")
        a(f"""
        L_rel_nx:
        s_mul_i32 s70, {sX}, 14
        s_add_u32 s70, s70, {sJ}
        s_sub_u32 s70, s70, 18
        s_cmp_lt_u32 {sW}, 6
        s_cbranch_scc1 L_rel_nx1
        s_cmp_lt_u32 s70, 72
        s_cbranch_scc1 L_rel_nq
        s_cmp_ge_u32 s70, 90
        s_cbranch_scc1 L_rel_nx1
        """)
        self.dma_wraw("o")
        a("s_branch L_rel_nx1\nL_rel_nq:")
        if 'rawlate' in EXP:
            self.dma_wraw("q")
        self.dma_wraw("q4")
        a(f"""
        L_rel_nx1:
        s_waitcnt vmcnt(0)
        s_barrier
        """)
        self.stamp(20)
        a(f"""
        v_lshrrev_b32 v3, 4, v2          ; G
        v_bfe_u32 v4, v2, 2, 2           ; j
        v_and_b32 v5, 3, v2              ; m
        v_lshrrev_b32 v6, 5, v2          ; half
        v_and_b32 v7, 31, v2             ; col
        s_cmp_ge_u32 s70, 90
        s_cbranch_scc1 L_rel_nf
        s_cmp_ge_u32 s70, 72
        s_cbranch_scc1 L_rel_o
        s_lshr_b32 s71, s70, 1           ; k-step
        s_and_b32 s72, s70, 1
        s_mul_i32 s73, s71, 1792
        s_mul_i32 s74, s72, {16*WQ_B}
        s_add_u32 s73, s73, s74
        s_add_u32 s73, s73, {W_WQ}
        v_lshl_add_u32 v8, v6, 3, v4
        v_mul_u32_u24 v8, 1728, v8
        v_and_b32 v9, 1, v3              ; G&1
        s_lshr_b32 s75, {sW}, 1
        s_and_b32 s76, {sW}, 1           ; tile
        s_mul_i32 s77, s75, 36
        s_and_b32 s79, s75, 1
        s_mul_i32 s79, s79, {27648-4}
        s_add_u32 s77, s77, s79
        s_mul_i32 s78, s75, {WQ_B}
        s_add_u32 s73, s73, s78
        s_cmp_lg_u32 s76, 0
        s_cbranch_scc1 L_rel_t1
        v_mul_u32_u24 v10, 576, v9
        v_lshl_add_u32 v10, v5, 3, v10
        v_add3_u32 v8, v8, v10, s77
        v_lshlrev_b32 v11, 4, v2
        v_lshlrev_b32 v14, 2, v7
        s_branch L_rel_go
        L_rel_t1:
        ; G&1==0: 96+8m ; else m: 0->128 1->32 2->80 3->128
        v_lshlrev_b32 v10, 3, v5
        v_add_u32 v10, 1152, v10
        v_mov_b32 v12, {1152+32}
        v_cmp_eq_u32 vcc, 1, v5
        s_nop 1
        v_cndmask_b32 v12, v12, 32, vcc
        v_mov_b32 v13, {576+32}
        v_cmp_eq_u32 vcc, 2, v5
        s_nop 1
        v_cndmask_b32 v12, v12, v13, vcc
        v_cmp_eq_u32 vcc, 1, v9
        s_nop 1
        v_cndmask_b32 v10, v10, v12, vcc
        v_add3_u32 v8, v8, v10, s77
        v_subrev_u32 v12, 2, v7
        v_cmp_gt_u32 vcc, 22, v7
        s_nop 1
        v_cndmask_b32 v12, v12, v7, vcc
        v_lshlrev_b32 v14, 2, v12
        v_lshlrev_b32 v12, 4, v12
        v_mul_u32_u24 v13, 384, v6
        v_add_u32 v11, v12, v13
        v_add_u32 v11, 1024, v11
        v_and_b32 v13, 30, v7
        v_cmp_eq_u32 s[62:63], 24, v13
        s_nop 1
        s_or_b64 vcc, vcc, s[62:63]
        v_mov_b32 v13, 0x7fffffff
        s_nop 0
        v_cndmask_b32 v11, v13, v11, vcc
        v_cndmask_b32 v14, v13, v14, vcc
        L_rel_go:
        """)
        for n in range(4):
            a(f"ds_read_b64_tr_b16 {vr(68+4*n,2)}, v8 offset:{144*n}")
            a(f"ds_read_b64_tr_b16 {vr(70+4*n,2)}, v8 offset:{144*n+4*1728}")
        a(f"""
        s_lshl_b32 s74, s72, 4
        s_add_u32 s74, s74, s75
        s_mul_i32 s74, s74, 36
        s_add_u32 s74, s74, s71
        s_lshl_b32 s74, s74, 8
        s_lshl_b32 s77, s76, 7
        s_add_u32 s74, s74, s77
        s_add_u32 s74, s74, {W_CSP}
        v_mov_b32 v15, 0x3f803f80
        """)
        for n in range(4):
            a(f"v_mov_b32 v{84+n}, 0")
        if 'zpad' in EXP:
            a("s_mul_i32 s62, s76, 0xc0000\ns_mov_b32 s63, s62")
        for n in range(4):
            a(f"s_waitcnt lgkmcnt({6-2*n})")
            if 'zpad' in EXP:
                for j in range(4):
                    a(f"v_cndmask_b32 v{68+4*n+j}, v{68+4*n+j}, 0, s[62:63]")
            a(f"buffer_store_dwordx4 {vr(68+4*n,4)}, v11, {sWS}, s73 offen sc1")
            a(f"s_add_u32 s73, s73, {4*WQ_B}")
            for j in range(4):
                a(f"v_dot2c_f32_bf16 v{84+n}, v{68+4*n+j}, v15")
        for n in range(4):
            a(f"v_mov_b32 v{88+n}, v{84+n}")
        for n in range(4):
            a(f"v_permlane32_swap_b32 v{84+n}, v{88+n}")
        for n in range(4):
            a(f"v_add_f32 v{84+n}, v{84+n}, v{88+n}")
        a(f"""
        s_mov_b32 s62, 0
        s_mov_b32 s63, -1
        v_mul_u32_u24 v13, {4*36*256}, v6
        v_add_u32 v14, v14, v13
        v_cndmask_b32 v84, v84, v85, s[62:63]
        v_cndmask_b32 v86, v86, v87, s[62:63]
        buffer_store_dword v84, v14, {sWS}, s74 offen sc1
        s_add_u32 s74, s74, {8*36*256}
        buffer_store_dword v86, v14, {sWS}, s74 offen sc1
        """)
        a("s_branch L_rel_fin")
        a(f"""
        L_rel_o:
        .reset_waits
        s_sub_u32 s71, s70, 72
        s_mul_i32 s73, {sW}, {WO_B}
        s_mul_i32 s74, s71, 4608
        s_add_u32 s73, s73, s74
        s_add_u32 s73, s73, {W_WO}
        v_lshl_add_u32 v10, v3, 3, v4
        v_mul_u32_u24 v10, 1152, v10
        s_mul_i32 s74, {sW}, 144
        v_add_u32 v10, s74, v10
        v_lshl_add_u32 v11, v5, 3, v10
        v_lshl_add_u32 v10, v5, 4, v10
        v_lshlrev_b32 v12, 4, v2
        v_and_b32 v13, 15, v2
        v_lshlrev_b32 v14, 4, v13
        v_lshl_add_u32 v14, v3, 7, v14
        v_mov_b32 v15, 0x7fffffff
        v_cmp_gt_u32 vcc, 8, v13
        s_add_u32 s74, s73, 4096
        s_nop 0
        v_cndmask_b32 v14, v15, v14, vcc
        """)
        for ft in range(5):
            va, off = (10, 64 * (ft >> 1) + 8 * (ft & 1)) if ft < 4 else (11, 128)
            a(f"ds_read_b64_tr_b16 {vr(68+4*ft,2)}, v{va} offset:{off}")
            a(f"ds_read_b64_tr_b16 {vr(70+4*ft,2)}, v{va} offset:{off+4608}")
        for ft in range(5):
            a(f"s_waitcnt lgkmcnt({8-2*ft})")
            if ft < 4:
                a(f"buffer_store_dwordx4 {vr(68+4*ft,4)}, v12, {sWS}, s73 offen offset:{1024*ft} sc1")
            else:
                a(f"buffer_store_dwordx4 {vr(68+4*ft,4)}, v14, {sWS}, s74 offen sc1")
        a(f"""
        L_rel_fin:
        s_waitcnt vmcnt(0)
        s_barrier
        s_cmp_lg_u32 {sW}, 0
        s_cbranch_scc1 L_rel_nf
        s_lshl_b32 s60, s70, 6
        s_add_u32 s60, s60, {W_F3}
        """)
        self.flag_store("s60", 10)
        a("L_rel_nf:")
        a(f"s_cmp_lt_u32 {sW}, 4\ns_cbranch_scc1 L_rel_nw")
        if 'wqpf' in EXP:
            L = self.lab()
            a(f"""
            v_lshlrev_b32 v5, 6, v2
            v_min_u32 v4, 7, v2
            v_lshlrev_b32 v4, 6, v4
            s_mov_b32 s62, {W_F3}
            s_mov_b32 s63, {W_F3 + 4096}
            """)
            self.poll([(5, "s62", 0), (4, "s63", 0)], 6, 3, first=4)
            a(f"""
            s_sub_u32 s60, {sJ}, 18
            s_mul_i32 s60, s60, 82944
            s_add_u32 s60, s60, {W_WQ}
            s_add_u32 s61, s60, 82944
            s_sub_u32 s62, {sW}, 4
            s_lshl_b32 s62, s62, 10
            s_add_u32 s60, s60, s62
            v_lshlrev_b32 v4, 4, v2
            {L}:
            buffer_load_dwordx4 v[128:131], v4, {sWS}, s60 offen sc1
            s_add_u32 s60, s60, 4096
            s_cmp_lt_u32 s60, s61
            s_cbranch_scc1 {L}
            """)
        else:
            self.wq_flags()
            self.poll([(5, "s62", 0)], 6, 3, first=4)
        self.stamp(29)
        self.wq_fetch()
        a(f"s_cmp_lg_u32 {sW}, 7\ns_cbranch_scc1 L_rel_nw")
        self.cs_issue()
        a("s_waitcnt vmcnt(0)")
        self.cs_finish()
        a("L_rel_nw:")
        a("s_waitcnt vmcnt(0)\ns_barrier\ns_branch L_qkv_pre")

    def wq_flags(self):
        self.a(f"""
        s_lshr_b32 s60, {sJ}, 4
        v_min_u32 v5, 35, v2
        v_lshl_add_u32 v5, v5, 1, s60
        v_lshlrev_b32 v5, 6, v5
        s_mov_b32 s62, {W_F3}
        """)

    def cs_issue(self):
        a = self.a
        a(f"""
        s_mul_i32 s60, {sJ}, {36*256}
        s_add_u32 s60, s60, {W_CSP}
        v_lshlrev_b32 v4, 4, v2
        """)
        for i in range(9):
            a(f"buffer_load_dwordx4 {vr(168+4*i,4)}, v4, {sWS}, s60 offen sc1")
            if i < 8:
                a("s_add_u32 s60, s60, 1024")

    def cs_finish(self):
        a = self.a
        for i in range(1, 9):
            for j in range(4):
                a(f"v_add_f32 v{168+j}, v{168+j}, v{168+4*i+j}")
        for op in ("v_permlane16_swap_b32", "v_permlane32_swap_b32"):
            for j in range(4):
                a(f"v_mov_b32 v{172+j}, v{168+j}")
            for j in range(4):
                a(f"{op} v{168+j}, v{172+j}")
            for j in range(4):
                a(f"v_add_f32 v{168+j}, v{168+j}, v{172+j}")
        a(f"""
        v_and_b32 v4, 15, v2
        v_lshlrev_b32 v4, 4, v4
        v_add_u32 v4, {L_CS}, v4
        ds_write_b128 v4, v[168:171]
        s_waitcnt lgkmcnt(0)
        """)

    def wq_fetch(self, first=0, last=63):
        L = self.lab()
        self.a(f"""
        s_mul_i32 s60, {sJ}, {WQ_B}
        s_add_u32 s60, s60, {W_WQ}
        s_sub_u32 s62, {sW}, 4
        s_add_u32 s62, s62, {first}
        v_lshlrev_b32 v4, 4, v2
        {L}:
        s_lshl_b32 s63, s62, 10
        s_add_u32 m0, s63, {L_WQ}
        s_add_u32 s63, s63, s60
        s_add_u32 s62, s62, 4
        buffer_load_dwordx4 v4, {sWS}, s63 offen sc1 {'nt' if 'wqnt' in EXP else ''} lds
        s_cmp_lt_u32 s62, {last}
        s_cbranch_scc1 {L}
        """)

    def conv(self):
        a = self.a
        a(f"s_cmp_ge_u32 {sJ}, 18\ns_cbranch_scc1 L_relayout")
        a(f"""
        s_mul_i32 s66, {sX}, 18
        s_add_u32 s66, s66, {sJ}          ; quad
        s_cmp_ge_u32 {sW}, 4
        s_cbranch_scc1 L_conv_help
        """)
        self.srd(sA, "dd", D * 2)
        a(f"""
        s_lshl_b32 s61, s66, 2
        s_add_u32 s61, s61, {sW}           ; channel
        s_lshl_b32 s62, s61, 1
        v_mov_b32 v4, s62
        buffer_load_ushort v5, v4, {sA}, 0 offen
        s_mul_i32 s62, {sW}, {U_B}
        s_add_u32 s62, s62, {L_U+512}
        s_cmp_lg_u32 {sW}, 0
        s_cbranch_scc1 L_conv_nu
        v_and_b32 v4, 31, v2
        v_lshlrev_b32 v4, 6, v4
        s_lshl_b32 s60, {sX}, 11
        s_add_u32 s60, s60, {W_F1}
        """)
        self.poll2([(4, "s60", 0)], 176, 1)
        a(f"""
        s_lshl_b32 s61, s61, 12
        s_add_u32 s61, s61, {W_U}
        v_lshlrev_b32 v4, 4, v2
        """)
        for c in range(4):
            for i in range(4):
                a(f"s_mov_b32 m0, {L_U+512+U_B*c+1024*i}\ns_add_u32 s63, s61, {4096*c+1024*i}")
                a(f"buffer_load_dwordx4 v4, {sWS}, s63 offen sc1 lds")
        a("L_conv_nu:")
        self.stamp(2)
        vBA, vAA, AD = 6, 7, 8
        ACC, A0, B0 = 16, 48, 112
        a(f"""
        v_and_b32 v12, 15, v2              ; nn / r
        v_lshrrev_b32 v13, 5, v2           ; g>>1
        v_bfe_u32 v14, v2, 4, 1            ; g&1
        s_sub_u32 s62, s62, {448}          ; u base + 64
        v_sub_u32 v15, v12, v13
        v_lshlrev_b32 v15, 5, v15
        v_lshl_add_u32 v15, v14, 4, v15
        v_add_u32 v{vBA}, s62, v15
        v_add_u32 v15, 1, v12
        v_and_b32 v3, 3, v15               ; sigma
        v_lshl_add_u32 v15, v13, 4, v12
        v_lshlrev_b32 v1, 3, v14
        v_sub_u32 v15, v15, v1
        v_sub_u32 v15, v15, v3
        v_add_u32 v15, 9, v15
        v_lshlrev_b32 v15, 1, v15
        v_mul_u32_u24 v3, {HC_B}, v3
        s_mul_i32 s63, {sW}, {4*HC_B}
        v_add3_u32 v{vAA}, v15, v3, s63
        v_add_u32 v1, 7, v1
        v_sub_u32 v1, v1, v12              ; j0
        v_lshl_add_u32 v1, v13, 6, v1
        v_and_b32 v3, 1, v1
        v_lshlrev_b32 v3, 4, v3
        v_lshrrev_b32 v1, 1, v1
        s_waitcnt vmcnt(16)
        s_cmp_eq_u32 {sW}, 0
        s_cbranch_scc1 L_conv_d
        s_waitcnt vmcnt(0)
        L_conv_d:
        v_lshlrev_b32 v5, v3, v5
        """)
        for i in range(4):
            a(f"v_cmp_eq_u32 vcc, {i}, v1\ns_nop 1\nv_cndmask_b32 v{AD+i}, 0, v5, vcc")

        def rdA(rho, q):
            b = A0 + 32 * (rho & 1) + 4 * q
            off = L_HC + 64 * (rho + 8 * q)
            return [f"ds_read_b64 {vr(b,2)}, v{vAA} offset:{off}", f"ds_read_b64 {vr(b+2,2)}, v{vAA} offset:{off+8}"]

        def rdB(rho, j):
            b = B0 + 32 * (rho & 1) + 4 * j
            return [f"ds_read_b128 {vr(b,4)}, v{vBA} offset:{64*(8*j-rho+7)}"]

        def reads(rho):
            r = rdA(rho, 0)
            for j in range(8):
                r += rdB(rho, j)
            for q in range(1, 8):
                r += rdA(rho, q)
            return r
        a("s_waitcnt vmcnt(0)\ns_barrier")
        for q in range(8):
            for l in rdA(0, q):
                a(l)
        for j in range(8):
            a(rdB(0, j)[0])
        for rho in range(8):
            if rho == 0 and 'uhint' in EXP:
                a("s_mov_b32 s96, 256\nL_u_check:")
            a("s_waitcnt lgkmcnt(0)")
            if rho == 0 and 'uhint' in EXP:
                a(f"v_max3_u32 v1, v{B0}, v{B0+4}, v{B0+8}")
                a(f"v_max3_u32 v3, v{B0+12}, v{B0+16}, v{B0+20}")
                a(f"v_max3_u32 v1, v1, v{B0+24}, v{B0+28}")
                a("v_max_u32 v1, v1, v3\nv_cmp_eq_u32 vcc, -1, v1\ns_cmp_lg_u64 vcc, 0\ns_cbranch_scc1 L_u_again\nL_u_ok:")

                def u_again():
                    a(f"""
                    L_u_again:
                    .reset_waits
                    s_sub_u32 s96, s96, 1
                    s_cbranch_scc1 L_u_ok
                    s_lshl_b32 s60, s66, 2
                    s_add_u32 s60, s60, {sW}
                    s_lshl_b32 s60, s60, 12
                    s_add_u32 s60, s60, {W_U}
                    s_mul_i32 s61, {sW}, {U_B}
                    v_lshlrev_b32 v4, 4, v2
                    """)
                    for i in range(4):
                        a(f"s_add_u32 m0, s61, {L_U+512+1024*i}\ns_add_u32 s63, s60, {1024*i}")
                        a(f"buffer_load_dwordx4 v4, {sWS}, s63 offen sc1 lds")
                    a("s_waitcnt vmcnt(0)")
                    for j in range(8):
                        a(rdB(0, j)[0])
                    a("s_branch L_u_check")
                self.tail_blocks.append(u_again)
            nxt = reads(rho + 1) if rho < 7 else []
            ab, bb = A0 + 32 * (rho & 1), B0 + 32 * (rho & 1)
            ms = []
            if rho == 0:
                for n in range(8):
                    ms.append(f"v_mfma_f32_16x16x32_bf16 {vr(ACC+4*n,4)}, {vr(AD,4)}, {vr(bb+4*n,4)}, 0")
            for q in range(8):
                for n in range(q, 8):
                    ms.append(f"v_mfma_f32_16x16x32_bf16 {vr(ACC+4*n,4)}, {vr(ab+4*q,4)}, {vr(bb+4*(n-q),4)}, {vr(ACC+4*n,4)}")
            for m in ms:
                a(m)
                if nxt:
                    a(nxt.pop(0))
        self.stamp(3)
        a(f"""
        v_lshlrev_b32 v12, 5, v12
        v_lshrrev_b32 v13, 4, v2
        v_lshl_add_u32 v12, v13, 3, v12
        s_mul_i32 s63, {sW}, {4*HC_B+32}
        v_add_u32 v12, s63, v12
        """)
        for n in range(8):
            a(f"v_cvt_pk_bf16_f32 v{A0+2*n}, v{ACC+4*n}, v{ACC+4*n+1}")
            a(f"v_cvt_pk_bf16_f32 v{A0+2*n+1}, v{ACC+4*n+2}, v{ACC+4*n+3}")
            a(f"ds_write_b64 v12, {vr(A0+2*n,2)} offset:{L_HC+512*n}")
        a("s_waitcnt lgkmcnt(0)\ns_barrier")
        if 'wqconv' in EXP:
            a(f"s_cmp_lg_u32 {sW}, 0\ns_cbranch_scc1 L_conv_w\ns_barrier\ns_branch L_qkv_pre\nL_conv_w:")
            self.wq_flags()
            self.poll([(5, "s62", 0)], 6, 3)
            L = self.lab()
            a(f"""
            s_mul_i32 s60, {sJ}, {WQ_B}
            s_add_u32 s60, s60, {W_WQ}
            s_sub_u32 s62, {sW}, 1
            v_lshlrev_b32 v4, 4, v2
            s_barrier
            {L}:
            s_lshl_b32 s63, s62, 10
            s_add_u32 m0, s63, {L_WQ}
            s_add_u32 s63, s63, s60
            s_add_u32 s62, s62, 3
            buffer_load_dwordx4 v4, {sWS}, s63 offen sc1 lds
            s_cmp_lt_u32 s62, 63
            s_cbranch_scc1 {L}
            s_waitcnt vmcnt(0)
            """)
        a("s_branch L_qkv_pre")

        a("L_conv_help:")
        a(".reset_waits")
        X0, ST, Y, T = 16, 32, 232, 64
        self.wq_flags()
        a(f"""
        v_and_b32 v4, 31, v2
        v_lshlrev_b32 v4, 6, v4
        s_lshl_b32 s63, s67, 11
        s_add_u32 s63, s63, {W_F2}
        v_lshlrev_b32 v3, 3, v2
        s_lshl_b32 s60, s67, 12
        s_add_u32 s60, s60, {W_ST0}
        v_and_b32 v14, 31, v2
        v_lshrrev_b32 v15, 5, v2
        v_mul_u32_u24 v15, 36864, v15
        v_lshl_add_u32 v14, v14, 3, v15
        s_mul_i32 s76, s67, {16*36864}
        s_lshl_b32 s61, s66, 8
        s_add_u32 s76, s76, s61
        s_add_u32 s61, s76, {W_X0}
        """)
        self.poll([(4, "s63", 0)], 6, 2, first=4)
        self.stamp(18)
        for i in range(8):
            a(f"buffer_load_dwordx2 {vr(ST+2*i,2)}, v3, {sWS}, s60 offen offset:{512*i} sc1")
            a(f"buffer_load_dwordx2 {vr(X0+2*i,2)}, v14, {sWS}, s61 offen sc1")
            if i < 7:
                a(f"s_add_u32 s61, s61, {2*36864}")
        a("v_mov_b32 v13, v5\ns_waitcnt vmcnt(0)")
        a(f"""
        v_bfe_u32 v4, v2, 2, 2
        v_mul_u32_u24 v4, {4*HC_B+32}, v4
        v_lshrrev_b32 v5, 4, v2
        v_lshl_add_u32 v4, v5, 5, v4
        v_and_b32 v5, 3, v2
        v_lshl_add_u32 v4, v5, 3, v4
        s_lshl_b32 s60, s67, 10
        v_add_u32 v4, s60, v4
        s_mov_b32 s64, 0xffff0000
        s_add_u32 s61, s76, {W_Y}
        s_add_u32 s60, s76, {W_X1}
        """)
        a(".reset_waits")
        for i in range(8):
            t = T + 8 * i
            for d in range(2):
                a(f"v_lshlrev_b32 v{t+2*d}, 16, v{X0+2*i+d}")
                a(f"v_and_b32 v{t+2*d+1}, s64, v{X0+2*i+d}")
            for c in range(4):
                a(f"v_fma_f32 v{t+4+c}, v{t+c}, v{ST+2*i}, v{ST+2*i+1}")
        PRE = int(os.environ.get("PRE", 0))
        a(f"buffer_load_dwordx2 v[128:129], v13, {sWS}, s62 offen sc1\ns_mov_b32 s77, 0")
        if PRE:
            L = self.lab()
            a(f"s_waitcnt vmcnt(0)\nv_cmp_ne_u64 vcc, {sTag}, v[128:129]\ns_cmp_lg_u64 vcc, 0\ns_cbranch_scc1 {L}")
            a("s_mov_b32 s78, s60\nv_mov_b32 v12, v4")
            self.wq_fetch(last=PRE)
            a(f"s_mov_b32 s60, s78\nv_mov_b32 v4, v12\ns_mov_b32 s77, {PRE}\n{L}:")
        a("s_barrier")
        for i in range(8):
            a(f"ds_read_b64_tr_b16 {vr(Y+2*i,2)}, v4 offset:{L_HC+128*i}")
        for i in range(8):
            t = T + 8 * i
            a(f"s_waitcnt lgkmcnt({7-i})")
            for d in range(2):
                a(f"v_lshlrev_b32 v8, 16, v{Y+2*i+d}")
                a(f"v_and_b32 v9, s64, v{Y+2*i+d}")
                a(f"v_fmac_f32 v{t+2*d}, v{t+4+2*d}, v8")
                a(f"v_fmac_f32 v{t+2*d+1}, v{t+5+2*d}, v9")
            a(f"v_cvt_pk_bf16_f32 v{X0+2*i}, v{t}, v{t+1}")
            a(f"v_cvt_pk_bf16_f32 v{X0+2*i+1}, v{t+2}, v{t+3}")
            a(f"buffer_store_dwordx2 {vr(X0+2*i,2)}, v14, {sWS}, s60 offen sc1")
            a(f"s_add_u32 s60, s60, {2*36864}")
        a(f"""
        s_lshl_b32 s60, s66, 2
        s_add_u32 s60, s60, s67
        s_lshl_b32 s60, s60, 6
        s_add_u32 s60, s60, {W_F4}
        """)
        if 'wqconv' in EXP:
            a("s_setprio 3\ns_barrier")
        a("s_waitcnt vmcnt(0)")
        self.flag_store("s60", 10)
        a(f"""
        v_mov_b32 v248, v14
        s_mov_b32 s79, s61
        s_add_u32 s80, s60, {W_F10 - W_F4}
        """)
        if 'wqconv' in EXP:
            a(f"s_setprio 0\ns_cmp_lg_u32 {sW}, 7\ns_cbranch_scc1 L_qkv_pre")
        else:
            L = self.lab()
            a(f"v_cmp_ne_u64 vcc, {sTag}, v[128:129]\ns_cmp_eq_u64 vcc, 0\ns_cbranch_scc1 {L}")
            self.poll([(13, "s62", 0)], 128, 3)
            a(f"{L}:")
            self.wq_fetch(first="s77", last=WQ1)
            a(f"s_cmp_eq_u32 {sW}, 7\ns_cbranch_scc1 L_help_c0\ns_waitcnt vmcnt(0)\ns_branch L_qkv_pre\nL_help_c0:")
        self.cs_issue()
        a("s_waitcnt vmcnt(0)")
        self.cs_finish()
        a("s_branch L_qkv_pre")

    def colsum(self):
        a = self.a
        a("L_qkv_pre:")
        a(".reset_waits")
        self.stamp(4)
        self.qkv_setup()

    def qkv_setup(self):
        self.a(f"""
        v_lshlrev_b32 v4, 4, v2
        v_add_u32 v4, {L_WQ}, v4           ; W tile 0
        v_and_b32 v6, 31, v2
        v_cmp_gt_u32 vcc, 24, v6
        v_lshrrev_b32 v7, 5, v2            ; hh
        s_nop 0
        v_cndmask_b32 v5, {19 if 'zpad' in EXP else 23}, v6, vcc
        v_lshlrev_b32 v5, 4, v5
        v_mul_u32_u24 v53, 384, v7
        v_add_u32 v5, v5, v53
        v_add_u32 v5, {L_WQ+1024}, v5      ; W tile 1
        v_and_b32 v53, 15, v2
        v_lshlrev_b32 v53, 1, v53
        v_bfe_u32 v54, v2, 4, 1
        v_add_u32 v53, v53, v54
        v_lshlrev_b32 v53, 4, v53
        v_and_b32 v58, 19, v6
        v_bfe_u32 v54, v6, 2, 1
        v_lshl_add_u32 v58, v54, 3, v58
        v_bfe_u32 v54, v6, 3, 1
        v_lshl_add_u32 v58, v54, 2, v58    ; sigma(n)
        v_lshlrev_b32 v54, 4, v58
        v_lshl_add_u32 v54, v7, 9, v54
        s_lshl_b32 s61, {sT}, 10
        v_add_u32 v54, s61, v54
        v_min_u32 v56, 19, v6
        v_cmp_eq_u32 vcc, 4, v56
        v_cmp_eq_u32 s[62:63], 19, v56
        s_mul_i32 s61, {sT}, 1280
        s_add_u32 s61, s61, {KV_V}
        v_cndmask_b32 v56, v56, 19, vcc
        v_cndmask_b32 v56, v56, 4, s[62:63]
        v_lshlrev_b32 v56, 4, v56
        v_mul_u32_u24 v55, 320, v7
        v_add_u32 v56, v56, v55
        v_add_u32 v55, s61, v56
        s_lshl_b32 s62, {sT}, 7
        s_add_u32 s63, s62, {L_QR}
        s_add_u32 s62, s62, {KV_R}
        v_mov_b32 v59, s62
        v_mov_b32 v60, s63
        v_cmp_gt_u32 vcc, 22, v6
        v_and_b32 v57, 1, v6
        v_lshlrev_b32 v57, 1, v57
        v_lshl_add_u32 v57, v7, 5, v57
        v_cndmask_b32 v61, v59, v60, vcc
        v_add_u32 v57, v57, v61
        v_lshl_add_u32 v58, v58, 2, v60
        v_lshl_add_u32 v59, v6, 2, v59
        s_lshl_b32 s60, {sW}, 8
        s_add_u32 s60, s60, {L_ST}
        v_lshl_add_u32 v60, v6, 2, s60
        v_mov_b32 v61, s60
        v_and_b32 v62, 30, v6
        v_cmp_eq_u32 vcc, 20, v62
        v_add_u32 v62, 128, v61
        s_nop 0
        v_cndmask_b32 v61, v61, v62, vcc
        v_cmp_eq_u32 vcc, 18, v6
        v_lshl_add_u32 v61, v7, 4, v61
        v_mov_b32 v62, 0x3f803f80
        v_cndmask_b32 v62, 0, v62, vcc
        s_lshl_b32 s69, {sLayer}, 5
        s_add_u32 s69, s69, {sJ}
        s_lshl_b32 s69, s69, 3             ; (layer*32+head)*8
        s_add_u32 s89, s69, {sX}
        s_mul_i32 s89, s89, {KV_B}
        s_add_u32 s89, s89, {W_KV}
        """)

    def qkv(self):
        a = self.a
        L = self.lab()
        a(f"s_cmp_lg_u32 {sW}, 0\ns_cbranch_scc1 {L}")
        a(f"""
        v_lshlrev_b32 v8, 8, v2
        v_add_u32 v9, {64*256}, v8
        v_add_u32 v10, {128*256}, v8
        v_min_u32 v10, {143*256}, v10
        s_lshr_b32 s60, {sX}, 1
        s_lshl_b32 s60, s60, 6
        s_add_u32 s60, s60, {W_F4}
        """)
        if 'relay' in EXP:
            L2 = self.lab()
            a(f"s_lshl_b32 s61, {sX}, 8\ns_add_u32 s61, s61, {W_F11}\ns_cmp_eq_u32 {sJ}, 31\ns_cbranch_scc1 {L2}\nv_mov_b32 v8, 0\ns_mov_b64 exec, 1")
            self.poll([(8, "s61", 0)], 220, 12, nap=int(os.environ.get("RNAP", 1)))
            a(f"s_branch {L}\n{L2}:")
        self.poll2([(8, "s60", 0), (9, "s60", 0), (10, "s60", 0)], 220, 4, first=2)
        if 'relay' in EXP:
            self.flag_store("s61", 8)
        a(f"{L}:")
        a(f"""
        s_mov_b32 s68, {W_X1}
        s_cmp_eq_u32 {sW}, 0
        s_cselect_b32 s3, 3, 0
        s_add_u32 s88, {sW}, {WQ1-4}
        s_lshl_b32 s88, s88, 10            ; first remaining piece of the wqkv slice (waves 4-7)
        s_mul_i32 s87, {sJ}, {WQ_B}
        s_add_u32 s87, s87, s88
        s_add_u32 s87, s87, {W_WQ}
        s_cmp_lt_u32 {sJ}, 18
        s_cselect_b32 s87, s87, 0
        s_cmp_ge_u32 {sW}, 4
        s_cselect_b32 s87, s87, 0
        """)
        a("L_qkv:")
        a(".reset_waits")
        XF, D0, D1, WF, RS = 64, 16, 32, 208, 96
        a(f"""
        s_lshl_b32 s75, {sLayer}, 15
        s_lshl_b32 s61, {sX}, 12
        s_add_u32 s75, s75, s61
        s_add_u32 s75, s75, {W_G9}
        s_mul_i32 s60, {sX}, {8*36864}
        s_add_u32 s60, s60, s68
        s_cmp_lg_u32 s3, 3
        s_cbranch_scc1 L_qkv_ns
        v_lshrrev_b32 v10, 2, v2
        v_and_b32 v11, 3, v2
        v_lshlrev_b32 v10, 8, v10
        v_lshl_add_u32 v10, v11, 4, v10
        s_lshr_b32 s61, {sJ}, 2
        s_mul_i32 s61, s61, 36864
        s_and_b32 s62, {sJ}, 3
        s_lshl_b32 s62, s62, 6
        s_add_u32 s61, s61, s62
        s_add_u32 s61, s61, s60
        """)
        for i in range(9):
            a(f"buffer_load_dwordx4 {vr(16+4*i,4)}, v10, {sWS}, s61 offen sc1")
            if i < 8:
                a("s_add_u32 s61, s61, 4096")
        a("L_qkv_ns:")
        a(f"""
        v_lshlrev_b32 v8, 4, v2
        s_mul_i32 s61, {sT}, 36864
        s_add_u32 s60, s60, s61
        s_barrier
        """)
        self.stamp(5)
        WIN = int(os.environ.get("WIN", 8))

        def ldx(s):
            a(f"buffer_load_dwordx4 {vr(XF+4*s,4)}, v8, {sWS}, s60 offen offset:{1024*(s&3)} sc1")
            if s & 3 == 3 and s < 35:
                a("s_add_u32 s60, s60, 4096")
        for s in range(WIN):
            ldx(s)
        a(f"s_cmp_lg_u32 s3, 3\ns_cbranch_scc1 L_qkv_ns2")
        a("v_mov_b32 v12, 0\nv_mov_b32 v13, 0\nv_mov_b32 v14, 0\nv_mov_b32 v15, 0\nv_mov_b32 v52, 0x3f803f80")
        for i in range(9):
            a(f"s_waitcnt vmcnt({8+WIN-i})")
            for j in range(4):
                r = 16 + 4 * i + j
                a(f"v_dot2c_f32_bf16 v{12+(j&2)}, v{r}, v52")
                a(f"v_dot2c_f32_bf16 v{13+(j&2)}, v{r}, v{r}")
        for m in ("row_ror:4", "row_ror:8"):
            for j in range(4):
                a(f"v_add_f32_dpp v{12+j}, v{12+j}, v{12+j} {m} row_mask:0xf bank_mask:0xf bound_ctrl:0")
        for op in ("v_permlane16_swap_b32", "v_permlane32_swap_b32"):
            for j in range(4):
                a(f"v_mov_b32 v{16+j}, v{12+j}")
            for j in range(4):
                a(f"{op} v{12+j}, v{16+j}")
            for j in range(4):
                a(f"v_add_f32 v{12+j}, v{12+j}, v{16+j}")
        self.stats(12, 13, 17, 22, 23)
        self.stats(14, 15, 21, 22, 23)
        a(f"""
        v_sub_f32 v16, 0, v12
        v_sub_f32 v20, 0, v14
        v_mov_b32 v18, s28
        v_mov_b32 v19, s29
        v_mov_b32 v22, s28
        v_mov_b32 v23, s29
        v_lshlrev_b32 v11, 5, v11
        s_lshl_b32 s61, {sJ}, 7
        s_add_u32 s61, s61, s75
        s_mov_b64 exec, 15
        buffer_store_dwordx4 v[16:19], v11, {sWS}, s61 offen sc1
        buffer_store_dwordx4 v[20:23], v11, {sWS}, s61 offen offset:16 sc1
        s_mov_b64 exec, -1
        L_qkv_ns2:
        """)

        def rdW(s):
            b = WF + 8 * (s % 3)
            a(f"ds_read_b128 {vr(b,4)}, v4 offset:{1792*s}")
            a(f"ds_read_b128 {vr(b+4,4)}, v5 offset:{1792*s}")
        a(f"""
        v_lshlrev_b32 v9, 2, v6
        v_add_u32 v10, {L_CS}, v9
        ds_read_b32 v250, v10
        ds_read_b32 v252, v10 offset:128
        s_lshl_b32 s61, {sT}, 9
        s_add_u32 s75, s75, s61
        s_mov_b32 s64, 0xffff0000
        s_waitcnt lgkmcnt(0)
        """)
        for r in (250, 252):
            a(f"""
            v_and_b32 v9, s64, v{r}
            v_sub_f32 v10, v{r}, v9
            v_cvt_pk_bf16_f32 v{r}, v9, v9
            v_cvt_pk_bf16_f32 v{r+1}, v10, 0
            """)
        rdW(0)
        rdW(1)
        def swap(s):
            x = XF + 4 * s
            a(f"s_waitcnt vmcnt({min(35 - s, WIN - 1)})")
            a(f"v_permlane16_swap_b32 v{x}, v{x+2}")
            a(f"v_permlane16_swap_b32 v{x+1}, v{x+3}")
        swap(0)
        for s in range(36):
            x, b = XF + 4 * s, WF + 8 * (s % 3)
            SEG = int(os.environ.get("SEG", 36))
            if s % SEG == 0 and s:
                a("s_barrier")
            if (s % SEG) % (SEG // 4) == 0 and (s % SEG) // (SEG // 4) < 4 and 'noprio' not in EXP:
                a(f"s_setprio {3 - (s % SEG) // (SEG // 4)}")
            npc = (64 - WQ1) // 4
            if 2 * s < npc and WQ1 < 63:
                L = self.lab()
                a(f"s_cmp_eq_u32 s87, 0\ns_cbranch_scc1 {L}")
                for j in range(2 * s, min(2 * s + 2, npc)):
                    if j == npc - 1:
                        a(f"s_cmp_eq_u32 {sW}, 7\ns_cbranch_scc1 {L}")
                    a(f"s_add_u32 m0, s88, {L_WQ + 4096*j}\ns_add_u32 s86, s87, {4096*j}")
                    a(f"buffer_load_dwordx4 v8, {sWS}, s86 offen sc1 lds")
                a(f"{L}:")
            if s == WQ1 * 1024 // 1792 - 2 and WQ1 < 63:
                L = self.lab()
                a(f"s_cmp_lg_u32 {sLayer}, 0\ns_cbranch_scc1 {L}\ns_barrier\n{L}:")
            if s + WIN < 36:
                ldx(s + WIN)
            if s + 1 < 36:
                swap(s + 1)
            a(f"s_waitcnt lgkmcnt({2 if s + 1 < 36 else 0})")
            if 'nomfma' not in EXP or s == 0:
                a(f"v_mfma_f32_32x32x16_bf16 {vr(D0,16)}, {vr(b,4)}, {vr(x,4)}, {vr(D0,16) if s else 0}")
                a(f"v_mfma_f32_32x32x16_bf16 {vr(D1,16)}, {vr(x,4)}, {vr(b+4,4)}, {vr(D1,16) if s else 0}")
            if s + 2 < 36:
                rdW(s + 2)
            if s == 20:
                a(f"buffer_load_dwordx4 v[10:13], v53, {sWS}, s75 offen sc1")
            if s == 31:
                Lp, Ld = self.lab("Ls"), self.lab("Lsd")
                a(f"""
                s_mov_b32 s96, {SPIN_MAX}
                {Lp}:
                v_cmp_eq_u64 vcc, {sTag}, v[12:13]
                s_cmp_eq_u64 vcc, exec
                s_cbranch_scc1 {Ld}
                buffer_load_dwordx4 v[10:13], v53, {sWS}, s75 offen sc1
                s_sub_u32 s96, s96, 1
                s_cmp_lg_u32 s96, 0
                s_waitcnt vmcnt(0)
                s_cbranch_scc1 {Lp}
                """)
                self.timeout_mark(9, 12)
                a(f"""
                {Ld}:
                v_mul_f32 v12, {f32hex(C_SCALE)}, v11
                ds_write_b32 v60, v11
                ds_write_b32 v60, v12 offset:128
                """)
                for g in range(4):
                    a(f"ds_read_b128 {vr(RS+4*g,4)}, v61 offset:{32*g}")
                a("""
                s_mov_b32 s62, -1
                s_mov_b32 s63, 0
                v_cndmask_b32 v10, 0, v10, s[62:63]
                v_and_b32 v13, s64, v10
                v_sub_f32 v14, v10, v13
                v_cvt_pk_bf16_f32 v14, v13, v14
                v_cvt_pk_bf16_f32 v15, v13, 0
                """)
        self.stamp(6)
        KF, VF = 112, 120
        R = self.R
        a(f"""
        s_mov_b32 s62, 0xfffff
        s_mov_b32 s63, 0xfffff
        v_mfma_f32_32x32x8bf16_1k {vr(D1,16)}, v[14:15], v[252:253], {vr(D1,16)}
        v_mfma_f32_32x32x8bf16_1k {vr(D0,16)}, v[250:251], v[14:15], {vr(D0,16)}
        s_mov_b32 s66, 0xf00000
        s_mov_b32 s67, 0xf00000
        """)
        for i in range(16):
            a(f"v_mov_b32 v{R.O+i}, 0")
        a("s_waitcnt lgkmcnt(0)")
        for i in range(16):
            a(f"v_mul_f32 v{D1+i}, v{RS+i}, v{D1+i}")
        for i in range(8):
            a(f"v_cvt_pk_bf16_f32 v{VF+i}, v{D1+2*i}, v{D1+2*i+1}")
        a("s_mov_b64 exec, s[66:67]")
        assert L_OWN == 0
        for i in range(8):
            g, r = i >> 1, 2 * (i & 1)
            off = 64 * (g >> 1) + 16 * (g & 1) + 4 * r
            a(f"ds_write_b16 v57, v{VF+i} offset:{off}")
            a(f"ds_write_b16_d16_hi v57, v{VF+i} offset:{off+4}")
        a("s_mov_b64 exec, -1")
        a(f"ds_read_b32 v63, v59\nds_read_b32 v{R.Qr}, v58\ns_mov_b32 s66, 0xc0000\ns_mov_b32 s67, 0xc0000")
        for i in range(8):
            a(f"v_cndmask_b32 v{VF+i}, v{VF+i}, v62, s[66:67]")
        a(f"""
        s_mov_b64 exec, s[62:63]
        buffer_store_dwordx4 {vr(VF,4)}, v55, {sWS}, s89 offen sc1
        buffer_store_dwordx4 {vr(VF+4,4)}, v55, {sWS}, s89 offen offset:640 sc1
        s_mov_b64 exec, -1
        """)
        for i in range(8, 16):
            a(f"v_mul_f32 v{D0+i}, v11, v{D0+i}")
        for i in range(4):
            a(f"v_cvt_pk_bf16_f32 v{KF+i}, v{D0+8+2*i}, v{D0+9+2*i}")
        a(f"""
        buffer_store_dwordx4 {vr(KF,4)}, v54, {sWS}, s89 offen sc1
        s_waitcnt lgkmcnt(0)
        s_mov_b32 exec_hi, 0
        buffer_store_dword v63, v59, {sWS}, s89 offen sc1
        s_mov_b64 exec, s[62:63]
        ds_write_b128 v55, {vr(VF,4)} offset:{L_OWN}
        ds_write_b128 v55, {vr(VF+4,4)} offset:{L_OWN+640}
        s_mov_b64 exec, -1
        ds_write_b128 v54, {vr(KF,4)} offset:{L_OWN}
        """)
        for i in range(8):
            a(f"v_mul_f32 v{D0+i}, v12, v{D0+i}")
        for i in range(4):
            a(f"v_cvt_pk_bf16_f32 v{R.Q+i}, v{D0+2*i}, v{D0+1+2*i}")
        a(f"v_mov_b32 v{R.aV}, v56\ns_waitcnt lgkmcnt(0)")
        self.stamp(7)

    class Regs:
        S = [128, 160]
        O = 192
        Q = 208
        Qr = 212
        K = [8, 16]
        Kr = [24, 26]
        V = [28, 44]
        idx, aK, aR, aV = 214, 215, 216, 217

    def attention(self):
        a, R = self.a, self.R
        slot = lambda blk: L_OWN if blk == 0 else L_RING + ((blk - 2) % 3) * KV_B
        aK0, aR0, aV0 = 218, 219, 220

        def rd(kind, u, i=0):
            blk, dt = u >> 2, u & 3
            own = blk == 0
            base = slot(blk) - (0 if own else L_RING)
            buf = u & 1
            if kind == "R":
                return f"ds_read_b32 v{R.Kr[buf]}, v{aR0 if own else R.aR} offset:{base + KV_R + 256*dt}"
            if kind == "K":
                return f"ds_read_b128 {vr(R.K[buf]+4*i,4)}, v{aK0 if own else R.aK} offset:{base + 2048*dt + 1024*i}"
            return f"ds_read_b128 {vr(R.V[buf]+4*i,4)}, v{aV0 if own else R.aV} offset:{base + KV_V + 2560*dt + 640*i}"

        def m4(sb, kb):
            a(f"v_mfma_f32_32x32x4bf16_1k {vr(R.S[sb],32)}, {vr(R.Kr[kb],2)}, {vr(R.Qr,2)}, 0")

        def mf(sb, kb, hi):
            d = vr(R.S[sb] + 16 * hi, 16)
            a(f"v_mfma_f32_32x32x16_bf16 {d}, {vr(R.K[kb]+4*hi,4)}, {vr(R.Q,4)}, {d}")

        def sm(sb, vb, g):
            a(f"v_smfmac_f32_32x32x32_bf16 {vr(R.O,16)}, {vr(R.V[vb]+4*g,4)}, {vr(R.S[sb]+8*g,8)}, v{R.idx}")

        def call_try():
            a("s_call_b64 s[76:77], L_try")

        def try_body():
            Ln, Lr = self.lab(), self.lab()
            a(f"""
            L_try:
            .reset_waits
            s_waitcnt vmcnt(0)
            v_cmp_eq_u64 vcc, {sTag}, v[6:7]
            {Ln}:
            s_lshl_b32 s60, s62, 3
            s_lshr_b32 s60, vcc_lo, s60
            s_and_b32 s60, s60, 0xff
            s_cmp_lg_u32 s60, 0xff
            s_cbranch_scc1 {Lr}
            s_add_u32 s60, {sX}, s62
            s_add_u32 s60, s60, 1
            s_and_b32 s60, s60, 7
            s_add_u32 s60, s60, s69
            s_mul_i32 s60, s60, {KV_B}
            s_add_u32 s60, s60, {W_KV}
            s_mul_i32 s63, s62, {slot(1) - slot(2)}
            s_sub_u32 s63, {slot(1)}, s63
            """)
            for i in range(19):
                a(f"s_add_u32 m0, s63, {1024*i}")
                a(f"s_add_u32 s86, s60, {1024*i}")
                a(f"buffer_load_dwordx4 v{aK0}, {sWS}, s86 offen sc1 lds")
            a(f"""
            s_add_u32 s62, s62, 1
            s_cmp_lt_u32 s62, 2
            s_cbranch_scc1 {Ln}
            s_setpc_b64 s[76:77]
            {Lr}:
            s_mov_b64 exec, 0xffff
            buffer_load_dwordx2 v[6:7], v4, {sWS}, s61 offen sc1
            s_mov_b64 exec, -1
            s_setpc_b64 s[76:77]
            """)
        self.try_body = try_body

        def try_until(n):
            L, Ld = self.lab(), self.lab()
            a(f"""
            s_mov_b32 s96, {SPIN_MAX}
            {L}:
            s_cmp_ge_u32 s62, {n}
            s_cbranch_scc1 {Ld}
            """)
            call_try()
            a(f"""
            s_sub_u32 s96, s96, 1
            s_cmp_lg_u32 s96, 0
            s_cbranch_scc1 {L}
            """)
            self.timeout_mark(5, 228)
            a(f"{Ld}:")

        def on_wave(w, fn):
            if 'nofetch' in EXP:
                return
            L = self.lab()
            a(f"s_cmp_lg_u32 {sW}, {w}\ns_cbranch_scc1 {L}\ns_setprio 3")
            fn()
            a(f"{L}:")

        a(f"""
        v_lshlrev_b32 v{aK0}, 4, v2
        v_lshlrev_b32 v{aR0}, 2, v2
        v_mov_b32 v{aV0}, v{R.aV}
        v_add_u32 v{R.aK}, {L_RING}, v{aK0}
        v_add_u32 v{R.aR}, {L_RING}, v{aR0}
        v_add_u32 v{R.aV}, {L_RING}, v{aV0}
        v_mov_b32 v{R.idx}, 0xdddddddd
        v_mov_b32 v{R.Qr+1}, 0
        v_mov_b32 v{R.Kr[0]+1}, 0
        v_mov_b32 v{R.Kr[1]+1}, 0
        s_add_u32 s70, s69, {sX}
        s_lshl_b32 s70, s70, 3
        s_add_u32 s70, s70, {sW}
        s_lshl_b32 s70, s70, 6
        s_add_u32 s70, s70, {W_F5}
        """)
        a(f"""
        s_lshl_b32 s83, {sW}, 10
        s_and_b32 s84, {sJ}, 7
        s_mul_i32 s84, s84, {WO_B}
        s_add_u32 s84, s84, {W_WO}
        s_add_u32 s84, s84, s83
        v_mov_b32 v222, s28
        v_mov_b32 v223, s29
        v_mov_b32 v224, 0
        """)
        a("s_barrier")

        def publish():
            a(f"""
            s_waitcnt vmcnt(0)
            s_mov_b64 exec, 1
            buffer_store_dwordx2 v[222:223], v224, {sWS}, s70 offen sc1
            s_mov_b64 exec, -1
            """)

        def seg_start(u):
            for l in (rd("R", u), rd("K", u, 0), rd("K", u, 1), rd("V", u, 0), rd("V", u, 1), rd("R", u + 1), rd("K", u + 1, 0),
                      rd("V", u, 2), rd("K", u + 1, 1), rd("V", u, 3)):
                a(l)

        def seg_qk():
            a("s_waitcnt lgkmcnt(7)")
            m4(0, 0)
            a("s_nop 15\ns_nop 1")
            mf(0, 0, 0)
            mf(0, 0, 1)
            a("s_nop 10")

        def piece(src, lds, off, maxw=8):
            if 'nofetch' in EXP:
                return
            L = self.lab()
            if maxw < 8:
                a(f"s_cmp_ge_u32 {sW}, {maxw}\ns_cbranch_scc1 {L}")
            a(f"s_add_u32 m0, s83, {lds + off}\ns_add_u32 s86, {src}, {off}")
            a(f"buffer_load_dwordx4 v{aK0}, {sWS}, s86 offen sc1 {'nt' if 'kvnt' in EXP and src == 's85' else ''} lds")
            if maxw < 8:
                a(f"{L}:")

        def poll_all():
            a(f"""
            s_lshl_b32 s61, s69, 9
            s_add_u32 s61, s61, {W_F5}
            v_lshlrev_b32 v4, 6, v2
            v_min_u32 v5, 17, v2
            v_lshlrev_b32 v5, 6, v5
            s_mov_b32 s60, {W_F3 + 72*64}
            """)
            self.poll([(4, "s61", 0), (5, "s60", 0)], 60, 5)

        seg_start(0)
        L = self.lab()
        a(f"s_cmp_lt_u32 {sW}, 4\ns_cbranch_scc1 {L}")
        publish()
        a(f"s_cmp_lg_u32 {sLayer}, 0\ns_cbranch_scc1 {L}\ns_cmp_ge_u32 {sJ}, 18\ns_cbranch_scc1 {L}")
        for i in range(8):
            a(f"buffer_store_dwordx2 {vr(232+2*i,2)}, v248, {sWS}, s79 offen sc1")
            a(f"s_add_u32 s79, s79, {2*36864}")
        a(f"{L}:")
        seg_qk()
        self.stamp(8)
        for u in range(32):
            P = u & 1
            N = P ^ 1
            end = 4 if u < 4 else 32
            first = u in (0, 4)
            last = u == end - 1
            e = lambda i, j: [a(f"v_exp_f32 v{R.S[P]+k}, v{R.S[P]+k}") for k in range(i, j)]
            k2 = u + 2 < end
            v1 = u + 1 < end
            blk, dt = u >> 2, u & 3
            hook = {}
            if u == PUB_AT:
                L = self.lab()
                a(f"s_cmp_ge_u32 {sW}, 4\ns_cbranch_scc1 {L}")
                publish()
                a(f"{L}:")
            if u == LOOK_AT:
                L = self.lab()
                a(f"""
                s_cmp_lg_u32 {sW}, 0
                s_cbranch_scc1 {L}
                s_mov_b32 s62, 0
                s_lshl_b32 s61, s69, 9
                s_add_u32 s61, s61, {W_F5}
                s_add_u32 s60, {sX}, 1
                s_lshl_b32 s60, s60, 3
                v_add_u32 v4, s60, v2
                v_and_b32 v4, 63, v4
                v_lshlrev_b32 v4, 6, v4
                s_mov_b64 exec, 0xffff
                buffer_load_dwordx2 v[6:7], v4, {sWS}, s61 offen sc1
                s_mov_b64 exec, -1
                {L}:
                """)
            if u in TRY_AT:
                L = self.lab()
                a(f"s_cmp_lg_u32 {sW}, 0\ns_cbranch_scc1 {L}\ns_cmp_ge_u32 s62, 2\ns_cbranch_scc1 {L}")
                call_try()
                a(f"{L}:")
            if u == 4:
                L0, L1 = self.lab(), self.lab()
                a(f"s_cmp_lg_u32 {sW}, 0\ns_cbranch_scc1 {L1}")
                try_until(1)
                a(f"{L1}:")
                self.out_setup()
                L1 = self.lab()
                a(f"""
                s_cmp_lg_u32 {sW}, 0
                s_cbranch_scc1 {L0}
                s_cmp_lg_u32 s62, 2
                s_cbranch_scc1 {L0}
                s_waitcnt vmcnt(19)
                s_branch {L1}
                {L0}:
                s_waitcnt vmcnt(0)
                {L1}:
                s_barrier
                """)
                self.stamp(14)
                seg_start(4)
                L0, L1 = self.lab(), self.lab()
                a(f"s_cmp_lg_u32 {sW}, 0\ns_cbranch_scc1 {L0}\ns_setprio 3")
                try_until(2)
                a(f"{L0}:")
                L = self.lab()
                a(f"""
                s_cmp_lt_u32 {sW}, 4
                s_cbranch_scc1 {L}
                s_cmp_lg_u32 {sLayer}, 0
                s_cbranch_scc1 {L}
                s_cmp_ge_u32 {sJ}, 18
                s_cbranch_scc1 {L}
                s_mov_b64 exec, 1
                buffer_store_dwordx2 v[222:223], v224, {sWS}, s80 offen sc1
                s_mov_b64 exec, -1
                {L}:
                """)
                on_wave(6, poll_all)
                seg_qk()
            if 1 <= blk < 7 and dt == 2 and 'nobar' not in EXP:
                a("s_waitcnt vmcnt(0)\ns_barrier")
                if blk == 3:
                    L = self.lab()
                    a(f"s_cmp_ge_u32 {sW}, 4\ns_cbranch_scc1 {L}\nv_cmp_ne_u64 vcc, {sTag}, v[74:75]\ns_cmp_eq_u64 vcc, 0\ns_cbranch_scc1 {L}")
                    self.poll([(72, "s78", 0)], 74, 10)
                    a(f"{L}:")
                if blk + 2 < 8:
                    a(f"s_add_u32 s85, {sX}, {blk+2}\ns_and_b32 s85, s85, 7")
                    a(f"""
                    s_add_u32 s85, s85, s69
                    s_mul_i32 s85, s85, {KV_B}
                    s_add_u32 s85, s85, {W_KV}
                    s_add_u32 s85, s85, s83
                    """)
            if 1 <= blk < 7 and dt >= 2:
                src, lds, o = ("s85", slot(blk + 2), 0) if blk < 6 else ("s84", L_WO, 36 * 1024)
                if dt == 2:
                    hook[0] = lambda: piece(src, lds, o)
                    hook[1] = lambda: piece(src, lds, o + 8192)
                else:
                    hook[0] = lambda: piece(src, lds, o + 16384, 3)
                    if blk < 6:
                        hook[1] = lambda: piece("s84", L_WO, 8192 * (blk - 1), 8 if blk < 5 else 4)
            if u == 12:
                def yflag():
                    L = self.lab()
                    a(f"s_cmp_ge_u32 {sW}, 4\ns_cbranch_scc1 {L}\nbuffer_load_dwordx2 v[74:75], v72, {sWS}, s78 offen sc1\n{L}:")
                hook[0] = yflag
            if u == 16:
                def resid():
                    L = self.lab()
                    a(f"s_cmp_ge_u32 {sW}, 4\ns_cbranch_scc1 {L}\ns_add_u32 s60, s67, s68\ns_add_u32 s61, s67, {W_Y}")
                    for ft in range(5):
                        va, off = XQ(ft)
                        a(f"buffer_load_dwordx2 {vr(76+2*ft,2)}, v{va}, {sWS}, s60 offen offset:{off} sc1")
                        a(f"buffer_load_dwordx2 {vr(86+2*ft,2)}, v{va}, {sWS}, s61 offen offset:{off} sc1")
                    a(f"{L}:")
                hook[0] = resid
            H = lambda k: hook.get(k, lambda: None)()
            if 'noprio' not in EXP and u >= 4:
                a(f"s_setprio {3 - ((u + 2) & 3) if u < 26 else int(os.environ.get('TAILP', '322110')[u - 26])}")
            e(0, 2)
            if not first:
                sm(N, N, 3)
            if k2:
                a(rd("R", u + 2))
            if HP[0] == 0:
                H(0)
            e(2, 5)
            a(f"s_waitcnt lgkmcnt({2 if last else 3 + (1 if k2 else 0)})")
            if not last:
                m4(N, N)
            if v1:
                a(rd("V", u + 1, 0))
            if HP[0] == 1:
                H(0)
            e(5, 13)
            sm(P, P, 0)
            if v1:
                a(rd("V", u + 1, 1))
            e(13, 18)
            sm(P, P, 1)
            if k2:
                a(rd("K", u + 2, 0))
            e(18, 22)
            if not last:
                mf(N, N, 0)
            if v1:
                a(rd("V", u + 1, 2))
            if HP[1] == 3:
                H(1)
            e(22, 26)
            a(f"s_waitcnt lgkmcnt({(2 if k2 else 0) + (3 if v1 else 0)})")
            sm(P, P, 2)
            if k2:
                a(rd("K", u + 2, 1))
            e(26, 29)
            if not last:
                mf(N, N, 1)
            if v1:
                a(rd("V", u + 1, 3))
            if HP[1] == 5:
                H(1)
            if HP[0] == 5:
                H(0)
            e(29, 32)
            if last:
                a("s_nop 1")
                sm(P, P, 3)
        self.stamp(9)
        a("s_setprio 0")
        O = R.O
        a(f"""
        s_add_u32 s60, s71, {sJ}
        s_lshl_b32 s60, s60, 6
        s_add_u32 s70, s60, {W_F6}
        s_lshl_b32 s61, s71, 6
        s_add_u32 s83, s61, {W_F6}
        s_mov_b32 s72, 0
        L_att_norm:
        s_nop 5
        v_mov_b32 v10, v{O+10}
        v_mov_b32 v11, v{O+10}
        v_add_f32 v12, abs(v{O}), abs(v{O+1})
        v_add_f32 v13, abs(v{O+2}), abs(v{O+3})
        v_permlane32_swap_b32 v10, v11
        v_add_f32 v12, v12, abs(v{O+4})
        v_add_f32 v13, v13, abs(v{O+5})
        v_add_f32 v12, v12, abs(v{O+6})
        v_add_f32 v13, v13, abs(v{O+7})
        v_add_f32 v12, v12, abs(v{O+8})
        v_add_f32 v13, v13, abs(v{O+9})
        v_add_f32 v12, v12, v13
        v_rcp_f32 v11, v10
        v_cmp_le_f32 vcc, {f32hex(2.0**-100)}, v10
        v_cmp_ge_f32 s[94:95], {"s73"}, v10
        v_cmp_ge_f32 s[100:101], {"s74"}, v12
        s_nop 0
        s_and_b64 vcc, vcc, s[94:95]
        s_and_b64 vcc, vcc, s[100:101]
        s_cmp_eq_u64 vcc, exec
        s_cbranch_scc1 L_att_ok
        s_cmp_eq_u32 s72, 0
        s_cbranch_scc1 L_att_fallback
        L_att_ok:
        """)
        for i in range(10):
            a(f"v_mul_f32 v{O+i}, v11, v{O+i}")
        for i in range(5):
            a(f"v_cvt_pk_bf16_f32 v{12+i}, v{O+2*i}, v{O+2*i+1}")
        a(f"""
        buffer_store_dwordx4 v[12:15], v225, {sWS}, s81 offen sc1
        s_mov_b32 exec_hi, 0
        buffer_store_dword v16, v226, {sWS}, s82 offen sc1
        s_mov_b64 exec, -1
        s_cmp_lg_u32 {sW}, 0
        s_waitcnt vmcnt(0)
        s_barrier
        """)
        self.warm_o = f"""
        buffer_load_dwordx4 v[8:11], v225, {sWS}, s81 offen sc1
        buffer_load_dword v12, v226, {sWS}, s82 offen sc1
        """ if 'warmo' in EXP else ""

    def out_setup(self):
        a = self.a
        L = self.lab()
        a(f"""
        v_lshrrev_b32 v61, 5, v2
        v_and_b32 v60, 15, v2
        v_lshlrev_b32 v226, 1, v60
        v_bfe_u32 v225, v2, 4, 1
        v_add_u32 v226, v226, v225         ; tau(n)
        s_lshl_b32 s60, {sT}, 5
        v_add_u32 v226, s60, v226
        v_lshlrev_b32 v225, 4, v226
        v_lshl_add_u32 v225, v61, 12, v225
        v_lshlrev_b32 v226, 2, v226
        s_lshl_b32 s60, {sLayer}, 3
        s_add_u32 s60, s60, {sX}
        s_lshl_b32 s71, s60, 5             ; (layer*8+X)*32
        s_add_u32 s60, s71, {sJ}
        s_lshl_b32 s81, s60, 13
        s_add_u32 s81, s81, {W_OM}
        s_lshl_b32 s82, s60, 10
        s_add_u32 s82, s82, {W_OR}
        s_cmp_ge_u32 {sW}, 4
        s_cbranch_scc1 {L}
        v_lshrrev_b32 v61, 4, v2
        s_lshr_b32 s64, {sJ}, 3            ; sub
        s_and_b32 s65, {sJ}, 7             ; slice
        s_lshl_b32 s66, s64, 6
        s_lshl_b32 s67, {sT4}, 4
        s_add_u32 s66, s66, s67
        v_add_u32 v62, s66, v60
        v_lshlrev_b32 v64, 8, v61
        v_lshl_add_u32 v64, v60, 3, v64    ; g*256 + tok*8
        v_lshl_add_u32 v63, v61, 8, v64    ; g*512 + tok*8
        v_add_u32 v64, 4096, v64
        v_mov_b32 v65, 0x7fffffff
        v_cmp_gt_u32 vcc, 2, v61
        s_mul_i32 s60, s65, {18*256}
        s_lshl_b32 s63, {sX}, 3
        s_lshr_b32 s67, s66, 5
        s_add_u32 s63, s63, s67
        s_mul_i32 s63, s63, 36864
        s_add_u32 s60, s60, s63
        s_and_b32 s63, s66, 16
        s_lshl_b32 s63, s63, 3
        s_add_u32 s67, s60, s63
        v_cndmask_b32 v64, v65, v64, vcc
        v_lshrrev_b32 v65, 1, v61
        v_lshlrev_b32 v65, 13, v65
        v_and_b32 v66, 1, v61
        v_lshl_add_u32 v65, v66, 12, v65
        v_lshl_add_u32 v65, v62, 4, v65    ; o main
        v_lshlrev_b32 v66, 12, v61
        v_lshl_add_u32 v66, v62, 2, v66    ; o rem
        v_lshlrev_b32 v67, 4, v2           ; W ft<4
        v_and_b32 v68, 7, v2
        v_lshlrev_b32 v68, 4, v68
        v_lshl_add_u32 v68, v61, 7, v68
        v_add_u32 v68, 4096, v68           ; W ft==4
        v_add_u32 v69, {9*4608}, v67
        v_add_u32 v70, {9*4608}, v68
        v_and_b32 v71, 31, v2
        v_lshlrev_b32 v71, 6, v71          ; flags
        v_min_u32 v72, 17, v2
        v_lshlrev_b32 v72, 8, v72          ; y flags
        s_mul_i32 s78, s65, {18*256}
        s_lshr_b32 s63, {sX}, 1
        s_lshl_b32 s63, s63, 6
        s_add_u32 s78, s78, s63
        s_add_u32 s78, s78, {W_F10}
        {L}:
        """)

    def next_layer(self):
        self.a(f"s_mov_b32 {sLayer}, 1\ns_mov_b32 s68, {W_X3}\ns_mov_b32 s87, 0")
        self.qkv_setup()

    def fetch_wo(self, first, n, va, step=1):
        Ll = self.lab()
        self.a(f"""
        s_and_b32 s60, {sJ}, 7
        s_mul_i32 s60, s60, {WO_B}
        s_add_u32 s60, s60, {W_WO + 1024*first}
        s_add_u32 s61, s60, {1024*n}
        s_mov_b32 m0, {L_WO + 1024*first}
        """)
        if step > 1:
            self.a("s_lshl_b32 s62, s62, 10\ns_add_u32 s60, s60, s62\ns_add_u32 m0, m0, s62\ns_nop 0")
        else:
            self.a("s_nop 0")
        self.a(f"""
        {Ll}:
        buffer_load_dwordx4 v{va}, {sWS}, s60 offen sc1 lds
        s_add_u32 m0, m0, {1024*step}
        s_add_u32 s60, s60, {1024*step}
        s_cmp_lt_u32 s60, s61
        s_cbranch_scc1 {Ll}
        """)

    def fallback(self):
        a, R = self.a, self.R
        S0 = R.S[0]
        a("L_att_fallback:")
        a(".reset_waits")
        a(f"""
        s_mov_b32 s72, 1
        s_mul_i32 s75, s69, {KV_B}
        s_add_u32 s75, s75, {W_KV}
        v_mov_b32 v221, 0xff7fffff
        s_waitcnt vmcnt(0)
        """)
        for p in range(2):
            Lb = self.lab("Lfb")
            a(f"s_mov_b32 s76, 0\n{Lb}:")
            a(f"""
            s_lshr_b32 s77, s76, 2
            s_and_b32 s78, s76, 3
            s_mul_i32 s77, s77, {KV_B}
            s_add_u32 s77, s77, s75
            s_lshl_b32 s79, s78, 11
            s_add_u32 s79, s79, s77
            buffer_load_dwordx4 {vr(R.K[0]+8,4)}, v218, {sWS}, s79 offen sc1
            buffer_load_dwordx4 {vr(R.K[0]+12,4)}, v218, {sWS}, s79 offen offset:1024 sc1
            s_lshl_b32 s79, s78, 8
            s_add_u32 s79, s79, s77
            s_add_u32 s79, s79, {KV_R}
            buffer_load_dword v{R.Kr[0]}, v219, {sWS}, s79 offen sc1
            """)
            if p:
                a(f"s_mul_i32 s79, s78, 2560\ns_add_u32 s79, s79, s77\ns_add_u32 s79, s79, {KV_V}")
                for i in range(4):
                    a(f"buffer_load_dwordx4 {vr(R.V[0]+4*i,4)}, v220, {sWS}, s79 offen offset:{640*i} sc1")
            a(f"""
            s_waitcnt vmcnt(0)
            v_mfma_f32_32x32x4bf16_1k {vr(S0,32)}, {vr(R.Kr[0],2)}, {vr(R.Qr,2)}, 0
            s_nop 15
            s_nop 3
            v_mfma_f32_32x32x16_bf16 {vr(S0,16)}, {vr(R.K[0]+8,4)}, {vr(R.Q,4)}, {vr(S0,16)}
            v_mfma_f32_32x32x16_bf16 {vr(S0+16,16)}, {vr(R.K[0]+12,4)}, {vr(R.Q,4)}, {vr(S0+16,16)}
            s_nop 15
            """)
            if p == 0:
                for i in range(16):
                    a(f"v_max3_f32 v221, v221, v{S0+2*i}, v{S0+2*i+1}")
            else:
                for i in range(32):
                    a(f"v_sub_f32 v{S0+i}, v{S0+i}, v221")
                for i in range(32):
                    a(f"v_exp_f32 v{S0+i}, v{S0+i}")
                a("s_nop 1")
                for g in range(4):
                    a(f"v_smfmac_f32_32x32x32_bf16 {vr(R.O,16)}, {vr(R.V[0]+4*g,4)}, {vr(S0+8*g,8)}, v{R.idx}")
            a(f"s_add_u32 s76, s76, 1\ns_cmp_lt_u32 s76, 32\ns_cbranch_scc1 {Lb}")
            if p == 0:
                a("v_mov_b32 v227, v221\ns_nop 1\nv_permlane32_swap_b32 v221, v227\ns_nop 1\nv_max_f32 v221, v221, v227")
                for i in range(16):
                    a(f"v_mov_b32 v{R.O+i}, 0")
        a("s_nop 15\ns_branch L_att_norm")

    def outproj(self):
        a = self.a
        OF, ACC, XR, YR = 128, 16, 76, 86
        WF = [36, 200, 220]
        a(f"""
        s_cbranch_scc1 L_op_nf
        s_mov_b64 exec, 1
        buffer_store_dwordx2 v[222:223], v224, {sWS}, s70 offen sc1
        s_mov_b64 exec, -1
        """)
        self.stamp(10)
        a(f"""
        L_op_nf:
        {self.warm_o}
        s_cmp_ge_u32 {sW}, 4
        s_cbranch_scc1 L_op_help
        s_mov_b32 s63, 0xffff0000
        """)
        XF = 96
        YF = [116 + i for i in range(12)] + [240 + i for i in range(8)]
        for i in range(10):
            a(f"v_lshlrev_b32 v{XF+2*i}, 16, v{XR+i}")
            a(f"v_and_b32 v{XF+2*i+1}, s63, v{XR+i}")
            a(f"v_lshlrev_b32 v{YF[2*i]}, 16, v{YR+i}")
            a(f"v_and_b32 v{YF[2*i+1]}, s63, v{YR+i}")
        self.srd(sA, "out", NB)
        a(f"""
        s_lshl_b32 s60, {sX}, 8
        v_add_u32 v72, s60, v62
        v_mul_u32_u24 v72, 1152, v72
        v_lshl_add_u32 v73, v61, 3, v72
        v_lshl_add_u32 v72, v61, 4, v72
        v_mov_b32 v4, 0x7fffffff
        v_cmp_gt_u32 vcc, 2, v61
        s_mul_i32 s78, s65, 144
        s_nop 0
        v_cndmask_b32 v73, v4, v73, vcc
        """)
        L = self.lab()
        a(f"s_cmp_lg_u32 {sW}, 0\ns_cbranch_scc1 {L}")
        self.poll2([(71, "s83", 0)], 56, 6)
        a(f"""
        {L}:
        s_barrier
        s_lshl_b32 s60, s71, 13
        s_add_u32 s60, s60, {W_OM}
        s_lshl_b32 s61, s71, 10
        s_add_u32 s61, s61, {W_OR}
        """)
        self.stamp(11)
        for s in range(16):
            a(f"buffer_load_dwordx4 {vr(OF+4*s,4)}, v65, {sWS}, s60 offen sc1")
            if s < 15:
                a("s_add_u32 s60, s60, 0x4000")
        for s in range(2):
            for i in range(4):
                a(f"buffer_load_dword v{OF+64+4*s+i}, v66, {sWS}, s61 offen offset:{1024*i} sc1")
            if s == 0:
                a("s_add_u32 s61, s61, 0x4000")

        def rdW(s):
            hi = s >= 9
            out = []
            for ft in range(5):
                va = (69 if hi else 67) if ft < 4 else (70 if hi else 68)
                off = L_WO + 4608 * (s - 9 * hi) + (1024 * ft if ft < 4 else 0)
                out.append(f"ds_read_b128 {vr(WF[s%3]+4*ft,4)}, v{va} offset:{off}")
            return out
        for l in rdW(0) + rdW(1):
            a(l)
        for s in range(18):
            nxt = rdW(s + 2) if s < 16 else []
            a(f"s_waitcnt vmcnt({23-s if s < 16 else (4 if s == 16 else 0)}) lgkmcnt({5 if s < 17 else 0})")
            for ft in range(5):
                d = vr(ACC + 4 * ft, 4)
                a(f"v_mfma_f32_16x16x32_bf16 {d}, {vr(WF[s%3]+4*ft,4)}, {vr(OF+4*s,4)}, {d if s else vr(XF+4*ft,4)}")
                if nxt:
                    a(nxt[ft])
        self.stamp(12)
        XF = ACC
        a(f"""
        s_lshl_b32 s60, {sX}, 2
        s_add_u32 s60, s60, s64
        s_lshl_b32 s60, s60, 13
        s_add_u32 s60, s60, {W_G7}
        s_lshl_b32 s61, {sT4}, 8
        s_add_u32 s60, s60, s61
        s_lshl_b32 s61, s65, 10
        s_add_u32 s61, s61, s60
        v_lshlrev_b32 v4, 4, v60
        v_cmp_gt_u32 vcc, 2, v61
        v_mov_b32 v10, s28
        v_mov_b32 v11, s29
        s_cmp_lg_u32 {sLayer}, 0
        s_cbranch_scc1 L_op_final
        """)
        a(f"v_pk_add_f32 v[12:13], {vr(XF,2)}, {vr(XF+2,2)}\nv_pk_mul_f32 v[14:15], {vr(XF,2)}, {vr(XF,2)}")
        a(f"v_pk_fma_f32 v[14:15], {vr(XF+2,2)}, {vr(XF+2,2)}, v[14:15]")
        for i in range(2, 10):
            if i == 8:
                for j in range(16, 20):
                    a(f"v_cndmask_b32 v{XF+j}, 0, v{XF+j}, vcc")
            a(f"v_pk_add_f32 v[12:13], v[12:13], {vr(XF+2*i,2)}")
            a(f"v_pk_fma_f32 v[14:15], {vr(XF+2*i,2)}, {vr(XF+2*i,2)}, v[14:15]")
        a("v_add_f32 v8, v12, v13\nv_add_f32 v9, v14, v15")

        def xsum():
            for op in ("v_permlane16_swap_b32", "v_permlane32_swap_b32"):
                a(f"""
                v_mov_b32 v12, v8
                v_mov_b32 v13, v9
                s_nop 1
                {op} v8, v12
                {op} v9, v13
                s_nop 0
                v_add_f32 v8, v8, v12
                v_add_f32 v9, v9, v13
                """)
        xsum()
        a(f"""
        s_mov_b64 exec, 0xffff
        buffer_store_dwordx4 v[8:11], v4, {sWS}, s61 offen sc1
        s_mov_b64 exec, -1
        v_lshl_add_u32 v4, v61, 10, v4
        s_add_u32 s61, s60, 4096
        """)
        if 'gnoack' not in EXP:
            a("s_waitcnt vmcnt(0)")
        if os.environ.get("GDELAY"):
            a(f"s_sleep {os.environ['GDELAY']}")
        Ld0, Ld1 = self.poll2([(4, "s60", 0), (4, "s61", 0)], 136, 7, width=4)
        a(f"""
        {Ld0}:
        v_add_f32 v8, v136, v140
        v_add_f32 v9, v137, v141
        """)
        xsum()
        self.stats(8, 9, 12, 14, 10)
        a("v_mov_b32 v13, v12\nv_mov_b32 v15, v14")
        a(f"s_add_u32 s60, s67, {W_X3}")
        for ft in range(5):
            for p in range(2):
                x, y, t = XF + 4 * ft + 2 * p, YF[4 * ft + 2 * p], 96 + 4 * ft + 2 * p
                a(f"v_pk_fma_f32 {vr(t,2)}, {vr(x,2)}, v[12:13], v[14:15]")
                a(f"v_pk_fma_f32 {vr(x,2)}, {vr(t,2)}, {vr(y,2)}, {vr(x,2)}")
            a(f"v_cvt_pk_bf16_f32 v{76+2*ft}, v{XF+4*ft}, v{XF+4*ft+1}")
            a(f"v_cvt_pk_bf16_f32 v{77+2*ft}, v{XF+4*ft+2}, v{XF+4*ft+3}")
            a(f"buffer_store_dwordx2 {vr(76+2*ft,2)}, v{XQ(ft)[0]}, {sWS}, s60 offen offset:{XQ(ft)[1]} sc1")
        self.next_layer()
        L = self.lab()
        a(f"""
        s_lshl_b32 s60, {sX}, 11
        s_add_u32 s60, s60, {W_F8}
        s_lshl_b32 s61, {sJ}, 6
        s_add_u32 s61, s61, s60
        v_lshlrev_b32 v8, 6, v6
        v_mov_b32 v10, s28
        v_mov_b32 v11, s29
        v_mov_b32 v12, 0
        v_mov_b32 v13, {L_CNT}
        v_mov_b32 v14, 1
        s_add_u32 s62, s67, {W_X3}
        s_waitcnt vmcnt(0)
        s_mov_b64 exec, 1
        ds_add_rtn_u32 v14, v13, v14
        s_waitcnt lgkmcnt(0)
        v_readfirstlane_b32 s3, v14
        s_mov_b64 exec, -1
        s_cmp_lg_u32 s3, 3
        s_cbranch_scc1 {L}w
        s_mov_b64 exec, 1
        buffer_store_dwordx2 v[10:11], v12, {sWS}, s61 offen sc1
        s_mov_b64 exec, -1
        {L}w:
        """)
        if 'warmx' in EXP:
            for ft in range(5):
                a(f"buffer_load_dwordx2 v[240:241], v{XQ(ft)[0]}, {sWS}, s62 offen offset:{XQ(ft)[1]} sc1")
        a(f"s_cbranch_scc1 {L}")
        self.poll2([(8, "s60", 0)], 220, 8)
        a(f"{L}:")
        a("s_branch L_next_layer")

        a("L_op_help:")
        a(".reset_waits")
        a(f"s_sub_u32 s62, {sW}, 4\ns_mov_b32 s3, 0\nv_mov_b32 v4, {L_CNT}\nv_mov_b32 v5, 0\nds_write_b32 v4, v5")
        self.fetch_wo(55, 26, 218, step=4)
        a("s_waitcnt vmcnt(0) lgkmcnt(0)\ns_barrier")
        a(f"s_cmp_lg_u32 {sLayer}, 0\ns_cbranch_scc1 L_end")
        self.next_layer()
        a("L_next_layer:")
        if self.stop == "gate2":
            a("s_branch L_end")
        a("s_branch L_qkv")

        a("L_op_final:")
        a(".reset_waits")
        for ft in range(5):
            a(f"v_cvt_pk_bf16_f32 v{76+2*ft}, v{XF+4*ft}, v{XF+4*ft+1}")
            a(f"v_cvt_pk_bf16_f32 v{77+2*ft}, v{XF+4*ft+2}, v{XF+4*ft+3}")
            if ft in (1, 3):
                a(f"buffer_store_dwordx4 {vr(74+2*ft,4)}, v72, {sA}, s78 offen offset:{32*(ft-1)}")
        a(f"buffer_store_dwordx2 v[84:85], v73, {sA}, s78 offen offset:128")
        a(f"""
        s_or_b32 s60, s2, {sW}
        s_cmp_lg_u32 s60, 0
        s_cbranch_scc1 L_end
        s_mov_b32 s60, {W_NONCE}
        """)
        self.flag_store("s60", 10)

    def build(self):
        a = self.a
        self.R = G.Regs
        self.prologue()
        self.prep()
        self.finish_if("prep")
        self.conv()
        self.relayout()
        self.colsum()
        self.finish_if("conv")
        a(f"s_mov_b32 s73, {f32hex(2.0**120)}\ns_mov_b32 s74, {f32hex(2.0**120)}")
        self.qkv()
        if self.stop == "qkv":
            a("s_waitcnt vmcnt(0)\ns_branch L_end")
        self.attention()
        self.finish_if("attn")
        self.outproj()
        a("L_end:")
        if self.ts:
            self.stamp(15)
            a(f"""
            s_lshl_b32 s60, s2, 3
            s_add_u32 s60, s60, {sW}
            s_lshl_b32 s60, s60, 8
            s_add_u32 s60, s60, {W_TS}
            v_lshlrev_b32 v4, 2, v2
            buffer_store_dword v255, v4, {sWS}, s60 offen
            """)
            if 'dbgts' in EXP:
                wg = int(os.environ.get("DBGWG", 0))
                a(f"""
                s_cmp_lg_u32 s2, {wg}
                s_cbranch_scc1 L_nodbg
                s_cmp_lg_u32 {sW}, 0
                s_cbranch_scc1 L_nodbg
                v_readlane_b32 s60, v255, 0
                s_nop 3
                v_subrev_u32 v5, s60, v255
                """)
                for n, i in enumerate((16, 1, 2, 3, 4, 5, 7, 8, 9, 11, 13, 21, 24, 25, 27, 31)):
                    a(f"v_readlane_b32 s61, v5, {i}\ns_nop 3\nv_writelane_b32 v6, s61, {n}")
                a(f"s_mov_b64 exec, 0xffff\nglobal_store_dword v4, v6, s[{PTR['dbg']}:{PTR['dbg']+1}]\nL_nodbg:")
        a("s_waitcnt vmcnt(0)")
        a("L_exit:")
        a("s_endpgm")
        self.fallback()
        self.try_body()
        for f in self.tail_blocks:
            f()
        a("L_code_end:")
        lines, added = fix_hazards(a.lines, verbose=True, tag="k")
        errs = check_waits(lines, "k")
        for e in errs:
            print(e)
        lines = [l for l in lines if not l.startswith(".reset_waits")]
        a.lines = lines
        body = a.text().replace("CODE_AFTER", "(L_code_end-L_pc_here)")
        ref = open(f"cdna_kernels/{NAME}.s.ref").read()
        head = ref[:ref.index("; Override launch")]
        txt = head + DOC + f"""; @launch grid=(256,1,1) block=(512,1,1) lds={LDS_BYTES}
.amdgcn_target "amdgcn-amd-amdhsa--gfx950"
.text
.p2align 12
.globl {NAME}_kernel
.p2align 8
.type {NAME}_kernel,@function
{NAME}_kernel:
""" + body + f""".section .rodata,"a"
.p2align 6
.amdhsa_kernel {NAME}_kernel
  .amdhsa_next_free_vgpr 256
  .amdhsa_next_free_sgpr 102
  .amdhsa_accum_offset 256
  .amdhsa_group_segment_fixed_size 0
  .amdhsa_kernarg_size 96
  .amdhsa_user_sgpr_count 2
  .amdhsa_user_sgpr_kernarg_segment_ptr 1
  .amdhsa_system_sgpr_workgroup_id_x 1
.end_amdhsa_kernel
"""
        return txt, errs


if __name__ == "__main__":
    out = sys.argv[1]
    stop = None
    ts = False
    for x in sys.argv[2:]:
        if x == "ts":
            ts = True
        elif x == "ts2":
            ts = 2
        else:
            stop = x
    txt, errs = G(stop, ts).build()
    open(out, "w").write(txt)
    print("written", out, len(txt), "bytes;", len(errs), "wait errors")
```

```python
import sys
from asmlib import Asm, fix_hazards, check_waits

NAME = "interleave_layers__ssm_conv_h3__softmax_full_mha__prompt"
S, D = 2048, 576
NB = S * D * 2

W_NONCE = 0
W_F1 = 0x1000
W_F3 = 0x5000
W_F2 = 0x6C000
W_F4 = 0x8000
W_F5 = 0x12000
W_F6 = 0x52000
W_F8 = 0x5A000
W_G7 = 0x70000
W_ST0 = 0xB0000
W_CSP = 0x1C0000
W_F11 = 0x120000
W_F10 = 0x110000
W_G9 = 0x100000
W_TS = 0x140000
W_U = 0x210000
W_WQ = 0x500000
W_WO = 0x700000
W_X1 = 0x800000
W_X0 = 0x2000000
W_Y = 0xB00000
W_X3 = 0xE00000
W_KV = 0x1100000
W_OM = 0x1B00000
W_OR = 0x1F00000
W_SIZE = 0x2400000
WQ_B, WO_B, KV_B = 64512, 82944, 19456
KV_V, KV_R = 8192, 18432

L_HC, HC_B = 0, 4160
L_U, U_B = 66560, 4608
L_WO = 0
L_OWN = 0
L_RING = 37632
L_CS = 96000
L_ST = 96256
L_REM = 96256
L_QR = 98304
L_WQ = 99328
L_PK = L_WQ
L_PV = L_WQ + 10240
L_CNT = 98304
L_PX = L_PV + 9216
LDS_BYTES = 163840

sWS = "s[4:7]"
sA, sB, sC, sD_ = "s[8:11]", "s[12:15]", "s[16:19]", "s[20:23]"
sX, sJ, sW, sLayer = "s24", "s25", "s26", "s27"
sT, sT4 = "s30", "s31"
sTag = "s[28:29]"
sP = 32
PTR = dict(q=32, k=34, v=36, sk=38, h=40, dd=42, bx=44, wqkv=46, wo=48, out=50, dbg=52, ws=54)
SPIN_MAX = 400000
HP = [int(x) for x in __import__('os').environ.get('HP', '13')]
LOOK_AT = int(__import__('os').environ.get('LOOK', 2))
POLLS = {1: '1,0,0', 4: '0,2,0', 6: '1,2,4', 8: '1,2,4'}
PUB_AT = int(__import__('os').environ.get('PUB', 1))
TRY_AT = [int(x) for x in __import__('os').environ.get('TRY', '3').split(',')]
WQ1 = int(__import__('os').environ.get('WQ1', 63))

C_SCALE = 18 ** -0.5 * 1.4426950408889634


def f32hex(x):
    import struct
    return "0x%08x" % struct.unpack("<I", struct.pack("<f", x))[0]


def XQ(ft):
    return (63, 2048 * (ft >> 1) + 256 * (ft & 1)) if ft < 4 else (64, 0)


def vr(a, n):
    return f"v[{a}:{a+n-1}]" if n > 1 else f"v{a}"


import os
EXP = os.environ.get('EXP', '').split(',') + ['hearly', 'f2first', 'fixorder', 'warmx'] + ([] if os.environ.get('NOTMAP') else ['tmap'])


DOC = """;
;   layer  : qkv = LN(x) @ wqkv for (head J, tokens 256X..) with LN applied after the product
;   softmax: p = exp2(s) is first tried without a shift.  The row sum and the outputs are then range-checked
;            (sum in [2^-100, 2^120], outputs finite); any wave that fails the check recomputes its rows with
;
"""


class G:
    def __init__(self, stop=None, ts=False):
        self.a = Asm()
        self.stop = stop
        self.ts = ts
        self.nlab = 0
        self.tail_blocks = []

    def lab(self, p="L"):
        self.nlab += 1
        return f"{p}_{self.nlab}"

    def srd(self, s, ptr, nbytes):
        b = int(s[2:s.index(":")])
        p = PTR[ptr]
        self.a(f"s_mov_b32 s{b}, s{p}\ns_mov_b32 s{b+1}, s{p+1}\ns_mov_b32 s{b+2}, {nbytes}\ns_mov_b32 s{b+3}, 0x20000")

    def stamp(self, i):
        if not self.ts or (self.ts == 2 and i not in (0, 5, 15)):
            return
        self.a(f"s_memrealtime s[98:99]\ns_memtime s[92:93]\ns_lshl_b32 s97, {sLayer}, 4\ns_add_u32 m0, s97, {i}\ns_waitcnt lgkmcnt(0)\nv_writelane_b32 v255, s98, m0\ns_add_u32 m0, m0, 32\ns_nop 0\nv_writelane_b32 v255, s92, m0")

    def flag_store(self, soff, vtmp):
        self.a(f"""
        v_mov_b32 v{vtmp}, s28
        v_mov_b32 v{vtmp+1}, s29
        v_mov_b32 v{vtmp+2}, 0
        s_mov_b64 exec, 1
        buffer_store_dwordx2 {vr(vtmp,2)}, v{vtmp+2}, {sWS}, {soff} offen sc1
        s_mov_b64 exec, -1
        """)

    def poll(self, loads, vt, code, first=0, nap=1):
        a = self.a
        L, Ld = self.lab("Lpoll"), self.lab("Lpolld")
        a(f"s_mov_b32 s96, {SPIN_MAX}")
        if first:
            L1, L1d = self.lab("Lp1"), self.lab("Lp1d")
            va, so, im = loads[0]
            a(f"""
            s_mov_b64 exec, 1
            {L1}:
            buffer_load_dwordx2 {vr(vt,2)}, v{va}, {sWS}, {so} offen offset:{im} sc1
            s_waitcnt vmcnt(0)
            v_cmp_eq_u64 vcc, {sTag}, {vr(vt,2)}
            s_cmp_lg_u64 vcc, 0
            s_cbranch_scc1 {L1d}
            s_sleep {first}
            s_sub_u32 s96, s96, 1
            s_cmp_gt_u32 s96, 1
            s_cbranch_scc1 {L1}
            {L1d}:
            s_mov_b64 exec, -1
            """)
        a(f"{L}:")
        for i, (va, so, im) in enumerate(loads):
            if str(code) in os.environ.get("ATOM", "").split(","):
                a(f"v_mov_b32 v{vt+2*i}, 0\nv_mov_b32 v{vt+2*i+1}, 0")
                a(f"buffer_atomic_or_x2 {vr(vt+2*i,2)}, v{va}, {sWS}, {so} offen offset:{im} sc0 sc1")
            else:
                a(f"buffer_load_dwordx2 {vr(vt+2*i,2)}, v{va}, {sWS}, {so} offen offset:{im} sc1")
        a("s_waitcnt vmcnt(0)")
        for i in range(len(loads)):
            if i == 0:
                a(f"v_cmp_ne_u64 vcc, {sTag}, {vr(vt,2)}")
            else:
                a(f"v_cmp_ne_u64 s[94:95], {sTag}, {vr(vt+2*i,2)}\ns_or_b64 vcc, vcc, s[94:95]")
        a(f"""
        s_cmp_eq_u64 vcc, 0
        s_cbranch_scc1 {Ld}
        s_mov_b64 exec, vcc
        """)
        if nap:
            a(f"s_sleep {nap}")
        a(f"""
        s_sub_u32 s96, s96, 1
        s_cmp_lg_u32 s96, 0
        s_cbranch_scc1 {L}
        """)
        self.timeout_mark(code, vt)
        a(f"{Ld}:\ns_mov_b64 exec, -1")

    def poll2(self, loads, vt, code, width=2, first=0):
        a = self.a
        n = len(loads)
        if width == 2:
            ack, first, nap = map(int, os.environ.get(f"P{code}", POLLS[code]).split(","))
            if ack:
                a("s_waitcnt vmcnt(0)")
            return self.poll(loads, vt, code, first=first, nap=nap)
        L, Ld0, Ld1, Ld = self.lab("Lq"), self.lab("Lq0"), self.lab("Lq1"), self.lab("Lqd")
        op = "buffer_load_dwordx2" if width == 2 else "buffer_load_dwordx4"

        def issue(k):
            for i, (va, so, im) in enumerate(loads):
                a(f"{op} {vr(vt+width*(n*k+i),width)}, v{va}, {sWS}, {so} offen offset:{im} sc1")

        def check(k, tgt):
            a(f"s_waitcnt vmcnt({n})")
            for i in range(n):
                r = vr(vt + width * (n * k + i) + width - 2, 2)
                if i == 0:
                    a(f"v_cmp_ne_u64 vcc, {sTag}, {r}")
                else:
                    a(f"v_cmp_ne_u64 s[94:95], {sTag}, {r}\ns_or_b64 vcc, vcc, s[94:95]")
            a(f"s_cmp_eq_u64 vcc, 0\ns_cbranch_scc1 {tgt}")
            if width == 2:
                a("s_mov_b64 exec, vcc")
        a(f"s_mov_b32 s96, {SPIN_MAX}")
        if first:
            L1, L1d = self.lab("Lp1"), self.lab("Lp1d")
            va, so, im = loads[0]
            a(f"""
            s_mov_b64 exec, 1
            {L1}:
            buffer_load_dwordx2 {vr(vt,2)}, v{va}, {sWS}, {so} offen offset:{im} sc1
            s_waitcnt vmcnt(0)
            v_cmp_eq_u64 vcc, {sTag}, {vr(vt,2)}
            s_cmp_lg_u64 vcc, 0
            s_cbranch_scc1 {L1d}
            s_sleep {first}
            s_sub_u32 s96, s96, 1
            s_cmp_gt_u32 s96, 1
            s_cbranch_scc1 {L1}
            {L1d}:
            s_mov_b64 exec, -1
            """)
        if 'pipe' not in EXP and 'gpipe' not in EXP:
            a(f"{L}:")
            issue(0)
            n0, n = n, 0
            a("s_waitcnt vmcnt(0)")
            for i in range(n0):
                r = vr(vt + width * i + width - 2, 2)
                a(f"v_cmp_ne_u64 vcc, {sTag}, {r}" if i == 0 else f"v_cmp_ne_u64 s[94:95], {sTag}, {r}\ns_or_b64 vcc, vcc, s[94:95]")
            a(f"s_cmp_eq_u64 vcc, 0\ns_cbranch_scc1 {Ld0}\n{'s_sleep ' + os.environ['GNAP'] if os.environ.get('GNAP') else ''}\ns_sub_u32 s96, s96, 1\ns_cmp_lg_u32 s96, 0\ns_cbranch_scc1 {L}")
            self.timeout_mark(code, vt)
            return Ld0, Ld1
        issue(0)
        a(f"{L}:")
        issue(1)
        check(0, Ld0 if width > 2 else Ld)
        issue(0)
        check(1, Ld1 if width > 2 else Ld)
        a(f"""
        s_sub_u32 s96, s96, 1
        s_cmp_lg_u32 s96, 0
        s_cbranch_scc1 {L}
        s_waitcnt vmcnt(0)
        """)
        self.timeout_mark(code, vt)
        if width > 2:
            return Ld0, Ld1
        a(f"{Ld}:\ns_mov_b64 exec, -1")

    def timeout_mark(self, code, vt):
        self.a(f"""
        v_mov_b32 v{vt}, {code}
        v_mov_b32 v{vt+1}, 0
        global_store_dword v{vt+1}, v{vt}, s[{PTR['dbg']}:{PTR['dbg']+1}]
        s_waitcnt vmcnt(0)
        """)

    def finish_if(self, name):
        if self.stop == name:
            self.a("s_branch L_end")

    def prologue(self):
        a = self.a
        a(f"""
        s_cmp_ge_u32 s2, 256
        s_cbranch_scc1 L_exit
        s_load_dwordx16 s[32:47], s[0:1], 0
        s_load_dwordx8 s[48:55], s[0:1], 64
        s_getpc_b64 s[16:17]
        L_pc_here:
        s_and_b32 s17, s17, 0xffff
        s_mov_b32 s18, CODE_AFTER
        s_mov_b32 s19, 0x20000
        s_lshr_b32 s3, s2, 3
        s_mul_i32 s3, s3, 1280
        v_lshlrev_b32 v1, 6, v0
        v_cmp_gt_u32 vcc, 20, v0
        v_bfrev_b32 v2, -2
        v_cndmask_b32 v1, v2, v1, vcc
        buffer_load_dword v254, v1, {sC}, s3 offen
        v_lshrrev_b32 v1, 6, v0
        v_and_b32 v2, 63, v0
        s_and_b32 {sX}, s2, 7
        v_readfirstlane_b32 {sW}, v1
        s_lshr_b32 {sJ}, s2, 3
        s_mov_b32 {sLayer}, 0
        s_add_u32 {sT}, {sW}, {sJ}
        s_and_b32 {sT4}, {sT}, 3
        s_and_b32 {sT}, {sT}, 7
        s_waitcnt lgkmcnt(0)
        """)
        self.srd(sWS, "ws", W_SIZE)
        a("v_mov_b32 v248, 0")
        if self.ts:
            a("v_mov_b32 v255, 0")

    def div9(self, vidx, vrow, vj):
        self.a(f"""
        v_mul_hi_u32 v{vrow}, v{vidx}, s64
        v_mul_u32_u24 v{vj}, 9, v{vrow}
        v_sub_u32 v{vj}, v{vidx}, v{vj}
        """)

    def prep(self):
        a = self.a
        HR = 128
        self.stamp(0)
        a(f"s_load_dwordx2 {sTag}, s[54:55], {W_NONCE}")
        self.srd(sA, "k", NB)
        self.srd(sB, "v", NB)
        a(f"""
        s_mov_b32 s64, 0x1c71c71d
        """)
        if 'tmap' in EXP:
            a(f"s_and_b32 s84, {sJ}, 7\ns_lshr_b32 s85, {sJ}, 3\ns_lshl_b32 s60, {sX}, 2\ns_add_u32 s85, s85, s60")
        else:
            a(f"s_mov_b32 s84, {sX}\ns_mov_b32 s85, {sJ}")
        if 'uhint' in EXP:
            a(f"""
            s_cmp_ge_u32 {sW}, 5
            s_cbranch_scc1 L_prep_np
            v_and_b32 v3, 15, v2
            v_lshrrev_b32 v4, 4, v2
            v_lshlrev_b32 v100, 12, v3
            v_lshl_add_u32 v100, v4, 4, v100
            s_lshl_b32 s62, {sW}, 4
            v_add_u32 v8, s62, v3
            v_cmp_gt_u32 vcc, 72, v8
            v_bfrev_b32 v7, -2
            s_mul_i32 s66, s84, 72
            s_add_u32 s66, s66, s62
            s_lshl_b32 s66, s66, 12
            s_lshl_b32 s63, s85, 7
            s_add_u32 s66, s66, s63
            s_add_u32 s66, s66, {W_U}
            v_cndmask_b32 v100, v7, v100, vcc
            v_mov_b32 v76, -1
            v_mov_b32 v77, -1
            v_mov_b32 v78, -1
            v_mov_b32 v79, -1
            buffer_store_dwordx4 v[76:79], v100, {sWS}, s66 offen sc1
            buffer_store_dwordx4 v[76:79], v100, {sWS}, s66 offen offset:64 sc1
            L_prep_np:
            """)
        a(f"""
        s_mul_i32 s60, s85, {64*1152}
        s_mul_i32 s61, s84, 144
        s_add_u32 s60, s60, s61
        s_sub_u32 s61, s60, {4*1152}
        """)
        self.div9(0, 3, 4)
        a(f"""
        v_mul_u32_u24 v3, 1152, v3
        v_lshl_add_u32 v5, v4, 4, v3
        v_add_u32 v6, s61, v5
        s_lshl_b32 s62, {sW}, 10
        s_add_u32 m0, s62, {L_PK}
        v_add_u32 v7, 512, v0
        buffer_load_dwordx4 v6, {sA}, 0 offen lds
        s_add_u32 m0, s62, {L_PV}
        s_cmp_ge_u32 {sW}, 3
        buffer_load_dwordx4 v5, {sB}, s60 offen lds
        s_cbranch_scc1 L_prep_d3
        s_cmp_eq_u32 {sW}, 2
        s_cbranch_scc1 L_prep_d2
        """)
        self.div9(7, 3, 4)
        a(f"""
        v_mul_u32_u24 v3, 1152, v3
        v_lshl_add_u32 v5, v4, 4, v3
        v_add_u32 v6, s61, v5
        s_add_u32 m0, s62, {L_PK+8192}
        s_nop 0
        buffer_load_dwordx4 v6, {sA}, 0 offen lds
        s_branch L_prep_d3
        L_prep_d2:
        v_add_u32 v7, 512, v2
        """)
        self.div9(7, 3, 4)
        a(f"""
        v_mul_u32_u24 v3, 1152, v3
        v_lshl_add_u32 v5, v4, 4, v3
        s_mov_b32 m0, {L_PV+8192}
        s_nop 0
        buffer_load_dwordx4 v5, {sB}, s60 offen lds
        L_prep_d3:
        s_cmp_ge_u32 {sW}, 5
        s_cbranch_scc1 L_prep_other
        """)
        self.sk_load()
        if 'hearly' in EXP:
            a(f"s_cmp_lg_u32 {sW}, 4\ns_cbranch_scc1 L_prep_k0\ns_cmp_ge_u32 {sJ}, 18\ns_cbranch_scc1 L_prep_k0")
            self.h_issue(HR)
            a("s_waitcnt vmcnt(8)\ns_branch L_prep_k1\nL_prep_k0:\ns_waitcnt vmcnt(0)\nL_prep_k1:")
        else:
            a("s_waitcnt vmcnt(0)")
        a(f"""
        v_bfe_u32 v5, v2, 2, 2
        v_lshl_add_u32 v5, v4, 3, v5      ; 8G + j
        v_mul_u32_u24 v5, 144, v5
        v_and_b32 v6, 3, v2
        v_lshl_add_u32 v5, v6, 3, v5
        s_lshl_b32 s62, {sW}, 5
        s_add_u32 s62, s62, {L_PK}
        v_add_u32 v5, s62, v5
        s_waitcnt lgkmcnt(0)
        """)
        self.stamp(19)
        a("s_barrier")
        self.stamp(16)
        KR, VR_, KF, AC, WT = 12, 24, 32, 56, 72
        for o in range(2):
            for i in range(3):
                a(f"ds_read_b64_tr_b16 {vr(KR+6*o+2*i,2)}, v5 offset:{4608*o+576*i}")
            for i in range(2):
                a(f"ds_read_b64_tr_b16 {vr(VR_+4*o+2*i,2)}, v5 offset:{L_PV-L_PK+4608*o+576*i}")
        a(f"""
        s_mov_b32 s65, 0xffff0000
        v_lshlrev_b32 v{WT}, 16, v10
        v_and_b32 v{WT+1}, s65, v10
        v_lshlrev_b32 v{WT+2}, 16, v11
        v_and_b32 v{WT+3}, s65, v11
        v_lshlrev_b32 v6, 12, v3
        v_lshl_add_u32 v6, v4, 4, v6
        v_mov_b32 v7, 0x7fffffff
        s_mul_i32 s62, {sW}, 16
        v_add_u32 v8, s62, v3
        v_cmp_gt_u32 vcc, 72, v8
        s_lshl_b32 s62, s61, 12
        s_lshl_b32 s63, s85, 7
        s_add_u32 s62, s62, s63
        s_add_u32 s62, s62, {W_U}
        v_cndmask_b32 v6, v7, v6, vcc
        """)
        for o in range(2):
            a(f"s_waitcnt lgkmcnt({7 if o == 0 else 2})")
            kf = KF + 12 * o
            for d in range(6):
                if d:
                    a(f"v_lshlrev_b32 v{kf+2*d}, 16, v{KR+6*o+d}")
                a(f"v_and_b32 v{kf+2*d+1}, s65, v{KR+6*o+d}")
            ac = AC + 8 * o
            for t in range(8):
                a(f"v_mul_f32 v{ac+t}, v{WT}, v{kf+4+t}")
            for i in range(1, 4):
                for t in range(8):
                    a(f"v_fmac_f32 v{ac+t}, v{WT+i}, v{kf+4+t-i}")
            a(f"s_waitcnt lgkmcnt({5 if o == 0 else 0})")
            for d in range(4):
                a(f"v_lshlrev_b32 v{kf+2*d}, 16, v{VR_+4*o+d}")
                a(f"v_and_b32 v{kf+2*d+1}, s65, v{VR_+4*o+d}")
            for t in range(8):
                a(f"v_mul_f32 v{ac+t}, v{ac+t}, v{kf+t}")
            for d in range(4):
                a(f"v_cvt_pk_bf16_f32 v{76+4*o+d}, v{ac+7-2*d}, v{ac+6-2*d}")
            a(f"buffer_store_dwordx4 {vr(76+4*o,4)}, v6, {sWS}, s62 offen offset:{64*o} sc1")
        self.stamp(17)
        a(f"""
        s_add_u32 s28, s28, 1
        s_addc_u32 s29, s29, 0
        s_lshl_b32 s60, s84, 5
        s_add_u32 s60, s60, s85
        s_lshl_b32 s60, s60, 6
        s_add_u32 s60, s60, {W_F1}
        v_mov_b32 v10, s28
        v_mov_b32 v11, s29
        v_mov_b32 v12, 0
        s_mov_b32 s81, 256
        s_cmp_lg_u32 {sW}, 0
        {'' if 'uhint' in EXP else 's_waitcnt vmcnt(0)'}
        s_barrier
        s_cbranch_scc1 L_prep_nf
        s_mov_b64 exec, 1
        buffer_store_dwordx2 v[10:11], v12, {sWS}, s60 offen sc1
        s_mov_b64 exec, -1
        L_prep_nf:
        s_cmp_lt_u32 {sW}, 4
        s_cbranch_scc1 L_prep_done
        s_branch L_prep_second
        """)

        a("L_prep_other:")
        a(".reset_waits")
        a(f"""
        s_mul_i32 s70, {sX}, 14
        s_add_u32 s70, s70, {sJ}
        s_sub_u32 s70, s70, 18            ; unit
        s_cmp_ge_u32 {sJ}, 18
        s_cbranch_scc1 L_prep_r
        """)
        a(f"""
        s_lshl_b32 s81, {sX}, 4
        s_add_u32 s81, s81, {sJ}
        s_cmp_lt_u32 {sJ}, 16
        s_cselect_b32 s81, s81, 256
        s_cmp_eq_u32 {sW}, 5
        s_cselect_b32 s81, s81, 256
        """)
        if 'hearly' in EXP:
            self.h_issue(HR)
            if 'x0late' in EXP:
                a("s_waitcnt vmcnt(8) lgkmcnt(0)\ns_branch L_prep_w1")
            else:
                a("s_cmp_lt_u32 s81, 128\ns_cbranch_scc1 L_prep_hx\ns_waitcnt vmcnt(8) lgkmcnt(0)\ns_branch L_prep_w1\nL_prep_hx:")
                self.x0_issue()
                a("s_waitcnt vmcnt(26) lgkmcnt(0)\ns_branch L_prep_w1")
        else:
            a("s_branch L_prep_w0")
        a(f"""
        L_prep_r:
        s_cmp_ge_u32 s70, 72
        s_cbranch_scc1 L_prep_w0
        s_cmp_lt_u32 {sW}, 6
        s_cbranch_scc1 L_prep_w0
        """)
        if 'rawlate' not in EXP:
            self.dma_wraw("q")
            a(f"s_waitcnt vmcnt(13) lgkmcnt(0)\ns_branch L_prep_w1")
        a(f"""
        L_prep_w0:
        s_waitcnt vmcnt(0) lgkmcnt(0)
        L_prep_w1:
        s_barrier                        ; B0
        s_add_u32 s28, s28, 1
        s_addc_u32 s29, s29, 0
        s_barrier                        ; B1
        L_prep_second:
        s_sub_u32 s67, {sW}, 4
        s_cmp_ge_u32 {sJ}, 18
        s_cbranch_scc1 L_prep_done
        """)
        if 'hearly' not in EXP:
            self.h_issue(HR)
        if 'x0late' in EXP:
            a("s_waitcnt vmcnt(0)\ns_cmp_ge_u32 s81, 128\ns_cbranch_scc1 L_prep_b1")
            self.x0_issue()
            a("L_prep_b1:\ns_mov_b32 s61, s67")
            self.build_h(HR)
            a("s_cmp_ge_u32 s81, 128\ns_cbranch_scc1 L_prep_b2")
            self.x0_stats()
            self.x0_store(wait=False)
            a("L_prep_b2:\ns_waitcnt lgkmcnt(0)\ns_barrier")
        else:
            a("s_waitcnt vmcnt(0)\ns_cmp_ge_u32 s81, 128\ns_cbranch_scc1 L_prep_b2")
            self.x0_stats()
            self.x0_store(wait=False)
            a("L_prep_b2:\ns_mov_b32 s61, s67")
            self.build_h(HR)
        a("s_cmp_ge_u32 s81, 128\ns_cbranch_scc1 L_prep_b3\ns_waitcnt vmcnt(0)")
        self.flag_store("s82", 10)
        a("L_prep_b3:" if 'x0late' in EXP else "L_prep_b3:\ns_waitcnt lgkmcnt(0)\ns_barrier")
        a("L_prep_done:")
        a(".reset_waits")
        self.stamp(1)

    def h_issue(self, HR):
        a = self.a
        self.srd(sD_, "h", NB)
        a(f"""
        s_mul_i32 s63, {sX}, 18
        s_add_u32 s63, s63, {sJ}
        v_lshlrev_b32 v9, 4, v2
        s_lshl_b32 s63, s63, 2
        s_add_u32 s63, s63, {sW}
        s_sub_u32 s63, s63, 4
        s_lshl_b32 s63, s63, 12
        """)
        for i in range(4):
            b = HR + 8 * i
            a(f"buffer_load_dwordx4 {vr(b,4)}, v9, {sD_}, s63 offen offset:{1024*i}")
            a(f"buffer_load_dwordx4 {vr(b+4,4)}, v9, {sD_}, s63 offen offset:{1024*i+8}")

    def x0_issue(self):
        a = self.a
        self.srd(sC, "q", NB)
        a(f"""
        s_mul_i32 s61, s81, {16*1152}
        v_lshrrev_b32 v24, 3, v2
        v_and_b32 v25, 7, v2
        v_mul_u32_u24 v26, 2304, v24
        v_lshl_add_u32 v26, v25, 4, v26
        """)
        for i in range(9):
            a(f"buffer_load_dwordx4 {vr(168+8*i,4)}, v26, {sC}, s61 offen offset:{128*i}")
            a(f"buffer_load_dwordx4 {vr(172+8*i,4)}, v26, {sC}, s61 offen offset:{128*i+1152}")

    def x0_stats(self):
        a = self.a
        a("""
        v_mov_b32 v28, 0
        v_mov_b32 v29, 0
        v_mov_b32 v30, 0
        v_mov_b32 v31, 0
        v_mov_b32 v27, 0x3f803f80
        s_waitcnt vmcnt(0)
        """)
        for i in range(9):
            b = 168 + 8 * i
            for j in range(4):
                for h in range(2):
                    a(f"v_dot2c_f32_bf16 v{28+2*h}, v{b+4*h+j}, v27")
                    a(f"v_dot2c_f32_bf16 v{29+2*h}, v{b+4*h+j}, v{b+4*h+j}")
            a(f"v_swap_b32 v{b+2}, v{b+4}\nv_swap_b32 v{b+3}, v{b+5}")
        for m in ("quad_perm:[1,0,3,2]", "quad_perm:[2,3,0,1]", "row_half_mirror"):
            for j in range(4):
                a(f"v_add_f32_dpp v{28+j}, v{28+j}, v{28+j} {m} row_mask:0xf bank_mask:0xf bound_ctrl:0")
        self.stats(28, 29, 32, 33, 27)
        self.stats(30, 31, 34, 35, 27)

    def x0_store(self, wait=True):
        a = self.a
        a(f"""
        s_lshl_b32 s82, s81, 6
        s_add_u32 s82, s82, {W_F2}
        s_lshl_b32 s63, s81, 7
        s_add_u32 s63, s63, {W_ST0}
        v_lshlrev_b32 v24, 4, v24
        v_lshl_add_u32 v26, v25, 9, v24
        v_cmp_eq_u32 vcc, 0, v25
        s_lshr_b32 s60, s81, 1
        s_mul_i32 s60, s60, 36864
        s_and_b32 s61, s81, 1
        s_lshl_b32 s61, s61, 7
        s_add_u32 s60, s60, s61
        s_add_u32 s60, s60, {W_X0}
        s_mov_b64 exec, vcc
        buffer_store_dwordx4 v[32:35], v24, {sWS}, s63 offen sc1
        s_mov_b64 exec, -1
        """)
        for i in range(9):
            b = 168 + 8 * i
            a(f"buffer_store_dwordx4 {vr(b,4)}, v26, {sWS}, s60 offen sc1")
            a(f"buffer_store_dwordx4 {vr(b+4,4)}, v26, {sWS}, s60 offen offset:256 sc1")
            if i < 8:
                a("s_add_u32 s60, s60, 4096")
        if wait:
            a("s_waitcnt vmcnt(0)")
            self.flag_store("s82", 10)

    def sk_load(self):
        self.srd(sC, "sk", D * 8)
        self.a(f"""
        v_and_b32 v3, 15, v2
        v_lshrrev_b32 v4, 4, v2           ; G
        s_mul_i32 s61, s84, 72
        s_lshl_b32 s62, {sW}, 4
        s_add_u32 s61, s61, s62
        v_add_u32 v5, s61, v3
        v_lshlrev_b32 v5, 3, v5
        buffer_load_dwordx2 v[10:11], v5, {sC}, 0 offen
        """)

    def arrive(self, cnt, last, base, index, vm=0):
        L = self.lab()
        self.a(f"""
        v_mov_b32 v8, {cnt}
        v_mov_b32 v9, 1
        s_waitcnt vmcnt({vm})
        s_mov_b64 exec, 1
        ds_add_rtn_u32 v9, v8, v9
        s_mov_b64 exec, -1
        {index}
        s_lshl_b32 s60, s60, 6
        s_add_u32 s60, s60, {base}
        s_waitcnt lgkmcnt(0)
        v_readfirstlane_b32 s61, v9
        s_cmp_lg_u32 s61, {last}
        s_cbranch_scc1 {L}
        """)
        self.flag_store("s60", 10)
        self.a(f"{L}:")

    def build_h(self, HR):
        a = self.a
        T = 84
        a(f"""
        s_mul_i32 s63, s61, {4*HC_B}
        s_add_u32 s63, s63, {L_HC+32}
        v_lshl_add_u32 v7, v2, 4, s63
        """)
        for i in range(4):
            A, C = HR + 8 * i, HR + 8 * i + 4
            t = T + 12 * (i & 1)
            d = [A, A + 1, A + 2, A + 3, C + 2, C + 3]
            if i == 0:
                a(f"v_readlane_b32 s60, v{HR}, 0\nv_readlane_b32 s62, v{HR+1}, 0")
            a(f"ds_write_b128 v7, {vr(A,4)} offset:{1024*i}")
            for j in range(4):
                a(f"v_alignbyte_b32 v{t+j}, v{d[j+1]}, v{d[j]}, 2")
            a(f"ds_write_b128 v7, {vr(t,4)} offset:{HC_B+1024*i}")
            for j in range(4):
                a(f"v_mov_b32 v{t+4+j}, v{d[j+1]}")
            a(f"ds_write_b128 v7, {vr(t+4,4)} offset:{2*HC_B+1024*i}")
            for j in range(4):
                a(f"v_alignbyte_b32 v{t+8+j}, v{d[j+2]}, v{d[j+1]}, 2")
            a(f"ds_write_b128 v7, {vr(t+8,4)} offset:{3*HC_B+1024*i}")
        a(f"""
        v_mov_b32 v16, s60
        v_mov_b32 v17, s62
        v_mov_b32 v18, 0
        v_mov_b32 v19, 0
        v_mov_b32 v20, 0
        v_mov_b32 v21, 0
        v_lshlrev_b32 v8, 4, v2
        v_sub_u32 v8, 64, v8
        v_cmp_eq_u32 vcc, 0, v2
        v_lshlrev_b64 v[22:23], v8, v[16:17]
        s_sub_u32 s63, s63, 32
        v_mul_u32_u24 v7, {HC_B}, v2
        v_add_u32 v7, s63, v7
        v_cndmask_b32 v22, v22, v18, vcc
        v_cndmask_b32 v23, v23, v18, vcc
        s_mul_i32 s63, s61, {U_B}
        s_add_u32 s63, s63, {L_U}
        v_lshl_add_u32 v8, v2, 3, s63
        ds_write_b64 v8, v[18:19]
        s_mov_b64 exec, 15
        ds_write_b128 v7, v[18:21]
        ds_write_b128 v7, v[20:23] offset:16
        s_mov_b64 exec, -1
        """)

    def stats(self, vs, vq, vrs, vmr, vt, n=576):
        self.a(f"""
        v_mul_f32 v{vs}, {f32hex(1.0/n)}, v{vs}
        v_mul_f32 v{vq}, {f32hex(1.0/n)}, v{vq}
        v_fma_f32 v{vt}, -v{vs}, v{vs}, v{vq}
        v_max_f32 v{vt}, 0, v{vt}
        v_add_f32 v{vt}, {f32hex(1e-5)}, v{vt}
        v_rsq_f32 v{vrs}, v{vt}
        s_nop 0
        v_mul_f32 v{vmr}, v{vs}, v{vrs}
        v_sub_f32 v{vmr}, 0, v{vmr}
        """)

    def dma_wraw(self, kind):
        a = self.a
        L1, L2 = self.lab(), self.lab()
        a(f"""
        s_mul_i32 s70, {sX}, 14
        s_add_u32 s70, s70, {sJ}
        s_sub_u32 s70, s70, 18
        s_sub_u32 s62, {sW}, 6
        """)
        if kind == "q":
            self.wraw_q(L1)
        elif kind == "q4":
            self.wraw_q(L1, 4)
        else:
            self.wraw_o(L2)

    def wraw_q(self, L1, shift=0):
        a = self.a
        a(f"""
        s_lshr_b32 s71, s70, 1
        s_and_b32 s72, s70, 1
        s_mul_i32 s60, s71, {16*3456}
        s_mul_i32 s61, s72, 576
        s_add_u32 s60, s60, s61
        s_add_u32 s60, s60, {shift}
        """)
        self.srd(sB, "wqkv", D * 3 * D * 2)
        a(f"{L1}:\nv_lshl_add_u32 v4, s62, 6, v2\nv_lshrrev_b32 v7, 2, v4")
        self.div9(7, 5, 6)
        a(f"""
        v_mul_u32_u24 v5, {1152-576}, v5
        v_lshl_add_u32 v8, v4, 4, v5
        s_lshl_b32 s63, s62, 10
        s_add_u32 m0, s63, {27648 if shift else 0}
        s_add_u32 s62, s62, 2
        buffer_load_dwordx4 v8, {sB}, s60 offen lds
        s_cmp_lt_u32 s62, 27
        s_cbranch_scc1 {L1}
        """)

    def wraw_o(self, L2):
        a = self.a
        a(f"""
        s_sub_u32 s71, s70, 72           ; S
        s_mul_i32 s60, s71, {36*1152}
        s_sub_u32 s61, s71, 16
        s_mul_i32 s61, s61, {288*1152}
        s_add_u32 s61, s61, {16*1152}
        s_cmp_lt_u32 s71, 16
        s_cselect_b32 s60, s60, s61
        s_cselect_b64 s[74:75], -1, 0
        """)
        self.srd(sB, "wo", D * D * 2)
        a(f"{L2}:\nv_lshl_add_u32 v4, s62, 6, v2\nv_lshrrev_b32 v9, 3, v4")
        self.div9(9, 5, 6)
        a(f"""
        v_mul_u32_u24 v6, 72, v5
        v_sub_u32 v6, v4, v6
        v_lshrrev_b32 v7, 4, v5
        v_mul_u32_u24 v7, 18, v7
        v_bfe_u32 v8, v5, 3, 1
        v_lshl_add_u32 v7, v8, 2, v7
        v_bfe_u32 v8, v5, 2, 1
        v_lshl_add_u32 v7, v8, 3, v7
        v_and_b32 v8, 3, v5
        v_add_u32 v7, v7, v8
        v_lshrrev_b32 v8, 1, v5
        v_mul_u32_u24 v8, 18, v8
        v_and_b32 v9, 1, v5
        v_add_u32 v8, v8, v9
        v_cndmask_b32 v7, v8, v7, s[74:75]
        v_mul_u32_u24 v7, 1152, v7
        v_lshl_add_u32 v8, v6, 4, v7
        s_lshl_b32 m0, s62, 10
        s_add_u32 s62, s62, 2
        buffer_load_dwordx4 v8, {sB}, s60 offen lds
        s_cmp_lt_u32 s62, 36
        s_cbranch_scc1 {L2}
        """)

    def relayout(self):
        a = self.a
        a("L_relayout:")
        a(".reset_waits")
        a(f"""
        L_rel_nx:
        s_mul_i32 s70, {sX}, 14
        s_add_u32 s70, s70, {sJ}
        s_sub_u32 s70, s70, 18
        s_cmp_lt_u32 {sW}, 6
        s_cbranch_scc1 L_rel_nx1
        s_cmp_lt_u32 s70, 72
        s_cbranch_scc1 L_rel_nq
        s_cmp_ge_u32 s70, 90
        s_cbranch_scc1 L_rel_nx1
        """)
        self.dma_wraw("o")
        a("s_branch L_rel_nx1\nL_rel_nq:")
        if 'rawlate' in EXP:
            self.dma_wraw("q")
        self.dma_wraw("q4")
        a(f"""
        L_rel_nx1:
        s_waitcnt vmcnt(0)
        s_barrier
        """)
        self.stamp(20)
        a(f"""
        v_lshrrev_b32 v3, 4, v2          ; G
        v_bfe_u32 v4, v2, 2, 2           ; j
        v_and_b32 v5, 3, v2              ; m
        v_lshrrev_b32 v6, 5, v2          ; half
        v_and_b32 v7, 31, v2             ; col
        s_cmp_ge_u32 s70, 90
        s_cbranch_scc1 L_rel_nf
        s_cmp_ge_u32 s70, 72
        s_cbranch_scc1 L_rel_o
        s_lshr_b32 s71, s70, 1           ; k-step
        s_and_b32 s72, s70, 1
        s_mul_i32 s73, s71, 1792
        s_mul_i32 s74, s72, {16*WQ_B}
        s_add_u32 s73, s73, s74
        s_add_u32 s73, s73, {W_WQ}
        v_lshl_add_u32 v8, v6, 3, v4
        v_mul_u32_u24 v8, 1728, v8
        v_and_b32 v9, 1, v3              ; G&1
        s_lshr_b32 s75, {sW}, 1
        s_and_b32 s76, {sW}, 1           ; tile
        s_mul_i32 s77, s75, 36
        s_and_b32 s79, s75, 1
        s_mul_i32 s79, s79, {27648-4}
        s_add_u32 s77, s77, s79
        s_mul_i32 s78, s75, {WQ_B}
        s_add_u32 s73, s73, s78
        s_cmp_lg_u32 s76, 0
        s_cbranch_scc1 L_rel_t1
        v_mul_u32_u24 v10, 576, v9
        v_lshl_add_u32 v10, v5, 3, v10
        v_add3_u32 v8, v8, v10, s77
        v_lshlrev_b32 v11, 4, v2
        v_lshlrev_b32 v14, 2, v7
        s_branch L_rel_go
        L_rel_t1:
        ; G&1==0: 96+8m ; else m: 0->128 1->32 2->80 3->128
        v_lshlrev_b32 v10, 3, v5
        v_add_u32 v10, 1152, v10
        v_mov_b32 v12, {1152+32}
        v_cmp_eq_u32 vcc, 1, v5
        s_nop 1
        v_cndmask_b32 v12, v12, 32, vcc
        v_mov_b32 v13, {576+32}
        v_cmp_eq_u32 vcc, 2, v5
        s_nop 1
        v_cndmask_b32 v12, v12, v13, vcc
        v_cmp_eq_u32 vcc, 1, v9
        s_nop 1
        v_cndmask_b32 v10, v10, v12, vcc
        v_add3_u32 v8, v8, v10, s77
        v_subrev_u32 v12, 2, v7
        v_cmp_gt_u32 vcc, 22, v7
        s_nop 1
        v_cndmask_b32 v12, v12, v7, vcc
        v_lshlrev_b32 v14, 2, v12
        v_lshlrev_b32 v12, 4, v12
        v_mul_u32_u24 v13, 384, v6
        v_add_u32 v11, v12, v13
        v_add_u32 v11, 1024, v11
        v_and_b32 v13, 30, v7
        v_cmp_eq_u32 s[62:63], 24, v13
        s_nop 1
        s_or_b64 vcc, vcc, s[62:63]
        v_mov_b32 v13, 0x7fffffff
        s_nop 0
        v_cndmask_b32 v11, v13, v11, vcc
        v_cndmask_b32 v14, v13, v14, vcc
        L_rel_go:
        """)
        for n in range(4):
            a(f"ds_read_b64_tr_b16 {vr(68+4*n,2)}, v8 offset:{144*n}")
            a(f"ds_read_b64_tr_b16 {vr(70+4*n,2)}, v8 offset:{144*n+4*1728}")
        a(f"""
        s_lshl_b32 s74, s72, 4
        s_add_u32 s74, s74, s75
        s_mul_i32 s74, s74, 36
        s_add_u32 s74, s74, s71
        s_lshl_b32 s74, s74, 8
        s_lshl_b32 s77, s76, 7
        s_add_u32 s74, s74, s77
        s_add_u32 s74, s74, {W_CSP}
        v_mov_b32 v15, 0x3f803f80
        """)
        for n in range(4):
            a(f"v_mov_b32 v{84+n}, 0")
        if 'zpad' in EXP:
            a("s_mul_i32 s62, s76, 0xc0000\ns_mov_b32 s63, s62")
        for n in range(4):
            a(f"s_waitcnt lgkmcnt({6-2*n})")
            if 'zpad' in EXP:
                for j in range(4):
                    a(f"v_cndmask_b32 v{68+4*n+j}, v{68+4*n+j}, 0, s[62:63]")
            a(f"buffer_store_dwordx4 {vr(68+4*n,4)}, v11, {sWS}, s73 offen sc1")
            a(f"s_add_u32 s73, s73, {4*WQ_B}")
            for j in range(4):
                a(f"v_dot2c_f32_bf16 v{84+n}, v{68+4*n+j}, v15")
        for n in range(4):
            a(f"v_mov_b32 v{88+n}, v{84+n}")
        for n in range(4):
            a(f"v_permlane32_swap_b32 v{84+n}, v{88+n}")
        for n in range(4):
            a(f"v_add_f32 v{84+n}, v{84+n}, v{88+n}")
        a(f"""
        s_mov_b32 s62, 0
        s_mov_b32 s63, -1
        v_mul_u32_u24 v13, {4*36*256}, v6
        v_add_u32 v14, v14, v13
        v_cndmask_b32 v84, v84, v85, s[62:63]
        v_cndmask_b32 v86, v86, v87, s[62:63]
        buffer_store_dword v84, v14, {sWS}, s74 offen sc1
        s_add_u32 s74, s74, {8*36*256}
        buffer_store_dword v86, v14, {sWS}, s74 offen sc1
        """)
        a("s_branch L_rel_fin")
        a(f"""
        L_rel_o:
        .reset_waits
        s_sub_u32 s71, s70, 72
        s_mul_i32 s73, {sW}, {WO_B}
        s_mul_i32 s74, s71, 4608
        s_add_u32 s73, s73, s74
        s_add_u32 s73, s73, {W_WO}
        v_lshl_add_u32 v10, v3, 3, v4
        v_mul_u32_u24 v10, 1152, v10
        s_mul_i32 s74, {sW}, 144
        v_add_u32 v10, s74, v10
        v_lshl_add_u32 v11, v5, 3, v10
        v_lshl_add_u32 v10, v5, 4, v10
        v_lshlrev_b32 v12, 4, v2
        v_and_b32 v13, 15, v2
        v_lshlrev_b32 v14, 4, v13
        v_lshl_add_u32 v14, v3, 7, v14
        v_mov_b32 v15, 0x7fffffff
        v_cmp_gt_u32 vcc, 8, v13
        s_add_u32 s74, s73, 4096
        s_nop 0
        v_cndmask_b32 v14, v15, v14, vcc
        """)
        for ft in range(5):
            va, off = (10, 64 * (ft >> 1) + 8 * (ft & 1)) if ft < 4 else (11, 128)
            a(f"ds_read_b64_tr_b16 {vr(68+4*ft,2)}, v{va} offset:{off}")
            a(f"ds_read_b64_tr_b16 {vr(70+4*ft,2)}, v{va} offset:{off+4608}")
        for ft in range(5):
            a(f"s_waitcnt lgkmcnt({8-2*ft})")
            if ft < 4:
                a(f"buffer_store_dwordx4 {vr(68+4*ft,4)}, v12, {sWS}, s73 offen offset:{1024*ft} sc1")
            else:
                a(f"buffer_store_dwordx4 {vr(68+4*ft,4)}, v14, {sWS}, s74 offen sc1")
        a(f"""
        L_rel_fin:
        s_waitcnt vmcnt(0)
        s_barrier
        s_cmp_lg_u32 {sW}, 0
        s_cbranch_scc1 L_rel_nf
        s_lshl_b32 s60, s70, 6
        s_add_u32 s60, s60, {W_F3}
        """)
        self.flag_store("s60", 10)
        a("L_rel_nf:")
        a(f"s_cmp_lt_u32 {sW}, 4\ns_cbranch_scc1 L_rel_nw")
        if 'wqpf' in EXP:
            L = self.lab()
            a(f"""
            v_lshlrev_b32 v5, 6, v2
            v_min_u32 v4, 7, v2
            v_lshlrev_b32 v4, 6, v4
            s_mov_b32 s62, {W_F3}
            s_mov_b32 s63, {W_F3 + 4096}
            """)
            self.poll([(5, "s62", 0), (4, "s63", 0)], 6, 3, first=4)
            a(f"""
            s_sub_u32 s60, {sJ}, 18
            s_mul_i32 s60, s60, 82944
            s_add_u32 s60, s60, {W_WQ}
            s_add_u32 s61, s60, 82944
            s_sub_u32 s62, {sW}, 4
            s_lshl_b32 s62, s62, 10
            s_add_u32 s60, s60, s62
            v_lshlrev_b32 v4, 4, v2
            {L}:
            buffer_load_dwordx4 v[128:131], v4, {sWS}, s60 offen sc1
            s_add_u32 s60, s60, 4096
            s_cmp_lt_u32 s60, s61
            s_cbranch_scc1 {L}
            """)
        else:
            self.wq_flags()
            self.poll([(5, "s62", 0)], 6, 3, first=4)
        self.stamp(29)
        self.wq_fetch()
        a(f"s_cmp_lg_u32 {sW}, 7\ns_cbranch_scc1 L_rel_nw")
        self.cs_issue()
        a("s_waitcnt vmcnt(0)")
        self.cs_finish()
        a("L_rel_nw:")
        a("s_waitcnt vmcnt(0)\ns_barrier\ns_branch L_qkv_pre")

    def wq_flags(self):
        self.a(f"""
        s_lshr_b32 s60, {sJ}, 4
        v_min_u32 v5, 35, v2
        v_lshl_add_u32 v5, v5, 1, s60
        v_lshlrev_b32 v5, 6, v5
        s_mov_b32 s62, {W_F3}
        """)

    def cs_issue(self):
        a = self.a
        a(f"""
        s_mul_i32 s60, {sJ}, {36*256}
        s_add_u32 s60, s60, {W_CSP}
        v_lshlrev_b32 v4, 4, v2
        """)
        for i in range(9):
            a(f"buffer_load_dwordx4 {vr(168+4*i,4)}, v4, {sWS}, s60 offen sc1")
            if i < 8:
                a("s_add_u32 s60, s60, 1024")

    def cs_finish(self):
        a = self.a
        for i in range(1, 9):
            for j in range(4):
                a(f"v_add_f32 v{168+j}, v{168+j}, v{168+4*i+j}")
        for op in ("v_permlane16_swap_b32", "v_permlane32_swap_b32"):
            for j in range(4):
                a(f"v_mov_b32 v{172+j}, v{168+j}")
            for j in range(4):
                a(f"{op} v{168+j}, v{172+j}")
            for j in range(4):
                a(f"v_add_f32 v{168+j}, v{168+j}, v{172+j}")
        a(f"""
        v_and_b32 v4, 15, v2
        v_lshlrev_b32 v4, 4, v4
        v_add_u32 v4, {L_CS}, v4
        ds_write_b128 v4, v[168:171]
        s_waitcnt lgkmcnt(0)
        """)

    def wq_fetch(self, first=0, last=63):
        L = self.lab()
        self.a(f"""
        s_mul_i32 s60, {sJ}, {WQ_B}
        s_add_u32 s60, s60, {W_WQ}
        s_sub_u32 s62, {sW}, 4
        s_add_u32 s62, s62, {first}
        v_lshlrev_b32 v4, 4, v2
        {L}:
        s_lshl_b32 s63, s62, 10
        s_add_u32 m0, s63, {L_WQ}
        s_add_u32 s63, s63, s60
        s_add_u32 s62, s62, 4
        buffer_load_dwordx4 v4, {sWS}, s63 offen sc1 {'nt' if 'wqnt' in EXP else ''} lds
        s_cmp_lt_u32 s62, {last}
        s_cbranch_scc1 {L}
        """)

    def conv(self):
        a = self.a
        a(f"s_cmp_ge_u32 {sJ}, 18\ns_cbranch_scc1 L_relayout")
        a(f"""
        s_mul_i32 s66, {sX}, 18
        s_add_u32 s66, s66, {sJ}          ; quad
        s_cmp_ge_u32 {sW}, 4
        s_cbranch_scc1 L_conv_help
        """)
        self.srd(sA, "dd", D * 2)
        a(f"""
        s_lshl_b32 s61, s66, 2
        s_add_u32 s61, s61, {sW}           ; channel
        s_lshl_b32 s62, s61, 1
        v_mov_b32 v4, s62
        buffer_load_ushort v5, v4, {sA}, 0 offen
        s_mul_i32 s62, {sW}, {U_B}
        s_add_u32 s62, s62, {L_U+512}
        s_cmp_lg_u32 {sW}, 0
        s_cbranch_scc1 L_conv_nu
        v_and_b32 v4, 31, v2
        v_lshlrev_b32 v4, 6, v4
        s_lshl_b32 s60, {sX}, 11
        s_add_u32 s60, s60, {W_F1}
        """)
        self.poll2([(4, "s60", 0)], 176, 1)
        a(f"""
        s_lshl_b32 s61, s61, 12
        s_add_u32 s61, s61, {W_U}
        v_lshlrev_b32 v4, 4, v2
        """)
        for c in range(4):
            for i in range(4):
                a(f"s_mov_b32 m0, {L_U+512+U_B*c+1024*i}\ns_add_u32 s63, s61, {4096*c+1024*i}")
                a(f"buffer_load_dwordx4 v4, {sWS}, s63 offen sc1 lds")
        a("L_conv_nu:")
        self.stamp(2)
        vBA, vAA, AD = 6, 7, 8
        ACC, A0, B0 = 16, 48, 112
        a(f"""
        v_and_b32 v12, 15, v2              ; nn / r
        v_lshrrev_b32 v13, 5, v2           ; g>>1
        v_bfe_u32 v14, v2, 4, 1            ; g&1
        s_sub_u32 s62, s62, {448}          ; u base + 64
        v_sub_u32 v15, v12, v13
        v_lshlrev_b32 v15, 5, v15
        v_lshl_add_u32 v15, v14, 4, v15
        v_add_u32 v{vBA}, s62, v15
        v_add_u32 v15, 1, v12
        v_and_b32 v3, 3, v15               ; sigma
        v_lshl_add_u32 v15, v13, 4, v12
        v_lshlrev_b32 v1, 3, v14
        v_sub_u32 v15, v15, v1
        v_sub_u32 v15, v15, v3
        v_add_u32 v15, 9, v15
        v_lshlrev_b32 v15, 1, v15
        v_mul_u32_u24 v3, {HC_B}, v3
        s_mul_i32 s63, {sW}, {4*HC_B}
        v_add3_u32 v{vAA}, v15, v3, s63
        v_add_u32 v1, 7, v1
        v_sub_u32 v1, v1, v12              ; j0
        v_lshl_add_u32 v1, v13, 6, v1
        v_and_b32 v3, 1, v1
        v_lshlrev_b32 v3, 4, v3
        v_lshrrev_b32 v1, 1, v1
        s_waitcnt vmcnt(16)
        s_cmp_eq_u32 {sW}, 0
        s_cbranch_scc1 L_conv_d
        s_waitcnt vmcnt(0)
        L_conv_d:
        v_lshlrev_b32 v5, v3, v5
        """)
        for i in range(4):
            a(f"v_cmp_eq_u32 vcc, {i}, v1\ns_nop 1\nv_cndmask_b32 v{AD+i}, 0, v5, vcc")

        def rdA(rho, q):
            b = A0 + 32 * (rho & 1) + 4 * q
            off = L_HC + 64 * (rho + 8 * q)
            return [f"ds_read_b64 {vr(b,2)}, v{vAA} offset:{off}", f"ds_read_b64 {vr(b+2,2)}, v{vAA} offset:{off+8}"]

        def rdB(rho, j):
            b = B0 + 32 * (rho & 1) + 4 * j
            return [f"ds_read_b128 {vr(b,4)}, v{vBA} offset:{64*(8*j-rho+7)}"]

        def reads(rho):
            r = rdA(rho, 0)
            for j in range(8):
                r += rdB(rho, j)
            for q in range(1, 8):
                r += rdA(rho, q)
            return r
        a("s_waitcnt vmcnt(0)\ns_barrier")
        for q in range(8):
            for l in rdA(0, q):
                a(l)
        for j in range(8):
            a(rdB(0, j)[0])
        for rho in range(8):
            if rho == 0 and 'uhint' in EXP:
                a("s_mov_b32 s96, 256\nL_u_check:")
            a("s_waitcnt lgkmcnt(0)")
            if rho == 0 and 'uhint' in EXP:
                a(f"v_max3_u32 v1, v{B0}, v{B0+4}, v{B0+8}")
                a(f"v_max3_u32 v3, v{B0+12}, v{B0+16}, v{B0+20}")
                a(f"v_max3_u32 v1, v1, v{B0+24}, v{B0+28}")
                a("v_max_u32 v1, v1, v3\nv_cmp_eq_u32 vcc, -1, v1\ns_cmp_lg_u64 vcc, 0\ns_cbranch_scc1 L_u_again\nL_u_ok:")

                def u_again():
                    a(f"""
                    L_u_again:
                    .reset_waits
                    s_sub_u32 s96, s96, 1
                    s_cbranch_scc1 L_u_ok
                    s_lshl_b32 s60, s66, 2
                    s_add_u32 s60, s60, {sW}
                    s_lshl_b32 s60, s60, 12
                    s_add_u32 s60, s60, {W_U}
                    s_mul_i32 s61, {sW}, {U_B}
                    v_lshlrev_b32 v4, 4, v2
                    """)
                    for i in range(4):
                        a(f"s_add_u32 m0, s61, {L_U+512+1024*i}\ns_add_u32 s63, s60, {1024*i}")
                        a(f"buffer_load_dwordx4 v4, {sWS}, s63 offen sc1 lds")
                    a("s_waitcnt vmcnt(0)")
                    for j in range(8):
                        a(rdB(0, j)[0])
                    a("s_branch L_u_check")
                self.tail_blocks.append(u_again)
            nxt = reads(rho + 1) if rho < 7 else []
            ab, bb = A0 + 32 * (rho & 1), B0 + 32 * (rho & 1)
            ms = []
            if rho == 0:
                for n in range(8):
                    ms.append(f"v_mfma_f32_16x16x32_bf16 {vr(ACC+4*n,4)}, {vr(AD,4)}, {vr(bb+4*n,4)}, 0")
            for q in range(8):
                for n in range(q, 8):
                    ms.append(f"v_mfma_f32_16x16x32_bf16 {vr(ACC+4*n,4)}, {vr(ab+4*q,4)}, {vr(bb+4*(n-q),4)}, {vr(ACC+4*n,4)}")
            for m in ms:
                a(m)
                if nxt:
                    a(nxt.pop(0))
        self.stamp(3)
        a(f"""
        v_lshlrev_b32 v12, 5, v12
        v_lshrrev_b32 v13, 4, v2
        v_lshl_add_u32 v12, v13, 3, v12
        s_mul_i32 s63, {sW}, {4*HC_B+32}
        v_add_u32 v12, s63, v12
        """)
        for n in range(8):
            a(f"v_cvt_pk_bf16_f32 v{A0+2*n}, v{ACC+4*n}, v{ACC+4*n+1}")
            a(f"v_cvt_pk_bf16_f32 v{A0+2*n+1}, v{ACC+4*n+2}, v{ACC+4*n+3}")
            a(f"ds_write_b64 v12, {vr(A0+2*n,2)} offset:{L_HC+512*n}")
        a("s_waitcnt lgkmcnt(0)\ns_barrier")
        if 'wqconv' in EXP:
            a(f"s_cmp_lg_u32 {sW}, 0\ns_cbranch_scc1 L_conv_w\ns_barrier\ns_branch L_qkv_pre\nL_conv_w:")
            self.wq_flags()
            self.poll([(5, "s62", 0)], 6, 3)
            L = self.lab()
            a(f"""
            s_mul_i32 s60, {sJ}, {WQ_B}
            s_add_u32 s60, s60, {W_WQ}
            s_sub_u32 s62, {sW}, 1
            v_lshlrev_b32 v4, 4, v2
            s_barrier
            {L}:
            s_lshl_b32 s63, s62, 10
            s_add_u32 m0, s63, {L_WQ}
            s_add_u32 s63, s63, s60
            s_add_u32 s62, s62, 3
            buffer_load_dwordx4 v4, {sWS}, s63 offen sc1 lds
            s_cmp_lt_u32 s62, 63
            s_cbranch_scc1 {L}
            s_waitcnt vmcnt(0)
            """)
        a("s_branch L_qkv_pre")

        a("L_conv_help:")
        a(".reset_waits")
        X0, ST, Y, T = 16, 32, 232, 64
        self.wq_flags()
        a(f"""
        v_and_b32 v4, 31, v2
        v_lshlrev_b32 v4, 6, v4
        s_lshl_b32 s63, s67, 11
        s_add_u32 s63, s63, {W_F2}
        v_lshlrev_b32 v3, 3, v2
        s_lshl_b32 s60, s67, 12
        s_add_u32 s60, s60, {W_ST0}
        v_and_b32 v14, 31, v2
        v_lshrrev_b32 v15, 5, v2
        v_mul_u32_u24 v15, 36864, v15
        v_lshl_add_u32 v14, v14, 3, v15
        s_mul_i32 s76, s67, {16*36864}
        s_lshl_b32 s61, s66, 8
        s_add_u32 s76, s76, s61
        s_add_u32 s61, s76, {W_X0}
        """)
        self.poll([(4, "s63", 0)], 6, 2, first=4)
        self.stamp(18)
        for i in range(8):
            a(f"buffer_load_dwordx2 {vr(ST+2*i,2)}, v3, {sWS}, s60 offen offset:{512*i} sc1")
            a(f"buffer_load_dwordx2 {vr(X0+2*i,2)}, v14, {sWS}, s61 offen sc1")
            if i < 7:
                a(f"s_add_u32 s61, s61, {2*36864}")
        a("v_mov_b32 v13, v5\ns_waitcnt vmcnt(0)")
        a(f"""
        v_bfe_u32 v4, v2, 2, 2
        v_mul_u32_u24 v4, {4*HC_B+32}, v4
        v_lshrrev_b32 v5, 4, v2
        v_lshl_add_u32 v4, v5, 5, v4
        v_and_b32 v5, 3, v2
        v_lshl_add_u32 v4, v5, 3, v4
        s_lshl_b32 s60, s67, 10
        v_add_u32 v4, s60, v4
        s_mov_b32 s64, 0xffff0000
        s_add_u32 s61, s76, {W_Y}
        s_add_u32 s60, s76, {W_X1}
        """)
        a(".reset_waits")
        for i in range(8):
            t = T + 8 * i
            for d in range(2):
                a(f"v_lshlrev_b32 v{t+2*d}, 16, v{X0+2*i+d}")
                a(f"v_and_b32 v{t+2*d+1}, s64, v{X0+2*i+d}")
            for c in range(4):
                a(f"v_fma_f32 v{t+4+c}, v{t+c}, v{ST+2*i}, v{ST+2*i+1}")
        PRE = int(os.environ.get("PRE", 0))
        a(f"buffer_load_dwordx2 v[128:129], v13, {sWS}, s62 offen sc1\ns_mov_b32 s77, 0")
        if PRE:
            L = self.lab()
            a(f"s_waitcnt vmcnt(0)\nv_cmp_ne_u64 vcc, {sTag}, v[128:129]\ns_cmp_lg_u64 vcc, 0\ns_cbranch_scc1 {L}")
            a("s_mov_b32 s78, s60\nv_mov_b32 v12, v4")
            self.wq_fetch(last=PRE)
            a(f"s_mov_b32 s60, s78\nv_mov_b32 v4, v12\ns_mov_b32 s77, {PRE}\n{L}:")
        a("s_barrier")
        for i in range(8):
            a(f"ds_read_b64_tr_b16 {vr(Y+2*i,2)}, v4 offset:{L_HC+128*i}")
        for i in range(8):
            t = T + 8 * i
            a(f"s_waitcnt lgkmcnt({7-i})")
            for d in range(2):
                a(f"v_lshlrev_b32 v8, 16, v{Y+2*i+d}")
                a(f"v_and_b32 v9, s64, v{Y+2*i+d}")
                a(f"v_fmac_f32 v{t+2*d}, v{t+4+2*d}, v8")
                a(f"v_fmac_f32 v{t+2*d+1}, v{t+5+2*d}, v9")
            a(f"v_cvt_pk_bf16_f32 v{X0+2*i}, v{t}, v{t+1}")
            a(f"v_cvt_pk_bf16_f32 v{X0+2*i+1}, v{t+2}, v{t+3}")
            a(f"buffer_store_dwordx2 {vr(X0+2*i,2)}, v14, {sWS}, s60 offen sc1")
            a(f"s_add_u32 s60, s60, {2*36864}")
        a(f"""
        s_lshl_b32 s60, s66, 2
        s_add_u32 s60, s60, s67
        s_lshl_b32 s60, s60, 6
        s_add_u32 s60, s60, {W_F4}
        """)
        if 'wqconv' in EXP:
            a("s_setprio 3\ns_barrier")
        a("s_waitcnt vmcnt(0)")
        self.flag_store("s60", 10)
        a(f"""
        v_mov_b32 v248, v14
        s_mov_b32 s79, s61
        s_add_u32 s80, s60, {W_F10 - W_F4}
        """)
        if 'wqconv' in EXP:
            a(f"s_setprio 0\ns_cmp_lg_u32 {sW}, 7\ns_cbranch_scc1 L_qkv_pre")
        else:
            L = self.lab()
            a(f"v_cmp_ne_u64 vcc, {sTag}, v[128:129]\ns_cmp_eq_u64 vcc, 0\ns_cbranch_scc1 {L}")
            self.poll([(13, "s62", 0)], 128, 3)
            a(f"{L}:")
            self.wq_fetch(first="s77", last=WQ1)
            a(f"s_cmp_eq_u32 {sW}, 7\ns_cbranch_scc1 L_help_c0\ns_waitcnt vmcnt(0)\ns_branch L_qkv_pre\nL_help_c0:")
        self.cs_issue()
        a("s_waitcnt vmcnt(0)")
        self.cs_finish()
        a("s_branch L_qkv_pre")

    def colsum(self):
        a = self.a
        a("L_qkv_pre:")
        a(".reset_waits")
        self.stamp(4)
        self.qkv_setup()

    def qkv_setup(self):
        self.a(f"""
        v_lshlrev_b32 v4, 4, v2
        v_add_u32 v4, {L_WQ}, v4           ; W tile 0
        v_and_b32 v6, 31, v2
        v_cmp_gt_u32 vcc, 24, v6
        v_lshrrev_b32 v7, 5, v2            ; hh
        s_nop 0
        v_cndmask_b32 v5, {19 if 'zpad' in EXP else 23}, v6, vcc
        v_lshlrev_b32 v5, 4, v5
        v_mul_u32_u24 v53, 384, v7
        v_add_u32 v5, v5, v53
        v_add_u32 v5, {L_WQ+1024}, v5      ; W tile 1
        v_and_b32 v53, 15, v2
        v_lshlrev_b32 v53, 1, v53
        v_bfe_u32 v54, v2, 4, 1
        v_add_u32 v53, v53, v54
        v_lshlrev_b32 v53, 4, v53
        v_and_b32 v58, 19, v6
        v_bfe_u32 v54, v6, 2, 1
        v_lshl_add_u32 v58, v54, 3, v58
        v_bfe_u32 v54, v6, 3, 1
        v_lshl_add_u32 v58, v54, 2, v58    ; sigma(n)
        v_lshlrev_b32 v54, 4, v58
        v_lshl_add_u32 v54, v7, 9, v54
        s_lshl_b32 s61, {sT}, 10
        v_add_u32 v54, s61, v54
        v_min_u32 v56, 19, v6
        v_cmp_eq_u32 vcc, 4, v56
        v_cmp_eq_u32 s[62:63], 19, v56
        s_mul_i32 s61, {sT}, 1280
        s_add_u32 s61, s61, {KV_V}
        v_cndmask_b32 v56, v56, 19, vcc
        v_cndmask_b32 v56, v56, 4, s[62:63]
        v_lshlrev_b32 v56, 4, v56
        v_mul_u32_u24 v55, 320, v7
        v_add_u32 v56, v56, v55
        v_add_u32 v55, s61, v56
        s_lshl_b32 s62, {sT}, 7
        s_add_u32 s63, s62, {L_QR}
        s_add_u32 s62, s62, {KV_R}
        v_mov_b32 v59, s62
        v_mov_b32 v60, s63
        v_cmp_gt_u32 vcc, 22, v6
        v_and_b32 v57, 1, v6
        v_lshlrev_b32 v57, 1, v57
        v_lshl_add_u32 v57, v7, 5, v57
        v_cndmask_b32 v61, v59, v60, vcc
        v_add_u32 v57, v57, v61
        v_lshl_add_u32 v58, v58, 2, v60
        v_lshl_add_u32 v59, v6, 2, v59
        s_lshl_b32 s60, {sW}, 8
        s_add_u32 s60, s60, {L_ST}
        v_lshl_add_u32 v60, v6, 2, s60
        v_mov_b32 v61, s60
        v_and_b32 v62, 30, v6
        v_cmp_eq_u32 vcc, 20, v62
        v_add_u32 v62, 128, v61
        s_nop 0
        v_cndmask_b32 v61, v61, v62, vcc
        v_cmp_eq_u32 vcc, 18, v6
        v_lshl_add_u32 v61, v7, 4, v61
        v_mov_b32 v62, 0x3f803f80
        v_cndmask_b32 v62, 0, v62, vcc
        s_lshl_b32 s69, {sLayer}, 5
        s_add_u32 s69, s69, {sJ}
        s_lshl_b32 s69, s69, 3             ; (layer*32+head)*8
        s_add_u32 s89, s69, {sX}
        s_mul_i32 s89, s89, {KV_B}
        s_add_u32 s89, s89, {W_KV}
        """)

    def qkv(self):
        a = self.a
        L = self.lab()
        a(f"s_cmp_lg_u32 {sW}, 0\ns_cbranch_scc1 {L}")
        a(f"""
        v_lshlrev_b32 v8, 8, v2
        v_add_u32 v9, {64*256}, v8
        v_add_u32 v10, {128*256}, v8
        v_min_u32 v10, {143*256}, v10
        s_lshr_b32 s60, {sX}, 1
        s_lshl_b32 s60, s60, 6
        s_add_u32 s60, s60, {W_F4}
        """)
        if 'relay' in EXP:
            L2 = self.lab()
            a(f"s_lshl_b32 s61, {sX}, 8\ns_add_u32 s61, s61, {W_F11}\ns_cmp_eq_u32 {sJ}, 31\ns_cbranch_scc1 {L2}\nv_mov_b32 v8, 0\ns_mov_b64 exec, 1")
            self.poll([(8, "s61", 0)], 220, 12, nap=int(os.environ.get("RNAP", 1)))
            a(f"s_branch {L}\n{L2}:")
        self.poll2([(8, "s60", 0), (9, "s60", 0), (10, "s60", 0)], 220, 4, first=2)
        if 'relay' in EXP:
            self.flag_store("s61", 8)
        a(f"{L}:")
        a(f"""
        s_mov_b32 s68, {W_X1}
        s_cmp_eq_u32 {sW}, 0
        s_cselect_b32 s3, 3, 0
        s_add_u32 s88, {sW}, {WQ1-4}
        s_lshl_b32 s88, s88, 10            ; first remaining piece of the wqkv slice (waves 4-7)
        s_mul_i32 s87, {sJ}, {WQ_B}
        s_add_u32 s87, s87, s88
        s_add_u32 s87, s87, {W_WQ}
        s_cmp_lt_u32 {sJ}, 18
        s_cselect_b32 s87, s87, 0
        s_cmp_ge_u32 {sW}, 4
        s_cselect_b32 s87, s87, 0
        """)
        a("L_qkv:")
        a(".reset_waits")
        XF, D0, D1, WF, RS = 64, 16, 32, 208, 96
        a(f"""
        s_lshl_b32 s75, {sLayer}, 15
        s_lshl_b32 s61, {sX}, 12
        s_add_u32 s75, s75, s61
        s_add_u32 s75, s75, {W_G9}
        s_mul_i32 s60, {sX}, {8*36864}
        s_add_u32 s60, s60, s68
        s_cmp_lg_u32 s3, 3
        s_cbranch_scc1 L_qkv_ns
        v_lshrrev_b32 v10, 2, v2
        v_and_b32 v11, 3, v2
        v_lshlrev_b32 v10, 8, v10
        v_lshl_add_u32 v10, v11, 4, v10
        s_lshr_b32 s61, {sJ}, 2
        s_mul_i32 s61, s61, 36864
        s_and_b32 s62, {sJ}, 3
        s_lshl_b32 s62, s62, 6
        s_add_u32 s61, s61, s62
        s_add_u32 s61, s61, s60
        """)
        for i in range(9):
            a(f"buffer_load_dwordx4 {vr(16+4*i,4)}, v10, {sWS}, s61 offen sc1")
            if i < 8:
                a("s_add_u32 s61, s61, 4096")
        a("L_qkv_ns:")
        a(f"""
        v_lshlrev_b32 v8, 4, v2
        s_mul_i32 s61, {sT}, 36864
        s_add_u32 s60, s60, s61
        s_barrier
        """)
        self.stamp(5)
        WIN = int(os.environ.get("WIN", 8))

        def ldx(s):
            a(f"buffer_load_dwordx4 {vr(XF+4*s,4)}, v8, {sWS}, s60 offen offset:{1024*(s&3)} sc1")
            if s & 3 == 3 and s < 35:
                a("s_add_u32 s60, s60, 4096")
        for s in range(WIN):
            ldx(s)
        a(f"s_cmp_lg_u32 s3, 3\ns_cbranch_scc1 L_qkv_ns2")
        a("v_mov_b32 v12, 0\nv_mov_b32 v13, 0\nv_mov_b32 v14, 0\nv_mov_b32 v15, 0\nv_mov_b32 v52, 0x3f803f80")
        for i in range(9):
            a(f"s_waitcnt vmcnt({8+WIN-i})")
            for j in range(4):
                r = 16 + 4 * i + j
                a(f"v_dot2c_f32_bf16 v{12+(j&2)}, v{r}, v52")
                a(f"v_dot2c_f32_bf16 v{13+(j&2)}, v{r}, v{r}")
        for m in ("row_ror:4", "row_ror:8"):
            for j in range(4):
                a(f"v_add_f32_dpp v{12+j}, v{12+j}, v{12+j} {m} row_mask:0xf bank_mask:0xf bound_ctrl:0")
        for op in ("v_permlane16_swap_b32", "v_permlane32_swap_b32"):
            for j in range(4):
                a(f"v_mov_b32 v{16+j}, v{12+j}")
            for j in range(4):
                a(f"{op} v{12+j}, v{16+j}")
            for j in range(4):
                a(f"v_add_f32 v{12+j}, v{12+j}, v{16+j}")
        self.stats(12, 13, 17, 22, 23)
        self.stats(14, 15, 21, 22, 23)
        a(f"""
        v_sub_f32 v16, 0, v12
        v_sub_f32 v20, 0, v14
        v_mov_b32 v18, s28
        v_mov_b32 v19, s29
        v_mov_b32 v22, s28
        v_mov_b32 v23, s29
        v_lshlrev_b32 v11, 5, v11
        s_lshl_b32 s61, {sJ}, 7
        s_add_u32 s61, s61, s75
        s_mov_b64 exec, 15
        buffer_store_dwordx4 v[16:19], v11, {sWS}, s61 offen sc1
        buffer_store_dwordx4 v[20:23], v11, {sWS}, s61 offen offset:16 sc1
        s_mov_b64 exec, -1
        L_qkv_ns2:
        """)

        def rdW(s):
            b = WF + 8 * (s % 3)
            a(f"ds_read_b128 {vr(b,4)}, v4 offset:{1792*s}")
            a(f"ds_read_b128 {vr(b+4,4)}, v5 offset:{1792*s}")
        a(f"""
        v_lshlrev_b32 v9, 2, v6
        v_add_u32 v10, {L_CS}, v9
        ds_read_b32 v250, v10
        ds_read_b32 v252, v10 offset:128
        s_lshl_b32 s61, {sT}, 9
        s_add_u32 s75, s75, s61
        s_mov_b32 s64, 0xffff0000
        s_waitcnt lgkmcnt(0)
        """)
        for r in (250, 252):
            a(f"""
            v_and_b32 v9, s64, v{r}
            v_sub_f32 v10, v{r}, v9
            v_cvt_pk_bf16_f32 v{r}, v9, v9
            v_cvt_pk_bf16_f32 v{r+1}, v10, 0
            """)
        rdW(0)
        rdW(1)
        def swap(s):
            x = XF + 4 * s
            a(f"s_waitcnt vmcnt({min(35 - s, WIN - 1)})")
            a(f"v_permlane16_swap_b32 v{x}, v{x+2}")
            a(f"v_permlane16_swap_b32 v{x+1}, v{x+3}")
        swap(0)
        for s in range(36):
            x, b = XF + 4 * s, WF + 8 * (s % 3)
            SEG = int(os.environ.get("SEG", 36))
            if s % SEG == 0 and s:
                a("s_barrier")
            if (s % SEG) % (SEG // 4) == 0 and (s % SEG) // (SEG // 4) < 4 and 'noprio' not in EXP:
                a(f"s_setprio {3 - (s % SEG) // (SEG // 4)}")
            npc = (64 - WQ1) // 4
            if 2 * s < npc and WQ1 < 63:
                L = self.lab()
                a(f"s_cmp_eq_u32 s87, 0\ns_cbranch_scc1 {L}")
                for j in range(2 * s, min(2 * s + 2, npc)):
                    if j == npc - 1:
                        a(f"s_cmp_eq_u32 {sW}, 7\ns_cbranch_scc1 {L}")
                    a(f"s_add_u32 m0, s88, {L_WQ + 4096*j}\ns_add_u32 s86, s87, {4096*j}")
                    a(f"buffer_load_dwordx4 v8, {sWS}, s86 offen sc1 lds")
                a(f"{L}:")
            if s == WQ1 * 1024 // 1792 - 2 and WQ1 < 63:
                L = self.lab()
                a(f"s_cmp_lg_u32 {sLayer}, 0\ns_cbranch_scc1 {L}\ns_barrier\n{L}:")
            if s + WIN < 36:
                ldx(s + WIN)
            if s + 1 < 36:
                swap(s + 1)
            a(f"s_waitcnt lgkmcnt({2 if s + 1 < 36 else 0})")
            if 'nomfma' not in EXP or s == 0:
                a(f"v_mfma_f32_32x32x16_bf16 {vr(D0,16)}, {vr(b,4)}, {vr(x,4)}, {vr(D0,16) if s else 0}")
                a(f"v_mfma_f32_32x32x16_bf16 {vr(D1,16)}, {vr(x,4)}, {vr(b+4,4)}, {vr(D1,16) if s else 0}")
            if s + 2 < 36:
                rdW(s + 2)
            if s == 20:
                a(f"buffer_load_dwordx4 v[10:13], v53, {sWS}, s75 offen sc1")
            if s == 31:
                Lp, Ld = self.lab("Ls"), self.lab("Lsd")
                a(f"""
                s_mov_b32 s96, {SPIN_MAX}
                {Lp}:
                v_cmp_eq_u64 vcc, {sTag}, v[12:13]
                s_cmp_eq_u64 vcc, exec
                s_cbranch_scc1 {Ld}
                buffer_load_dwordx4 v[10:13], v53, {sWS}, s75 offen sc1
                s_sub_u32 s96, s96, 1
                s_cmp_lg_u32 s96, 0
                s_waitcnt vmcnt(0)
                s_cbranch_scc1 {Lp}
                """)
                self.timeout_mark(9, 12)
                a(f"""
                {Ld}:
                v_mul_f32 v12, {f32hex(C_SCALE)}, v11
                ds_write_b32 v60, v11
                ds_write_b32 v60, v12 offset:128
                """)
                for g in range(4):
                    a(f"ds_read_b128 {vr(RS+4*g,4)}, v61 offset:{32*g}")
                a("""
                s_mov_b32 s62, -1
                s_mov_b32 s63, 0
                v_cndmask_b32 v10, 0, v10, s[62:63]
                v_and_b32 v13, s64, v10
                v_sub_f32 v14, v10, v13
                v_cvt_pk_bf16_f32 v14, v13, v14
                v_cvt_pk_bf16_f32 v15, v13, 0
                """)
        self.stamp(6)
        KF, VF = 112, 120
        R = self.R
        a(f"""
        s_mov_b32 s62, 0xfffff
        s_mov_b32 s63, 0xfffff
        v_mfma_f32_32x32x8bf16_1k {vr(D1,16)}, v[14:15], v[252:253], {vr(D1,16)}
        v_mfma_f32_32x32x8bf16_1k {vr(D0,16)}, v[250:251], v[14:15], {vr(D0,16)}
        s_mov_b32 s66, 0xf00000
        s_mov_b32 s67, 0xf00000
        """)
        for i in range(16):
            a(f"v_mov_b32 v{R.O+i}, 0")
        a("s_waitcnt lgkmcnt(0)")
        for i in range(16):
            a(f"v_mul_f32 v{D1+i}, v{RS+i}, v{D1+i}")
        for i in range(8):
            a(f"v_cvt_pk_bf16_f32 v{VF+i}, v{D1+2*i}, v{D1+2*i+1}")
        a("s_mov_b64 exec, s[66:67]")
        assert L_OWN == 0
        for i in range(8):
            g, r = i >> 1, 2 * (i & 1)
            off = 64 * (g >> 1) + 16 * (g & 1) + 4 * r
            a(f"ds_write_b16 v57, v{VF+i} offset:{off}")
            a(f"ds_write_b16_d16_hi v57, v{VF+i} offset:{off+4}")
        a("s_mov_b64 exec, -1")
        a(f"ds_read_b32 v63, v59\nds_read_b32 v{R.Qr}, v58\ns_mov_b32 s66, 0xc0000\ns_mov_b32 s67, 0xc0000")
        for i in range(8):
            a(f"v_cndmask_b32 v{VF+i}, v{VF+i}, v62, s[66:67]")
        a(f"""
        s_mov_b64 exec, s[62:63]
        buffer_store_dwordx4 {vr(VF,4)}, v55, {sWS}, s89 offen sc1
        buffer_store_dwordx4 {vr(VF+4,4)}, v55, {sWS}, s89 offen offset:640 sc1
        s_mov_b64 exec, -1
        """)
        for i in range(8, 16):
            a(f"v_mul_f32 v{D0+i}, v11, v{D0+i}")
        for i in range(4):
            a(f"v_cvt_pk_bf16_f32 v{KF+i}, v{D0+8+2*i}, v{D0+9+2*i}")
        a(f"""
        buffer_store_dwordx4 {vr(KF,4)}, v54, {sWS}, s89 offen sc1
        s_waitcnt lgkmcnt(0)
        s_mov_b32 exec_hi, 0
        buffer_store_dword v63, v59, {sWS}, s89 offen sc1
        s_mov_b64 exec, s[62:63]
        ds_write_b128 v55, {vr(VF,4)} offset:{L_OWN}
        ds_write_b128 v55, {vr(VF+4,4)} offset:{L_OWN+640}
        s_mov_b64 exec, -1
        ds_write_b128 v54, {vr(KF,4)} offset:{L_OWN}
        """)
        for i in range(8):
            a(f"v_mul_f32 v{D0+i}, v12, v{D0+i}")
        for i in range(4):
            a(f"v_cvt_pk_bf16_f32 v{R.Q+i}, v{D0+2*i}, v{D0+1+2*i}")
        a(f"v_mov_b32 v{R.aV}, v56\ns_waitcnt lgkmcnt(0)")
        self.stamp(7)

    class Regs:
        S = [128, 160]
        O = 192
        Q = 208
        Qr = 212
        K = [8, 16]
        Kr = [24, 26]
        V = [28, 44]
        idx, aK, aR, aV = 214, 215, 216, 217

    def attention(self):
        a, R = self.a, self.R
        slot = lambda blk: L_OWN if blk == 0 else L_RING + ((blk - 2) % 3) * KV_B
        aK0, aR0, aV0 = 218, 219, 220

        def rd(kind, u, i=0):
            blk, dt = u >> 2, u & 3
            own = blk == 0
            base = slot(blk) - (0 if own else L_RING)
            buf = u & 1
            if kind == "R":
                return f"ds_read_b32 v{R.Kr[buf]}, v{aR0 if own else R.aR} offset:{base + KV_R + 256*dt}"
            if kind == "K":
                return f"ds_read_b128 {vr(R.K[buf]+4*i,4)}, v{aK0 if own else R.aK} offset:{base + 2048*dt + 1024*i}"
            return f"ds_read_b128 {vr(R.V[buf]+4*i,4)}, v{aV0 if own else R.aV} offset:{base + KV_V + 2560*dt + 640*i}"

        def m4(sb, kb):
            a(f"v_mfma_f32_32x32x4bf16_1k {vr(R.S[sb],32)}, {vr(R.Kr[kb],2)}, {vr(R.Qr,2)}, 0")

        def mf(sb, kb, hi):
            d = vr(R.S[sb] + 16 * hi, 16)
            a(f"v_mfma_f32_32x32x16_bf16 {d}, {vr(R.K[kb]+4*hi,4)}, {vr(R.Q,4)}, {d}")

        def sm(sb, vb, g):
            a(f"v_smfmac_f32_32x32x32_bf16 {vr(R.O,16)}, {vr(R.V[vb]+4*g,4)}, {vr(R.S[sb]+8*g,8)}, v{R.idx}")

        def call_try():
            a("s_call_b64 s[76:77], L_try")

        def try_body():
            Ln, Lr = self.lab(), self.lab()
            a(f"""
            L_try:
            .reset_waits
            s_waitcnt vmcnt(0)
            v_cmp_eq_u64 vcc, {sTag}, v[6:7]
            {Ln}:
            s_lshl_b32 s60, s62, 3
            s_lshr_b32 s60, vcc_lo, s60
            s_and_b32 s60, s60, 0xff
            s_cmp_lg_u32 s60, 0xff
            s_cbranch_scc1 {Lr}
            s_add_u32 s60, {sX}, s62
            s_add_u32 s60, s60, 1
            s_and_b32 s60, s60, 7
            s_add_u32 s60, s60, s69
            s_mul_i32 s60, s60, {KV_B}
            s_add_u32 s60, s60, {W_KV}
            s_mul_i32 s63, s62, {slot(1) - slot(2)}
            s_sub_u32 s63, {slot(1)}, s63
            """)
            for i in range(19):
                a(f"s_add_u32 m0, s63, {1024*i}")
                a(f"s_add_u32 s86, s60, {1024*i}")
                a(f"buffer_load_dwordx4 v{aK0}, {sWS}, s86 offen sc1 lds")
            a(f"""
            s_add_u32 s62, s62, 1
            s_cmp_lt_u32 s62, 2
            s_cbranch_scc1 {Ln}
            s_setpc_b64 s[76:77]
            {Lr}:
            s_mov_b64 exec, 0xffff
            buffer_load_dwordx2 v[6:7], v4, {sWS}, s61 offen sc1
            s_mov_b64 exec, -1
            s_setpc_b64 s[76:77]
            """)
        self.try_body = try_body

        def try_until(n):
            L, Ld = self.lab(), self.lab()
            a(f"""
            s_mov_b32 s96, {SPIN_MAX}
            {L}:
            s_cmp_ge_u32 s62, {n}
            s_cbranch_scc1 {Ld}
            """)
            call_try()
            a(f"""
            s_sub_u32 s96, s96, 1
            s_cmp_lg_u32 s96, 0
            s_cbranch_scc1 {L}
            """)
            self.timeout_mark(5, 228)
            a(f"{Ld}:")

        def on_wave(w, fn):
            if 'nofetch' in EXP:
                return
            L = self.lab()
            a(f"s_cmp_lg_u32 {sW}, {w}\ns_cbranch_scc1 {L}\ns_setprio 3")
            fn()
            a(f"{L}:")

        a(f"""
        v_lshlrev_b32 v{aK0}, 4, v2
        v_lshlrev_b32 v{aR0}, 2, v2
        v_mov_b32 v{aV0}, v{R.aV}
        v_add_u32 v{R.aK}, {L_RING}, v{aK0}
        v_add_u32 v{R.aR}, {L_RING}, v{aR0}
        v_add_u32 v{R.aV}, {L_RING}, v{aV0}
        v_mov_b32 v{R.idx}, 0xdddddddd
        v_mov_b32 v{R.Qr+1}, 0
        v_mov_b32 v{R.Kr[0]+1}, 0
        v_mov_b32 v{R.Kr[1]+1}, 0
        s_add_u32 s70, s69, {sX}
        s_lshl_b32 s70, s70, 3
        s_add_u32 s70, s70, {sW}
        s_lshl_b32 s70, s70, 6
        s_add_u32 s70, s70, {W_F5}
        """)
        a(f"""
        s_lshl_b32 s83, {sW}, 10
        s_and_b32 s84, {sJ}, 7
        s_mul_i32 s84, s84, {WO_B}
        s_add_u32 s84, s84, {W_WO}
        s_add_u32 s84, s84, s83
        v_mov_b32 v222, s28
        v_mov_b32 v223, s29
        v_mov_b32 v224, 0
        """)
        a("s_barrier")

        def publish():
            a(f"""
            s_waitcnt vmcnt(0)
            s_mov_b64 exec, 1
            buffer_store_dwordx2 v[222:223], v224, {sWS}, s70 offen sc1
            s_mov_b64 exec, -1
            """)

        def seg_start(u):
            for l in (rd("R", u), rd("K", u, 0), rd("K", u, 1), rd("V", u, 0), rd("V", u, 1), rd("R", u + 1), rd("K", u + 1, 0),
                      rd("V", u, 2), rd("K", u + 1, 1), rd("V", u, 3)):
                a(l)

        def seg_qk():
            a("s_waitcnt lgkmcnt(7)")
            m4(0, 0)
            a("s_nop 15\ns_nop 1")
            mf(0, 0, 0)
            mf(0, 0, 1)
            a("s_nop 10")

        def piece(src, lds, off, maxw=8):
            if 'nofetch' in EXP:
                return
            L = self.lab()
            if maxw < 8:
                a(f"s_cmp_ge_u32 {sW}, {maxw}\ns_cbranch_scc1 {L}")
            a(f"s_add_u32 m0, s83, {lds + off}\ns_add_u32 s86, {src}, {off}")
            a(f"buffer_load_dwordx4 v{aK0}, {sWS}, s86 offen sc1 {'nt' if 'kvnt' in EXP and src == 's85' else ''} lds")
            if maxw < 8:
                a(f"{L}:")

        def poll_all():
            a(f"""
            s_lshl_b32 s61, s69, 9
            s_add_u32 s61, s61, {W_F5}
            v_lshlrev_b32 v4, 6, v2
            v_min_u32 v5, 17, v2
            v_lshlrev_b32 v5, 6, v5
            s_mov_b32 s60, {W_F3 + 72*64}
            """)
            self.poll([(4, "s61", 0), (5, "s60", 0)], 60, 5)

        seg_start(0)
        L = self.lab()
        a(f"s_cmp_lt_u32 {sW}, 4\ns_cbranch_scc1 {L}")
        publish()
        a(f"s_cmp_lg_u32 {sLayer}, 0\ns_cbranch_scc1 {L}\ns_cmp_ge_u32 {sJ}, 18\ns_cbranch_scc1 {L}")
        for i in range(8):
            a(f"buffer_store_dwordx2 {vr(232+2*i,2)}, v248, {sWS}, s79 offen sc1")
            a(f"s_add_u32 s79, s79, {2*36864}")
        a(f"{L}:")
        seg_qk()
        self.stamp(8)
        for u in range(32):
            P = u & 1
            N = P ^ 1
            end = 4 if u < 4 else 32
            first = u in (0, 4)
            last = u == end - 1
            e = lambda i, j: [a(f"v_exp_f32 v{R.S[P]+k}, v{R.S[P]+k}") for k in range(i, j)]
            k2 = u + 2 < end
            v1 = u + 1 < end
            blk, dt = u >> 2, u & 3
            hook = {}
            if u == PUB_AT:
                L = self.lab()
                a(f"s_cmp_ge_u32 {sW}, 4\ns_cbranch_scc1 {L}")
                publish()
                a(f"{L}:")
            if u == LOOK_AT:
                L = self.lab()
                a(f"""
                s_cmp_lg_u32 {sW}, 0
                s_cbranch_scc1 {L}
                s_mov_b32 s62, 0
                s_lshl_b32 s61, s69, 9
                s_add_u32 s61, s61, {W_F5}
                s_add_u32 s60, {sX}, 1
                s_lshl_b32 s60, s60, 3
                v_add_u32 v4, s60, v2
                v_and_b32 v4, 63, v4
                v_lshlrev_b32 v4, 6, v4
                s_mov_b64 exec, 0xffff
                buffer_load_dwordx2 v[6:7], v4, {sWS}, s61 offen sc1
                s_mov_b64 exec, -1
                {L}:
                """)
            if u in TRY_AT:
                L = self.lab()
                a(f"s_cmp_lg_u32 {sW}, 0\ns_cbranch_scc1 {L}\ns_cmp_ge_u32 s62, 2\ns_cbranch_scc1 {L}")
                call_try()
                a(f"{L}:")
            if u == 4:
                L0, L1 = self.lab(), self.lab()
                a(f"s_cmp_lg_u32 {sW}, 0\ns_cbranch_scc1 {L1}")
                try_until(1)
                a(f"{L1}:")
                self.out_setup()
                L1 = self.lab()
                a(f"""
                s_cmp_lg_u32 {sW}, 0
                s_cbranch_scc1 {L0}
                s_cmp_lg_u32 s62, 2
                s_cbranch_scc1 {L0}
                s_waitcnt vmcnt(19)
                s_branch {L1}
                {L0}:
                s_waitcnt vmcnt(0)
                {L1}:
                s_barrier
                """)
                self.stamp(14)
                seg_start(4)
                L0, L1 = self.lab(), self.lab()
                a(f"s_cmp_lg_u32 {sW}, 0\ns_cbranch_scc1 {L0}\ns_setprio 3")
                try_until(2)
                a(f"{L0}:")
                L = self.lab()
                a(f"""
                s_cmp_lt_u32 {sW}, 4
                s_cbranch_scc1 {L}
                s_cmp_lg_u32 {sLayer}, 0
                s_cbranch_scc1 {L}
                s_cmp_ge_u32 {sJ}, 18
                s_cbranch_scc1 {L}
                s_mov_b64 exec, 1
                buffer_store_dwordx2 v[222:223], v224, {sWS}, s80 offen sc1
                s_mov_b64 exec, -1
                {L}:
                """)
                on_wave(6, poll_all)
                seg_qk()
            if 1 <= blk < 7 and dt == 2 and 'nobar' not in EXP:
                a("s_waitcnt vmcnt(0)\ns_barrier")
                if blk == 3:
                    L = self.lab()
                    a(f"s_cmp_ge_u32 {sW}, 4\ns_cbranch_scc1 {L}\nv_cmp_ne_u64 vcc, {sTag}, v[74:75]\ns_cmp_eq_u64 vcc, 0\ns_cbranch_scc1 {L}")
                    self.poll([(72, "s78", 0)], 74, 10)
                    a(f"{L}:")
                if blk + 2 < 8:
                    a(f"s_add_u32 s85, {sX}, {blk+2}\ns_and_b32 s85, s85, 7")
                    a(f"""
                    s_add_u32 s85, s85, s69
                    s_mul_i32 s85, s85, {KV_B}
                    s_add_u32 s85, s85, {W_KV}
                    s_add_u32 s85, s85, s83
                    """)
            if 1 <= blk < 7 and dt >= 2:
                src, lds, o = ("s85", slot(blk + 2), 0) if blk < 6 else ("s84", L_WO, 36 * 1024)
                if dt == 2:
                    hook[0] = lambda: piece(src, lds, o)
                    hook[1] = lambda: piece(src, lds, o + 8192)
                else:
                    hook[0] = lambda: piece(src, lds, o + 16384, 3)
                    if blk < 6:
                        hook[1] = lambda: piece("s84", L_WO, 8192 * (blk - 1), 8 if blk < 5 else 4)
            if u == 12:
                def yflag():
                    L = self.lab()
                    a(f"s_cmp_ge_u32 {sW}, 4\ns_cbranch_scc1 {L}\nbuffer_load_dwordx2 v[74:75], v72, {sWS}, s78 offen sc1\n{L}:")
                hook[0] = yflag
            if u == 16:
                def resid():
                    L = self.lab()
                    a(f"s_cmp_ge_u32 {sW}, 4\ns_cbranch_scc1 {L}\ns_add_u32 s60, s67, s68\ns_add_u32 s61, s67, {W_Y}")
                    for ft in range(5):
                        va, off = XQ(ft)
                        a(f"buffer_load_dwordx2 {vr(76+2*ft,2)}, v{va}, {sWS}, s60 offen offset:{off} sc1")
                        a(f"buffer_load_dwordx2 {vr(86+2*ft,2)}, v{va}, {sWS}, s61 offen offset:{off} sc1")
                    a(f"{L}:")
                hook[0] = resid
            H = lambda k: hook.get(k, lambda: None)()
            if 'noprio' not in EXP and u >= 4:
                a(f"s_setprio {3 - ((u + 2) & 3) if u < 26 else int(os.environ.get('TAILP', '322110')[u - 26])}")
            e(0, 2)
            if not first:
                sm(N, N, 3)
            if k2:
                a(rd("R", u + 2))
            if HP[0] == 0:
                H(0)
            e(2, 5)
            a(f"s_waitcnt lgkmcnt({2 if last else 3 + (1 if k2 else 0)})")
            if not last:
                m4(N, N)
            if v1:
                a(rd("V", u + 1, 0))
            if HP[0] == 1:
                H(0)
            e(5, 13)
            sm(P, P, 0)
            if v1:
                a(rd("V", u + 1, 1))
            e(13, 18)
            sm(P, P, 1)
            if k2:
                a(rd("K", u + 2, 0))
            e(18, 22)
            if not last:
                mf(N, N, 0)
            if v1:
                a(rd("V", u + 1, 2))
            if HP[1] == 3:
                H(1)
            e(22, 26)
            a(f"s_waitcnt lgkmcnt({(2 if k2 else 0) + (3 if v1 else 0)})")
            sm(P, P, 2)
            if k2:
                a(rd("K", u + 2, 1))
            e(26, 29)
            if not last:
                mf(N, N, 1)
            if v1:
                a(rd("V", u + 1, 3))
            if HP[1] == 5:
                H(1)
            if HP[0] == 5:
                H(0)
            e(29, 32)
            if last:
                a("s_nop 1")
                sm(P, P, 3)
        self.stamp(9)
        a("s_setprio 0")
        O = R.O
        a(f"""
        s_add_u32 s60, s71, {sJ}
        s_lshl_b32 s60, s60, 6
        s_add_u32 s70, s60, {W_F6}
        s_lshl_b32 s61, s71, 6
        s_add_u32 s83, s61, {W_F6}
        s_mov_b32 s72, 0
        L_att_norm:
        s_nop 5
        v_mov_b32 v10, v{O+10}
        v_mov_b32 v11, v{O+10}
        v_add_f32 v12, abs(v{O}), abs(v{O+1})
        v_add_f32 v13, abs(v{O+2}), abs(v{O+3})
        v_permlane32_swap_b32 v10, v11
        v_add_f32 v12, v12, abs(v{O+4})
        v_add_f32 v13, v13, abs(v{O+5})
        v_add_f32 v12, v12, abs(v{O+6})
        v_add_f32 v13, v13, abs(v{O+7})
        v_add_f32 v12, v12, abs(v{O+8})
        v_add_f32 v13, v13, abs(v{O+9})
        v_add_f32 v12, v12, v13
        v_rcp_f32 v11, v10
        v_cmp_le_f32 vcc, {f32hex(2.0**-100)}, v10
        v_cmp_ge_f32 s[94:95], {"s73"}, v10
        v_cmp_ge_f32 s[100:101], {"s74"}, v12
        s_nop 0
        s_and_b64 vcc, vcc, s[94:95]
        s_and_b64 vcc, vcc, s[100:101]
        s_cmp_eq_u64 vcc, exec
        s_cbranch_scc1 L_att_ok
        s_cmp_eq_u32 s72, 0
        s_cbranch_scc1 L_att_fallback
        L_att_ok:
        """)
        for i in range(10):
            a(f"v_mul_f32 v{O+i}, v11, v{O+i}")
        for i in range(5):
            a(f"v_cvt_pk_bf16_f32 v{12+i}, v{O+2*i}, v{O+2*i+1}")
        a(f"""
        buffer_store_dwordx4 v[12:15], v225, {sWS}, s81 offen sc1
        s_mov_b32 exec_hi, 0
        buffer_store_dword v16, v226, {sWS}, s82 offen sc1
        s_mov_b64 exec, -1
        s_cmp_lg_u32 {sW}, 0
        s_waitcnt vmcnt(0)
        s_barrier
        """)
        self.warm_o = f"""
        buffer_load_dwordx4 v[8:11], v225, {sWS}, s81 offen sc1
        buffer_load_dword v12, v226, {sWS}, s82 offen sc1
        """ if 'warmo' in EXP else ""

    def out_setup(self):
        a = self.a
        L = self.lab()
        a(f"""
        v_lshrrev_b32 v61, 5, v2
        v_and_b32 v60, 15, v2
        v_lshlrev_b32 v226, 1, v60
        v_bfe_u32 v225, v2, 4, 1
        v_add_u32 v226, v226, v225         ; tau(n)
        s_lshl_b32 s60, {sT}, 5
        v_add_u32 v226, s60, v226
        v_lshlrev_b32 v225, 4, v226
        v_lshl_add_u32 v225, v61, 12, v225
        v_lshlrev_b32 v226, 2, v226
        s_lshl_b32 s60, {sLayer}, 3
        s_add_u32 s60, s60, {sX}
        s_lshl_b32 s71, s60, 5             ; (layer*8+X)*32
        s_add_u32 s60, s71, {sJ}
        s_lshl_b32 s81, s60, 13
        s_add_u32 s81, s81, {W_OM}
        s_lshl_b32 s82, s60, 10
        s_add_u32 s82, s82, {W_OR}
        s_cmp_ge_u32 {sW}, 4
        s_cbranch_scc1 {L}
        v_lshrrev_b32 v61, 4, v2
        s_lshr_b32 s64, {sJ}, 3            ; sub
        s_and_b32 s65, {sJ}, 7             ; slice
        s_lshl_b32 s66, s64, 6
        s_lshl_b32 s67, {sT4}, 4
        s_add_u32 s66, s66, s67
        v_add_u32 v62, s66, v60
        v_lshlrev_b32 v64, 8, v61
        v_lshl_add_u32 v64, v60, 3, v64    ; g*256 + tok*8
        v_lshl_add_u32 v63, v61, 8, v64    ; g*512 + tok*8
        v_add_u32 v64, 4096, v64
        v_mov_b32 v65, 0x7fffffff
        v_cmp_gt_u32 vcc, 2, v61
        s_mul_i32 s60, s65, {18*256}
        s_lshl_b32 s63, {sX}, 3
        s_lshr_b32 s67, s66, 5
        s_add_u32 s63, s63, s67
        s_mul_i32 s63, s63, 36864
        s_add_u32 s60, s60, s63
        s_and_b32 s63, s66, 16
        s_lshl_b32 s63, s63, 3
        s_add_u32 s67, s60, s63
        v_cndmask_b32 v64, v65, v64, vcc
        v_lshrrev_b32 v65, 1, v61
        v_lshlrev_b32 v65, 13, v65
        v_and_b32 v66, 1, v61
        v_lshl_add_u32 v65, v66, 12, v65
        v_lshl_add_u32 v65, v62, 4, v65    ; o main
        v_lshlrev_b32 v66, 12, v61
        v_lshl_add_u32 v66, v62, 2, v66    ; o rem
        v_lshlrev_b32 v67, 4, v2           ; W ft<4
        v_and_b32 v68, 7, v2
        v_lshlrev_b32 v68, 4, v68
        v_lshl_add_u32 v68, v61, 7, v68
        v_add_u32 v68, 4096, v68           ; W ft==4
        v_add_u32 v69, {9*4608}, v67
        v_add_u32 v70, {9*4608}, v68
        v_and_b32 v71, 31, v2
        v_lshlrev_b32 v71, 6, v71          ; flags
        v_min_u32 v72, 17, v2
        v_lshlrev_b32 v72, 8, v72          ; y flags
        s_mul_i32 s78, s65, {18*256}
        s_lshr_b32 s63, {sX}, 1
        s_lshl_b32 s63, s63, 6
        s_add_u32 s78, s78, s63
        s_add_u32 s78, s78, {W_F10}
        {L}:
        """)

    def next_layer(self):
        self.a(f"s_mov_b32 {sLayer}, 1\ns_mov_b32 s68, {W_X3}\ns_mov_b32 s87, 0")
        self.qkv_setup()

    def fetch_wo(self, first, n, va, step=1):
        Ll = self.lab()
        self.a(f"""
        s_and_b32 s60, {sJ}, 7
        s_mul_i32 s60, s60, {WO_B}
        s_add_u32 s60, s60, {W_WO + 1024*first}
        s_add_u32 s61, s60, {1024*n}
        s_mov_b32 m0, {L_WO + 1024*first}
        """)
        if step > 1:
            self.a("s_lshl_b32 s62, s62, 10\ns_add_u32 s60, s60, s62\ns_add_u32 m0, m0, s62\ns_nop 0")
        else:
            self.a("s_nop 0")
        self.a(f"""
        {Ll}:
        buffer_load_dwordx4 v{va}, {sWS}, s60 offen sc1 lds
        s_add_u32 m0, m0, {1024*step}
        s_add_u32 s60, s60, {1024*step}
        s_cmp_lt_u32 s60, s61
        s_cbranch_scc1 {Ll}
        """)

    def fallback(self):
        a, R = self.a, self.R
        S0 = R.S[0]
        a("L_att_fallback:")
        a(".reset_waits")
        a(f"""
        s_mov_b32 s72, 1
        s_mul_i32 s75, s69, {KV_B}
        s_add_u32 s75, s75, {W_KV}
        v_mov_b32 v221, 0xff7fffff
        s_waitcnt vmcnt(0)
        """)
        for p in range(2):
            Lb = self.lab("Lfb")
            a(f"s_mov_b32 s76, 0\n{Lb}:")
            a(f"""
            s_lshr_b32 s77, s76, 2
            s_and_b32 s78, s76, 3
            s_mul_i32 s77, s77, {KV_B}
            s_add_u32 s77, s77, s75
            s_lshl_b32 s79, s78, 11
            s_add_u32 s79, s79, s77
            buffer_load_dwordx4 {vr(R.K[0]+8,4)}, v218, {sWS}, s79 offen sc1
            buffer_load_dwordx4 {vr(R.K[0]+12,4)}, v218, {sWS}, s79 offen offset:1024 sc1
            s_lshl_b32 s79, s78, 8
            s_add_u32 s79, s79, s77
            s_add_u32 s79, s79, {KV_R}
            buffer_load_dword v{R.Kr[0]}, v219, {sWS}, s79 offen sc1
            """)
            if p:
                a(f"s_mul_i32 s79, s78, 2560\ns_add_u32 s79, s79, s77\ns_add_u32 s79, s79, {KV_V}")
                for i in range(4):
                    a(f"buffer_load_dwordx4 {vr(R.V[0]+4*i,4)}, v220, {sWS}, s79 offen offset:{640*i} sc1")
            a(f"""
            s_waitcnt vmcnt(0)
            v_mfma_f32_32x32x4bf16_1k {vr(S0,32)}, {vr(R.Kr[0],2)}, {vr(R.Qr,2)}, 0
            s_nop 15
            s_nop 3
            v_mfma_f32_32x32x16_bf16 {vr(S0,16)}, {vr(R.K[0]+8,4)}, {vr(R.Q,4)}, {vr(S0,16)}
            v_mfma_f32_32x32x16_bf16 {vr(S0+16,16)}, {vr(R.K[0]+12,4)}, {vr(R.Q,4)}, {vr(S0+16,16)}
            s_nop 15
            """)
            if p == 0:
                for i in range(16):
                    a(f"v_max3_f32 v221, v221, v{S0+2*i}, v{S0+2*i+1}")
            else:
                for i in range(32):
                    a(f"v_sub_f32 v{S0+i}, v{S0+i}, v221")
                for i in range(32):
                    a(f"v_exp_f32 v{S0+i}, v{S0+i}")
                a("s_nop 1")
                for g in range(4):
                    a(f"v_smfmac_f32_32x32x32_bf16 {vr(R.O,16)}, {vr(R.V[0]+4*g,4)}, {vr(S0+8*g,8)}, v{R.idx}")
            a(f"s_add_u32 s76, s76, 1\ns_cmp_lt_u32 s76, 32\ns_cbranch_scc1 {Lb}")
            if p == 0:
                a("v_mov_b32 v227, v221\ns_nop 1\nv_permlane32_swap_b32 v221, v227\ns_nop 1\nv_max_f32 v221, v221, v227")
                for i in range(16):
                    a(f"v_mov_b32 v{R.O+i}, 0")
        a("s_nop 15\ns_branch L_att_norm")

    def outproj(self):
        a = self.a
        OF, ACC, XR, YR = 128, 16, 76, 86
        WF = [36, 200, 220]
        a(f"""
        s_cbranch_scc1 L_op_nf
        s_mov_b64 exec, 1
        buffer_store_dwordx2 v[222:223], v224, {sWS}, s70 offen sc1
        s_mov_b64 exec, -1
        """)
        self.stamp(10)
        a(f"""
        L_op_nf:
        {self.warm_o}
        s_cmp_ge_u32 {sW}, 4
        s_cbranch_scc1 L_op_help
        s_mov_b32 s63, 0xffff0000
        """)
        XF = 96
        YF = [116 + i for i in range(12)] + [240 + i for i in range(8)]
        for i in range(10):
            a(f"v_lshlrev_b32 v{XF+2*i}, 16, v{XR+i}")
            a(f"v_and_b32 v{XF+2*i+1}, s63, v{XR+i}")
            a(f"v_lshlrev_b32 v{YF[2*i]}, 16, v{YR+i}")
            a(f"v_and_b32 v{YF[2*i+1]}, s63, v{YR+i}")
        self.srd(sA, "out", NB)
        a(f"""
        s_lshl_b32 s60, {sX}, 8
        v_add_u32 v72, s60, v62
        v_mul_u32_u24 v72, 1152, v72
        v_lshl_add_u32 v73, v61, 3, v72
        v_lshl_add_u32 v72, v61, 4, v72
        v_mov_b32 v4, 0x7fffffff
        v_cmp_gt_u32 vcc, 2, v61
        s_mul_i32 s78, s65, 144
        s_nop 0
        v_cndmask_b32 v73, v4, v73, vcc
        """)
        L = self.lab()
        a(f"s_cmp_lg_u32 {sW}, 0\ns_cbranch_scc1 {L}")
        self.poll2([(71, "s83", 0)], 56, 6)
        a(f"""
        {L}:
        s_barrier
        s_lshl_b32 s60, s71, 13
        s_add_u32 s60, s60, {W_OM}
        s_lshl_b32 s61, s71, 10
        s_add_u32 s61, s61, {W_OR}
        """)
        self.stamp(11)
        for s in range(16):
            a(f"buffer_load_dwordx4 {vr(OF+4*s,4)}, v65, {sWS}, s60 offen sc1")
            if s < 15:
                a("s_add_u32 s60, s60, 0x4000")
        for s in range(2):
            for i in range(4):
                a(f"buffer_load_dword v{OF+64+4*s+i}, v66, {sWS}, s61 offen offset:{1024*i} sc1")
            if s == 0:
                a("s_add_u32 s61, s61, 0x4000")

        def rdW(s):
            hi = s >= 9
            out = []
            for ft in range(5):
                va = (69 if hi else 67) if ft < 4 else (70 if hi else 68)
                off = L_WO + 4608 * (s - 9 * hi) + (1024 * ft if ft < 4 else 0)
                out.append(f"ds_read_b128 {vr(WF[s%3]+4*ft,4)}, v{va} offset:{off}")
            return out
        for l in rdW(0) + rdW(1):
            a(l)
        for s in range(18):
            nxt = rdW(s + 2) if s < 16 else []
            a(f"s_waitcnt vmcnt({23-s if s < 16 else (4 if s == 16 else 0)}) lgkmcnt({5 if s < 17 else 0})")
            for ft in range(5):
                d = vr(ACC + 4 * ft, 4)
                a(f"v_mfma_f32_16x16x32_bf16 {d}, {vr(WF[s%3]+4*ft,4)}, {vr(OF+4*s,4)}, {d if s else vr(XF+4*ft,4)}")
                if nxt:
                    a(nxt[ft])
        self.stamp(12)
        XF = ACC
        a(f"""
        s_lshl_b32 s60, {sX}, 2
        s_add_u32 s60, s60, s64
        s_lshl_b32 s60, s60, 13
        s_add_u32 s60, s60, {W_G7}
        s_lshl_b32 s61, {sT4}, 8
        s_add_u32 s60, s60, s61
        s_lshl_b32 s61, s65, 10
        s_add_u32 s61, s61, s60
        v_lshlrev_b32 v4, 4, v60
        v_cmp_gt_u32 vcc, 2, v61
        v_mov_b32 v10, s28
        v_mov_b32 v11, s29
        s_cmp_lg_u32 {sLayer}, 0
        s_cbranch_scc1 L_op_final
        """)
        a(f"v_pk_add_f32 v[12:13], {vr(XF,2)}, {vr(XF+2,2)}\nv_pk_mul_f32 v[14:15], {vr(XF,2)}, {vr(XF,2)}")
        a(f"v_pk_fma_f32 v[14:15], {vr(XF+2,2)}, {vr(XF+2,2)}, v[14:15]")
        for i in range(2, 10):
            if i == 8:
                for j in range(16, 20):
                    a(f"v_cndmask_b32 v{XF+j}, 0, v{XF+j}, vcc")
            a(f"v_pk_add_f32 v[12:13], v[12:13], {vr(XF+2*i,2)}")
            a(f"v_pk_fma_f32 v[14:15], {vr(XF+2*i,2)}, {vr(XF+2*i,2)}, v[14:15]")
        a("v_add_f32 v8, v12, v13\nv_add_f32 v9, v14, v15")

        def xsum():
            for op in ("v_permlane16_swap_b32", "v_permlane32_swap_b32"):
                a(f"""
                v_mov_b32 v12, v8
                v_mov_b32 v13, v9
                s_nop 1
                {op} v8, v12
                {op} v9, v13
                s_nop 0
                v_add_f32 v8, v8, v12
                v_add_f32 v9, v9, v13
                """)
        xsum()
        a(f"""
        s_mov_b64 exec, 0xffff
        buffer_store_dwordx4 v[8:11], v4, {sWS}, s61 offen sc1
        s_mov_b64 exec, -1
        v_lshl_add_u32 v4, v61, 10, v4
        s_add_u32 s61, s60, 4096
        """)
        if 'gnoack' not in EXP:
            a("s_waitcnt vmcnt(0)")
        if os.environ.get("GDELAY"):
            a(f"s_sleep {os.environ['GDELAY']}")
        Ld0, Ld1 = self.poll2([(4, "s60", 0), (4, "s61", 0)], 136, 7, width=4)
        a(f"""
        {Ld0}:
        v_add_f32 v8, v136, v140
        v_add_f32 v9, v137, v141
        """)
        xsum()
        self.stats(8, 9, 12, 14, 10)
        a("v_mov_b32 v13, v12\nv_mov_b32 v15, v14")
        a(f"s_add_u32 s60, s67, {W_X3}")
        for ft in range(5):
            for p in range(2):
                x, y, t = XF + 4 * ft + 2 * p, YF[4 * ft + 2 * p], 96 + 4 * ft + 2 * p
                a(f"v_pk_fma_f32 {vr(t,2)}, {vr(x,2)}, v[12:13], v[14:15]")
                a(f"v_pk_fma_f32 {vr(x,2)}, {vr(t,2)}, {vr(y,2)}, {vr(x,2)}")
            a(f"v_cvt_pk_bf16_f32 v{76+2*ft}, v{XF+4*ft}, v{XF+4*ft+1}")
            a(f"v_cvt_pk_bf16_f32 v{77+2*ft}, v{XF+4*ft+2}, v{XF+4*ft+3}")
            a(f"buffer_store_dwordx2 {vr(76+2*ft,2)}, v{XQ(ft)[0]}, {sWS}, s60 offen offset:{XQ(ft)[1]} sc1")
        self.next_layer()
        L = self.lab()
        a(f"""
        s_lshl_b32 s60, {sX}, 11
        s_add_u32 s60, s60, {W_F8}
        s_lshl_b32 s61, {sJ}, 6
        s_add_u32 s61, s61, s60
        v_lshlrev_b32 v8, 6, v6
        v_mov_b32 v10, s28
        v_mov_b32 v11, s29
        v_mov_b32 v12, 0
        v_mov_b32 v13, {L_CNT}
        v_mov_b32 v14, 1
        s_add_u32 s62, s67, {W_X3}
        s_waitcnt vmcnt(0)
        s_mov_b64 exec, 1
        ds_add_rtn_u32 v14, v13, v14
        s_waitcnt lgkmcnt(0)
        v_readfirstlane_b32 s3, v14
        s_mov_b64 exec, -1
        s_cmp_lg_u32 s3, 3
        s_cbranch_scc1 {L}w
        s_mov_b64 exec, 1
        buffer_store_dwordx2 v[10:11], v12, {sWS}, s61 offen sc1
        s_mov_b64 exec, -1
        {L}w:
        """)
        if 'warmx' in EXP:
            for ft in range(5):
                a(f"buffer_load_dwordx2 v[240:241], v{XQ(ft)[0]}, {sWS}, s62 offen offset:{XQ(ft)[1]} sc1")
        a(f"s_cbranch_scc1 {L}")
        self.poll2([(8, "s60", 0)], 220, 8)
        a(f"{L}:")
        a("s_branch L_next_layer")

        a("L_op_help:")
        a(".reset_waits")
        a(f"s_sub_u32 s62, {sW}, 4\ns_mov_b32 s3, 0\nv_mov_b32 v4, {L_CNT}\nv_mov_b32 v5, 0\nds_write_b32 v4, v5")
        self.fetch_wo(55, 26, 218, step=4)
        a("s_waitcnt vmcnt(0) lgkmcnt(0)\ns_barrier")
        a(f"s_cmp_lg_u32 {sLayer}, 0\ns_cbranch_scc1 L_end")
        self.next_layer()
        a("L_next_layer:")
        if self.stop == "gate2":
            a("s_branch L_end")
        a("s_branch L_qkv")

        a("L_op_final:")
        a(".reset_waits")
        for ft in range(5):
            a(f"v_cvt_pk_bf16_f32 v{76+2*ft}, v{XF+4*ft}, v{XF+4*ft+1}")
            a(f"v_cvt_pk_bf16_f32 v{77+2*ft}, v{XF+4*ft+2}, v{XF+4*ft+3}")
            if ft in (1, 3):
                a(f"buffer_store_dwordx4 {vr(74+2*ft,4)}, v72, {sA}, s78 offen offset:{32*(ft-1)}")
        a(f"buffer_store_dwordx2 v[84:85], v73, {sA}, s78 offen offset:128")
        a(f"""
        s_or_b32 s60, s2, {sW}
        s_cmp_lg_u32 s60, 0
        s_cbranch_scc1 L_end
        s_mov_b32 s60, {W_NONCE}
        """)
        self.flag_store("s60", 10)

    def build(self):
        a = self.a
        self.R = G.Regs
        self.prologue()
        self.prep()
        self.finish_if("prep")
        self.conv()
        self.relayout()
        self.colsum()
        self.finish_if("conv")
        a(f"s_mov_b32 s73, {f32hex(2.0**120)}\ns_mov_b32 s74, {f32hex(2.0**120)}")
        self.qkv()
        if self.stop == "qkv":
            a("s_waitcnt vmcnt(0)\ns_branch L_end")
        self.attention()
        self.finish_if("attn")
        self.outproj()
        a("L_end:")
        if self.ts:
            self.stamp(15)
            a(f"""
            s_lshl_b32 s60, s2, 3
            s_add_u32 s60, s60, {sW}
            s_lshl_b32 s60, s60, 8
            s_add_u32 s60, s60, {W_TS}
            v_lshlrev_b32 v4, 2, v2
            buffer_store_dword v255, v4, {sWS}, s60 offen
            """)
            if 'dbgts' in EXP:
                wg = int(os.environ.get("DBGWG", 0))
                a(f"""
                s_cmp_lg_u32 s2, {wg}
                s_cbranch_scc1 L_nodbg
                s_cmp_lg_u32 {sW}, 0
                s_cbranch_scc1 L_nodbg
                v_readlane_b32 s60, v255, 0
                s_nop 3
                v_subrev_u32 v5, s60, v255
                """)
                for n, i in enumerate((16, 1, 2, 3, 4, 5, 7, 8, 9, 11, 13, 21, 24, 25, 27, 31)):
                    a(f"v_readlane_b32 s61, v5, {i}\ns_nop 3\nv_writelane_b32 v6, s61, {n}")
                a(f"s_mov_b64 exec, 0xffff\nglobal_store_dword v4, v6, s[{PTR['dbg']}:{PTR['dbg']+1}]\nL_nodbg:")
        pr = os.environ.get("PROBE")
        if pr:
            i, j, mul, wg = map(int, pr.split(","))
            a(f"""
            s_cmp_lg_u32 s2, {wg}
            s_cbranch_scc1 L_noprobe
            s_cmp_lg_u32 {sW}, 0
            s_cbranch_scc1 L_noprobe
            v_readlane_b32 s60, v255, {i}
            v_readlane_b32 s61, v255, {j}
            v_readlane_b32 s62, v255, 31
            s_nop 3
            s_sub_u32 s61, s61, s60
            s_mul_i32 s61, s61, {mul}
            L_probe:
            s_memrealtime s[64:65]
            s_waitcnt lgkmcnt(0)
            s_sub_u32 s64, s64, s62
            s_cmp_lt_u32 s64, s61
            s_cbranch_scc1 L_probe
            L_noprobe:
            """)
        a("s_waitcnt vmcnt(0)")
        a("L_exit:")
        a("s_endpgm")
        self.fallback()
        self.try_body()
        for f in self.tail_blocks:
            f()
        a("L_code_end:")
        lines, added = fix_hazards(a.lines, verbose=True, tag="k")
        errs = check_waits(lines, "k")
        for e in errs:
            print(e)
        lines = [l for l in lines if not l.startswith(".reset_waits")]
        a.lines = lines
        body = a.text().replace("CODE_AFTER", "(L_code_end-L_pc_here)")
        ref = open(f"cdna_kernels/{NAME}.s.ref").read()
        head = ref[:ref.index("; Override launch")]
        txt = head + DOC + f"""; @launch grid=(256,1,1) block=(512,1,1) lds={LDS_BYTES}
.amdgcn_target "amdgcn-amd-amdhsa--gfx950"
.text
.p2align 12
.globl {NAME}_kernel
.p2align 8
.type {NAME}_kernel,@function
{NAME}_kernel:
""" + body + f""".section .rodata,"a"
.p2align 6
.amdhsa_kernel {NAME}_kernel
  .amdhsa_next_free_vgpr 256
  .amdhsa_next_free_sgpr 102
  .amdhsa_accum_offset 256
  .amdhsa_group_segment_fixed_size 0
  .amdhsa_kernarg_size 96
  .amdhsa_user_sgpr_count 2
  .amdhsa_user_sgpr_kernarg_segment_ptr 1
  .amdhsa_system_sgpr_workgroup_id_x 1
.end_amdhsa_kernel
"""
        return txt, errs


if __name__ == "__main__":
    out = sys.argv[1]
    stop = None
    ts = False
    for x in sys.argv[2:]:
        if x == "ts":
            ts = True
        elif x == "ts2":
            ts = 2
        else:
            stop = x
    txt, errs = G(stop, ts).build()
    open(out, "w").write(txt)
    print("written", out, len(txt), "bytes;", len(errs), "wait errors")
```
